```python
import torch

def _softmax(x, axis=-1):
    return torch.softmax(x, dim=axis)
def _gelu(x):
    return torch.nn.functional.gelu(x, approximate="tanh")
def _silu(x):
    return torch.nn.functional.silu(x)
def _sigmoid(x):
    return torch.sigmoid(x)
def _layernorm(x, axis=-1, eps=1e-5):
    m = x.mean(dim=axis, keepdim=True)
    v = x.var(dim=axis, keepdim=True, unbiased=False)
    return (x - m) / torch.sqrt(v + eps)
def _scatter_add(tgt, idx, src, axis=0):
    return tgt.clone().index_add_(axis, idx, src)
def _segment_sum(src, seg, n):
    out = torch.zeros((n,) + src.shape[1:], dtype=src.dtype)
    return out.index_add_(0, seg, src)
def _pad(x, pw):
    flat = tuple(v for pair in reversed(pw) for v in pair)
    return torch.nn.functional.pad(x, flat)

kernel_name = 'gated_mix__grouped_kv_mqa__dense_activation_silu__prompt'

def setup_inputs():

    _w = (lambda a: (lambda t: t.to(torch.bfloat16) if t.is_floating_point() else t)(torch.as_tensor(a)))
    def _A_setup():
        B, S, D, H = 1, 2048, 512, 32
        Dh = D // H
        return {
            "x": _w((lambda *s: torch.randn(*s, dtype=torch.bfloat16) * 0.05)(B, S, D)),
            "wq": _w((lambda *s: torch.randn(*s, dtype=torch.bfloat16) * 0.8)(D, H * Dh)),
            "wk": _w((lambda *s: torch.randn(*s, dtype=torch.bfloat16) * 0.8)(D, Dh)),
            "wv": _w((lambda *s: torch.randn(*s, dtype=torch.bfloat16) * 0.05)(D, Dh)),
            "wo": _w((lambda *s: torch.randn(*s, dtype=torch.bfloat16) * 0.05)(H * Dh, D)),
        }
    _A_in = _A_setup()

    def _B_setup():
        B, S, D, F = 1, 2048, 512, 1376
        return {
            "x": _w((lambda *s: torch.randn(*s, dtype=torch.bfloat16) * 0.05)(B, S, D)),
            "w1": _w((lambda *s: torch.randn(*s, dtype=torch.bfloat16) * 3.2)(D, F) * (D ** -0.5)),
            "w2": _w((lambda *s: torch.randn(*s, dtype=torch.bfloat16) * 0.1)(F, D) * (F ** -0.5)),
        }
    _B_in = _B_setup()

    return {
        "A_x": _A_in["x"],
        "A_wq": _A_in["wq"],
        "A_wk": _A_in["wk"],
        "A_wv": _A_in["wv"],
        "A_wo": _A_in["wo"],
        "B_x": _B_in["x"],
        "B_w1": _B_in["w1"],
        "B_w2": _B_in["w2"],
        "gate_w": _w((lambda *s: torch.randn(*s, dtype=torch.bfloat16) * 0.05)(512) * 16.0),
    }

def reference(A_x, A_wq, A_wk, A_wv, A_wo, B_x, B_w1, B_w2, gate_w):
    def _A_ref(x, wq, wk, wv, wo):
        B, S, D = x.shape
        H = 32
        Dh = D // H
        q = (lambda x, *d: x.permute(*d))((x @ wq).reshape(B, S, H, Dh), 0, 2, 1, 3)
        k = x @ wk
        v = x @ wv
        scores = torch.einsum("bhqd,bkd->bhqk", q, k) * (Dh ** -0.5)
        p = _softmax(scores, axis=-1)
        o = torch.einsum("bhqk,bkd->bhqd", p, v)
        return (lambda x, *d: x.permute(*d))(o, 0, 2, 1, 3).reshape(B, S, H * Dh) @ wo

    def _B_ref(x, w1, w2):
        h = torch.einsum("bsd,df->bsf", x, w1)
        h = _silu(h)
        out = torch.einsum("bsf,fd->bsd", h, w2)
        return out

    x = A_x
    g = _sigmoid((x * gate_w).sum(-1, keepdims=True))
    a = _A_ref(x, A_wq, A_wk, A_wv, A_wo)
    b = _B_ref(x, B_w1, B_w2)
    return g * a + (1 - g) * b
```

```python
import sys, struct

NAME = "gated_mix__grouped_kv_mqa__dense_activation_silu__prompt"
STAMPS = "--stamps" in sys.argv
OUT = [a for a in sys.argv[1:] if not a.startswith("--")]
OUT = OUT[0] if OUT else f"cdna_kernels/{NAME}.s"

def f2u(x): return struct.unpack("<I", struct.pack("<f", x))[0]
LOG2E = 1.4426950408889634

TILE = 2080
KVBYTES = 64 * TILE
HALF = 32 * TILE
L_TB = KVBYTES
TBSZ = 2304
L_Q = L_TB + 8 * TBSZ
L_G = L_Q + 8192
L_CNT = L_G + 256
LDS_TOTAL = L_CNT + 256
WS_KV = 0
WS_H = 0x40000
WS_O = 0x600000
WS_ST = 0x900000
SPIN = 1 << 17

L = []
def e(s): L.append("    " + s)
def lab(s): L.append(s + ":")
def cm(s): L.append("    ; " + s)
def vr(a, n=4): return f"v[{a}:{a+n-1}]"
def sr(a, n=2): return f"s[{a}:{a+n-1}]"
nstamp = [0]
def stamp(i):
    if STAMPS:
        e(f"s_memtime s[{72+2*i}:{73+2*i}]")

sX, sWQ, sWK, sWV, sWO, sW1, sW2, sGW, sOUT, sDBG, sWS = 4, 6, 8, 10, 12, 16, 18, 20, 22, 24, 26
sQB, sHG, sWAVE = 28, 29, 30
sB0, sB1, sADV, sSTR, sROLE, sHT = 34, 36, 38, 40, 41, 42
sKV, sH, sO = 44, 46, 48
sT, sT2, sT3 = 50, 52, 54
sC = 56
sSPIN, sI, sBASE, sRETRY = 60, 61, 62, 63
sTB = 64
sP = 66
sP2 = 68

def add64(dst, src, off_s=None, imm=None):
    o = f"s{off_s}" if off_s is not None else hex(imm)
    e(f"s_add_u32 s{dst}, s{src}, {o}")
    e(f"s_addc_u32 s{dst+1}, s{src+1}, 0")

def mfma(d, a, b, c):
    cs = "0" if c is None else vr(c, 16)
    e(f"v_mfma_f32_32x32x16_bf16 {vr(d,16)}, {vr(a)}, {vr(b)}, {cs}")

def poll_dbg(name, vaddr, vtmp, want=None):
    e(f"s_mov_b32 s{sSPIN}, {SPIN}")
    lab(f"L_{name}")
    e(f"global_load_dword v{vtmp}, v{vaddr}, {sr(sDBG)} sc1")
    e("s_waitcnt vmcnt(0)")
    if want is None:
        e(f"v_cmp_eq_u32 vcc, 0, v{vtmp}")
    else:
        e(f"v_cmp_ne_u32 vcc, {want}, v{vtmp}")
    e(f"s_cbranch_vccz L_{name}_ok")
    e("s_sleep 2")
    e(f"s_sub_u32 s{sSPIN}, s{sSPIN}, 1")
    e(f"s_cmp_lg_u32 s{sSPIN}, 0")
    e(f"s_cbranch_scc1 L_{name}")
    lab(f"L_{name}_ok")

def dma_pieces(first_s, n, voff, lds_base, g_base):
    for j in range(0, n, 4):
        e(f"s_add_u32 s{sT}, s{first_s}, {lds_base + j*1024}")
        e(f"s_mov_b32 m0, s{sT}")
        e(f"s_add_u32 s{sT}, s{first_s}, {g_base + j*1024}")
        add64(sP, sKV, off_s=sT)
        for i in range(4):
            e(f"global_load_lds_dwordx4 v{voff}, {sr(sP)} offset:{i*1024} sc1")

def dma_one(voff, off):
    e(f"s_mov_b32 m0, {off}")
    add64(sP, sKV, imm=off)
    e(f"global_load_lds_dwordx4 v{voff}, {sr(sP)} sc1")

vL, vL16 = 1, 2
e("s_cmp_ge_u32 s2, 256")
e("s_cbranch_scc1 L_end")
e("s_load_dwordx16 s[4:19], s[0:1], 0")
e("s_load_dwordx8 s[20:27], s[0:1], 64")
if STAMPS:
    e("s_memrealtime s[70:71]")
stamp(0)
e(f"s_getpc_b64 {sr(sT)}")
lab("L_pc")
e("v_lshlrev_b32 v3, 6, v0")
e("v_min_u32 v3, L_code_end-L_pc-4, v3")
e(f"global_load_dword v4, v3, {sr(sT)}")
e(f"v_and_b32 v{vL}, 63, v0")
e("v_lshrrev_b32 v5, 6, v0")
e(f"v_lshlrev_b32 v{vL16}, 4, v{vL}")
e(f"v_readfirstlane_b32 s{sWAVE}, v5")
e(f"s_and_b32 s{sT}, s2, 7")
e(f"s_lshl_b32 s{sT}, s{sT}, 2")
e(f"s_bfe_u32 s{sT2}, s2, 0x20003")
e(f"s_add_u32 s{sQB}, s{sT}, s{sT2}")
e(f"s_lshr_b32 s{sHG}, s2, 5")
e(f"s_mul_i32 s{sTB}, s{sWAVE}, {TBSZ}")
e(f"s_add_u32 s{sTB}, s{sTB}, {L_TB}")
e(f"s_and_b32 s{sT}, s{sWAVE}, 1")
e(f"s_lshl_b32 s{sT}, s{sT}, 7")
e(f"s_lshl_b32 s{sT2}, s{sWAVE}, 13")
e(f"s_or_b32 s{sT}, s{sT}, s{sT2}")
e(f"v_xor_b32 v16, s{sT}, v{vL16}")
for i in range(1, 8):
    e(f"v_xor_b32 v{16+i}, {(i << 4) | (4096 if i >= 4 else 0)}, v16")
cm("role: 0=Q 1=KV 2=H 3=idle")
e(f"s_mul_i32 s{sHT}, s{sHG}, 6")
e(f"s_add_u32 s{sHT}, s{sHT}, s{sWAVE}")
e(f"s_sub_u32 s{sHT}, s{sHT}, 7")
e(f"s_mov_b32 s{sROLE}, 2")
e(f"s_cmp_lg_u32 s{sHG}, 0")
e("s_cbranch_scc1 L_role1")
e(f"s_mov_b32 s{sHT}, 0")
e(f"s_cmp_eq_u32 s{sWAVE}, 2")
e(f"s_cselect_b32 s{sROLE}, 1, s{sROLE}")
e(f"s_cmp_ge_u32 s{sWAVE}, 4")
e(f"s_cselect_b32 s{sROLE}, 3, s{sROLE}")
lab("L_role1")
e(f"s_cmp_lt_u32 s{sWAVE}, 2")
e(f"s_cselect_b32 s{sROLE}, 0, s{sROLE}")
e("s_waitcnt lgkmcnt(0)")
e(f"s_lshl_b32 s{sT}, s{sQB}, 16")
add64(sP, sX, off_s=sT)
e(f"s_mov_b32 m0, s{sT2}")
e("s_nop 0")
for i in range(4):
    e(f"global_load_lds_dwordx4 v{16+i}, {sr(sP)} offset:{i*1024}")
e(f"s_add_u32 s{sT2}, s{sT2}, 4096")
e(f"s_mov_b32 m0, s{sT2}")
e("s_nop 0")
for i in range(4, 8):
    e(f"global_load_lds_dwordx4 v{16+i}, {sr(sP)} offset:{(i-4)*1024}")
e(f"v_and_b32 v6, 7, v{vL}")
e("v_lshlrev_b32 v7, 4, v6")
for i in range(8):
    e(f"global_load_dwordx4 {vr(96+4*i)}, v7, {sr(sGW)} offset:{i*128}")
add64(sKV, sWS, imm=WS_KV)
e(f"s_mul_i32 s{sT}, s{sQB}, {43*4096}")
e(f"s_add_u32 s{sT}, s{sT}, {WS_H}")
add64(sH, sWS, off_s=sT)
e(f"s_lshl_b32 s{sT}, s{sQB}, 16")
e(f"s_add_u32 s{sT}, s{sT}, {WS_O}")
add64(sO, sWS, off_s=sT)
e(f"s_lshl_b32 s{sT}, s{sHT}, 6")
add64(sB0, sW1, off_s=sT)
e(f"s_mov_b32 s{sSTR}, 2752")
e(f"s_cmp_lg_u32 s{sROLE}, 0")
e("s_cbranch_scc1 L_role2")
e(f"s_lshl_b32 s{sT}, s{sHG}, 7")
e(f"s_lshl_b32 s{sT2}, s{sWAVE}, 6")
e(f"s_add_u32 s{sT}, s{sT}, s{sT2}")
add64(sB0, sWQ, off_s=sT)
e(f"s_mov_b32 s{sSTR}, 1024")
lab("L_role2")
add64(sB1, sB0, imm=32)
e(f"s_cmp_lg_u32 s{sROLE}, 1")
e("s_cbranch_scc1 L_role3")
e(f"s_mov_b64 {sr(sB0)}, {sr(sWK)}")
e(f"s_mov_b64 {sr(sB1)}, {sr(sWV)}")
e(f"s_mov_b32 s{sSTR}, 32")
lab("L_role3")
e(f"s_lshl_b32 s{sADV}, s{sSTR}, 4")
e(f"s_mov_b32 s{sADV+1}, 0")
e(f"v_lshrrev_b32 v24, 2, v{vL}")
e(f"v_mul_lo_u32 v24, v24, s{sSTR}")
e(f"v_and_b32 v25, 1, v{vL}")
e("v_lshl_add_u32 v24, v25, 4, v24")
e("v_mov_b32 v25, 0")
e(f"v_and_b32 v26, 2, v{vL}")
e("v_cmp_ne_u32 vcc, 0, v26")
e(f"v_mov_b32 v26, s{sB0}")
e(f"v_mov_b32 v27, s{sB0+1}")
e(f"v_mov_b32 v28, s{sB1}")
e(f"v_mov_b32 v29, s{sB1+1}")
e("v_cndmask_b32 v26, v26, v28, vcc")
e("v_cndmask_b32 v27, v27, v29, vcc")
e("v_lshl_add_u64 v[26:27], v[24:25], 0, v[26:27]")
e(f"s_cmp_eq_u32 s{sROLE}, 3")
e("s_cbranch_scc1 L_noW")
for i in range(32):
    e(f"global_load_dwordx4 {vr(128+4*i)}, v[26:27], off")
    if i < 31:
        e(f"v_lshl_add_u64 v[26:27], v[26:27], 0, {sr(sADV)}")
lab("L_noW")
for i in range(4):
    e(f"v_mov_b32 v{28+i}, -1")
e(f"s_lshl_b32 s{sT}, s{sHG}, 13")
e(f"s_lshl_b32 s{sT2}, s{sWAVE}, 10")
e(f"s_add_u32 s{sT}, s{sT}, s{sT2}")
add64(sP, sO, off_s=sT)
e(f"global_store_dwordx4 v{vL16}, v[28:31], {sr(sP)} sc1")
e("v_mov_b32 v32, 0")
e(f"v_mov_b32 v33, {L_CNT}")
e("ds_write_b32 v33, v32")
cm("X fragment addresses v8..v15")
e(f"v_and_b32 v32, 31, v{vL}")
e(f"v_lshrrev_b32 v33, 5, v{vL}")
e(f"v_and_b32 v34, 15, v{vL}")
e("v_xor_b32 v34, v34, v33")
e("v_lshlrev_b32 v34, 4, v34")
e("v_lshl_add_u32 v8, v32, 10, v34")
for j in range(1, 8):
    e(f"v_xor_b32 v{8+j}, {j << 5}, v8")
cm("transpose write addr v5, tr-read addr v6 (natural k order), v7 (permuted k order)")
e(f"v_add_u32 v5, s{sTB}, v{vL16}")
e(f"v_bfe_u32 v34, v{vL}, 2, 2")
e(f"v_bfe_u32 v35, v{vL}, 4, 1")
e(f"v_and_b32 v36, 3, v{vL}")
e("v_lshlrev_b32 v34, 6, v34")
e("v_lshl_add_u32 v34, v35, 5, v34")
e("v_lshl_add_u32 v34, v36, 3, v34")
e(f"v_add_u32 v34, s{sTB}, v34")
e("v_lshl_add_u32 v6, v33, 9, v34")
e("v_lshl_add_u32 v7, v33, 8, v34")
cm("gate: X read addresses v40 (even i), v41 (odd i); row in v42")
e(f"v_lshrrev_b32 v42, 3, v{vL}")
e(f"s_lshl_b32 s{sT}, s{sWAVE}, 3")
e(f"v_add_u32 v42, s{sT}, v42")
e("v_and_b32 v43, 15, v42")
e(f"v_and_b32 v44, 7, v{vL}")
e("v_xor_b32 v43, v43, v44")
e("v_lshlrev_b32 v43, 4, v43")
e("v_lshl_add_u32 v40, v42, 10, v43")
e("v_xor_b32 v41, 0x80, v40")
e(f"s_cmp_eq_u32 s{sROLE}, 3")
e("s_cbranch_scc1 L_w0")
e("s_waitcnt vmcnt(33) lgkmcnt(0)")
e("s_branch L_w1")
lab("L_w0")
e("s_waitcnt vmcnt(1) lgkmcnt(0)")
lab("L_w1")
e("s_barrier")
stamp(1)
for i in range(8):
    e(f"ds_read_b128 {vr(64+4*i)}, v{40+(i&1)} offset:{(i>>1)*256}")
e("v_mov_b32 v43, 0")
for i in range(8):
    e(f"s_waitcnt lgkmcnt({7-i})")
    for j in range(4):
        e(f"v_dot2_f32_bf16 v43, v{64+4*i+j}, v{96+4*i+j}, v43")
e("s_nop 2")
e("v_add_f32_dpp v43, v43, v43 quad_perm:[1,0,3,2] row_mask:0xf bank_mask:0xf")
e("s_nop 1")
e("v_add_f32_dpp v43, v43, v43 quad_perm:[2,3,0,1] row_mask:0xf bank_mask:0xf")
e("s_nop 1")
e("v_add_f32_dpp v43, v43, v43 row_half_mirror row_mask:0xf bank_mask:0xf")
e(f"v_mul_f32 v43, {hex(f2u(-LOG2E))}, v43")
e("v_exp_f32 v43, v43")
e("v_lshlrev_b32 v42, 2, v42")
e("v_add_f32 v43, 1.0, v43")
e("v_rcp_f32 v43, v43")
e("s_nop 0")
e(f"ds_write_b32 v42, v43 offset:{L_G - 131072}" if False else f"v_add_u32 v42, {L_G}, v42")
e("ds_write_b32 v42, v43")
e(f"s_cmp_eq_u32 s{sROLE}, 3")
e("s_cbranch_scc1 L_p1_done")
ACC = [64, 80]
AF = [32, 36]
BF = [[40, 44], [48, 52]]
def p1_mf(i):
    for rt in range(2):
        mfma(ACC[rt], AF[i & 1], BF[rt][i & 1], None if i == 0 else ACC[rt])
e("s_waitcnt lgkmcnt(0)")
for i in range(32):
    e(f"s_waitcnt vmcnt({32-i})")
    e(f"ds_write_b128 v5, {vr(128+4*i)}")
    e(f"ds_read_b64_tr_b16 {vr(AF[i&1],2)}, v6")
    e(f"ds_read_b64_tr_b16 {vr(AF[i&1]+2,2)}, v6 offset:256")
    for rt in range(2):
        e(f"ds_read_b128 {vr(BF[rt][i&1])}, v{8+(i&7)} offset:{rt*32768+(i>>3)*256}")
    if i > 0:
        e("s_waitcnt lgkmcnt(5)")
        p1_mf(i - 1)
e("s_waitcnt lgkmcnt(0)")
p1_mf(31)
stamp(2)
e("s_nop 15")
e(f"s_cmp_eq_u32 s{sROLE}, 2")
e("s_cbranch_scc1 L_epiH")
e(f"s_cmp_eq_u32 s{sROLE}, 1")
e("s_cbranch_scc1 L_epiKV")
e(f"s_mov_b32 s{sC}, {hex(f2u(0.25*LOG2E))}")
e(f"s_mov_b32 s{sC+1}, s{sC}")
for r in range(0, 32, 2):
    e(f"v_pk_mul_f32 {vr(64+r,2)}, {vr(64+r,2)}, {sr(sC)}")
for r in range(0, 32, 2):
    e(f"v_cvt_pk_bf16_f32 v{128+r//2}, v{64+r}, v{65+r}")
e(f"s_lshl_b32 s{sT}, s{sWAVE}, 12")
e(f"s_add_u32 s{sT}, s{sT}, {L_Q}")
e(f"v_add_u32 v32, s{sT}, v{vL16}")
for rt in range(2):
    for i in range(2):
        e(f"ds_write_b128 v32, {vr(128+rt*8+i*4)} offset:{i*2048+rt*1024}")
e("s_branch L_p1_done")
lab("L_epiKV")
for r in range(0, 32, 2):
    e(f"v_cvt_pk_bf16_f32 v{128+r//2}, v{64+r}, v{65+r}")
e(f"s_mul_i32 s{sT}, s{sQB}, {2*TILE}")
add64(sP, sKV, off_s=sT)
e(f"global_store_dwordx4 v{vL16}, v[128:131], {sr(sP)} sc1")
e(f"global_store_dwordx4 v{vL16}, v[136:139], {sr(sP)} offset:{TILE} sc1")
e(f"v_and_b32 v32, 31, v{vL}")
e(f"v_lshrrev_b32 v33, 5, v{vL}")
e("v_lshlrev_b32 v32, 5, v32")
e("v_lshl_add_u32 v32, v33, 3, v32")
e(f"v_add_u32 v32, s{sTB}, v32")
e(f"v_bfe_u32 v34, v{vL}, 2, 2")
e(f"v_bfe_u32 v35, v{vL}, 4, 1")
e("v_lshl_add_u32 v34, v35, 2, v34")
e("v_lshl_add_u32 v34, v33, 4, v34")
e("v_lshlrev_b32 v34, 5, v34")
e(f"v_and_b32 v36, 3, v{vL}")
e("v_lshl_add_u32 v34, v36, 3, v34")
e(f"v_add_u32 v34, s{sTB}, v34")
for rt in range(2):
    e(f"ds_write_b64 v32, {vr(132+rt*8,2)} offset:{rt*1024}")
    e(f"ds_write_b64 v32, {vr(134+rt*8,2)} offset:{rt*1024+16}")
for rt in range(2):
    e(f"ds_read_b64_tr_b16 {vr(144+rt*4,2)}, v34 offset:{rt*1024}")
    e(f"ds_read_b64_tr_b16 {vr(146+rt*4,2)}, v34 offset:{rt*1024+256}")
e(f"v_lshl_add_u32 v35, v33, 4, v{vL16}")
e(f"v_and_b32 v36, 1, v{vL}")
e("v_mul_u32_u24 v36, 528, v36")
for i in range(4):
    e(f"v_mov_b32 v{152+i}, 0x3f803f80")
e(f"global_store_dwordx4 v36, v[152:155], {sr(sP)} offset:{1024+512} sc1")
e(f"global_store_dwordx4 v36, v[152:155], {sr(sP)} offset:{TILE+1024+512} sc1")
e("s_waitcnt lgkmcnt(0)")
e(f"global_store_dwordx4 v35, v[144:147], {sr(sP)} offset:1024 sc1")
e(f"global_store_dwordx4 v35, v[148:151], {sr(sP)} offset:{TILE+1024} sc1")
e(f"s_lshl_b32 s{sT}, s{sQB}, 2")
e(f"v_mov_b32 v32, s{sT}")
e("v_mov_b32 v33, 1")
e("s_waitcnt vmcnt(0)")
e(f"global_store_dword v32, v33, {sr(sDBG)} sc1")
e("s_branch L_p1_done")
lab("L_epiH")
e(f"s_mov_b32 s{sC}, {hex(f2u(-LOG2E))}")
e(f"s_mov_b32 s{sC+1}, s{sC}")
e(f"s_lshl_b32 s{sT}, s{sHT}, 12")
add64(sP, sH, off_s=sT)
for rt in range(2):
    a = ACC[rt]
    for r in range(0, 16, 2):
        e(f"v_pk_mul_f32 {vr(128+r,2)}, {vr(a+r,2)}, {sr(sC)}")
    for r in range(16):
        e(f"v_exp_f32 v{128+r}, v{128+r}")
    for r in range(0, 16, 2):
        e(f"v_pk_add_f32 {vr(128+r,2)}, {vr(128+r,2)}, 1.0 op_sel_hi:[1,0]")
    for r in range(16):
        e(f"v_rcp_f32 v{128+r}, v{128+r}")
    for r in range(0, 16, 2):
        e(f"v_pk_mul_f32 {vr(128+r,2)}, {vr(128+r,2)}, {vr(a+r,2)}")
    for r in range(0, 16, 2):
        e(f"v_cvt_pk_bf16_f32 v{144+rt*8+r//2}, v{128+r}, v{129+r}")
    for ks in range(2):
        e(f"global_store_dwordx4 v{vL16}, {vr(144+rt*8+ks*4)}, {sr(sP)} offset:{ks*2048+rt*1024} sc1")
lab("L_p1_done")
stamp(3)
e(f"v_and_b32 v32, 15, v{vL}")
e("v_lshlrev_b32 v32, 2, v32")
e("v_add_u32 v33, 64, v32")
poll_dbg("kvU", 33, 34)
stamp(4)
e(f"s_lshl_b32 s{sT3}, s{sWAVE}, 13")
dma_pieces(sT3, 8, vL16, HALF, HALF)
e(f"s_cmp_lg_u32 s{sWAVE}, 0")
e("s_cbranch_scc1 L_kvU2")
dma_one(vL16, HALF + 65536)
lab("L_kvU2")
e("s_waitcnt vmcnt(0) lgkmcnt(0)")
e("s_barrier")
stamp(5)
e(f"s_cmp_ge_u32 s{sWAVE}, 4")
e("s_cbranch_scc1 L_gemm")

QA, QB_ = 16, 20
KF = [24, 28]
VF = [[32, 36], [40, 44]]
P = [48, 56]
S = [64, 80]
C = [96, 112]
O = [128, 144]
Qf = [QA, QB_]
vK0, vV0, vK, vV = 8, 9, 10, 11
e(f"s_lshl_b32 s{sT}, s{sWAVE}, 11")
e(f"s_add_u32 s{sT}, s{sT}, {L_Q}")
e(f"v_add_u32 v12, s{sT}, v{vL16}")
e(f"ds_read_b128 {vr(QA)}, v12")
e(f"ds_read_b128 {vr(QB_)}, v12 offset:1024")
e(f"v_mov_b32 v{vK0}, v{vL16}")
e(f"v_add_u32 v{vK}, {HALF}, v{vL16}")
e(f"ds_read_b128 {vr(KF[0])}, v{vK}")
cm("V lane address: m>=16: 1024 + h*256 + (m-16)*16 ; else 1024+512 (ones)")
e(f"v_and_b32 v12, 15, v{vL}")
e(f"v_lshrrev_b32 v13, 5, v{vL}")
e("v_lshlrev_b32 v12, 4, v12")
e("v_lshl_add_u32 v12, v13, 8, v12")
e(f"v_and_b32 v13, 16, v{vL}")
e("v_cmp_ne_u32 vcc, 0, v13")
e("v_mov_b32 v13, 512")
e("s_nop 0")
e(f"v_cndmask_b32 v{vV0}, v13, v12, vcc")
e(f"v_add_u32 v{vV0}, 1024, v{vV0}")
e(f"s_mov_b32 s{sRETRY}, 0")
e("s_waitcnt lgkmcnt(0)")
mfma(S[0], KF[0], QA, None)
mfma(S[1], KF[0], QB_, None)
e("s_nop 15")
def rowmax_finish(src_list):
    e("v_mov_b32 v14, v12")
    e("v_mov_b32 v15, v13")
    e("s_nop 1")
    e("v_permlane32_swap_b32 v12, v14")
    e("v_permlane32_swap_b32 v13, v15")
    e("s_nop 1")
    e("v_max_f32 v12, v12, v14")
    e("v_max_f32 v13, v13, v15")
    for x in range(2):
        for r in range(16):
            e(f"v_sub_f32 v{C[x]+r}, 0, v{12+x}")
for x in range(2):
    e(f"v_max3_f32 v{12+x}, v{S[x]}, v{S[x]+1}, v{S[x]+2}")
    for r in range(3, 15, 2):
        e(f"v_max3_f32 v{12+x}, v{12+x}, v{S[x]+r}, v{S[x]+r+1}")
    e(f"v_max_f32 v{12+x}, v{12+x}, v{S[x]+15}")
lab("L_att_setC")
rowmax_finish(None)
lab("L_att_start")
e(f"s_mov_b32 s{sBASE}, {HALF}")
e(f"v_add_u32 v{vK}, s{sBASE}, v{vK0}")
e(f"v_add_u32 v{vV}, s{sBASE}, v{vV0}")
e(f"ds_read_b128 {vr(KF[0])}, v{vK}")
e(f"ds_read_b128 {vr(VF[0][0])}, v{vV}")
e(f"ds_read_b128 {vr(VF[0][1])}, v{vV} offset:528")
for r in range(32):
    e(f"v_mov_b32 v{O[0]+r}, 0")
for r in range(4):
    e(f"v_mov_b32 v{VF[1][1]+r}, 0")
    e(f"v_mov_b32 v{P[1]+4+r}, 0")
e(f"v_mov_b32 v{S[1]+14}, 0")
e(f"v_mov_b32 v{S[1]+15}, 0")
e(f"s_mov_b32 s{sI}, 0")
e("s_waitcnt lgkmcnt(0)")
mfma(S[0], KF[0], QA, C[0])
e("s_nop 15")
stamp(6)
UN = 16
def ex(x, r): e(f"v_exp_f32 v{S[x]+r}, v{S[x]+r}")
def cv(x, i): e(f"v_cvt_pk_bf16_f32 v{P[x]+i}, v{S[x]+2*i}, v{S[x]+2*i+1}")
def phase(x, m1, s1, m2, s2, m3, s3):
    y = 1 - x
    ex(x, 0); cv(y, 7); ex(x, 1); ex(x, 2)
    m1(); s1()
    cv(x, 0); ex(x, 3); ex(x, 4); cv(x, 1); ex(x, 5); ex(x, 6); cv(x, 2); ex(x, 7)
    m2(); s2()
    ex(x, 8); cv(x, 3); ex(x, 9); ex(x, 10); cv(x, 4); ex(x, 11); ex(x, 12)
    m3(); s3()
    cv(x, 5); ex(x, 13); ex(x, 14); cv(x, 6); ex(x, 15)
L.append(".p2align 6")
lab("L_att_loop")
for u in range(UN):
    b, nb = u & 1, (u & 1) ^ 1
    off = (u + 1) * TILE if u < UN - 1 else 0
    if u == UN - 1:
        e(f"s_cmp_eq_u32 s{sI}, {32//UN - 1}")
        e("s_cbranch_scc1 L_att_chk")
        lab("L_att_chk_ret")
        e(f"v_add_u32 v{vK}, s{sBASE}, v{vK0}")
        e(f"v_add_u32 v{vV}, s{sBASE}, v{vV0}")
    def nothing(): pass
    def salu():
        if u == UN - 2:
            e(f"s_add_u32 s{sBASE}, s{sBASE}, {UN*TILE}")
            e(f"s_cmp_ge_u32 s{sBASE}, {KVBYTES}")
            e(f"s_cselect_b32 s{sBASE}, 0, s{sBASE}")
        if u == UN - 1:
            e(f"s_add_u32 s{sI}, s{sI}, 1")
            e(f"s_cmp_lt_u32 s{sI}, {64//UN}")
    phase(0,
          lambda: mfma(O[1], VF[nb][1], P[1] + 4, O[1]), lambda: e(f"ds_read_b128 {vr(KF[nb])}, v{vK} offset:{off}"),
          lambda: mfma(S[1], KF[b], QB_, C[1]), lambda: e(f"ds_read_b128 {vr(VF[nb][0])}, v{vV} offset:{off}"),
          lambda: mfma(O[0], VF[b][0], P[0], O[0]), lambda: e(f"ds_read_b128 {vr(VF[nb][1])}, v{vV} offset:{off+528}"))
    phase(1,
          lambda: mfma(O[0], VF[b][1], P[0] + 4, O[0]), lambda: e("s_waitcnt lgkmcnt(2)"),
          lambda: mfma(S[0], KF[nb], QA, C[0]), salu,
          lambda: mfma(O[1], VF[b][0], P[1], O[1]), lambda: e("s_waitcnt lgkmcnt(0)"))
e("s_cbranch_scc1 L_att_loop")
e("s_nop 0")
cv(1, 7)
e("s_nop 1")
mfma(O[1], VF[1][1], P[1] + 4, O[1])
stamp(7)
e(f"v_and_b32 v12, 31, v{vL}")
e("v_lshlrev_b32 v12, 2, v12")
e(f"v_add_u32 v12, {L_G}, v12")
e("ds_read_b32 v14, v12")
e("ds_read_b32 v15, v12 offset:128")
e("s_nop 15")
cm("safety check of the stand-in max: l < 2^42 and O finite, else redo with the true row max")
e(f"s_mov_b32 s{sT}, {hex(f2u(2.0**86))}")
for x in range(2):
    e(f"v_mul_f32 v{12+x}, s{sT}, v{O[x]}")
    for r in range(8, 16):
        e(f"v_add_f32 v{12+x}, v{12+x}, abs(v{O[x]+r})")
e("v_add_f32 v12, v12, v13")
e("v_mov_b32 v13, 0x207")
e("v_cmp_class_f32 vcc, v12, v13")
e("s_cbranch_vccz L_att_ok")
e(f"s_cmp_eq_u32 s{sRETRY}, 0")
e("s_cbranch_scc1 L_att_truemax")
lab("L_att_ok")
e("s_waitcnt lgkmcnt(0)")
for x in range(2):
    e(f"v_rcp_f32 v{12+x}, v{O[x]}")
e("s_nop 0")
for x in range(2):
    e(f"v_mul_f32 v{12+x}, v{12+x}, v{14+x}")
for x in range(2):
    for r in range(8, 16):
        e(f"v_mul_f32 v{O[x]+r}, v{O[x]+r}, v{12+x}")
    for i in range(4):
        e(f"v_cvt_pk_bf16_f32 v{P[0]+4*x+i}, v{O[x]+8+2*i}, v{O[x]+9+2*i}")
    for i in range(4):
        e(f"v_min_u32 v{P[0]+4*x+i}, -2, v{P[0]+4*x+i}")
e(f"s_lshl_b32 s{sT}, s{sHG}, 13")
e(f"s_lshl_b32 s{sT2}, s{sWAVE}, 11")
e(f"s_add_u32 s{sT}, s{sT}, s{sT2}")
add64(sP, sO, off_s=sT)
e(f"global_store_dwordx4 v{vL16}, {vr(P[0])}, {sr(sP)} sc1")
e(f"global_store_dwordx4 v{vL16}, {vr(P[0]+4)}, {sr(sP)} offset:1024 sc1")
stamp(8)
e("s_barrier")
e("s_branch L_final")
lab("L_att_chk")
e(f"v_mov_b32 v12, {L_CNT}")
e(f"s_mov_b32 s{sSPIN}, {SPIN*8}")
lab("L_att_chk2")
e("ds_read_b32 v13, v12")
e("s_waitcnt lgkmcnt(0)")
e(f"v_readfirstlane_b32 s{sT}, v13")
e(f"s_sub_u32 s{sSPIN}, s{sSPIN}, 1")
e(f"s_cmp_eq_u32 s{sSPIN}, 0")
e("s_cbranch_scc1 L_att_chk_ret")
e(f"s_cmp_lt_u32 s{sT}, 4")
e("s_cbranch_scc1 L_att_chk2")
e("s_branch L_att_chk_ret")
lab("L_att_truemax")
e(f"s_mov_b32 s{sRETRY}, 1")
e("v_mov_b32 v12, 0xff800000")
e("v_mov_b32 v13, 0xff800000")
e(f"v_mov_b32 v{vK}, v{vK0}")
e(f"s_mov_b32 s{sI}, 0")
lab("L_att_tm")
e(f"ds_read_b128 {vr(KF[0])}, v{vK}")
e(f"v_add_u32 v{vK}, {TILE}, v{vK}")
e("s_waitcnt lgkmcnt(0)")
mfma(S[0], KF[0], QA, None)
mfma(S[1], KF[0], QB_, None)
e("s_nop 15")
for x in range(2):
    for r in range(0, 16, 2):
        e(f"v_max3_f32 v{12+x}, v{12+x}, v{S[x]+r}, v{S[x]+r+1}")
e(f"s_add_u32 s{sI}, s{sI}, 1")
e(f"s_cmp_lt_u32 s{sI}, 64")
e("s_cbranch_scc1 L_att_tm")
e("s_branch L_att_setC")

lab("L_gemm")
sV = 65
e(f"s_sub_u32 s{sV}, s{sWAVE}, 4")
cm("publish H (one lane of wave 4)")
e(f"s_cmp_lg_u32 s{sV}, 0")
e("s_cbranch_scc1 L_g0")
e(f"s_lshl_b32 s{sT}, s{sQB}, 2")
e(f"s_add_u32 s{sT}, s{sT}, 128")
e(f"v_mov_b32 v34, s{sT}")
e("v_mov_b32 v35, 1")
e("s_mov_b64 exec, 1")
e(f"global_atomic_add v34, v35, {sr(sDBG)} sc1")
e("s_mov_b64 exec, -1")
lab("L_g0")
poll_dbg("kvL", 32, 34)
e(f"s_lshl_b32 s{sT3}, s{sV}, 14")
dma_pieces(sT3, 16, vL16, 0, 0)
e(f"s_cmp_lg_u32 s{sV}, 0")
e("s_cbranch_scc1 L_g1")
dma_one(vL16, 65536)
lab("L_g1")
cm("row-major weight load offsets v8..v11, transpose write addr v5")
e(f"v_lshrrev_b32 v32, 3, v{vL}")
e(f"v_and_b32 v33, 7, v{vL}")
e("v_lshlrev_b32 v8, 10, v32")
e("v_lshl_add_u32 v8, v33, 4, v8")
for j in range(1, 4):
    e(f"v_add_u32 v{8+j}, {j*8192}, v8")
e(f"v_bfe_u32 v34, v{vL}, 2, 1")
e("v_mul_u32_u24 v34, 1088, v34")
e("v_lshl_add_u32 v34, v32, 6, v34")
e(f"v_and_b32 v33, 3, v{vL}")
e("v_lshl_add_u32 v34, v33, 4, v34")
e(f"v_add_u32 v5, s{sTB}, v34")
e("s_waitcnt vmcnt(0)")
e(f"v_mov_b32 v12, {L_CNT}")
e("v_mov_b32 v13, 1")
e("s_mov_b64 exec, 1")
e("ds_add_u32 v12, v13")
e("s_mov_b64 exec, -1")
stamp(6)
e(f"s_lshl_b32 s{sT}, s{sQB}, 2")
e(f"s_add_u32 s{sT}, s{sT}, 128")
e(f"v_mov_b32 v34, s{sT}")
poll_dbg("hrdy", 34, 35, want=8)
stamp(7)
GA = [64, 80, 96, 112]
GAF = [[16, 20], [24, 28]]
def g2_issue(i):
    st = 128 + 32 * (i & 3)
    e(f"s_mul_i32 s{sT}, s{sV}, 11")
    e(f"s_add_u32 s{sT}, s{sT}, {i}")
    e(f"s_min_u32 s{sT}, s{sT}, 42")
    e(f"s_lshl_b32 s{sT2}, s{sT}, 15")
    e(f"s_lshl_b32 s{sT3}, s{sHG}, 7")
    e(f"s_add_u32 s{sT2}, s{sT2}, s{sT3}")
    add64(sP, sW2, off_s=sT2)
    e(f"s_lshl_b32 s{sT}, s{sT}, 12")
    add64(sP2, sH, off_s=sT)
    for j in range(4):
        e(f"global_load_dwordx4 {vr(st+4*j)}, v{8+j}, {sr(sP)}")
    for j in range(4):
        e(f"global_load_dwordx4 {vr(st+16+4*j)}, v{vL16}, {sr(sP2)} offset:{j*1024} sc1")
def transpose_kstep(src, dst):
    e(f"ds_write_b128 v5, {vr(src)}")
    e(f"ds_write_b128 v5, {vr(src+4)} offset:512")
    for ct in range(2):
        e(f"ds_read_b64_tr_b16 {vr(dst[ct],2)}, v7 offset:{ct*1088}")
        e(f"ds_read_b64_tr_b16 {vr(dst[ct]+2,2)}, v7 offset:{ct*1088+512}")
for i in range(3):
    g2_issue(i)
for i in range(11):
    if i + 3 < 11:
        g2_issue(i + 3)
    st = 128 + 32 * (i & 3)
    e(f"s_waitcnt vmcnt({8*min(3, 10-i)})")
    if i == 10:
        e(f"s_cmp_eq_u32 s{sV}, 3")
        e("s_cbranch_scc1 L_g2done")
    transpose_kstep(st, GAF[0])
    transpose_kstep(st + 8, GAF[1])
    for ks in range(2):
        e(f"s_waitcnt lgkmcnt({6*(1-ks)})")
        for ct in range(2):
            for rt in range(2):
                a = GA[ct*2+rt]
                mfma(a, GAF[ks][ct], st + 16 + 8*ks + 4*rt, None if (i == 0 and ks == 0) else a)
lab("L_g2done")
stamp(8)
cm("wo fragments -> v192..v255")
e(f"s_lshl_b32 s{sT}, s{sV}, 17")
e(f"s_lshl_b32 s{sT2}, s{sHG}, 7")
e(f"s_add_u32 s{sT}, s{sT}, s{sT2}")
add64(sP, sWO, off_s=sT)
for g in range(4):
    for j in range(4):
        e(f"global_load_dwordx4 {vr(128+16*g+4*j)}, v{8+j}, {sr(sP)}")
    if g < 3:
        add64(sP, sP, imm=32768)
e(f"v_and_b32 v12, 31, v{vL}")
e("v_lshlrev_b32 v12, 2, v12")
e(f"v_add_u32 v12, {L_G}, v12")
e("ds_read_b32 v14, v12")
e("ds_read_b32 v16, v12 offset:128")
e("s_waitcnt lgkmcnt(0)")
e("v_sub_f32 v14, 1.0, v14")
e("v_sub_f32 v16, 1.0, v16")
e("s_nop 7")
for t in range(4):
    for r in range(0, 16, 2):
        e(f"v_pk_mul_f32 {vr(GA[t]+r,2)}, {vr(GA[t]+r,2)}, {vr(14+2*(t&1),2)} op_sel_hi:[1,0]")
for ks in range(8):
    e(f"s_waitcnt vmcnt({14-2*ks})")
    transpose_kstep(128 + 8*ks, [192 + 8*ks, 196 + 8*ks])
    e("s_waitcnt lgkmcnt(6)")
e(f"s_lshl_b32 s{sT}, s{sV}, 14")
add64(sP, sO, off_s=sT)
for j in range(4):
    e(f"v_add_u32 v{8+j}, {j*4096}, v{vL16}")
e("s_waitcnt lgkmcnt(0)")
stamp(9)
e("s_barrier")
stamp(10)
e(f"s_mov_b32 s{sSPIN}, {SPIN}")
lab("L_opoll")
for g in range(4):
    for j in range(4):
        e(f"global_load_dwordx4 {vr(128+16*g+4*j)}, v{8+g}, {sr(sP)} offset:{j*1024} sc1")
e("v_mov_b32 v12, 0")
for g in range(4):
    e(f"s_waitcnt vmcnt({12-4*g})")
    for r in range(0, 16, 2):
        e(f"v_max3_u32 v12, v12, v{128+16*g+r}, v{129+16*g+r}")
e("v_cmp_eq_u32 vcc, -1, v12")
e("s_cbranch_vccz L_ook")
e(f"s_sub_u32 s{sSPIN}, s{sSPIN}, 1")
e(f"s_cmp_lg_u32 s{sSPIN}, 0")
e("s_cbranch_scc1 L_opoll")
lab("L_ook")
stamp(11)
for ks in range(8):
    for ct in range(2):
        for rt in range(2):
            a = GA[ct*2+rt]
            mfma(a, 192 + 8*ks + 4*ct, 128 + 8*ks + 4*rt, a)
e(f"s_lshl_b32 s{sT}, s{sV}, 14")
e(f"v_add_u32 v12, s{sT}, v{vL16}")
e("s_nop 15")
for t in range(4):
    for q in range(4):
        e(f"ds_write_b128 v12, {vr(GA[t]+4*q)} offset:{t*4096+q*1024}")
e("s_waitcnt lgkmcnt(0)")

lab("L_final")
cm("thread t: row=t>>3, cg=t&7 ; addr = (ct*2+rt)*4096 + q*1024 + n*16 (+512 for h=1)")
e("v_bfe_u32 v12, v0, 2, 1")
e("v_bfe_u32 v13, v0, 8, 1")
e("v_lshl_add_u32 v12, v12, 1, v13")
e("v_lshlrev_b32 v12, 12, v12")
e("v_and_b32 v13, 3, v0")
e("v_lshl_add_u32 v12, v13, 10, v12")
e("v_bfe_u32 v13, v0, 3, 5")
e("v_lshl_add_u32 v12, v13, 4, v12")
e("v_lshrrev_b32 v13, 3, v0")
e("v_lshlrev_b32 v13, 10, v13")
e("v_and_b32 v14, 7, v0")
e("v_lshl_add_u32 v13, v14, 4, v13")
e(f"s_lshl_b32 s{sT}, s{sQB}, 16")
e(f"s_lshl_b32 s{sT2}, s{sHG}, 7")
e(f"s_add_u32 s{sT}, s{sT}, s{sT2}")
add64(sP, sOUT, off_s=sT)
e("s_barrier")
for v in range(4):
    for h in range(2):
        e(f"ds_read_b128 {vr(16+8*v+4*h)}, v12 offset:{v*16384+h*512}")
e("s_waitcnt lgkmcnt(4)")
for r in range(0, 8, 2):
    e(f"v_pk_add_f32 {vr(16+r,2)}, {vr(16+r,2)}, {vr(24+r,2)}")
e("s_waitcnt lgkmcnt(0)")
for r in range(0, 8, 2):
    e(f"v_pk_add_f32 {vr(32+r,2)}, {vr(32+r,2)}, {vr(40+r,2)}")
for r in range(0, 8, 2):
    e(f"v_pk_add_f32 {vr(16+r,2)}, {vr(16+r,2)}, {vr(32+r,2)}")
for i in range(4):
    e(f"v_cvt_pk_bf16_f32 v{48+i}, v{16+2*i}, v{17+2*i}")
e(f"global_store_dwordx4 v13, v[48:51], {sr(sP)}")
if STAMPS:
    e("s_waitcnt vmcnt(0)")
    stamp(12)
    e("s_waitcnt lgkmcnt(0)")
    e(f"s_lshl_b32 s{sT}, s2, 3")
    e(f"s_add_u32 s{sT}, s{sT}, s{sWAVE}")
    e(f"s_lshl_b32 s{sT}, s{sT}, 7")
    e(f"s_add_u32 s{sT}, s{sT}, {WS_ST}")
    add64(sP, sWS, off_s=sT)
    e("v_mov_b32 v12, 0")
    e("s_mov_b64 exec, 1")
    for i in range(14):
        e(f"v_mov_b32 v13, s{70+2*i}")
        e(f"global_store_dword v12, v13, {sr(sP)} offset:{4*i}")
    e("s_waitcnt vmcnt(0)")
lab("L_end")
e("s_endpgm")
lab("L_code_end")

HEAD = open(f"cdna_kernels/{NAME}.s.ref").read().split("; Override launch geometry")[0]
src = HEAD + f"""; @launch grid=(256,1,1) block=(512,1,1) lds={LDS_TOTAL}
.amdgcn_target "amdgcn-amd-amdhsa--gfx950"
.text
.globl {NAME}_kernel
.p2align 8
.type {NAME}_kernel,@function
{NAME}_kernel:
""" + "\n".join(L) + f"""
.section .rodata,"a"
.p2align 6
.amdhsa_kernel {NAME}_kernel
  .amdhsa_next_free_vgpr 256
  .amdhsa_next_free_sgpr 102
  .amdhsa_accum_offset 256
  .amdhsa_group_segment_fixed_size 0
  .amdhsa_kernarg_size 96
  .amdhsa_user_sgpr_count 2
  .amdhsa_user_sgpr_kernarg_segment_ptr 1
  .amdhsa_system_sgpr_workgroup_id_x 1
.end_amdhsa_kernel
"""
open(OUT, "w").write(src)
print("wrote", OUT, len(L), "lines")
```

```python
import sys, struct

NAME = "gated_mix__grouped_kv_mqa__dense_activation_silu__prompt"
STAMPS = "--stamps" in sys.argv
def opt(name, default):
    for a in sys.argv[1:]:
        if a.startswith(f"--{name}="): return int(a.split("=")[1])
    return default
OUT = [a for a in sys.argv[1:] if not a.startswith("--")]
OUT = OUT[0] if OUT else f"cdna_kernels/{NAME}.s"
DIAG = opt("diag", 0)

def f2u(x): return struct.unpack("<I", struct.pack("<f", x))[0]
LOG2E = 1.4426950408889634

TILE = 2080
KVBYTES = 64 * TILE
HALF = 32 * TILE
XS = 1040
L_X = HALF
L_RING = KVBYTES
RSZ = 7168
L_G = L_RING + 4 * RSZ
L_CNT = L_G + 256
L_GW = L_CNT + 256
LDS_TOTAL = L_GW + 1024
C_G2H, C_KVP, C_GO, C_RED, C_K1, C_W, C_Q1, C_Q2, C_GX = [L_CNT + 4*i for i in range(9)]
L_KVP = L_RING
L_QX = 49152
WS_KV, WS_FL, WS_H, WS_O, WS_ST = 0, 0x30000, 0x40000, 0x600000, 0x900000
SPIN = 1 << 16
WS_KF = WS_FL + 0x1000
WS_NONCE = WS_FL + 0x3000
TAGC = 0x9E3779B1

L = []
def e(s): L.append("    " + s)
def lab(s): L.append(s + ":")
def cm(s): L.append("    ; " + s)
def vr(a, n=4): return f"v[{a}:{a+n-1}]"
def sr(a, n=2): return f"s[{a}:{a+n-1}]"
def stamp(i):
    if STAMPS: e(f"s_memtime s[{72+2*i}:{73+2*i}]")

sX, sWQ, sWK, sWV, sWO, sW1, sW2, sGW, sOUT, sDBG, sWS = 4, 6, 8, 10, 12, 16, 18, 20, 22, 24, 26
sQB, sHG, sWAVE, sV = 28, 29, 30, 31
sJQ, sXM = 32, 33
sB0, sFL, sADV, sADV2, sRING, sN = 34, 36, 38, 39, 40, 41
sHT, sHT2 = 42, 43
sKV, sH, sO = 44, 46, 48
sT, sT2, sT3 = 50, 52, 54
sC, sTAG = 56, 58
sSPIN, sI, sCHK, sRETRY = 60, 61, 62, 63
sWB, sWB2 = 14, 64
sP, sP2 = 66, 68
vL, vL16 = 1, 2

def add64(dst, src, off_s=None, imm=None):
    o = f"s{off_s}" if off_s is not None else hex(imm)
    e(f"s_add_u32 s{dst}, s{src}, {o}")
    e(f"s_addc_u32 s{dst+1}, s{src+1}, 0")
def mfma(d, a, b, c):
    cs = "0" if c is None else vr(c, 16)
    e(f"v_mfma_f32_32x32x16_bf16 {vr(d,16)}, {vr(a)}, {vr(b)}, {cs}")
def lds_spin(name, off, want, va, vt, slp=1):
    e(f"v_mov_b32 v{va}, {off}")
    e(f"s_mov_b32 s{sSPIN}, {SPIN*64}")
    lab(f"L_{name}")
    e(f"ds_read_b32 v{vt}, v{va}")
    e("s_waitcnt lgkmcnt(0)")
    e(f"v_readfirstlane_b32 s{sT}, v{vt}")
    e(f"s_sub_u32 s{sSPIN}, s{sSPIN}, 1")
    e(f"s_cmp_eq_u32 s{sSPIN}, 0")
    e(f"s_cbranch_scc1 L_{name}_ok")
    e(f"s_cmp_ge_u32 s{sT}, {want}")
    e(f"s_cbranch_scc1 L_{name}_ok")
    e(f"s_sleep {slp}")
    e(f"s_branch L_{name}")
    lab(f"L_{name}_ok")
def lds_signal(off, va, vt):
    e(f"v_mov_b32 v{va}, {off}")
    e(f"v_mov_b32 v{vt}, 1")
    e("s_mov_b64 exec, 1")
    e(f"ds_add_u32 v{va}, v{vt}")
    e("s_mov_b64 exec, -1")
def dma_lin(base, first_s, n, lds_off=0):
    for j in range(0, n, 4):
        e(f"s_add_u32 s{sT}, s{first_s}, {j*1024}")
        e(f"s_add_u32 m0, s{sT}, {lds_off}")
        add64(sP, base, off_s=sT)
        for i in range(4):
            e(f"global_load_lds_dwordx4 v{vL16}, {sr(sP)} offset:{i*1024} sc1")
def dma_kv_one(off):
    e(f"s_mov_b32 m0, {off}")
    add64(sP, sKV, imm=off)
    e(f"global_load_lds_dwordx4 v{vL16}, {sr(sP)} sc1")
def tr_lane(dst, t0, t1):
    e(f"v_bfe_u32 v{dst}, v{vL}, 2, 2")
    e(f"v_bfe_u32 v{t0}, v{vL}, 4, 1")
    e(f"v_and_b32 v{t1}, 3, v{vL}")
    e(f"v_lshlrev_b32 v{dst}, 6, v{dst}")
    e(f"v_lshl_add_u32 v{dst}, v{t0}, 5, v{dst}")
    e(f"v_lshl_add_u32 v{dst}, v{t1}, 3, v{dst}")
    e(f"v_lshrrev_b32 v{t0}, 5, v{vL}")
    e(f"v_lshl_add_u32 v{dst}, v{t0}, 9, v{dst}")
def x_lane(dst, t0):
    e(f"v_and_b32 v{dst}, 31, v{vL}")
    e(f"v_mul_u32_u24 v{dst}, {XS}, v{dst}")
    e(f"v_lshrrev_b32 v{t0}, 5, v{vL}")
    e(f"v_lshl_add_u32 v{dst}, v{t0}, 4, v{dst}")
    e(f"v_add_u32 v{dst}, {L_X}, v{dst}")

e("s_load_dwordx16 s[4:19], s[0:1], 0")
e("s_load_dwordx8 s[20:27], s[0:1], 64")
e("s_cmp_ge_u32 s2, 256")
e("s_cbranch_scc1 L_end")
if STAMPS: e("s_memrealtime s[70:71]")
stamp(0)
e("v_lshrrev_b32 v5, 6, v0")
e(f"v_and_b32 v{vL}, 63, v0")
e(f"v_readfirstlane_b32 s{sWAVE}, v5")
e(f"v_lshlrev_b32 v{vL16}, 4, v{vL}")
cm("qb = ((wg&7)>>1)*8 + ((wg>>3)&7) ; hg = (wg&1)*4 + (wg>>6)")
e(f"s_bfe_u32 s{sT}, s2, 0x20001")
e(f"s_bfe_u32 s{sJQ}, s2, 0x30003")
e(f"s_lshl3_add_u32 s{sQB}, s{sT}, s{sJQ}")
e(f"s_and_b32 s{sT}, s2, 1")
e(f"s_lshr_b32 s{sT3}, s2, 6")
e(f"s_lshl2_add_u32 s{sHG}, s{sT}, s{sT3}")
e(f"s_cmp_ge_u32 s{sWAVE}, 8")
e("s_cbranch_scc1 L_gw")

e(f"s_lshl_b32 s{sT2}, s{sQB}, 16")
e(f"s_cmp_eq_u32 s{sT3}, 0")
e("s_cbranch_scc1 L_prod")
e(f"s_lshl_b32 s{sT3}, s{sT3}, 1")
e(f"s_lshl3_add_u32 s{sXM}, s{sWAVE}, s{sT3}")
def x_dma(x, first=False):
    e(f"s_xor_b32 s{sT}, s{sXM}, {x}")
    e(f"s_mul_i32 s{sT3}, s{sT}, {XS}")
    e(f"s_add_u32 m0, s{sT3}, {L_X}")
    e(f"s_lshl_b32 s{sT}, s{sT}, 10")
    e(f"v_add_u32 v16, s{sT}, v{vL16}")
    if first:
        e("s_waitcnt lgkmcnt(0)")
        stamp(9)
        add64(sP, sX, off_s=sT2)
    e(f"global_load_lds_dwordx4 v16, {sr(sP)}")
def piece_lane(dst, t0, t1):
    e(f"v_lshrrev_b32 v{t0}, 5, v{vL}")
    e(f"v_bfe_u32 v{t1}, v{vL}, 2, 2")
    e(f"v_lshl_add_u32 v{t0}, v{t0}, 2, v{t1}")
    e(f"v_lshlrev_b32 v{dst}, 10, v{t0}")
    e(f"v_bfe_u32 v{t1}, v{vL}, 4, 1")
    e(f"v_lshl_add_u32 v{dst}, v{t1}, 6, v{dst}")
    e(f"v_and_b32 v{t1}, 3, v{vL}")
    e(f"v_lshl_add_u32 v{dst}, v{t1}, 4, v{dst}")
def wq_base():
    e(f"s_lshl_b32 s{sT}, s{sHG}, 7")
    add64(sP2, sWQ, off_s=sT)
def wq_dma(i, flip=0):
    e(f"s_xor_b32 s{sT}, s{sJQ}, {i}")
    e(f"s_lshl3_add_u32 s{sT}, s{sT}, s{sWAVE}")
    if flip: e(f"s_xor_b32 s{sT}, s{sT}, {flip}")
    e(f"s_lshl_b32 m0, s{sT}, 10")
    e(f"s_lshl_b32 s{sT}, s{sT}, 13")
    e(f"v_add_u32 v16, s{sT}, v18")
    e(f"global_load_lds_dwordx4 v16, {sr(sP2)}")
piece_lane(18, 19, 20)
x_dma(0, True); x_dma(1)
wq_base()
wq_dma(0)
e("s_barrier")
for i in range(2, 8):
    x_dma(i)
for i in range(1, 8):
    wq_dma(i)
e("s_branch L_a3")
lab("L_prod")
cm("producer: waves 0..3 fetch rows 32*rt + 8w + i (rt = hg>>2) and their own 8 k-steps of [wk|wv]")
e(f"s_and_b32 s{sT}, s{sWAVE}, 3")
e(f"s_add_u32 s{sT}, s{sT}, s{sHG}")
e(f"s_lshl_b32 s{sXM}, s{sT}, 3")
e(f"s_cmp_ge_u32 s{sWAVE}, 4")
e("s_cbranch_scc1 L_prod2")
e(f"v_lshrrev_b32 v24, 2, v{vL}")
e("v_lshlrev_b32 v24, 5, v24")
e(f"v_and_b32 v25, 1, v{vL}")
e("v_lshl_add_u32 v24, v25, 4, v24")
e(f"s_lshl_b32 s{sT}, s{sWAVE}, 12")
e(f"v_add_u32 v24, s{sT}, v24")
e("v_mov_b32 v25, 0")
e(f"v_and_b32 v26, 2, v{vL}")
e("v_cmp_ne_u32 vcc, 0, v26")
x_dma(0, True)
e(f"v_mov_b32 v26, s{sWK}")
e(f"v_mov_b32 v27, s{sWK+1}")
e(f"v_mov_b32 v28, s{sWV}")
e(f"v_mov_b32 v29, s{sWV+1}")
e("v_cndmask_b32 v26, v26, v28, vcc")
e("v_cndmask_b32 v27, v27, v29, vcc")
e("v_lshl_add_u64 v[26:27], v[24:25], 0, v[26:27]")
e(f"s_cmp_eq_u32 s{sHG}, 0")
e(f"s_cselect_b32 s{sN}, {32*XS}, 0")
e(f"s_add_u32 s{sN}, s{sN}, {L_X}")
e(f"s_lshl_b32 s{sT2}, s{sWAVE}, 13")
e(f"s_add_u32 s{sN}, s{sN}, s{sT2}")
e(f"s_mov_b32 s{sP2+1}, 0")
def wkv_dma(i):
    e(f"s_xor_b32 s{sT}, s{sJQ}, {i}")
    e(f"s_lshl_b32 s{sP2}, s{sT}, 9")
    e(f"s_lshl_b32 s{sT}, s{sT}, 10")
    e(f"s_add_u32 m0, s{sT}, s{sN}")
    e(f"v_lshl_add_u64 v[28:29], v[26:27], 0, {sr(sP2)}")
    e("global_load_lds_dwordx4 v[28:29], off")
wkv_dma(0)
for i in range(1, 8):
    x_dma(i)
for i in range(1, 8):
    wkv_dma(i)
e("s_barrier")
e("s_branch L_a3")
lab("L_prod2")
piece_lane(18, 19, 20)
e("s_waitcnt lgkmcnt(0)")
add64(sP, sX, off_s=sT2)
e("s_barrier")
e("s_branch L_a3")

lab("L_gw")
e(f"s_sub_u32 s{sV}, s{sWAVE}, 8")
e(f"s_cmp_lg_u32 s{sV}, 0")
e("s_cbranch_scc1 L_gw1")
cm("pull the code into L2: 8 lines per workgroup; zero the LDS counters")
e(f"s_getpc_b64 {sr(sT)}")
lab("L_pc")
e(f"s_sub_u32 s{sT}, s{sT}, L_pc-{NAME}_kernel")
e(f"s_subb_u32 s{sT+1}, s{sT+1}, 0")
e(f"s_andn2_b32 s{sT2}, s2, 7")
e(f"v_and_b32 v3, 7, v{vL}")
e(f"v_add_lshl_u32 v3, v3, s{sT2}, 6")
e(f"v_min_u32 v3, L_code_end-{NAME}_kernel-4, v3")
e(f"global_load_dword v4, v3, {sr(sT)}")
e(f"v_and_b32 v16, 15, v{vL}")
e(f"v_lshlrev_b32 v16, 2, v16")
e(f"v_add_u32 v16, {L_CNT}, v16")
e("v_mov_b32 v17, 0")
e("ds_write_b32 v16, v17")
lab("L_gw1")
e("s_waitcnt lgkmcnt(0)")
e(f"s_cmp_lg_u32 s{sV}, 1")
e("s_cbranch_scc1 L_gw2")
e(f"s_mov_b32 m0, {L_GW}")
e("s_nop 0")
e(f"global_load_lds_dwordx4 v{vL16}, {sr(sGW)}")
lab("L_gw2")
e("s_barrier")
e("s_branch L_g4")

lab("L_a3")
e("s_setprio 3")
e(f"s_load_dword s{sTAG}, {sr(sWS)}, {hex(WS_NONCE)}")
add64(sFL, sWS, imm=WS_KF)
add64(sKV, sWS, imm=WS_KV)
e(f"s_lshl3_add_u32 s{sT}, s{sQB}, s{sHG}")
e(f"s_lshl3_add_u32 s{sT}, s{sT}, s{sWAVE}")
e(f"s_lshl_b32 s{sT}, s{sT}, 10")
e(f"s_add_u32 s{sT}, s{sT}, {WS_O}")
add64(sO, sWS, off_s=sT)
tr_lane(6, 32, 33)
x_lane(8, 32)
e("s_waitcnt lgkmcnt(0)")
e(f"s_add_u32 s{sTAG}, s{sTAG}, {hex(TAGC)}")
stamp(10)
e(f"s_and_b32 s{sT}, s{sHG}, 3")
e("s_cbranch_scc0 L_kv")
e("s_waitcnt vmcnt(0)")
stamp(11)
e("s_barrier")
e("s_branch L_q")
lab("L_kv")
e(f"s_cmp_lt_u32 s{sWAVE}, 4")
e("s_cbranch_scc1 L_kv0")
cm("waves 4..7: wq, then (once wk|wv has been consumed) the other half of X")
wq_base()
e(f"s_mov_b32 s{sI}, 0")
lab("L_kvq")
e(f"s_xor_b32 s{sT}, s{sJQ}, s{sI}")
e(f"s_lshl3_add_u32 s{sT}, s{sT}, s{sWAVE}")
for flip in (0, 4):
    if flip: e(f"s_xor_b32 s{sT}, s{sT}, 4")
    e(f"s_lshl_b32 m0, s{sT}, 10")
    e(f"s_lshl_b32 s{sT2}, s{sT}, 13")
    e(f"v_add_u32 v16, s{sT2}, v18")
    e(f"global_load_lds_dwordx4 v16, {sr(sP2)}")
e("s_waitcnt vmcnt(4)")
e(f"s_add_u32 s{sI}, s{sI}, 1")
e(f"s_cmp_lt_u32 s{sI}, 8")
e("s_cbranch_scc1 L_kvq")
lds_spin("kr", C_W, 4, 12, 13)
for i in range(8):
    x_dma(32 + i)
    e("s_waitcnt vmcnt(5)")
e("s_branch L_kv5")
lab("L_kv0")
e(f"s_lshr_b32 s{sT3}, s{sHG}, 2")
e(f"v_add_u32 v10, s{sN}, v6")
e(f"s_mul_i32 s{sC}, s{sT3}, {32*XS}")
e(f"s_lshl_b32 s{sT2}, s{sWAVE}, 8")
e(f"s_add_u32 s{sC}, s{sC}, s{sT2}")
e(f"v_add_u32 v11, s{sC}, v8")
e(f"s_lshl_b32 s{sC}, s{sWAVE}, 12")
e(f"s_add_u32 s{sC}, s{sC}, {L_KVP - 4096}")
e(f"v_add_u32 v12, s{sC}, v{vL16}")
e("s_waitcnt vmcnt(0)")
lds_signal(C_K1, 16, 17)
lds_spin("k1", C_K1, 4, 16, 17, slp=0)
stamp(11)
for i in range(8):
    e(f"ds_read_b64_tr_b16 {vr(128+4*(i&3),2)}, v10 offset:{i*1024}")
    e(f"ds_read_b64_tr_b16 {vr(130+4*(i&3),2)}, v10 offset:{i*1024+256}")
    e(f"ds_read_b128 {vr(144+4*(i&3))}, v11 offset:{i*32}")
    if i >= 2:
        e("s_waitcnt lgkmcnt(6)")
        mfma(64, 128+4*((i-2)&3), 144+4*((i-2)&3), None if i == 2 else 64)
e("s_waitcnt lgkmcnt(3)")
mfma(64, 128+8, 144+8, 64)
e("s_waitcnt lgkmcnt(0)")
mfma(64, 128+12, 144+12, 64)
lds_signal(C_W, 16, 17)
e(f"s_cmp_eq_u32 s{sWAVE}, 0")
e("s_cbranch_scc1 L_kv3")
e("s_nop 5")
for q in range(4):
    e(f"ds_write_b128 v12, {vr(64+4*q)} offset:{q*1024}")
e("s_waitcnt lgkmcnt(0)")
lds_signal(C_KVP, 16, 17)
lab("L_kv5")
e("s_waitcnt vmcnt(0) lgkmcnt(0)")
e("s_barrier")
e("s_branch L_q")
lab("L_kv3")
e(f"s_lshl1_add_u32 s{sT2}, s{sQB}, s{sT3}")
e(f"s_mul_i32 s{sT2}, s{sT2}, {TILE}")
add64(sP, sKV, off_s=sT2)
e(f"v_and_b32 v20, 31, v{vL}")
e(f"v_lshrrev_b32 v21, 5, v{vL}")
e("v_lshlrev_b32 v20, 5, v20")
e("v_lshl_add_u32 v20, v21, 3, v20")
e(f"v_add_u32 v20, {L_KVP + 12288}, v20")
e(f"v_bfe_u32 v22, v{vL}, 2, 2")
e(f"v_bfe_u32 v23, v{vL}, 4, 1")
e("v_lshl_add_u32 v22, v23, 2, v22")
e("v_lshl_add_u32 v22, v21, 4, v22")
e("v_lshlrev_b32 v22, 5, v22")
e(f"v_and_b32 v23, 3, v{vL}")
e("v_lshl_add_u32 v22, v23, 3, v22")
e(f"v_add_u32 v22, {L_KVP + 12288}, v22")
e(f"v_lshl_add_u32 v23, v21, 4, v{vL16}")
e(f"v_and_b32 v24, 1, v{vL}")
e("v_mul_u32_u24 v24, 528, v24")
for i in range(4):
    e(f"v_mov_b32 v{56+i}, 0x3f803f80")
e(f"global_store_dwordx4 v24, v[56:59], {sr(sP)} offset:{1024+512} sc1")
lds_spin("kvp", C_KVP, 3, 16, 17, slp=0)
PB = (80, 128, 144)
for c in range(3):
    for q in range(4):
        e(f"ds_read_b128 {vr(PB[c]+4*q)}, v12 offset:{4096+c*4096+q*1024}")
for c in range(3):
    e(f"s_waitcnt lgkmcnt({8-4*c})")
    for r in range(0, 16, 2):
        e(f"v_pk_add_f32 {vr(64+r,2)}, {vr(64+r,2)}, {vr(PB[c]+r,2)}")
for r in range(8, 16, 2):
    e(f"v_cvt_pk_bf16_f32 v{80+r//2}, v{64+r}, v{65+r}")
VT = 0
e(f"ds_write_b64 v20, v[84:85] offset:{VT}")
e(f"ds_write_b64 v20, v[86:87] offset:{VT+16}")
e(f"ds_read_b64_tr_b16 v[88:89], v22 offset:{VT}")
e(f"ds_read_b64_tr_b16 v[90:91], v22 offset:{VT+256}")
for r in range(0, 8, 2):
    e(f"v_cvt_pk_bf16_f32 v{80+r//2}, v{64+r}, v{65+r}")
e(f"global_store_dwordx4 v{vL16}, v[80:83], {sr(sP)} sc1")
e("s_waitcnt lgkmcnt(0)")
e(f"global_store_dwordx4 v23, v[88:91], {sr(sP)} offset:1024 sc1")
if DIAG == 1: stamp(5)
e(f"s_lshl1_add_u32 s{sT2}, s{sQB}, s{sT3}")
e(f"s_lshl_b32 s{sT2}, s{sT2}, 7")
e(f"v_mov_b32 v20, s{sT2}")
e(f"v_mov_b32 v21, s{sTAG}")
e("s_waitcnt vmcnt(0)")
if DIAG == 1: stamp(6)
e("s_mov_b64 exec, 1")
e(f"global_store_dword v20, v21, {sr(sFL)} sc1")
e("s_mov_b64 exec, -1")
stamp(12)
e("s_barrier")
lab("L_q")
stamp(1)
Q = 16
e(f"v_lshrrev_b32 v10, 5, v{vL}")
e("v_lshl_add_u32 v10, v10, 9, v6")
e(f"s_lshr_b32 s{sT}, s{sWAVE}, 2")
e(f"s_lshl_b32 s{sT}, s{sT}, 8")
e(f"s_bfe_u32 s{sT2}, s{sWAVE}, 0x10001")
e(f"s_lshl_b32 s{sT3}, s{sT2}, 15")
e(f"s_add_u32 s{sT}, s{sT}, s{sT3}")
e(f"v_add_u32 v10, s{sT}, v10")
e(f"s_and_b32 s{sT}, s{sWAVE}, 1")
e(f"s_mul_i32 s{sT}, s{sT}, {32*XS}")
e(f"s_lshl_b32 s{sT3}, s{sT2}, 9")
e(f"s_add_u32 s{sT}, s{sT}, s{sT3}")
e(f"v_add_u32 v11, s{sT}, v8")
NB = 5
def q_reads(u):
    e(f"ds_read_b64_tr_b16 {vr(96+8*(u%NB),2)}, v10 offset:{u*2048}")
    e(f"ds_read_b64_tr_b16 {vr(98+8*(u%NB),2)}, v10 offset:{u*2048+512}")
    e(f"ds_read_b128 {vr(100+8*(u%NB))}, v11 offset:{u*32}")
for u in range(NB - 1):
    q_reads(u)
for u in range(16):
    if u + NB - 1 < 16:
        q_reads(u + NB - 1)
    e(f"s_waitcnt lgkmcnt({3*min(NB-1, 15-u)})")
    mfma(64, 96+8*(u%NB), 100+8*(u%NB), None if u == 0 else 64)
e(f"s_lshl_b32 s{sT}, s{sWAVE}, 11")
e(f"s_add_u32 s{sT}, s{sT}, {L_QX}")
e(f"v_add_u32 v12, s{sT}, v{vL16}")
e("v_xor_b32 v13, 4096, v12")
e(f"s_mov_b32 s{sC}, {hex(f2u(0.25*LOG2E))}")
if DIAG == 3: stamp(5)
e("s_barrier")
if DIAG == 3: stamp(6)
e("s_nop 4")
e(f"s_cmp_eq_u32 s{sT2}, 0")
e("s_cbranch_scc0 L_q1")
e("ds_write_b128 v12, v[72:75]")
e("ds_write_b128 v12, v[76:79] offset:1024")
e("s_branch L_q2")
lab("L_q1")
e("ds_write_b128 v12, v[64:67]")
e("ds_write_b128 v12, v[68:71] offset:1024")
e("s_waitcnt lgkmcnt(0)")
for r in range(8):
    e(f"v_mov_b32 v{64+r}, v{72+r}")
lab("L_q2")
e("s_waitcnt lgkmcnt(0)")
e("s_barrier")
if DIAG == 3: stamp(8)
e("ds_read_b128 v[80:83], v13")
e("ds_read_b128 v[84:87], v13 offset:1024")
e("s_waitcnt lgkmcnt(0)")
lds_signal(C_GO, 12, 13)
for r in range(8):
    e(f"v_add_f32 v{64+r}, v{64+r}, v{80+r}")
for r in range(8):
    e(f"v_mul_f32 v{64+r}, s{sC}, v{64+r}")
for i in range(4):
    e(f"v_cvt_pk_bf16_f32 v{Q+i}, v{64+2*i}, v{65+2*i}")
KF = [20, 24]
V0 = [28, 32]
V1 = [36, 40]
P = [48, 56]
S = [64, 80]
C = 96
O = 112
vK, vV0, vV = 10, 9, 11
cm("V lane address: m>=16: 1024 + h*256 + (m-16)*16 ; else 1024+512 (ones)")
e(f"v_and_b32 v12, 15, v{vL}")
e(f"v_lshrrev_b32 v13, 5, v{vL}")
e("v_lshlrev_b32 v12, 4, v12")
e("v_lshl_add_u32 v12, v13, 8, v12")
e(f"v_and_b32 v13, 16, v{vL}")
e("v_cmp_ne_u32 vcc, 0, v13")
e("v_mov_b32 v13, 512")
e(f"s_mov_b32 s{sRETRY}, 0")
e(f"s_mov_b32 s{sCHK}, 9")
e(f"v_cndmask_b32 v{vV0}, v13, v12, vcc")
e(f"v_add_u32 v{vV0}, 1024, v{vV0}")
stamp(2)
def att_zero():
    for r in range(16):
        e(f"v_mov_b32 v{O+r}, 0")
    for r in range(4):
        e(f"v_mov_b32 v{V1[1]+r}, 0")
        e(f"v_mov_b32 v{P[1]+4+r}, 0")
    e(f"v_mov_b32 v{S[1]+14}, 0")
    e(f"v_mov_b32 v{S[1]+15}, 0")
att_zero()
e("s_setprio 0")
e(f"s_cmp_lg_u32 s{sWAVE}, 7")
e("s_cbranch_scc1 L_kvw")
e(f"v_and_b32 v12, 31, v{vL}")
e("v_lshlrev_b32 v12, 7, v12")
e(f"s_mov_b32 s{sSPIN}, {SPIN}")
lab("L_kvpoll")
e(f"global_load_dword v13, v12, {sr(sFL)} sc1")
e("s_waitcnt vmcnt(0)")
e(f"v_cmp_ne_u32 vcc, s{sTAG}, v13")
e("s_cbranch_vccz L_kvpoll_ok")
e("s_sleep 2")
e(f"s_sub_u32 s{sSPIN}, s{sSPIN}, 1")
e(f"s_cmp_lg_u32 s{sSPIN}, 0")
e("s_cbranch_scc1 L_kvpoll")
lab("L_kvpoll_ok")
lds_signal(C_GO, 12, 13)
lab("L_kvw")
lds_spin("kvw2", C_GO, 9, 12, 13)
e("s_setprio 3")
stamp(3)
cm("pieces 2w,2w+1 (+16 by wave 0) gate the start, then 17+6w..")
e(f"s_cmp_lg_u32 s{sWAVE}, 0")
e("s_cbranch_scc1 L_kvw3")
dma_kv_one(16384)
lab("L_kvw3")
e(f"s_lshl_b32 s{sT}, s{sWAVE}, 11")
e(f"s_mov_b32 m0, s{sT}")
add64(sP, sKV, off_s=sT)
for i in range(2):
    e(f"global_load_lds_dwordx4 v{vL16}, {sr(sP)} offset:{i*1024} sc1")
for i in range(4):
    e(f"v_mov_b32 v{128+i}, -1")
e("s_waitcnt vmcnt(0)")
lds_signal(C_Q1, 12, 13)
cm("poison this wave's O slot; waves 4..7 request the rest of the first half (pieces 17..64)")
e(f"global_store_dwordx4 v{vL16}, v[128:131], {sr(sO)} sc1")
e(f"s_cmp_lt_u32 s{sWAVE}, 4")
e("s_cbranch_scc1 L_kvw4")
e(f"s_mul_i32 s{sT3}, s{sWAVE}, 12288")
e(f"s_sub_u32 s{sT3}, s{sT3}, {4*12288 - 17*1024}")
dma_lin(sKV, sT3, 12)
lab("L_kvw4")
lds_spin("kq1", C_Q1, 8, 12, 13, slp=0)
stamp(4)
e("s_setprio 1")
e(f"ds_read_b128 {vr(KF[0])}, v{vL16}")
def att_first_loads():
    e(f"ds_read_b128 {vr(KF[1])}, v{vL16} offset:{TILE}")
    e(f"ds_read_b128 {vr(V0[0])}, v{vV0}")
    e(f"ds_read_b128 {vr(V0[1])}, v{vV0} offset:{TILE}")
    e(f"ds_read_b128 {vr(V1[0])}, v{vV0} offset:528")
att_first_loads()
e("s_waitcnt lgkmcnt(4)")
mfma(S[0], KF[0], Q, None)
e("s_nop 11")
e(f"v_max3_f32 v12, v{S[0]}, v{S[0]+1}, v{S[0]+2}")
for r in range(3, 15, 2):
    e(f"v_max3_f32 v12, v12, v{S[0]+r}, v{S[0]+r+1}")
e(f"v_max_f32 v12, v12, v{S[0]+15}")
lab("L_att_setC")
e("v_mov_b32 v14, v12")
e(f"v_mov_b32 v{vK}, v{vL16}")
e(f"v_mov_b32 v{vV}, v{vV0}")
e("v_permlane32_swap_b32 v12, v14")
e(f"s_mov_b32 s{sI}, 0")
e("s_nop 0")
e("v_max_f32 v12, v12, v14")
for r in range(16):
    e(f"v_sub_f32 v{C+r}, 0, v12")
e("s_waitcnt lgkmcnt(0)")
e("s_nop 0")
mfma(S[0], KF[0], Q, C)
e(f"ds_read_b128 {vr(KF[0])}, v{vL16} offset:{2*TILE}")
e("s_nop 10")
if DIAG not in (1, 3): stamp(5)
UN = 8
def ex(x, r): e(f"v_exp_f32 v{S[x]+r}, v{S[x]+r}")
def cv(x, i): e(f"v_cvt_pk_bf16_f32 v{P[x]+i}, v{S[x]+2*i}, v{S[x]+2*i+1}")
L.append(".p2align 6")
lab("L_att_loop")
for u in range(UN):
    x = u & 1; y = 1 - x
    if u == 5:
        e(f"s_bitcmp1_b32 s{sCHK}, s{sI}")
        e("s_cbranch_scc1 L_att_chk")
        lab("L_att_chk_ret")
    ex(x, 0); cv(y, 7); ex(x, 1); ex(x, 2)
    mfma(O, V1[y], P[y] + 4, O)
    e(f"ds_read_b128 {vr(V1[y])}, v{vV} offset:{(u+1)*TILE+528}")
    cv(x, 0); ex(x, 3); ex(x, 4); cv(x, 1); ex(x, 5); ex(x, 6); cv(x, 2); ex(x, 7)
    mfma(S[y], KF[y], Q, C)
    e(f"ds_read_b128 {vr(KF[y])}, v{vK} offset:{(u+3)*TILE}")
    ex(x, 8); cv(x, 3); ex(x, 9); ex(x, 10); cv(x, 4); ex(x, 11); ex(x, 12)
    mfma(O, V0[x], P[x], O)
    e("s_waitcnt lgkmcnt(2)")
    e(f"ds_read_b128 {vr(V0[x])}, v{vV} offset:{(u+2)*TILE}")
    cv(x, 5); ex(x, 13); ex(x, 14); cv(x, 6); ex(x, 15)
if DIAG == 2:
    e("s_memtime s[100:101]")
    e("s_waitcnt lgkmcnt(0)")
    e(f"s_mov_b32 m0, s{sI}")
    e("s_nop 0")
    e("v_writelane_b32 v150, s100, m0")
e(f"v_add_u32 v{vK}, {UN*TILE}, v{vK}")
e(f"v_add_u32 v{vV}, {UN*TILE}, v{vV}")
e(f"s_add_u32 s{sI}, s{sI}, 1")
e(f"s_cmp_lt_u32 s{sI}, {64//UN - 1}")
e("s_cbranch_scc1 L_att_loop")
e("s_setprio 0")
e(f"s_cmp_lt_u32 s{sI}, {64//UN}")
e("s_cbranch_scc1 L_att_loop")
e("s_setprio 3")
cv(1, 7)
e(f"s_and_b32 s{sT}, s{sWAVE}, 1")
e(f"s_lshl_b32 s{sT}, s{sT}, 7")
mfma(O, V1[1], P[1] + 4, O)
if DIAG not in (1, 3): stamp(6)
e(f"s_add_u32 s{sT}, s{sT}, {L_G}")
e(f"v_and_b32 v12, 31, v{vL}")
e(f"v_lshl_add_u32 v12, v12, 2, s{sT}")
e("ds_read_b32 v14, v12")
e(f"s_mov_b32 s{sT}, {hex(f2u(2.0**86))}")
e("v_mov_b32 v13, 0x207")
e("s_nop 6")
cm("safety check of the stand-in max: l < 2^42 and O finite, else redo with the true row max")
e(f"v_mul_f32 v12, s{sT}, v{O}")
for r in range(8, 16):
    e(f"v_add_f32 v12, v12, abs(v{O+r})")
e("v_cmp_class_f32 vcc, v12, v13")
e(f"v_rcp_f32 v12, v{O}")
e("s_cbranch_vccz L_att_ok")
e(f"s_cmp_eq_u32 s{sRETRY}, 0")
e("s_cbranch_scc1 L_att_truemax")
lab("L_att_ok")
e("s_waitcnt lgkmcnt(0)")
e("v_mul_f32 v12, v12, v14")
for r in range(8, 16):
    e(f"v_mul_f32 v{O+r}, v{O+r}, v12")
for i in range(4):
    e(f"v_cvt_pk_bf16_f32 v{P[0]+i}, v{O+8+2*i}, v{O+9+2*i}")
for i in range(4):
    e(f"v_min_u32 v{P[0]+i}, -2, v{P[0]+i}")
e(f"global_store_dwordx4 v{vL16}, {vr(P[0])}, {sr(sO)} sc1")
stamp(7)
e("s_barrier")
e("s_branch L_fin")
lab("L_att_chk")
e(f"s_cmp_eq_u32 s{sI}, 0")
e("s_cbranch_scc0 L_att_chk3")
e("s_waitcnt vmcnt(0)")
lds_signal(C_Q2, 12, 13)
lds_spin("att_chk2", C_Q2, 8, 12, 13)
e("s_branch L_att_chk_ret")
lab("L_att_chk3")
lds_spin("att_chk4", C_G2H, 4, 12, 13)
e("s_branch L_att_chk_ret")
lab("L_att_truemax")
e(f"s_mov_b32 s{sRETRY}, 1")
e("v_mov_b32 v12, 0xff800000")
e(f"v_mov_b32 v{vK}, v{vL16}")
e(f"s_mov_b32 s{sI}, 0")
lab("L_att_tm")
e(f"ds_read_b128 {vr(KF[0])}, v{vK}")
e(f"v_add_u32 v{vK}, {TILE}, v{vK}")
e("s_waitcnt lgkmcnt(0)")
mfma(S[0], KF[0], Q, None)
e("s_nop 15")
for r in range(0, 16, 2):
    e(f"v_max3_f32 v12, v12, v{S[0]+r}, v{S[0]+r+1}")
e(f"s_add_u32 s{sI}, s{sI}, 1")
e(f"s_cmp_lt_u32 s{sI}, 64")
e("s_cbranch_scc1 L_att_tm")
e(f"ds_read_b128 {vr(KF[0])}, v{vL16}")
att_first_loads()
att_zero()
e("s_branch L_att_setC")

lab("L_g4")
e("s_setprio 2")
e(f"s_lshl_b32 s{sJQ}, s{sJQ}, 2")
cm("H tiles: start = 6hg - 2[hg>0] - 2[hg>4]; unit 1 = start+v (both row tiles); unit 2 = start+4+(v>>1), row tile v&1")
e(f"s_mul_i32 s{sHT}, s{sHG}, 6")
e(f"s_cmp_gt_u32 s{sHG}, 0")
e(f"s_cselect_b32 s{sT}, 2, 0")
e(f"s_sub_u32 s{sHT}, s{sHT}, s{sT}")
e(f"s_cmp_gt_u32 s{sHG}, 4")
e(f"s_cselect_b32 s{sT}, 2, 0")
e(f"s_sub_u32 s{sHT}, s{sHT}, s{sT}")
e(f"s_lshr_b32 s{sT}, s{sV}, 1")
e(f"s_add_u32 s{sHT2}, s{sHT}, s{sT}")
e(f"s_add_u32 s{sHT2}, s{sHT2}, 4")
e(f"s_add_u32 s{sHT}, s{sHT}, s{sV}")
e(f"s_and_b32 s{sT}, s{sHG}, 3")
e(f"s_cselect_b32 s{sN}, 1, 0")
e(f"s_cmp_gt_u32 s{sHT2}, 42")
e(f"s_cselect_b32 s{sN}, 0, s{sN}")
e(f"s_min_u32 s{sHT2}, s{sHT2}, 42")
e(f"s_mul_i32 s{sRING}, s{sV}, {RSZ}")
e(f"s_add_u32 s{sRING}, s{sRING}, {L_RING}")
e(f"v_lshrrev_b32 v26, 2, v{vL}")
e(f"v_and_b32 v27, 3, v{vL}")
e("v_mul_u32_u24 v24, 2752, v26")
e("v_lshl_add_u32 v24, v27, 4, v24")
e(f"s_lshl_b32 s{sT}, s{sHT}, 6")
add64(sWB, sW1, off_s=sT)
e(f"s_lshl_b32 s{sT}, s{sHT2}, 6")
add64(sWB2, sW1, off_s=sT)
ADV = 16 * 2752
def w_ptr_group(idx_s=None, imm=None):
    e(f"s_xor_b32 s{sT}, s{sJQ}, " + (f"s{idx_s}" if idx_s is not None else str(imm)))
    e(f"s_mul_i32 s{sT}, s{sT}, {ADV}")
    add64(sB0, sWB, off_s=sT)
e(f"s_lshl_b32 s{sT}, s{sQB}, 7")
e(f"s_add_u32 s{sT}, s{sT}, {WS_FL}")
add64(sFL, sWS, off_s=sT)
e(f"s_load_dword s{sTAG}, {sr(sWS)}, {hex(WS_NONCE)}")
add64(sKV, sWS, imm=WS_KV)
e(f"s_mul_i32 s{sT}, s{sQB}, {43*4096}")
e(f"s_add_u32 s{sT}, s{sT}, {WS_H}")
add64(sH, sWS, off_s=sT)
e(f"s_lshl_b32 s{sT}, s{sQB}, 16")
e(f"s_add_u32 s{sT}, s{sT}, {WS_O}")
add64(sO, sWS, off_s=sT)
tr_lane(7, 32, 33)
e(f"v_add_u32 v7, s{sRING}, v7")
x_lane(9, 32)
sR, sW = sADV, sADV2
e(f"s_mov_b32 s{sR}, 0")
e(f"s_add_u32 s{sW}, s{sRING}, {6*1024}")
e(f"s_mov_b32 s{sI}, 0")
for r in range(32):
    e(f"v_mov_b32 v{64+r}, 0")
for r in range(12):
    e(f"v_mov_b32 v{36 + r if r < 4 else (40 + r if r < 8 else 44 + r)}, 0")
e("s_waitcnt vmcnt(0) lgkmcnt(0)")
e(f"s_add_u32 s{sTAG}, s{sTAG}, {hex(TAGC)}")
e("s_barrier")
stamp(1)
for i in range(6):
    if i % 4 == 0: w_ptr_group(imm=i)
    else: add64(sB0, sB0, imm=ADV)
    e(f"s_add_u32 m0, s{sRING}, {i*1024}")
    e("s_nop 0")
    e(f"global_load_lds_dwordx4 v24, {sr(sB0)}")
if DIAG == 3: e("s_memtime s[100:101]")
e("s_barrier")
e("s_barrier")
cm("gate: rows 16v + (l>>3) (+8), part = l&7")
e(f"v_lshrrev_b32 v12, 3, v{vL}")
e(f"s_lshl_b32 s{sT}, s{sV}, 4")
e(f"v_add_u32 v12, s{sT}, v12")
e(f"v_mul_u32_u24 v10, {XS}, v12")
e(f"v_and_b32 v11, 7, v{vL}")
e("v_lshlrev_b32 v11, 4, v11")
e("v_add_u32 v10, v10, v11")
e(f"v_add_u32 v11, {L_GW}, v11")
e(f"v_add_u32 v10, {L_X}, v10")
e("v_lshlrev_b32 v12, 2, v12")
e(f"v_add_u32 v12, {L_G}, v12")
e("v_mov_b32 v14, 0")
e("v_mov_b32 v15, 0")
def g_reads(i):
    b = 96 + 12 * (i % 4)
    e(f"ds_read_b128 {vr(b)}, v11 offset:{i*128}")
    e(f"ds_read_b128 {vr(b+4)}, v10 offset:{i*128}")
    e(f"ds_read_b128 {vr(b+8)}, v10 offset:{i*128+8*XS}")
for i in range(4):
    g_reads(i)
for i in range(8):
    b = 96 + 12 * (i % 4)
    e(f"s_waitcnt lgkmcnt({3*min(3, 7-i)})")
    for j in range(4):
        e(f"v_dot2_f32_bf16 v14, v{b+4+j}, v{b+j}, v14")
        e(f"v_dot2_f32_bf16 v15, v{b+8+j}, v{b+j}, v15")
    if i + 4 < 8:
        g_reads(i + 4)
e("s_nop 2")
for perm in ("quad_perm:[1,0,3,2]", "quad_perm:[2,3,0,1]", "row_half_mirror"):
    e(f"v_add_f32_dpp v14, v14, v14 {perm} row_mask:0xf bank_mask:0xf")
    e(f"v_add_f32_dpp v15, v15, v15 {perm} row_mask:0xf bank_mask:0xf")
    e("s_nop 0")
for r in (14, 15):
    e(f"v_mul_f32 v{r}, {hex(f2u(-LOG2E))}, v{r}")
for r in (14, 15):
    e(f"v_exp_f32 v{r}, v{r}")
e("s_nop 0")
for r in (14, 15):
    e(f"v_add_f32 v{r}, 1.0, v{r}")
for r in (14, 15):
    e(f"v_rcp_f32 v{r}, v{r}")
e("s_nop 0")
e("ds_write_b32 v12, v14")
e("ds_write_b32 v12, v15 offset:32")
e("s_waitcnt lgkmcnt(0)")
ACC = [64, 80]
AF = [32, 36]
BF = [[40, 44], [48, 52]]
def g1_loop(nrt, tag):
    lab(f"L_g1{tag}")
    for u in range(4):
        if u == 0:
            e(f"s_and_b32 s{sT}, s{sI}, 31")
            e(f"s_xor_b32 s{sT}, s{sT}, s{sJQ}")
            e(f"s_lshl_b32 s{sT}, s{sT}, 5")
            e(f"v_add_u32 v8, s{sT}, v9")
        e(f"v_add_u32 v6, s{sR}, v7")
        e("s_waitcnt vmcnt(5)")
        e(f"ds_read_b64_tr_b16 {vr(AF[u&1],2)}, v6")
        e(f"ds_read_b64_tr_b16 {vr(AF[u&1]+2,2)}, v6 offset:256")
        for rt in range(nrt):
            e(f"ds_read_b128 {vr(BF[rt][u&1])}, v8 offset:{rt*32*XS+u*32}")
        if u == 2:
            e(f"s_add_u32 s{sT2}, s{sI}, 8")
            e(f"s_cmp_eq_u32 s{sT2}, 32")
            e(f"s_cselect_b32 s{sWB}, s{sWB2}, s{sWB}")
            e(f"s_cselect_b32 s{sWB+1}, s{sWB2+1}, s{sWB+1}")
            e(f"s_and_b32 s{sT2}, s{sT2}, 31")
            w_ptr_group(idx_s=sT2)
        else:
            add64(sB0, sB0, imm=ADV)
        e(f"s_mov_b32 m0, s{sW}")
        e(f"s_add_u32 s{sW}, s{sRING}, s{sR}")
        e(f"s_waitcnt lgkmcnt({2+nrt})")
        e(f"global_load_lds_dwordx4 v24, {sr(sB0)}")
        e(f"s_add_u32 s{sR}, s{sR}, 1024")
        e(f"s_cmp_eq_u32 s{sR}, {RSZ}")
        e(f"s_cselect_b32 s{sR}, 0, s{sR}")
        for rt in range(nrt):
            mfma(ACC[rt], AF[(u+1) & 1], BF[rt][(u+1) & 1], ACC[rt])
    e(f"s_add_u32 s{sI}, s{sI}, 4")
    e(f"s_and_b32 s{sT}, s{sI}, 31")
    e(f"s_cbranch_scc1 L_g1{tag}")
    e("s_waitcnt lgkmcnt(0)")
    for rt in range(nrt):
        mfma(ACC[rt], AF[1], BF[rt][1], ACC[rt])
def silu(a, dst):
    for r in range(0, 16, 2):
        e(f"v_pk_mul_f32 {vr(96+r,2)}, {vr(a+r,2)}, {sr(sC)}")
    for r in range(16):
        e(f"v_exp_f32 v{96+r}, v{96+r}")
    for r in range(0, 16, 2):
        e(f"v_pk_add_f32 {vr(96+r,2)}, {vr(96+r,2)}, 1.0 op_sel_hi:[1,0]")
    for r in range(16):
        e(f"v_rcp_f32 v{96+r}, v{96+r}")
    for r in range(0, 16, 2):
        e(f"v_pk_mul_f32 {vr(96+r,2)}, {vr(96+r,2)}, {vr(a+r,2)}")
    for r in range(0, 16, 2):
        e(f"v_cvt_pk_bf16_f32 v{dst+r//2}, v{96+r}, v{97+r}")
g1_loop(2, "a")
e(f"s_mov_b32 s{sC}, {hex(f2u(-LOG2E))}")
e(f"s_mov_b32 s{sC+1}, s{sC}")
e("s_nop 9")
silu(64, 112)
silu(80, 120)
if DIAG != 3: stamp(2)
e(f"s_cmp_eq_u32 s{sN}, 0")
e("s_cbranch_scc1 L_g1done")
e(f"s_and_b32 s{sT}, s{sV}, 1")
e(f"s_mul_i32 s{sT}, s{sT}, {32*XS}")
e(f"v_add_u32 v9, s{sT}, v9")
for r in range(16):
    e(f"v_mov_b32 v{64+r}, 0")
for r in range(4):
    e(f"v_mov_b32 v{36+r}, 0")
    e(f"v_mov_b32 v{44+r}, 0")
g1_loop(1, "b")
lds_signal(C_GX, 12, 13)
e("s_nop 7")
silu(64, 128)
e("s_branch L_g1done2")
lab("L_g1done")
lds_signal(C_GX, 12, 13)
lab("L_g1done2")
if DIAG == 3:
    e("s_mov_b32 s78, s100")
else:
    stamp(3)
GA = [100, 116, 132, 148]
piece_lane(8, 32, 33)
e("v_add_u32 v9, 0x2000, v8")
cm("X is dead once all 12 waves are through with it; K/V is published once C_GO reaches 9")
lds_spin("gx", C_GX, 4, 12, 13, slp=2)
lds_spin("gk", C_GO, 9, 12, 13, slp=2)
e(f"v_and_b32 v12, 31, v{vL}")
e("v_lshlrev_b32 v12, 7, v12")
e(f"v_add_u32 v12, {WS_KF + 4096}, v12")
e(f"s_mov_b32 s{sSPIN}, {SPIN}")
lab("L_kvpoll2")
e(f"global_load_dword v13, v12, {sr(sWS)} sc1")
e("s_waitcnt vmcnt(0)")
e(f"v_cmp_ne_u32 vcc, s{sTAG}, v13")
e("s_cbranch_vccz L_kvpoll2_ok")
e("s_sleep 8")
e(f"s_sub_u32 s{sSPIN}, s{sSPIN}, 1")
e(f"s_cmp_lg_u32 s{sSPIN}, 0")
e("s_cbranch_scc1 L_kvpoll2")
lab("L_kvpoll2_ok")
stamp(4)
cm("second half of K/V: pieces 65..129 (16 per wave + 1)")
e(f"s_lshl_b32 s{sT3}, s{sV}, 14")
e(f"s_add_u32 s{sT3}, s{sT3}, {65*1024}")
dma_lin(sKV, sT3, 16)
e(f"s_cmp_lg_u32 s{sV}, 0")
e("s_cbranch_scc1 L_g5")
dma_kv_one(129 * 1024)
lab("L_g5")
e(f"s_lshl_b32 s{sT}, s{sHT}, 12")
add64(sP, sH, off_s=sT)
for rt in range(2):
    for ks in range(2):
        e(f"global_store_dwordx4 v{vL16}, {vr(112+rt*8+ks*4)}, {sr(sP)} offset:{ks*2048+rt*1024} sc1")
e("s_waitcnt vmcnt(4)")
lds_signal(C_G2H, 12, 13)
stamp(5)
e(f"s_cmp_eq_u32 s{sN}, 0")
e("s_cbranch_scc1 L_g5b")
e(f"s_and_b32 s{sT}, s{sV}, 1")
e(f"s_lshl2_add_u32 s{sT}, s{sHT2}, s{sT}")
e(f"s_lshl_b32 s{sT}, s{sT}, 10")
add64(sP, sH, off_s=sT)
for ks in range(2):
    e(f"global_store_dwordx4 v{vL16}, {vr(128+ks*4)}, {sr(sP)} offset:{ks*2048} sc1")
lab("L_g5b")
e("s_waitcnt vmcnt(0)")
lds_signal(C_GX, 12, 13)
e(f"s_cmp_lg_u32 s{sV}, 0")
e("s_cbranch_scc1 L_g6")
cm("publish H once every G-wave's stores have drained")
lds_spin("hdr", C_GX, 8, 12, 13, slp=2)
lds_spin("hdr2", C_Q2, 8, 12, 13, slp=2)
e(f"s_lshl_b32 s{sT}, s{sHG}, 2")
e(f"v_mov_b32 v12, s{sT}")
e(f"v_mov_b32 v13, s{sTAG}")
e("s_mov_b64 exec, 1")
e(f"global_store_dword v12, v13, {sr(sFL)} sc1")
cm("every wave of this workgroup has read the epoch; the last workgroup to get here advances it")
e("v_mov_b32 v12, 0")
e("v_mov_b32 v14, 1")
e(f"global_atomic_add v15, v12, v14, {sr(sDBG)} sc0 sc1")
e("s_waitcnt vmcnt(0)")
e("v_cmp_eq_u32 vcc, 0xff, v15")
e("s_cbranch_vccz L_g6a")
e(f"v_mov_b32 v12, {WS_NONCE}")
e(f"global_store_dword v12, v13, {sr(sWS)} sc1")
lab("L_g6a")
e("s_mov_b64 exec, -1")
lab("L_g6")
def ring_issue(slot, base):
    e(f"s_add_u32 m0, s{sRING}, {slot*2048}")
    e("s_nop 0")
    e(f"global_load_lds_dwordx4 v8, {sr(base)}")
    e(f"s_add_u32 m0, s{sRING}, {slot*2048+1024}")
    e("s_nop 0")
    e(f"global_load_lds_dwordx4 v9, {sr(base)}")
def ring_read(slot, ct, dst):
    e(f"ds_read_b64_tr_b16 {vr(dst,2)}, v7 offset:{slot*2048+ct*256}")
    e(f"ds_read_b64_tr_b16 {vr(dst+2,2)}, v7 offset:{slot*2048+ct*256+1024}")
e(f"s_lshl_b32 s{sT}, s{sV}, 17")
e(f"s_lshl_b32 s{sT2}, s{sHG}, 7")
e(f"s_add_u32 s{sT}, s{sT}, s{sT2}")
add64(sP, sWO, off_s=sT)
for ks in range(3):
    ring_issue(ks, sP)
    add64(sP, sP, imm=16384)
for ks in range(8):
    e(f"s_waitcnt vmcnt({2*min(2, 7-ks)})")
    ring_read(ks % 3, 0, 36 + 8*ks)
    ring_read(ks % 3, 1, 40 + 8*ks)
    if ks + 3 < 8:
        e("s_waitcnt lgkmcnt(0)")
        ring_issue(ks % 3, sP)
        add64(sP, sP, imm=16384)
e("s_waitcnt lgkmcnt(0)")
stamp(6)
e(f"v_and_b32 v12, 7, v{vL}")
e("v_lshlrev_b32 v12, 2, v12")
e(f"s_mov_b32 s{sSPIN}, {SPIN}")
lab("L_hpoll")
e(f"global_load_dword v13, v12, {sr(sFL)} sc1")
e("s_waitcnt vmcnt(0)")
e(f"v_cmp_ne_u32 vcc, s{sTAG}, v13")
e("s_cbranch_vccz L_hpoll_ok")
e("s_sleep 8")
e(f"s_sub_u32 s{sSPIN}, s{sSPIN}, 1")
e(f"s_cmp_lg_u32 s{sSPIN}, 0")
e("s_cbranch_scc1 L_hpoll")
lab("L_hpoll_ok")
stamp(7)
HB = [12, 20, 28]
GAF = [4, 164]
e(f"s_mul_i32 s{sT}, s{sV}, 22")
e(f"s_cmp_eq_u32 s{sV}, 3")
e(f"s_cselect_b32 s{sT}, 65, s{sT}")
e(f"s_cmp_ge_u32 s{sV}, 2")
e(f"s_cselect_b32 s{sI}, 21, 22")
e(f"s_sub_u32 s{sN}, s{sI}, 1")
e(f"s_lshl_b32 s{sT2}, s{sT}, 14")
e(f"s_lshl_b32 s{sT3}, s{sHG}, 7")
e(f"s_add_u32 s{sT2}, s{sT2}, s{sT3}")
add64(sP, sW2, off_s=sT2)
e(f"s_lshl_b32 s{sT}, s{sT}, 11")
add64(sP2, sH, off_s=sT)
e("v_mov_b32 v3, v7")
def g2_issue(slot):
    ring_issue(slot, sP)
    for rt in range(2):
        e(f"global_load_dwordx4 {vr(HB[slot]+4*rt)}, v{vL16}, {sr(sP2)} offset:{rt*1024} sc1")
    cm("advance (clamped at the last k-step)")
    e(f"s_cmp_lg_u32 s{sN}, 0")
    e(f"s_cselect_b32 s{sT}, 16384, 0")
    e(f"s_cselect_b32 s{sT2}, 2048, 0")
    e(f"s_cselect_b32 s{sT3}, 1, 0")
    e(f"s_sub_u32 s{sN}, s{sN}, s{sT3}")
    add64(sP, sP, off_s=sT)
    add64(sP2, sP2, off_s=sT2)
def ring_read3(slot, ct, dst):
    e(f"ds_read_b64_tr_b16 {vr(dst,2)}, v3 offset:{slot*2048+ct*256}")
    e(f"ds_read_b64_tr_b16 {vr(dst+2,2)}, v3 offset:{slot*2048+ct*256+1024}")
def g2_step(slot, first):
    g2_issue((slot + 2) % 3)
    e("s_waitcnt vmcnt(8)")
    for ct in range(2):
        ring_read3(slot, ct, GAF[ct])
        e("s_waitcnt lgkmcnt(0)")
        for rt in range(2):
            a = GA[ct*2+rt]
            mfma(a, GAF[ct], HB[slot] + 4*rt, None if first else a)
g2_issue(0)
g2_issue(1)
g2_step(0, True)
e(f"s_sub_u32 s{sI}, s{sI}, 1")
lab("L_g2loop")
for slot in (1, 2, 0):
    g2_step(slot, False)
    e(f"s_sub_u32 s{sI}, s{sI}, 1")
    e(f"s_cmp_eq_u32 s{sI}, 0")
    e("s_cbranch_scc1 L_g2done" if slot != 0 else "s_cbranch_scc0 L_g2loop")
lab("L_g2done")
stamp(8)
e(f"v_and_b32 v4, 31, v{vL}")
e("v_lshlrev_b32 v4, 2, v4")
e(f"v_add_u32 v4, {L_G}, v4")
e("ds_read_b32 v6, v4")
e("ds_read_b32 v8, v4 offset:128")
e("s_waitcnt vmcnt(0) lgkmcnt(0)")
e("v_sub_f32 v6, 1.0, v6")
e("v_sub_f32 v8, 1.0, v8")
e("s_nop 5")
for t in range(4):
    for r in range(0, 16, 2):
        e(f"v_pk_mul_f32 {vr(GA[t]+r,2)}, {vr(GA[t]+r,2)}, {vr(6+2*(t&1),2)} op_sel_hi:[1,0]")
cm("tail addresses: v3 = O stage read, v10 = reduction write/read, v11 = output offset")
e(f"s_lshl_b32 s{sT3}, s{sV}, 14")
e(f"v_add_u32 v3, s{sT3}, v{vL16}")
e(f"v_add_u32 v10, 65536, v{vL16}")
e("v_add_u32 v9, 65536, v3")
e(f"v_and_b32 v11, 31, v{vL}")
e("v_lshlrev_b32 v11, 10, v11")
e(f"v_lshrrev_b32 v12, 5, v{vL}")
e("v_lshl_add_u32 v11, v12, 4, v11")
e(f"s_and_b32 s{sT}, s{sV}, 1")
e(f"s_lshl1_add_u32 s{sT}, s{sQB}, s{sT}")
e(f"s_lshl_b32 s{sT}, s{sT}, 15")
e(f"s_lshr_b32 s{sT2}, s{sV}, 1")
e(f"s_lshl1_add_u32 s{sT2}, s{sHG}, s{sT2}")
e(f"s_lshl_b32 s{sT2}, s{sT2}, 6")
e(f"s_add_u32 s{sT}, s{sT}, s{sT2}")
add64(sP2, sOUT, off_s=sT)
stamp(9)
e("s_barrier")
stamp(10)
e(f"s_mov_b32 s{sSPIN}, {SPIN}")
lab("L_opoll")
dma_lin(sO, sT3, 16)
e("v_mov_b32 v12, 0")
for g in range(4):
    e(f"s_waitcnt vmcnt({12-4*g})")
    for j in range(4):
        e(f"ds_read_b128 {vr(16+4*j)}, v3 offset:{g*4096+j*1024}")
    for j in range(4):
        e(f"s_waitcnt lgkmcnt({3-j})")
        e(f"v_max3_u32 v12, v12, v{16+4*j}, v{17+4*j}")
        e(f"v_max3_u32 v12, v12, v{18+4*j}, v{19+4*j}")
e("v_cmp_eq_u32 vcc, -1, v12")
e("s_cbranch_vccz L_ook")
e(f"s_sub_u32 s{sSPIN}, s{sSPIN}, 1")
e(f"s_cmp_lg_u32 s{sSPIN}, 0")
e("s_cbranch_scc1 L_opoll")
lab("L_ook")
stamp(11)
cm("all four tiles, row tile by row tile; then reduce-scatter through LDS: wave v keeps tile v")
OF = [12, 16, 20, 24, 28, 32]
seq = [(rt, ks) for rt in range(2) for ks in range(8)]
for n in range(4):
    rt, ks = seq[n]
    e(f"ds_read_b128 {vr(OF[n%6])}, v3 offset:{ks*2048+rt*1024}")
for n, (rt, ks) in enumerate(seq):
    if n + 4 < 16:
        r2, k2 = seq[n + 4]
        e(f"ds_read_b128 {vr(OF[(n+4)%6])}, v3 offset:{k2*2048+r2*1024}")
    if 11 <= n < 15:
        for q in (2*(n-11), 2*(n-11)+1):
            tt, qq = (0, q) if q < 4 else (2, q - 4)
            e(f"ds_write_b128 v9, {vr(GA[tt]+4*qq)} offset:{tt*4096+qq*1024}")
    younger = min(4, 15 - n)
    wr = sum(2 for m in range(n - 3, n + 1) if 11 <= m < 15)
    e(f"s_waitcnt lgkmcnt({younger + wr})")
    for ct in range(2):
        a = GA[ct*2+rt]
        mfma(a, 36 + 8*ks + 4*ct, OF[n % 6], a)
e("s_nop 11")
for tt in (1, 3):
    for qq in range(4):
        e(f"ds_write_b128 v9, {vr(GA[tt]+4*qq)} offset:{tt*4096+qq*1024}")
e("s_waitcnt lgkmcnt(0)")
lds_signal(C_RED, 4, 5)
lds_spin("red", C_RED, 4, 4, 5, slp=0)
stamp(12)
e(f"s_lshl_b32 s{sT}, s{sV}, 12")
e(f"v_add_u32 v10, s{sT}, v10")
for c in range(4):
    for q in range(4):
        e(f"ds_read_b128 {vr(36+16*c+4*q)}, v10 offset:{c*16384+q*1024}")
    if c == 2:
        e("s_waitcnt lgkmcnt(4)")
        for r in range(0, 16, 2):
            e(f"v_pk_add_f32 {vr(36+r,2)}, {vr(36+r,2)}, {vr(52+r,2)}")
e("s_waitcnt lgkmcnt(0)")
for r in range(0, 16, 2):
    e(f"v_pk_add_f32 {vr(68+r,2)}, {vr(68+r,2)}, {vr(84+r,2)}")
for r in range(0, 16, 2):
    e(f"v_pk_add_f32 {vr(36+r,2)}, {vr(36+r,2)}, {vr(68+r,2)}")
for i in range(8):
    e(f"v_cvt_pk_bf16_f32 v{16+i}, v{36+2*i}, v{37+2*i}")
e("s_nop 1")
for p in range(2):
    e(f"v_permlane32_swap_b32 v{16+4*p}, v{18+4*p}")
    e(f"v_permlane32_swap_b32 v{17+4*p}, v{19+4*p}")
for p in range(2):
    e(f"global_store_dwordx4 v11, {vr(16+4*p)}, {sr(sP2)} offset:{32*p}")
lab("L_fin")
if STAMPS:
    e("s_waitcnt vmcnt(0)")
    stamp(13)
    e("s_waitcnt lgkmcnt(0)")
    e(f"s_lshl_b32 s{sT}, s2, 4")
    e(f"s_add_u32 s{sT}, s{sT}, s{sWAVE}")
    e(f"s_lshl_b32 s{sT}, s{sT}, 7")
    e(f"s_add_u32 s{sT}, s{sT}, {WS_ST}")
    add64(sP, sWS, off_s=sT)
    if DIAG == 2:
        e(f"v_lshlrev_b32 v12, 2, v{vL}")
        e("s_mov_b64 exec, 0xff")
        e(f"global_store_dword v12, v150, {sr(sP)} offset:64")
    e("v_mov_b32 v12, 0")
    e("s_mov_b64 exec, 1")
    for i in range(15):
        e(f"v_mov_b32 v13, s{70+2*i}")
        e(f"global_store_dword v12, v13, {sr(sP)} offset:{4*i}")
    e("s_waitcnt vmcnt(0)")
lab("L_end")
e("s_endpgm")
lab("L_code_end")

HEAD = open(f"cdna_kernels/{NAME}.s.ref").read().split("; Override launch geometry")[0]
src = HEAD + f"""; @launch grid=(256,1,1) block=(768,1,1) lds={LDS_TOTAL}
.amdgcn_target "amdgcn-amd-amdhsa--gfx950"
.text
.globl {NAME}_kernel
.p2align 8
.type {NAME}_kernel,@function
{NAME}_kernel:
""" + "\n".join(L) + f"""
.section .rodata,"a"
.p2align 6
.amdhsa_kernel {NAME}_kernel
  .amdhsa_next_free_vgpr 168
  .amdhsa_next_free_sgpr 102
  .amdhsa_accum_offset 168
  .amdhsa_group_segment_fixed_size 0
  .amdhsa_kernarg_size 96
  .amdhsa_user_sgpr_count 2
  .amdhsa_user_sgpr_kernarg_segment_ptr 1
  .amdhsa_system_sgpr_workgroup_id_x 1
.end_amdhsa_kernel
"""
open(OUT, "w").write(src)
print("wrote", OUT, len(L), "lines")
```

```python
import sys, struct

NAME = "gated_mix__grouped_kv_mqa__dense_activation_silu__prompt"
STAMPS = "--stamps" in sys.argv
def opt(name, default):
    for a in sys.argv[1:]:
        if a.startswith(f"--{name}="): return int(a.split("=")[1])
    return default
OUT = [a for a in sys.argv[1:] if not a.startswith("--")]
OUT = OUT[0] if OUT else f"cdna_kernels/{NAME}.s"
DIAG = opt("diag", 0)

def f2u(x): return struct.unpack("<I", struct.pack("<f", x))[0]
LOG2E = 1.4426950408889634

TILE = 2080
KVBYTES = 64 * TILE
HALF = 32 * TILE
XS = 1040
L_X = HALF
L_RING = KVBYTES
RSZ = 7168
L_G = L_RING + 4 * RSZ
L_CNT = L_G + 256
L_GW = L_CNT + 256
LDS_TOTAL = L_GW + 1024
C_G2H, C_KVP, C_GO, C_RED, C_K1, C_W, C_Q1, C_Q2, C_GX = [L_CNT + 4*i for i in range(9)]
L_KVP = L_RING
L_QX = 49152
WS_KV, WS_FL, WS_H, WS_O, WS_ST = 0, 0x30000, 0x40000, 0x600000, 0x900000
SPIN = 1 << 16
WS_KF = WS_FL + 0x1000
WS_NONCE = WS_FL + 0x3000
TAGC = 0x9E3779B1

L = []
def e(s): L.append("    " + s)
def lab(s): L.append(s + ":")
def cm(s): L.append("    ; " + s)
def vr(a, n=4): return f"v[{a}:{a+n-1}]"
def sr(a, n=2): return f"s[{a}:{a+n-1}]"
def stamp(i):
    if STAMPS: e(f"s_memtime s[{72+2*i}:{73+2*i}]")

sX, sWQ, sWK, sWV, sWO, sW1, sW2, sGW, sOUT, sDBG, sWS = 4, 6, 8, 10, 12, 16, 18, 20, 22, 24, 26
sQB, sHG, sWAVE, sV = 28, 29, 30, 31
sJQ, sXM = 32, 33
sB0, sFL, sADV, sADV2, sRING, sN = 34, 36, 38, 39, 40, 41
sHT, sHT2 = 42, 43
sKV, sH, sO = 44, 46, 48
sT, sT2, sT3 = 50, 52, 54
sC, sTAG = 56, 58
sSPIN, sI, sCHK, sRETRY = 60, 61, 62, 63
sWB, sWB2 = 14, 64
sP, sP2 = 66, 68
vL, vL16 = 1, 2

def add64(dst, src, off_s=None, imm=None):
    o = f"s{off_s}" if off_s is not None else hex(imm)
    e(f"s_add_u32 s{dst}, s{src}, {o}")
    e(f"s_addc_u32 s{dst+1}, s{src+1}, 0")
def mfma(d, a, b, c):
    cs = "0" if c is None else vr(c, 16)
    e(f"v_mfma_f32_32x32x16_bf16 {vr(d,16)}, {vr(a)}, {vr(b)}, {cs}")
def lds_spin(name, off, want, va, vt, slp=1):
    e(f"v_mov_b32 v{va}, {off}")
    e(f"s_mov_b32 s{sSPIN}, {SPIN*64}")
    lab(f"L_{name}")
    e(f"ds_read_b32 v{vt}, v{va}")
    e("s_waitcnt lgkmcnt(0)")
    e(f"v_readfirstlane_b32 s{sT}, v{vt}")
    e(f"s_sub_u32 s{sSPIN}, s{sSPIN}, 1")
    e(f"s_cmp_eq_u32 s{sSPIN}, 0")
    e(f"s_cbranch_scc1 L_{name}_ok")
    e(f"s_cmp_ge_u32 s{sT}, {want}")
    e(f"s_cbranch_scc1 L_{name}_ok")
    e(f"s_sleep {slp}")
    e(f"s_branch L_{name}")
    lab(f"L_{name}_ok")
def lds_signal(off, va, vt):
    e(f"v_mov_b32 v{va}, {off}")
    e(f"v_mov_b32 v{vt}, 1")
    e("s_mov_b64 exec, 1")
    e(f"ds_add_u32 v{va}, v{vt}")
    e("s_mov_b64 exec, -1")
def dma_lin(base, first_s, n, lds_off=0):
    for j in range(0, n, 4):
        e(f"s_add_u32 s{sT}, s{first_s}, {j*1024}")
        e(f"s_add_u32 m0, s{sT}, {lds_off}")
        add64(sP, base, off_s=sT)
        for i in range(4):
            e(f"global_load_lds_dwordx4 v{vL16}, {sr(sP)} offset:{i*1024} sc1")
def dma_kv_one(off):
    e(f"s_mov_b32 m0, {off}")
    add64(sP, sKV, imm=off)
    e(f"global_load_lds_dwordx4 v{vL16}, {sr(sP)} sc1")
def tr_lane(dst, t0, t1):
    e(f"v_bfe_u32 v{dst}, v{vL}, 2, 2")
    e(f"v_bfe_u32 v{t0}, v{vL}, 4, 1")
    e(f"v_and_b32 v{t1}, 3, v{vL}")
    e(f"v_lshlrev_b32 v{dst}, 6, v{dst}")
    e(f"v_lshl_add_u32 v{dst}, v{t0}, 5, v{dst}")
    e(f"v_lshl_add_u32 v{dst}, v{t1}, 3, v{dst}")
    e(f"v_lshrrev_b32 v{t0}, 5, v{vL}")
    e(f"v_lshl_add_u32 v{dst}, v{t0}, 9, v{dst}")
def x_lane(dst, t0):
    e(f"v_and_b32 v{dst}, 31, v{vL}")
    e(f"v_mul_u32_u24 v{dst}, {XS}, v{dst}")
    e(f"v_lshrrev_b32 v{t0}, 5, v{vL}")
    e(f"v_lshl_add_u32 v{dst}, v{t0}, 4, v{dst}")
    e(f"v_add_u32 v{dst}, {L_X}, v{dst}")

e("s_load_dwordx16 s[4:19], s[0:1], 0")
e("s_load_dwordx8 s[20:27], s[0:1], 64")
e("s_cmp_ge_u32 s2, 256")
e("s_cbranch_scc1 L_end")
if STAMPS: e("s_memrealtime s[70:71]")
stamp(0)
e("v_lshrrev_b32 v5, 6, v0")
e(f"v_and_b32 v{vL}, 63, v0")
e(f"v_readfirstlane_b32 s{sWAVE}, v5")
e(f"v_lshlrev_b32 v{vL16}, 4, v{vL}")
cm("qb = ((wg&7)>>1)*8 + ((wg>>3)&7) ; hg = (wg&1)*4 + (wg>>6)")
e(f"s_bfe_u32 s{sT}, s2, 0x20001")
e(f"s_bfe_u32 s{sJQ}, s2, 0x30003")
e(f"s_lshl3_add_u32 s{sQB}, s{sT}, s{sJQ}")
e(f"s_and_b32 s{sT}, s2, 1")
e(f"s_lshr_b32 s{sT3}, s2, 6")
e(f"s_lshl2_add_u32 s{sHG}, s{sT}, s{sT3}")
e(f"s_cmp_ge_u32 s{sWAVE}, 8")
e("s_cbranch_scc1 L_gw")

e(f"s_lshl_b32 s{sT2}, s{sQB}, 16")
e(f"s_cmp_eq_u32 s{sT3}, 0")
e("s_cbranch_scc1 L_prod")
e(f"s_lshl_b32 s{sT3}, s{sT3}, 1")
e(f"s_lshl3_add_u32 s{sXM}, s{sWAVE}, s{sT3}")
def x_dma(x, first=False):
    e(f"s_xor_b32 s{sT}, s{sXM}, {x}")
    e(f"s_mul_i32 s{sT3}, s{sT}, {XS}")
    e(f"s_add_u32 m0, s{sT3}, {L_X}")
    e(f"s_lshl_b32 s{sT}, s{sT}, 10")
    e(f"v_add_u32 v16, s{sT}, v{vL16}")
    if first:
        e("s_waitcnt lgkmcnt(0)")
        stamp(9)
        add64(sP, sX, off_s=sT2)
    e(f"global_load_lds_dwordx4 v16, {sr(sP)}")
def piece_lane(dst, t0, t1):
    e(f"v_lshrrev_b32 v{t0}, 5, v{vL}")
    e(f"v_bfe_u32 v{t1}, v{vL}, 2, 2")
    e(f"v_lshl_add_u32 v{t0}, v{t0}, 2, v{t1}")
    e(f"v_lshlrev_b32 v{dst}, 10, v{t0}")
    e(f"v_bfe_u32 v{t1}, v{vL}, 4, 1")
    e(f"v_lshl_add_u32 v{dst}, v{t1}, 6, v{dst}")
    e(f"v_and_b32 v{t1}, 3, v{vL}")
    e(f"v_lshl_add_u32 v{dst}, v{t1}, 4, v{dst}")
def wq_base():
    e(f"s_lshl_b32 s{sT}, s{sHG}, 7")
    add64(sP2, sWQ, off_s=sT)
def wq_dma(i, flip=0):
    e(f"s_xor_b32 s{sT}, s{sJQ}, {i}")
    e(f"s_lshl3_add_u32 s{sT}, s{sT}, s{sWAVE}")
    if flip: e(f"s_xor_b32 s{sT}, s{sT}, {flip}")
    e(f"s_lshl_b32 m0, s{sT}, 10")
    e(f"s_lshl_b32 s{sT}, s{sT}, 13")
    e(f"v_add_u32 v16, s{sT}, v18")
    e(f"global_load_lds_dwordx4 v16, {sr(sP2)}")
piece_lane(18, 19, 20)
x_dma(0, True); x_dma(1)
wq_base()
wq_dma(0)
e("s_barrier")
for i in range(2, 8):
    x_dma(i)
for i in range(1, 8):
    wq_dma(i)
e("s_branch L_a3")
lab("L_prod")
cm("producer: waves 0..3 fetch rows 32*rt + 8w + i (rt = hg>>2) and their own 8 k-steps of [wk|wv]")
e(f"s_and_b32 s{sT}, s{sWAVE}, 3")
e(f"s_add_u32 s{sT}, s{sT}, s{sHG}")
e(f"s_lshl_b32 s{sXM}, s{sT}, 3")
e(f"s_cmp_ge_u32 s{sWAVE}, 4")
e("s_cbranch_scc1 L_prod2")
e(f"v_lshrrev_b32 v24, 2, v{vL}")
e("v_lshlrev_b32 v24, 5, v24")
e(f"v_and_b32 v25, 1, v{vL}")
e("v_lshl_add_u32 v24, v25, 4, v24")
e(f"s_lshl_b32 s{sT}, s{sWAVE}, 12")
e(f"v_add_u32 v24, s{sT}, v24")
e("v_mov_b32 v25, 0")
e(f"v_and_b32 v26, 2, v{vL}")
e("v_cmp_ne_u32 vcc, 0, v26")
x_dma(0, True)
e(f"v_mov_b32 v26, s{sWK}")
e(f"v_mov_b32 v27, s{sWK+1}")
e(f"v_mov_b32 v28, s{sWV}")
e(f"v_mov_b32 v29, s{sWV+1}")
e("v_cndmask_b32 v26, v26, v28, vcc")
e("v_cndmask_b32 v27, v27, v29, vcc")
e("v_lshl_add_u64 v[26:27], v[24:25], 0, v[26:27]")
e(f"s_cmp_eq_u32 s{sHG}, 0")
e(f"s_cselect_b32 s{sN}, {32*XS}, 0")
e(f"s_add_u32 s{sN}, s{sN}, {L_X}")
e(f"s_lshl_b32 s{sT2}, s{sWAVE}, 13")
e(f"s_add_u32 s{sN}, s{sN}, s{sT2}")
e(f"s_mov_b32 s{sP2+1}, 0")
def wkv_dma(i):
    e(f"s_xor_b32 s{sT}, s{sJQ}, {i}")
    e(f"s_lshl_b32 s{sP2}, s{sT}, 9")
    e(f"s_lshl_b32 s{sT}, s{sT}, 10")
    e(f"s_add_u32 m0, s{sT}, s{sN}")
    e(f"v_lshl_add_u64 v[28:29], v[26:27], 0, {sr(sP2)}")
    e("global_load_lds_dwordx4 v[28:29], off")
wkv_dma(0)
for i in range(1, 8):
    x_dma(i)
for i in range(1, 8):
    wkv_dma(i)
e("s_barrier")
e("s_branch L_a3")
lab("L_prod2")
piece_lane(18, 19, 20)
e("s_waitcnt lgkmcnt(0)")
add64(sP, sX, off_s=sT2)
e("s_barrier")
e("s_branch L_a3")

lab("L_gw")
e(f"s_sub_u32 s{sV}, s{sWAVE}, 8")
e(f"s_cmp_lg_u32 s{sV}, 0")
e("s_cbranch_scc1 L_gw1")
cm("pull the code into L2: 8 lines per workgroup; zero the LDS counters")
e(f"s_getpc_b64 {sr(sT)}")
lab("L_pc")
e(f"s_sub_u32 s{sT}, s{sT}, L_pc-{NAME}_kernel")
e(f"s_subb_u32 s{sT+1}, s{sT+1}, 0")
e(f"s_andn2_b32 s{sT2}, s2, 7")
e(f"v_and_b32 v3, 7, v{vL}")
e(f"v_add_lshl_u32 v3, v3, s{sT2}, 6")
e(f"v_min_u32 v3, L_code_end-{NAME}_kernel-4, v3")
e(f"global_load_dword v4, v3, {sr(sT)}")
e(f"v_and_b32 v16, 15, v{vL}")
e(f"v_lshlrev_b32 v16, 2, v16")
e(f"v_add_u32 v16, {L_CNT}, v16")
e("v_mov_b32 v17, 0")
e("ds_write_b32 v16, v17")
lab("L_gw1")
e("s_waitcnt lgkmcnt(0)")
e(f"s_cmp_lg_u32 s{sV}, 1")
e("s_cbranch_scc1 L_gw2")
e(f"s_mov_b32 m0, {L_GW}")
e("s_nop 0")
e(f"global_load_lds_dwordx4 v{vL16}, {sr(sGW)}")
lab("L_gw2")
e("s_barrier")
e("s_branch L_g4")

lab("L_a3")
e("s_setprio 3")
e(f"s_load_dword s{sTAG}, {sr(sWS)}, {hex(WS_NONCE)}")
add64(sFL, sWS, imm=WS_KF)
add64(sKV, sWS, imm=WS_KV)
e(f"s_lshl3_add_u32 s{sT}, s{sQB}, s{sHG}")
e(f"s_lshl3_add_u32 s{sT}, s{sT}, s{sWAVE}")
e(f"s_lshl_b32 s{sT}, s{sT}, 10")
e(f"s_add_u32 s{sT}, s{sT}, {WS_O}")
add64(sO, sWS, off_s=sT)
tr_lane(6, 32, 33)
x_lane(8, 32)
e("s_waitcnt lgkmcnt(0)")
e(f"s_add_u32 s{sTAG}, s{sTAG}, {hex(TAGC)}")
stamp(10)
e(f"s_and_b32 s{sT}, s{sHG}, 3")
e("s_cbranch_scc0 L_kv")
e("s_waitcnt vmcnt(0)")
stamp(11)
e("s_barrier")
e("s_branch L_q")
lab("L_kv")
e(f"s_cmp_lt_u32 s{sWAVE}, 4")
e("s_cbranch_scc1 L_kv0")
cm("waves 4..7: wq, then (once wk|wv has been consumed) the other half of X")
wq_base()
e(f"s_mov_b32 s{sI}, 0")
lab("L_kvq")
e(f"s_xor_b32 s{sT}, s{sJQ}, s{sI}")
e(f"s_lshl3_add_u32 s{sT}, s{sT}, s{sWAVE}")
for flip in (0, 4):
    if flip: e(f"s_xor_b32 s{sT}, s{sT}, 4")
    e(f"s_lshl_b32 m0, s{sT}, 10")
    e(f"s_lshl_b32 s{sT2}, s{sT}, 13")
    e(f"v_add_u32 v16, s{sT2}, v18")
    e(f"global_load_lds_dwordx4 v16, {sr(sP2)}")
e("s_waitcnt vmcnt(4)")
e(f"s_add_u32 s{sI}, s{sI}, 1")
e(f"s_cmp_lt_u32 s{sI}, 8")
e("s_cbranch_scc1 L_kvq")
lds_spin("kr", C_W, 4, 12, 13)
for i in range(8):
    x_dma(32 + i)
    e("s_waitcnt vmcnt(5)")
e("s_branch L_kv5")
lab("L_kv0")
e(f"s_lshr_b32 s{sT3}, s{sHG}, 2")
e(f"v_add_u32 v10, s{sN}, v6")
e(f"s_mul_i32 s{sC}, s{sT3}, {32*XS}")
e(f"s_lshl_b32 s{sT2}, s{sWAVE}, 8")
e(f"s_add_u32 s{sC}, s{sC}, s{sT2}")
e(f"v_add_u32 v11, s{sC}, v8")
e(f"s_lshl_b32 s{sC}, s{sWAVE}, 12")
e(f"s_add_u32 s{sC}, s{sC}, {L_KVP - 4096}")
e(f"v_add_u32 v12, s{sC}, v{vL16}")
e("s_waitcnt vmcnt(0)")
lds_signal(C_K1, 16, 17)
lds_spin("k1", C_K1, 4, 16, 17, slp=0)
stamp(11)
for i in range(8):
    e(f"ds_read_b64_tr_b16 {vr(128+4*(i&3),2)}, v10 offset:{i*1024}")
    e(f"ds_read_b64_tr_b16 {vr(130+4*(i&3),2)}, v10 offset:{i*1024+256}")
    e(f"ds_read_b128 {vr(144+4*(i&3))}, v11 offset:{i*32}")
    if i >= 2:
        e("s_waitcnt lgkmcnt(6)")
        mfma(64, 128+4*((i-2)&3), 144+4*((i-2)&3), None if i == 2 else 64)
e("s_waitcnt lgkmcnt(3)")
mfma(64, 128+8, 144+8, 64)
e("s_waitcnt lgkmcnt(0)")
mfma(64, 128+12, 144+12, 64)
lds_signal(C_W, 16, 17)
e(f"s_cmp_eq_u32 s{sWAVE}, 0")
e("s_cbranch_scc1 L_kv3")
e("s_nop 5")
for q in range(4):
    e(f"ds_write_b128 v12, {vr(64+4*q)} offset:{q*1024}")
e("s_waitcnt lgkmcnt(0)")
lds_signal(C_KVP, 16, 17)
lab("L_kv5")
e("s_waitcnt vmcnt(0) lgkmcnt(0)")
e("s_barrier")
e("s_branch L_q")
lab("L_kv3")
e(f"s_lshl1_add_u32 s{sT2}, s{sQB}, s{sT3}")
e(f"s_mul_i32 s{sT2}, s{sT2}, {TILE}")
add64(sP, sKV, off_s=sT2)
e(f"v_and_b32 v20, 31, v{vL}")
e(f"v_lshrrev_b32 v21, 5, v{vL}")
e("v_lshlrev_b32 v20, 5, v20")
e("v_lshl_add_u32 v20, v21, 3, v20")
e(f"v_add_u32 v20, {L_KVP + 12288}, v20")
e(f"v_bfe_u32 v22, v{vL}, 2, 2")
e(f"v_bfe_u32 v23, v{vL}, 4, 1")
e("v_lshl_add_u32 v22, v23, 2, v22")
e("v_lshl_add_u32 v22, v21, 4, v22")
e("v_lshlrev_b32 v22, 5, v22")
e(f"v_and_b32 v23, 3, v{vL}")
e("v_lshl_add_u32 v22, v23, 3, v22")
e(f"v_add_u32 v22, {L_KVP + 12288}, v22")
e(f"v_lshl_add_u32 v23, v21, 4, v{vL16}")
e(f"v_and_b32 v24, 1, v{vL}")
e("v_mul_u32_u24 v24, 528, v24")
for i in range(4):
    e(f"v_mov_b32 v{56+i}, 0x3f803f80")
e(f"global_store_dwordx4 v24, v[56:59], {sr(sP)} offset:{1024+512} sc1")
lds_spin("kvp", C_KVP, 3, 16, 17, slp=0)
PB = (80, 128, 144)
for c in range(3):
    for q in range(4):
        e(f"ds_read_b128 {vr(PB[c]+4*q)}, v12 offset:{4096+c*4096+q*1024}")
for c in range(3):
    e(f"s_waitcnt lgkmcnt({8-4*c})")
    for r in range(0, 16, 2):
        e(f"v_pk_add_f32 {vr(64+r,2)}, {vr(64+r,2)}, {vr(PB[c]+r,2)}")
for r in range(8, 16, 2):
    e(f"v_cvt_pk_bf16_f32 v{80+r//2}, v{64+r}, v{65+r}")
VT = 0
e(f"ds_write_b64 v20, v[84:85] offset:{VT}")
e(f"ds_write_b64 v20, v[86:87] offset:{VT+16}")
e(f"ds_read_b64_tr_b16 v[88:89], v22 offset:{VT}")
e(f"ds_read_b64_tr_b16 v[90:91], v22 offset:{VT+256}")
for r in range(0, 8, 2):
    e(f"v_cvt_pk_bf16_f32 v{80+r//2}, v{64+r}, v{65+r}")
e(f"global_store_dwordx4 v{vL16}, v[80:83], {sr(sP)} sc1")
e("s_waitcnt lgkmcnt(0)")
e(f"global_store_dwordx4 v23, v[88:91], {sr(sP)} offset:1024 sc1")
if DIAG == 1: stamp(5)
e(f"s_lshl1_add_u32 s{sT2}, s{sQB}, s{sT3}")
e(f"s_lshl_b32 s{sT2}, s{sT2}, 7")
e(f"v_mov_b32 v20, s{sT2}")
e(f"v_mov_b32 v21, s{sTAG}")
e("s_waitcnt vmcnt(0)")
if DIAG == 1: stamp(6)
e("s_mov_b64 exec, 1")
e(f"global_store_dword v20, v21, {sr(sFL)} sc1")
e("s_mov_b64 exec, -1")
stamp(12)
e("s_barrier")
lab("L_q")
stamp(1)
Q = 16
e(f"v_lshrrev_b32 v10, 5, v{vL}")
e("v_lshl_add_u32 v10, v10, 9, v6")
e(f"s_lshr_b32 s{sT}, s{sWAVE}, 2")
e(f"s_lshl_b32 s{sT}, s{sT}, 8")
e(f"s_bfe_u32 s{sT2}, s{sWAVE}, 0x10001")
e(f"s_lshl_b32 s{sT3}, s{sT2}, 15")
e(f"s_add_u32 s{sT}, s{sT}, s{sT3}")
e(f"v_add_u32 v10, s{sT}, v10")
e(f"s_and_b32 s{sT}, s{sWAVE}, 1")
e(f"s_mul_i32 s{sT}, s{sT}, {32*XS}")
e(f"s_lshl_b32 s{sT3}, s{sT2}, 9")
e(f"s_add_u32 s{sT}, s{sT}, s{sT3}")
e(f"v_add_u32 v11, s{sT}, v8")
NB = 5
def q_reads(u):
    e(f"ds_read_b64_tr_b16 {vr(96+8*(u%NB),2)}, v10 offset:{u*2048}")
    e(f"ds_read_b64_tr_b16 {vr(98+8*(u%NB),2)}, v10 offset:{u*2048+512}")
    e(f"ds_read_b128 {vr(100+8*(u%NB))}, v11 offset:{u*32}")
for u in range(NB - 1):
    q_reads(u)
for u in range(16):
    if u + NB - 1 < 16:
        q_reads(u + NB - 1)
    e(f"s_waitcnt lgkmcnt({3*min(NB-1, 15-u)})")
    mfma(64, 96+8*(u%NB), 100+8*(u%NB), None if u == 0 else 64)
e(f"s_lshl_b32 s{sT}, s{sWAVE}, 11")
e(f"s_add_u32 s{sT}, s{sT}, {L_QX}")
e(f"v_add_u32 v12, s{sT}, v{vL16}")
e("v_xor_b32 v13, 4096, v12")
e(f"s_mov_b32 s{sC}, {hex(f2u(0.25*LOG2E))}")
if DIAG == 3: stamp(5)
e("s_barrier")
if DIAG == 3: stamp(6)
e("s_nop 4")
e(f"s_cmp_eq_u32 s{sT2}, 0")
e("s_cbranch_scc0 L_q1")
e("ds_write_b128 v12, v[72:75]")
e("ds_write_b128 v12, v[76:79] offset:1024")
e("s_branch L_q2")
lab("L_q1")
e("ds_write_b128 v12, v[64:67]")
e("ds_write_b128 v12, v[68:71] offset:1024")
e("s_waitcnt lgkmcnt(0)")
for r in range(8):
    e(f"v_mov_b32 v{64+r}, v{72+r}")
lab("L_q2")
e("s_waitcnt lgkmcnt(0)")
e("s_barrier")
if DIAG == 3: stamp(8)
e("ds_read_b128 v[80:83], v13")
e("ds_read_b128 v[84:87], v13 offset:1024")
e("s_waitcnt lgkmcnt(0)")
lds_signal(C_GO, 12, 13)
for r in range(8):
    e(f"v_add_f32 v{64+r}, v{64+r}, v{80+r}")
for r in range(8):
    e(f"v_mul_f32 v{64+r}, s{sC}, v{64+r}")
for i in range(4):
    e(f"v_cvt_pk_bf16_f32 v{Q+i}, v{64+2*i}, v{65+2*i}")
KF = [20, 24]
V0 = [28, 32]
V1 = [36, 40]
P = [48, 56]
S = [64, 80]
C = 96
O = 112
vK, vV0, vV = 10, 9, 11
cm("V lane address: m>=16: 1024 + h*256 + (m-16)*16 ; else 1024+512 (ones)")
e(f"v_and_b32 v12, 15, v{vL}")
e(f"v_lshrrev_b32 v13, 5, v{vL}")
e("v_lshlrev_b32 v12, 4, v12")
e("v_lshl_add_u32 v12, v13, 8, v12")
e(f"v_and_b32 v13, 16, v{vL}")
e("v_cmp_ne_u32 vcc, 0, v13")
e("v_mov_b32 v13, 512")
e(f"s_mov_b32 s{sRETRY}, 0")
e(f"s_mov_b32 s{sCHK}, 9")
e(f"v_cndmask_b32 v{vV0}, v13, v12, vcc")
e(f"v_add_u32 v{vV0}, 1024, v{vV0}")
if opt("zrows", 0):
    cm("rows other than 0 and 4 of the spare half read out of range (zeros)")
    e(f"v_and_b32 v12, 27, v{vL}")
    e(f"v_cmp_lt_u32 vcc, 0, v12")
    e(f"v_cmp_gt_u32 {sr(sT)}, 16, v12")
    e(f"s_and_b64 vcc, vcc, {sr(sT)}")
    e("v_mov_b32 v13, 0x40000")
    e("s_nop 1")
    e(f"v_cndmask_b32 v{vV0}, v{vV0}, v13, vcc")
stamp(2)
def att_zero():
    for r in range(16):
        e(f"v_mov_b32 v{O+r}, 0")
    for r in range(4):
        e(f"v_mov_b32 v{V1[1]+r}, 0")
        e(f"v_mov_b32 v{P[1]+4+r}, 0")
    e(f"v_mov_b32 v{S[1]+14}, 0")
    e(f"v_mov_b32 v{S[1]+15}, 0")
att_zero()
e("s_setprio 0")
e(f"s_cmp_lg_u32 s{sWAVE}, 7")
e("s_cbranch_scc1 L_kvw")
e(f"v_and_b32 v12, 31, v{vL}")
e("v_lshlrev_b32 v12, 7, v12")
e(f"s_mov_b32 s{sSPIN}, {SPIN}")
lab("L_kvpoll")
e(f"global_load_dword v13, v12, {sr(sFL)} sc1")
e("s_waitcnt vmcnt(0)")
e(f"v_cmp_ne_u32 vcc, s{sTAG}, v13")
e("s_cbranch_vccz L_kvpoll_ok")
e("s_sleep 2")
e(f"s_sub_u32 s{sSPIN}, s{sSPIN}, 1")
e(f"s_cmp_lg_u32 s{sSPIN}, 0")
e("s_cbranch_scc1 L_kvpoll")
lab("L_kvpoll_ok")
lds_signal(C_GO, 12, 13)
lab("L_kvw")
lds_spin("kvw2", C_GO, 9, 12, 13)
e("s_setprio 3")
stamp(3)
cm("pieces 2w,2w+1 (+16 by wave 0) gate the start, then 17+6w..")
e(f"s_cmp_lg_u32 s{sWAVE}, 0")
e("s_cbranch_scc1 L_kvw3")
dma_kv_one(16384)
lab("L_kvw3")
e(f"s_lshl_b32 s{sT}, s{sWAVE}, 11")
e(f"s_mov_b32 m0, s{sT}")
add64(sP, sKV, off_s=sT)
for i in range(2):
    e(f"global_load_lds_dwordx4 v{vL16}, {sr(sP)} offset:{i*1024} sc1")
for i in range(4):
    e(f"v_mov_b32 v{128+i}, -1")
e("s_waitcnt vmcnt(0)")
lds_signal(C_Q1, 12, 13)
cm("poison this wave's O slot; waves 4..7 request the rest of the first half (pieces 17..64)")
e(f"global_store_dwordx4 v{vL16}, v[128:131], {sr(sO)} sc1")
e(f"s_cmp_lt_u32 s{sWAVE}, 4")
e("s_cbranch_scc1 L_kvw4")
e(f"s_mul_i32 s{sT3}, s{sWAVE}, 12288")
e(f"s_sub_u32 s{sT3}, s{sT3}, {4*12288 - 17*1024}")
dma_lin(sKV, sT3, 12)
lab("L_kvw4")
lds_spin("kq1", C_Q1, 8, 12, 13, slp=0)
stamp(4)
if STAMPS: e("s_memrealtime s[88:89]")
e("s_setprio 1")
e(f"ds_read_b128 {vr(KF[0])}, v{vL16}")
def att_first_loads():
    e(f"ds_read_b128 {vr(KF[1])}, v{vL16} offset:{TILE}")
    e(f"ds_read_b128 {vr(V0[0])}, v{vV0}")
    e(f"ds_read_b128 {vr(V0[1])}, v{vV0} offset:{TILE}")
    e(f"ds_read_b128 {vr(V1[0])}, v{vV0} offset:528")
att_first_loads()
e("s_waitcnt lgkmcnt(4)")
mfma(S[0], KF[0], Q, None)
e("s_nop 11")
e(f"v_max3_f32 v12, v{S[0]}, v{S[0]+1}, v{S[0]+2}")
for r in range(3, 15, 2):
    e(f"v_max3_f32 v12, v12, v{S[0]+r}, v{S[0]+r+1}")
e(f"v_max_f32 v12, v12, v{S[0]+15}")
lab("L_att_setC")
e("v_mov_b32 v14, v12")
e(f"v_mov_b32 v{vK}, v{vL16}")
e(f"v_mov_b32 v{vV}, v{vV0}")
e("v_permlane32_swap_b32 v12, v14")
e(f"s_mov_b32 s{sI}, 0")
e("s_nop 0")
e("v_max_f32 v12, v12, v14")
for r in range(16):
    e(f"v_sub_f32 v{C+r}, 0, v12")
e("s_waitcnt lgkmcnt(0)")
e("s_nop 0")
mfma(S[0], KF[0], Q, C)
e(f"ds_read_b128 {vr(KF[0])}, v{vL16} offset:{2*TILE}")
e("s_nop 10")
if DIAG not in (1, 3): stamp(5)
UN = 8
def ex(x, r): e(f"v_exp_f32 v{S[x]+r}, v{S[x]+r}")
def cv(x, i): e(f"v_cvt_pk_bf16_f32 v{P[x]+i}, v{S[x]+2*i}, v{S[x]+2*i+1}")
L.append(".p2align 6")
lab("L_att_loop")
for u in range(UN):
    x = u & 1; y = 1 - x
    if u == 5:
        e(f"s_bitcmp1_b32 s{sCHK}, s{sI}")
        e("s_cbranch_scc1 L_att_chk")
        lab("L_att_chk_ret")
    ex(x, 0); cv(y, 7); ex(x, 1); ex(x, 2)
    mfma(O, V1[y], P[y] + 4, O)
    e(f"ds_read_b128 {vr(V1[y])}, v{vV} offset:{(u+1)*TILE+528}")
    cv(x, 0); ex(x, 3); ex(x, 4); cv(x, 1); ex(x, 5); ex(x, 6); cv(x, 2); ex(x, 7)
    mfma(S[y], KF[y], Q, C)
    e(f"ds_read_b128 {vr(KF[y])}, v{vK} offset:{(u+3)*TILE}")
    ex(x, 8); cv(x, 3); ex(x, 9); ex(x, 10); cv(x, 4); ex(x, 11); ex(x, 12)
    mfma(O, V0[x], P[x], O)
    e("s_waitcnt lgkmcnt(2)")
    e(f"ds_read_b128 {vr(V0[x])}, v{vV} offset:{(u+2)*TILE}")
    cv(x, 5); ex(x, 13); ex(x, 14); cv(x, 6); ex(x, 15)
if DIAG == 2:
    e("s_memtime s[100:101]")
    e("s_waitcnt lgkmcnt(0)")
    e(f"s_mov_b32 m0, s{sI}")
    e("s_nop 0")
    e("v_writelane_b32 v150, s100, m0")
e(f"v_add_u32 v{vK}, {UN*TILE}, v{vK}")
e(f"v_add_u32 v{vV}, {UN*TILE}, v{vV}")
e(f"s_add_u32 s{sI}, s{sI}, 1")
e(f"s_cmp_lt_u32 s{sI}, {64//UN - 1}")
e("s_cbranch_scc1 L_att_loop")
e("s_setprio 0")
e(f"s_cmp_lt_u32 s{sI}, {64//UN}")
e("s_cbranch_scc1 L_att_loop")
e("s_setprio 3")
cv(1, 7)
e(f"s_and_b32 s{sT}, s{sWAVE}, 1")
e(f"s_lshl_b32 s{sT}, s{sT}, 7")
mfma(O, V1[1], P[1] + 4, O)
if DIAG not in (1, 3): stamp(6)
e(f"s_add_u32 s{sT}, s{sT}, {L_G}")
e(f"v_and_b32 v12, 31, v{vL}")
e(f"v_lshl_add_u32 v12, v12, 2, s{sT}")
e("ds_read_b32 v14, v12")
e(f"s_mov_b32 s{sT}, {hex(f2u(2.0**86))}")
e("v_mov_b32 v13, 0x207")
e("s_nop 6")
cm("safety check of the stand-in max: l < 2^42 and O finite, else redo with the true row max")
e(f"v_mul_f32 v12, s{sT}, v{O}")
for r in range(8, 16):
    e(f"v_add_f32 v12, v12, abs(v{O+r})")
e("v_cmp_class_f32 vcc, v12, v13")
e(f"v_rcp_f32 v12, v{O}")
e("s_cbranch_vccz L_att_ok")
e(f"s_cmp_eq_u32 s{sRETRY}, 0")
e("s_cbranch_scc1 L_att_truemax")
lab("L_att_ok")
e("s_waitcnt lgkmcnt(0)")
e("v_mul_f32 v12, v12, v14")
for r in range(8, 16):
    e(f"v_mul_f32 v{O+r}, v{O+r}, v12")
for i in range(4):
    e(f"v_cvt_pk_bf16_f32 v{P[0]+i}, v{O+8+2*i}, v{O+9+2*i}")
for i in range(4):
    e(f"v_min_u32 v{P[0]+i}, -2, v{P[0]+i}")
e(f"global_store_dwordx4 v{vL16}, {vr(P[0])}, {sr(sO)} sc1")
stamp(7)
if STAMPS: e("s_memrealtime s[96:97]")
e("s_barrier")
e("s_branch L_fin")
lab("L_att_chk")
e(f"s_cmp_eq_u32 s{sI}, 0")
e("s_cbranch_scc0 L_att_chk3")
e("s_waitcnt vmcnt(0)")
lds_signal(C_Q2, 12, 13)
lds_spin("att_chk2", C_Q2, 8, 12, 13)
e("s_branch L_att_chk_ret")
lab("L_att_chk3")
lds_spin("att_chk4", C_G2H, 4, 12, 13)
e("s_branch L_att_chk_ret")
lab("L_att_truemax")
e(f"s_mov_b32 s{sRETRY}, 1")
e("v_mov_b32 v12, 0xff800000")
e(f"v_mov_b32 v{vK}, v{vL16}")
e(f"s_mov_b32 s{sI}, 0")
lab("L_att_tm")
e(f"ds_read_b128 {vr(KF[0])}, v{vK}")
e(f"v_add_u32 v{vK}, {TILE}, v{vK}")
e("s_waitcnt lgkmcnt(0)")
mfma(S[0], KF[0], Q, None)
e("s_nop 15")
for r in range(0, 16, 2):
    e(f"v_max3_f32 v12, v12, v{S[0]+r}, v{S[0]+r+1}")
e(f"s_add_u32 s{sI}, s{sI}, 1")
e(f"s_cmp_lt_u32 s{sI}, 64")
e("s_cbranch_scc1 L_att_tm")
e(f"ds_read_b128 {vr(KF[0])}, v{vL16}")
att_first_loads()
att_zero()
e("s_branch L_att_setC")

lab("L_g4")
e("s_setprio 2")
e(f"s_lshl_b32 s{sJQ}, s{sJQ}, 2")
cm("H tiles: start = 6hg - 2[hg>0] - 2[hg>4]; unit 1 = start+v (both row tiles); unit 2 = start+4+(v>>1), row tile v&1")
e(f"s_mul_i32 s{sHT}, s{sHG}, 6")
e(f"s_cmp_gt_u32 s{sHG}, 0")
e(f"s_cselect_b32 s{sT}, 2, 0")
e(f"s_sub_u32 s{sHT}, s{sHT}, s{sT}")
e(f"s_cmp_gt_u32 s{sHG}, 4")
e(f"s_cselect_b32 s{sT}, 2, 0")
e(f"s_sub_u32 s{sHT}, s{sHT}, s{sT}")
e(f"s_lshr_b32 s{sT}, s{sV}, 1")
e(f"s_add_u32 s{sHT2}, s{sHT}, s{sT}")
e(f"s_add_u32 s{sHT2}, s{sHT2}, 4")
e(f"s_add_u32 s{sHT}, s{sHT}, s{sV}")
e(f"s_and_b32 s{sT}, s{sHG}, 3")
e(f"s_cselect_b32 s{sN}, 1, 0")
e(f"s_cmp_gt_u32 s{sHT2}, 42")
e(f"s_cselect_b32 s{sN}, 0, s{sN}")
e(f"s_min_u32 s{sHT2}, s{sHT2}, 42")
e(f"s_mul_i32 s{sRING}, s{sV}, {RSZ}")
e(f"s_add_u32 s{sRING}, s{sRING}, {L_RING}")
e(f"v_lshrrev_b32 v26, 2, v{vL}")
e(f"v_and_b32 v27, 3, v{vL}")
e("v_mul_u32_u24 v24, 2752, v26")
e("v_lshl_add_u32 v24, v27, 4, v24")
e(f"s_lshl_b32 s{sT}, s{sHT}, 6")
add64(sWB, sW1, off_s=sT)
e(f"s_lshl_b32 s{sT}, s{sHT2}, 6")
add64(sWB2, sW1, off_s=sT)
ADV = 16 * 2752
def w_ptr_group(idx_s=None, imm=None):
    e(f"s_xor_b32 s{sT}, s{sJQ}, " + (f"s{idx_s}" if idx_s is not None else str(imm)))
    e(f"s_mul_i32 s{sT}, s{sT}, {ADV}")
    add64(sB0, sWB, off_s=sT)
e(f"s_lshl_b32 s{sT}, s{sQB}, 7")
e(f"s_add_u32 s{sT}, s{sT}, {WS_FL}")
add64(sFL, sWS, off_s=sT)
e(f"s_load_dword s{sTAG}, {sr(sWS)}, {hex(WS_NONCE)}")
add64(sKV, sWS, imm=WS_KV)
e(f"s_mul_i32 s{sT}, s{sQB}, {43*4096}")
e(f"s_add_u32 s{sT}, s{sT}, {WS_H}")
add64(sH, sWS, off_s=sT)
e(f"s_lshl_b32 s{sT}, s{sQB}, 16")
e(f"s_add_u32 s{sT}, s{sT}, {WS_O}")
add64(sO, sWS, off_s=sT)
tr_lane(7, 32, 33)
e(f"v_add_u32 v7, s{sRING}, v7")
x_lane(9, 32)
sR, sW = sADV, sADV2
e(f"s_mov_b32 s{sR}, 0")
e(f"s_add_u32 s{sW}, s{sRING}, {6*1024}")
e(f"s_mov_b32 s{sI}, 0")
for r in range(32):
    e(f"v_mov_b32 v{64+r}, 0")
for r in range(12):
    e(f"v_mov_b32 v{36 + r if r < 4 else (40 + r if r < 8 else 44 + r)}, 0")
e("s_waitcnt vmcnt(0) lgkmcnt(0)")
e(f"s_add_u32 s{sTAG}, s{sTAG}, {hex(TAGC)}")
e("s_barrier")
stamp(1)
for i in range(6):
    if i % 4 == 0: w_ptr_group(imm=i)
    else: add64(sB0, sB0, imm=ADV)
    e(f"s_add_u32 m0, s{sRING}, {i*1024}")
    e("s_nop 0")
    e(f"global_load_lds_dwordx4 v24, {sr(sB0)}")
if DIAG == 3: e("s_memtime s[100:101]")
e("s_barrier")
e("s_barrier")
cm("gate: rows 16v + (l>>3) (+8), part = l&7")
e(f"v_lshrrev_b32 v12, 3, v{vL}")
e(f"s_lshl_b32 s{sT}, s{sV}, 4")
e(f"v_add_u32 v12, s{sT}, v12")
e(f"v_mul_u32_u24 v10, {XS}, v12")
e(f"v_and_b32 v11, 7, v{vL}")
e("v_lshlrev_b32 v11, 4, v11")
e("v_add_u32 v10, v10, v11")
e(f"v_add_u32 v11, {L_GW}, v11")
e(f"v_add_u32 v10, {L_X}, v10")
e("v_lshlrev_b32 v12, 2, v12")
e(f"v_add_u32 v12, {L_G}, v12")
e("v_mov_b32 v14, 0")
e("v_mov_b32 v15, 0")
def g_reads(i):
    b = 96 + 12 * (i % 4)
    e(f"ds_read_b128 {vr(b)}, v11 offset:{i*128}")
    e(f"ds_read_b128 {vr(b+4)}, v10 offset:{i*128}")
    e(f"ds_read_b128 {vr(b+8)}, v10 offset:{i*128+8*XS}")
for i in range(4):
    g_reads(i)
for i in range(8):
    b = 96 + 12 * (i % 4)
    e(f"s_waitcnt lgkmcnt({3*min(3, 7-i)})")
    for j in range(4):
        e(f"v_dot2_f32_bf16 v14, v{b+4+j}, v{b+j}, v14")
        e(f"v_dot2_f32_bf16 v15, v{b+8+j}, v{b+j}, v15")
    if i + 4 < 8:
        g_reads(i + 4)
e("s_nop 2")
for perm in ("quad_perm:[1,0,3,2]", "quad_perm:[2,3,0,1]", "row_half_mirror"):
    e(f"v_add_f32_dpp v14, v14, v14 {perm} row_mask:0xf bank_mask:0xf")
    e(f"v_add_f32_dpp v15, v15, v15 {perm} row_mask:0xf bank_mask:0xf")
    e("s_nop 0")
for r in (14, 15):
    e(f"v_mul_f32 v{r}, {hex(f2u(-LOG2E))}, v{r}")
for r in (14, 15):
    e(f"v_exp_f32 v{r}, v{r}")
e("s_nop 0")
for r in (14, 15):
    e(f"v_add_f32 v{r}, 1.0, v{r}")
for r in (14, 15):
    e(f"v_rcp_f32 v{r}, v{r}")
e("s_nop 0")
e("ds_write_b32 v12, v14")
e("ds_write_b32 v12, v15 offset:32")
e("s_waitcnt lgkmcnt(0)")
ACC = [64, 80]
AF = [32, 36]
BF = [[40, 44], [48, 52]]
def g1_loop(nrt, tag):
    lab(f"L_g1{tag}")
    for u in range(4):
        if u == 0:
            e(f"s_and_b32 s{sT}, s{sI}, 31")
            e(f"s_xor_b32 s{sT}, s{sT}, s{sJQ}")
            e(f"s_lshl_b32 s{sT}, s{sT}, 5")
            e(f"v_add_u32 v8, s{sT}, v9")
        e(f"v_add_u32 v6, s{sR}, v7")
        e("s_waitcnt vmcnt(5)")
        e(f"ds_read_b64_tr_b16 {vr(AF[u&1],2)}, v6")
        e(f"ds_read_b64_tr_b16 {vr(AF[u&1]+2,2)}, v6 offset:256")
        for rt in range(nrt):
            e(f"ds_read_b128 {vr(BF[rt][u&1])}, v8 offset:{rt*32*XS+u*32}")
        if u == 2:
            e(f"s_add_u32 s{sT2}, s{sI}, 8")
            e(f"s_cmp_eq_u32 s{sT2}, 32")
            e(f"s_cselect_b32 s{sWB}, s{sWB2}, s{sWB}")
            e(f"s_cselect_b32 s{sWB+1}, s{sWB2+1}, s{sWB+1}")
            e(f"s_and_b32 s{sT2}, s{sT2}, 31")
            w_ptr_group(idx_s=sT2)
        else:
            add64(sB0, sB0, imm=ADV)
        e(f"s_mov_b32 m0, s{sW}")
        e(f"s_add_u32 s{sW}, s{sRING}, s{sR}")
        e(f"s_waitcnt lgkmcnt({2+nrt})")
        e(f"global_load_lds_dwordx4 v24, {sr(sB0)}")
        e(f"s_add_u32 s{sR}, s{sR}, 1024")
        e(f"s_cmp_eq_u32 s{sR}, {RSZ}")
        e(f"s_cselect_b32 s{sR}, 0, s{sR}")
        for rt in range(nrt):
            mfma(ACC[rt], AF[(u+1) & 1], BF[rt][(u+1) & 1], ACC[rt])
    e(f"s_add_u32 s{sI}, s{sI}, 4")
    e(f"s_and_b32 s{sT}, s{sI}, 31")
    e(f"s_cbranch_scc1 L_g1{tag}")
    e("s_waitcnt lgkmcnt(0)")
    for rt in range(nrt):
        mfma(ACC[rt], AF[1], BF[rt][1], ACC[rt])
def silu(a, dst):
    for r in range(0, 16, 2):
        e(f"v_pk_mul_f32 {vr(96+r,2)}, {vr(a+r,2)}, {sr(sC)}")
    for r in range(16):
        e(f"v_exp_f32 v{96+r}, v{96+r}")
    for r in range(0, 16, 2):
        e(f"v_pk_add_f32 {vr(96+r,2)}, {vr(96+r,2)}, 1.0 op_sel_hi:[1,0]")
    for r in range(16):
        e(f"v_rcp_f32 v{96+r}, v{96+r}")
    for r in range(0, 16, 2):
        e(f"v_pk_mul_f32 {vr(96+r,2)}, {vr(96+r,2)}, {vr(a+r,2)}")
    for r in range(0, 16, 2):
        e(f"v_cvt_pk_bf16_f32 v{dst+r//2}, v{96+r}, v{97+r}")
g1_loop(2, "a")
e(f"s_mov_b32 s{sC}, {hex(f2u(-LOG2E))}")
e(f"s_mov_b32 s{sC+1}, s{sC}")
e("s_nop 9")
silu(64, 112)
silu(80, 120)
if DIAG != 3: stamp(2)
e(f"s_cmp_eq_u32 s{sN}, 0")
e("s_cbranch_scc1 L_g1done")
e(f"s_and_b32 s{sT}, s{sV}, 1")
e(f"s_mul_i32 s{sT}, s{sT}, {32*XS}")
e(f"v_add_u32 v9, s{sT}, v9")
for r in range(16):
    e(f"v_mov_b32 v{64+r}, 0")
for r in range(4):
    e(f"v_mov_b32 v{36+r}, 0")
    e(f"v_mov_b32 v{44+r}, 0")
g1_loop(1, "b")
lds_signal(C_GX, 12, 13)
e("s_nop 7")
silu(64, 128)
e("s_branch L_g1done2")
lab("L_g1done")
lds_signal(C_GX, 12, 13)
lab("L_g1done2")
if DIAG == 3:
    e("s_mov_b32 s78, s100")
else:
    stamp(3)
GA = [100, 116, 132, 148]
piece_lane(8, 32, 33)
e("v_add_u32 v9, 0x2000, v8")
cm("X is dead once all 12 waves are through with it; K/V is published once C_GO reaches 9")
lds_spin("gx", C_GX, 4, 12, 13, slp=2)
lds_spin("gk", C_GO, 9, 12, 13, slp=2)
e(f"v_and_b32 v12, 31, v{vL}")
e("v_lshlrev_b32 v12, 7, v12")
e(f"v_add_u32 v12, {WS_KF + 4096}, v12")
e(f"s_mov_b32 s{sSPIN}, {SPIN}")
lab("L_kvpoll2")
e(f"global_load_dword v13, v12, {sr(sWS)} sc1")
e("s_waitcnt vmcnt(0)")
e(f"v_cmp_ne_u32 vcc, s{sTAG}, v13")
e("s_cbranch_vccz L_kvpoll2_ok")
e("s_sleep 8")
e(f"s_sub_u32 s{sSPIN}, s{sSPIN}, 1")
e(f"s_cmp_lg_u32 s{sSPIN}, 0")
e("s_cbranch_scc1 L_kvpoll2")
lab("L_kvpoll2_ok")
stamp(4)
cm("second half of K/V: pieces 65..129 (16 per wave + 1)")
e(f"s_lshl_b32 s{sT3}, s{sV}, 14")
e(f"s_add_u32 s{sT3}, s{sT3}, {65*1024}")
dma_lin(sKV, sT3, 16)
e(f"s_cmp_lg_u32 s{sV}, 0")
e("s_cbranch_scc1 L_g5")
dma_kv_one(129 * 1024)
lab("L_g5")
e(f"s_lshl_b32 s{sT}, s{sHT}, 12")
add64(sP, sH, off_s=sT)
for rt in range(2):
    for ks in range(2):
        e(f"global_store_dwordx4 v{vL16}, {vr(112+rt*8+ks*4)}, {sr(sP)} offset:{ks*2048+rt*1024} sc1")
e("s_waitcnt vmcnt(4)")
lds_signal(C_G2H, 12, 13)
stamp(5)
e(f"s_cmp_eq_u32 s{sN}, 0")
e("s_cbranch_scc1 L_g5b")
e(f"s_and_b32 s{sT}, s{sV}, 1")
e(f"s_lshl2_add_u32 s{sT}, s{sHT2}, s{sT}")
e(f"s_lshl_b32 s{sT}, s{sT}, 10")
add64(sP, sH, off_s=sT)
for ks in range(2):
    e(f"global_store_dwordx4 v{vL16}, {vr(128+ks*4)}, {sr(sP)} offset:{ks*2048} sc1")
lab("L_g5b")
e("s_waitcnt vmcnt(0)")
lds_signal(C_GX, 12, 13)
e(f"s_cmp_lg_u32 s{sV}, 0")
e("s_cbranch_scc1 L_g6")
cm("publish H once every G-wave's stores have drained")
lds_spin("hdr", C_GX, 8, 12, 13, slp=2)
lds_spin("hdr2", C_Q2, 8, 12, 13, slp=2)
e(f"s_lshl_b32 s{sT}, s{sHG}, 2")
e(f"v_mov_b32 v12, s{sT}")
e(f"v_mov_b32 v13, s{sTAG}")
e("s_mov_b64 exec, 1")
e(f"global_store_dword v12, v13, {sr(sFL)} sc1")
cm("every wave of this workgroup has read the epoch; the last workgroup to get here advances it")
e("v_mov_b32 v12, 0")
e("v_mov_b32 v14, 1")
e(f"global_atomic_add v15, v12, v14, {sr(sDBG)} sc0 sc1")
e("s_waitcnt vmcnt(0)")
e("v_cmp_eq_u32 vcc, 0xff, v15")
e("s_cbranch_vccz L_g6a")
e(f"v_mov_b32 v12, {WS_NONCE}")
e(f"global_store_dword v12, v13, {sr(sWS)} sc1")
lab("L_g6a")
e("s_mov_b64 exec, -1")
lab("L_g6")
def ring_issue(slot, base):
    e(f"s_add_u32 m0, s{sRING}, {slot*2048}")
    e("s_nop 0")
    e(f"global_load_lds_dwordx4 v8, {sr(base)}")
    e(f"s_add_u32 m0, s{sRING}, {slot*2048+1024}")
    e("s_nop 0")
    e(f"global_load_lds_dwordx4 v9, {sr(base)}")
def ring_read(slot, ct, dst):
    e(f"ds_read_b64_tr_b16 {vr(dst,2)}, v7 offset:{slot*2048+ct*256}")
    e(f"ds_read_b64_tr_b16 {vr(dst+2,2)}, v7 offset:{slot*2048+ct*256+1024}")
e(f"s_lshl_b32 s{sT}, s{sV}, 17")
e(f"s_lshl_b32 s{sT2}, s{sHG}, 7")
e(f"s_add_u32 s{sT}, s{sT}, s{sT2}")
add64(sP, sWO, off_s=sT)
for ks in range(3):
    ring_issue(ks, sP)
    add64(sP, sP, imm=16384)
for ks in range(8):
    e(f"s_waitcnt vmcnt({2*min(2, 7-ks)})")
    ring_read(ks % 3, 0, 36 + 8*ks)
    ring_read(ks % 3, 1, 40 + 8*ks)
    if ks + 3 < 8:
        e("s_waitcnt lgkmcnt(0)")
        ring_issue(ks % 3, sP)
        add64(sP, sP, imm=16384)
e("s_waitcnt lgkmcnt(0)")
stamp(6)
e(f"v_and_b32 v12, 7, v{vL}")
e("v_lshlrev_b32 v12, 2, v12")
e(f"s_mov_b32 s{sSPIN}, {SPIN}")
lab("L_hpoll")
e(f"global_load_dword v13, v12, {sr(sFL)} sc1")
e("s_waitcnt vmcnt(0)")
e(f"v_cmp_ne_u32 vcc, s{sTAG}, v13")
e("s_cbranch_vccz L_hpoll_ok")
e("s_sleep 8")
e(f"s_sub_u32 s{sSPIN}, s{sSPIN}, 1")
e(f"s_cmp_lg_u32 s{sSPIN}, 0")
e("s_cbranch_scc1 L_hpoll")
lab("L_hpoll_ok")
stamp(7)
HB = [12, 20, 28]
GAF = [4, 164]
e(f"s_mul_i32 s{sT}, s{sV}, 22")
e(f"s_cmp_eq_u32 s{sV}, 3")
e(f"s_cselect_b32 s{sT}, 65, s{sT}")
e(f"s_cmp_ge_u32 s{sV}, 2")
e(f"s_cselect_b32 s{sI}, 21, 22")
e(f"s_sub_u32 s{sN}, s{sI}, 1")
e(f"s_lshl_b32 s{sT2}, s{sT}, 14")
e(f"s_lshl_b32 s{sT3}, s{sHG}, 7")
e(f"s_add_u32 s{sT2}, s{sT2}, s{sT3}")
add64(sP, sW2, off_s=sT2)
e(f"s_lshl_b32 s{sT}, s{sT}, 11")
add64(sP2, sH, off_s=sT)
e("v_mov_b32 v3, v7")
def g2_issue(slot):
    ring_issue(slot, sP)
    for rt in range(2):
        e(f"global_load_dwordx4 {vr(HB[slot]+4*rt)}, v{vL16}, {sr(sP2)} offset:{rt*1024} sc1")
    cm("advance (clamped at the last k-step)")
    e(f"s_cmp_lg_u32 s{sN}, 0")
    e(f"s_cselect_b32 s{sT}, 16384, 0")
    e(f"s_cselect_b32 s{sT2}, 2048, 0")
    e(f"s_cselect_b32 s{sT3}, 1, 0")
    e(f"s_sub_u32 s{sN}, s{sN}, s{sT3}")
    add64(sP, sP, off_s=sT)
    add64(sP2, sP2, off_s=sT2)
def ring_read3(slot, ct, dst):
    e(f"ds_read_b64_tr_b16 {vr(dst,2)}, v3 offset:{slot*2048+ct*256}")
    e(f"ds_read_b64_tr_b16 {vr(dst+2,2)}, v3 offset:{slot*2048+ct*256+1024}")
def g2_step(slot, first):
    g2_issue((slot + 2) % 3)
    e("s_waitcnt vmcnt(8)")
    for ct in range(2):
        ring_read3(slot, ct, GAF[ct])
        e("s_waitcnt lgkmcnt(0)")
        for rt in range(2):
            a = GA[ct*2+rt]
            mfma(a, GAF[ct], HB[slot] + 4*rt, None if first else a)
g2_issue(0)
g2_issue(1)
g2_step(0, True)
e(f"s_sub_u32 s{sI}, s{sI}, 1")
lab("L_g2loop")
for slot in (1, 2, 0):
    g2_step(slot, False)
    e(f"s_sub_u32 s{sI}, s{sI}, 1")
    e(f"s_cmp_eq_u32 s{sI}, 0")
    e("s_cbranch_scc1 L_g2done" if slot != 0 else "s_cbranch_scc0 L_g2loop")
lab("L_g2done")
stamp(8)
e(f"v_and_b32 v4, 31, v{vL}")
e("v_lshlrev_b32 v4, 2, v4")
e(f"v_add_u32 v4, {L_G}, v4")
e("ds_read_b32 v6, v4")
e("ds_read_b32 v8, v4 offset:128")
e("s_waitcnt vmcnt(0) lgkmcnt(0)")
e("v_sub_f32 v6, 1.0, v6")
e("v_sub_f32 v8, 1.0, v8")
e("s_nop 5")
for t in range(4):
    for r in range(0, 16, 2):
        e(f"v_pk_mul_f32 {vr(GA[t]+r,2)}, {vr(GA[t]+r,2)}, {vr(6+2*(t&1),2)} op_sel_hi:[1,0]")
cm("tail addresses: v3 = O stage read, v10 = reduction write/read, v11 = output offset")
e(f"s_lshl_b32 s{sT3}, s{sV}, 14")
e(f"v_add_u32 v3, s{sT3}, v{vL16}")
e(f"v_add_u32 v10, 65536, v{vL16}")
e("v_add_u32 v9, 65536, v3")
e(f"v_and_b32 v11, 31, v{vL}")
e("v_lshlrev_b32 v11, 10, v11")
e(f"v_lshrrev_b32 v12, 5, v{vL}")
e("v_lshl_add_u32 v11, v12, 4, v11")
e(f"s_and_b32 s{sT}, s{sV}, 1")
e(f"s_lshl1_add_u32 s{sT}, s{sQB}, s{sT}")
e(f"s_lshl_b32 s{sT}, s{sT}, 15")
e(f"s_lshr_b32 s{sT2}, s{sV}, 1")
e(f"s_lshl1_add_u32 s{sT2}, s{sHG}, s{sT2}")
e(f"s_lshl_b32 s{sT2}, s{sT2}, 6")
e(f"s_add_u32 s{sT}, s{sT}, s{sT2}")
add64(sP2, sOUT, off_s=sT)
stamp(9)
e("s_barrier")
stamp(10)
e(f"s_mov_b32 s{sSPIN}, {SPIN}")
lab("L_opoll")
dma_lin(sO, sT3, 16)
e("v_mov_b32 v12, 0")
for g in range(4):
    e(f"s_waitcnt vmcnt({12-4*g})")
    for j in range(4):
        e(f"ds_read_b128 {vr(16+4*j)}, v3 offset:{g*4096+j*1024}")
    for j in range(4):
        e(f"s_waitcnt lgkmcnt({3-j})")
        e(f"v_max3_u32 v12, v12, v{16+4*j}, v{17+4*j}")
        e(f"v_max3_u32 v12, v12, v{18+4*j}, v{19+4*j}")
e("v_cmp_eq_u32 vcc, -1, v12")
e("s_cbranch_vccz L_ook")
e(f"s_sub_u32 s{sSPIN}, s{sSPIN}, 1")
e(f"s_cmp_lg_u32 s{sSPIN}, 0")
e("s_cbranch_scc1 L_opoll")
lab("L_ook")
stamp(11)
cm("all four tiles, row tile by row tile; then reduce-scatter through LDS: wave v keeps tile v")
OF = [12, 16, 20, 24, 28, 32]
seq = [(rt, ks) for rt in range(2) for ks in range(8)]
for n in range(4):
    rt, ks = seq[n]
    e(f"ds_read_b128 {vr(OF[n%6])}, v3 offset:{ks*2048+rt*1024}")
for n, (rt, ks) in enumerate(seq):
    if n + 4 < 16:
        r2, k2 = seq[n + 4]
        e(f"ds_read_b128 {vr(OF[(n+4)%6])}, v3 offset:{k2*2048+r2*1024}")
    if 11 <= n < 15:
        for q in (2*(n-11), 2*(n-11)+1):
            tt, qq = (0, q) if q < 4 else (2, q - 4)
            e(f"ds_write_b128 v9, {vr(GA[tt]+4*qq)} offset:{tt*4096+qq*1024}")
    younger = min(4, 15 - n)
    wr = sum(2 for m in range(n - 3, n + 1) if 11 <= m < 15)
    e(f"s_waitcnt lgkmcnt({younger + wr})")
    for ct in range(2):
        a = GA[ct*2+rt]
        mfma(a, 36 + 8*ks + 4*ct, OF[n % 6], a)
e("s_nop 11")
for tt in (1, 3):
    for qq in range(4):
        e(f"ds_write_b128 v9, {vr(GA[tt]+4*qq)} offset:{tt*4096+qq*1024}")
e("s_waitcnt lgkmcnt(0)")
lds_signal(C_RED, 4, 5)
lds_spin("red", C_RED, 4, 4, 5, slp=0)
stamp(12)
e(f"s_lshl_b32 s{sT}, s{sV}, 12")
e(f"v_add_u32 v10, s{sT}, v10")
for c in range(4):
    for q in range(4):
        e(f"ds_read_b128 {vr(36+16*c+4*q)}, v10 offset:{c*16384+q*1024}")
    if c == 2:
        e("s_waitcnt lgkmcnt(4)")
        for r in range(0, 16, 2):
            e(f"v_pk_add_f32 {vr(36+r,2)}, {vr(36+r,2)}, {vr(52+r,2)}")
e("s_waitcnt lgkmcnt(0)")
for r in range(0, 16, 2):
    e(f"v_pk_add_f32 {vr(68+r,2)}, {vr(68+r,2)}, {vr(84+r,2)}")
for r in range(0, 16, 2):
    e(f"v_pk_add_f32 {vr(36+r,2)}, {vr(36+r,2)}, {vr(68+r,2)}")
for i in range(8):
    e(f"v_cvt_pk_bf16_f32 v{16+i}, v{36+2*i}, v{37+2*i}")
e("s_nop 1")
for p in range(2):
    e(f"v_permlane32_swap_b32 v{16+4*p}, v{18+4*p}")
    e(f"v_permlane32_swap_b32 v{17+4*p}, v{19+4*p}")
for p in range(2):
    e(f"global_store_dwordx4 v11, {vr(16+4*p)}, {sr(sP2)} offset:{32*p}")
lab("L_fin")
if STAMPS:
    e("s_waitcnt vmcnt(0)")
    stamp(13)
    e("s_memrealtime s[100:101]")
    e("s_waitcnt lgkmcnt(0)")
    e(f"s_lshl_b32 s{sT}, s2, 4")
    e(f"s_add_u32 s{sT}, s{sT}, s{sWAVE}")
    e(f"s_lshl_b32 s{sT}, s{sT}, 7")
    e(f"s_add_u32 s{sT}, s{sT}, {WS_ST}")
    add64(sP, sWS, off_s=sT)
    if DIAG == 2:
        e(f"v_lshlrev_b32 v12, 2, v{vL}")
        e("s_mov_b64 exec, 0xff")
        e(f"global_store_dword v12, v150, {sr(sP)} offset:64")
    e("v_mov_b32 v12, 0")
    e("s_mov_b64 exec, 1")
    for i in range(16):
        e(f"v_mov_b32 v13, s{70+2*i}")
        e(f"global_store_dword v12, v13, {sr(sP)} offset:{4*i}")
    e("s_waitcnt vmcnt(0)")
lab("L_end")
e("s_endpgm")
lab("L_code_end")

HEAD = open(f"cdna_kernels/{NAME}.s.ref").read().split("; Override launch geometry")[0]
src = HEAD + f"""; @launch grid=(256,1,1) block=(768,1,1) lds={LDS_TOTAL}
.amdgcn_target "amdgcn-amd-amdhsa--gfx950"
.text
.globl {NAME}_kernel
.p2align 8
.type {NAME}_kernel,@function
{NAME}_kernel:
""" + "\n".join(L) + f"""
.section .rodata,"a"
.p2align 6
.amdhsa_kernel {NAME}_kernel
  .amdhsa_next_free_vgpr 168
  .amdhsa_next_free_sgpr 102
  .amdhsa_accum_offset 168
  .amdhsa_group_segment_fixed_size 0
  .amdhsa_kernarg_size 96
  .amdhsa_user_sgpr_count 2
  .amdhsa_user_sgpr_kernarg_segment_ptr 1
  .amdhsa_system_sgpr_workgroup_id_x 1
.end_amdhsa_kernel
"""
open(OUT, "w").write(src)
print("wrote", OUT, len(L), "lines")
```

```python
import sys, struct

NAME = "gated_mix__grouped_kv_mqa__dense_activation_silu__prompt"
STAMPS = "--stamps" in sys.argv
def opt(name, default):
    for a in sys.argv[1:]:
        if a.startswith(f"--{name}="): return int(a.split("=")[1])
    return default
OUT = [a for a in sys.argv[1:] if not a.startswith("--")]
OUT = OUT[0] if OUT else f"cdna_kernels/{NAME}.s"
DIAG = opt("diag", 0)

def f2u(x): return struct.unpack("<I", struct.pack("<f", x))[0]
LOG2E = 1.4426950408889634

TILE = 2080
KVBYTES = 64 * TILE
L_X = 66560
L_UP = KVBYTES
L_Q = L_UP
L_KVP = L_UP
L_VT = L_UP + 24576
L_WKV = 32768
R2SZ = 6144
L_G = L_UP + 28672
L_CNT = L_G + 256
L_GW = L_CNT + 256
LDS_TOTAL = L_GW + 1024
C_KA, C_KB, C_KVP, C_GO, C_RED, C_K1, C_HD, C_OD, C_B2, C_QR = [L_CNT + 4*i for i in range(10)]
WS_KV, WS_FL, WS_H, WS_O, WS_ST = 0, 0x30000, 0x40000, 0x600000, 0x900000
WS_KF = WS_FL + 0x1000
WS_NONCE = WS_FL + 0x3000
SPIN = 1 << 16
TAGC = 0x9E3779B1

L = []
def e(s): L.append("    " + s)
def lab(s): L.append(s + ":")
def cm(s): L.append("    ; " + s)
def vr(a, n=4): return f"v[{a}:{a+n-1}]"
def sr(a, n=2): return f"s[{a}:{a+n-1}]"
def stamp(i):
    if STAMPS: e(f"s_memtime s[{72+2*i}:{73+2*i}]")

def stampx(i):
    if DIAG != 4: stamp(i)
sX, sWQ, sWK, sWV, sWO, sW1, sW2, sGW, sOUT, sDBG, sWS = 4, 6, 8, 10, 12, 16, 18, 20, 22, 24, 26
sQB, sHG, sWAVE, sV = 28, 29, 30, 31
sJQ, sXM = 32, 33
sB0, sFL, sADV, sROLE, sRING, sN = 34, 36, 38, 39, 40, 41
sHT, sPROD = 42, 43
sKV, sH, sO = 44, 46, 48
sT, sT2, sT3 = 50, 52, 54
sC, sTAG = 56, 58
sSPIN, sI, sCHK, sRETRY = 60, 61, 62, 63
sWB = 14
sP, sP2 = 66, 68
vL, vL16 = 1, 2

def add64(dst, src, off_s=None, imm=None):
    o = f"s{off_s}" if off_s is not None else hex(imm)
    e(f"s_add_u32 s{dst}, s{src}, {o}")
    e(f"s_addc_u32 s{dst+1}, s{src+1}, 0")
def mfma(d, a, b, c):
    cs = "0" if c is None else vr(c, 16)
    e(f"v_mfma_f32_32x32x16_bf16 {vr(d,16)}, {vr(a)}, {vr(b)}, {cs}")
def lds_spin(name, off, want, va, vt, slp=1):
    e(f"v_mov_b32 v{va}, {off}")
    e(f"s_mov_b32 s{sSPIN}, {SPIN*64}")
    lab(f"L_{name}")
    e(f"ds_read_b32 v{vt}, v{va}")
    e("s_waitcnt lgkmcnt(0)")
    e(f"v_readfirstlane_b32 s{sT}, v{vt}")
    e(f"s_sub_u32 s{sSPIN}, s{sSPIN}, 1")
    e(f"s_cmp_eq_u32 s{sSPIN}, 0")
    e(f"s_cbranch_scc1 L_{name}_ok")
    e(f"s_cmp_ge_u32 s{sT}, {want}")
    e(f"s_cbranch_scc1 L_{name}_ok")
    if slp: e(f"s_sleep {slp}")
    e(f"s_branch L_{name}")
    lab(f"L_{name}_ok")
def lds_signal(off, va, vt):
    e(f"v_mov_b32 v{va}, {off}")
    e(f"v_mov_b32 v{vt}, 1")
    e("s_mov_b64 exec, 1")
    e(f"ds_add_u32 v{va}, v{vt}")
    e("s_mov_b64 exec, -1")
def tag_poll(name, va, vt, base, slp):
    e(f"s_mov_b32 s{sSPIN}, {SPIN}")
    lab(f"L_{name}")
    e(f"global_load_dword v{vt}, v{va}, {sr(base)} sc1")
    e("s_waitcnt vmcnt(0)")
    e(f"v_cmp_ne_u32 vcc, s{sTAG}, v{vt}")
    e(f"s_cbranch_vccz L_{name}_ok")
    e(f"s_sleep {slp}")
    e(f"s_sub_u32 s{sSPIN}, s{sSPIN}, 1")
    e(f"s_cmp_lg_u32 s{sSPIN}, 0")
    e(f"s_cbranch_scc1 L_{name}")
    lab(f"L_{name}_ok")
def dma_lin(first_s, n, first_imm=0):
    for j in range(0, n, 4):
        e(f"s_add_u32 s{sT}, s{first_s}, {first_imm + j*1024}")
        e(f"s_mov_b32 m0, s{sT}")
        add64(sP, sKV, off_s=sT)
        for i in range(4):
            e(f"global_load_lds_dwordx4 v{vL16}, {sr(sP)} offset:{i*1024} sc1")
def dma_kv_one(off):
    e(f"s_mov_b32 m0, {off}")
    add64(sP, sKV, imm=off)
    e(f"global_load_lds_dwordx4 v{vL16}, {sr(sP)} sc1")
def tr_lane(dst, t0, t1):
    e(f"v_bfe_u32 v{dst}, v{vL}, 2, 2")
    e(f"v_bfe_u32 v{t0}, v{vL}, 4, 1")
    e(f"v_and_b32 v{t1}, 3, v{vL}")
    e(f"v_lshlrev_b32 v{dst}, 6, v{dst}")
    e(f"v_lshl_add_u32 v{dst}, v{t0}, 5, v{dst}")
    e(f"v_lshl_add_u32 v{dst}, v{t1}, 3, v{dst}")
    e(f"v_lshrrev_b32 v{t0}, 5, v{vL}")
    e(f"v_lshl_add_u32 v{dst}, v{t0}, 9, v{dst}")
e("s_load_dwordx16 s[4:19], s[0:1], 0")
e("s_load_dwordx8 s[20:27], s[0:1], 64")
e("s_cmp_ge_u32 s2, 256")
e("s_cbranch_scc1 L_end")
if STAMPS: e("s_memrealtime s[70:71]")
stamp(0)
e("v_lshrrev_b32 v5, 6, v0")
e(f"v_and_b32 v{vL}, 63, v0")
e(f"v_readfirstlane_b32 s{sWAVE}, v5")
e(f"v_lshlrev_b32 v{vL16}, 4, v{vL}")
cm("qb = ((wg&7)>>1)*8 + ((wg>>3)&7) ; hg = (wg&1)*4 + (wg>>6) ; producers: wg < 64")
e(f"s_bfe_u32 s{sT}, s2, 0x20001")
e(f"s_bfe_u32 s{sJQ}, s2, 0x30003")
e(f"s_lshl3_add_u32 s{sQB}, s{sT}, s{sJQ}")
e(f"s_and_b32 s{sT}, s2, 1")
e(f"s_lshr_b32 s{sPROD}, s2, 6")
e(f"s_lshl2_add_u32 s{sHG}, s{sT}, s{sPROD}")
cm("stage order s ^ rot, rot = 2*(qb&7) ^ 4*(hg&3)")
e(f"s_lshl_b32 s{sJQ}, s{sJQ}, 1")
e(f"s_lshl_b32 s{sT}, s{sPROD}, 2")
e(f"s_xor_b32 s{sJQ}, s{sJQ}, s{sT}")
e(f"s_and_b32 s{sJQ}, s{sJQ}, {opt('rot', 6)}")
e(f"s_cmp_lt_u32 s{sWAVE}, 8")
e("s_cbranch_scc1 L_aw")

e(f"s_sub_u32 s{sV}, s{sWAVE}, 8")
sWQB, sW1B = 34, 64
cm("X lane offset v20: row 16v + (l>>4) (+4j), 16B unit (l&15) ^ (row&15)")
e(f"v_lshrrev_b32 v16, 4, v{vL}")
e(f"v_and_b32 v17, 15, v{vL}")
e("v_xor_b32 v17, v17, v16")
e("v_lshlrev_b32 v17, 4, v17")
e("v_lshl_add_u32 v20, v16, 10, v17")
for j in range(1, 4):
    e(f"v_xor_b32 v{20+j}, {j*(4096+64)}, v20")
e(f"s_lshl2_add_u32 s{sT2}, s{sQB}, s{sV}")
e(f"s_lshl_b32 s{sT2}, s{sT2}, 14")
e(f"s_lshl_b32 s{sXM}, s{sV}, 12")
cm("row-in-octet v16 = 4*(l>>5) + ((l>>2)&3), v17 = tile bit (l>>4)&1, v18 = (l&3)*16")
e(f"v_lshrrev_b32 v16, 5, v{vL}")
e(f"v_bfe_u32 v19, v{vL}, 2, 2")
e("v_lshl_add_u32 v16, v16, 2, v19")
e(f"s_lshl_b32 s{sT3}, s{sV}, 3")
e(f"v_add_u32 v16, s{sT3}, v16")
e(f"v_bfe_u32 v17, v{vL}, 4, 1")
e(f"v_and_b32 v18, 3, v{vL}")
e("v_lshlrev_b32 v18, 4, v18")
e("v_lshl_add_u32 v24, v17, 6, v18")
e("v_lshl_add_u32 v24, v16, 10, v24")
def x_issue(g):
    e(f"s_xor_b32 s{sT}, s{sJQ}, {4*g}")
    e(f"s_lshr_b32 s{sT}, s{sT}, 2")
    e(f"s_lshl_b32 s{sT}, s{sT}, 8")
    e(f"s_add_u32 m0, s{sXM}, {L_X + g*16384}")
    add64(sP, sP2, off_s=sT)
    for j in range(4):
        if j:
            e(f"s_add_u32 m0, s{sXM}, {L_X + g*16384 + j*1024}")
            e("s_nop 0")
        e(f"global_load_lds_dwordx4 v{20+j}, {sr(sP)}")
e("s_waitcnt lgkmcnt(0)")
stamp(9)
e(f"s_load_dword s{sTAG}, {sr(sWS)}, {hex(WS_NONCE)}")
add64(sP2, sX, off_s=sT2)
x_issue(0)
e(f"s_lshl_b32 s{sT}, s{sHG}, 7")
add64(sWQ, sWQ, off_s=sT)
e(f"s_cmp_eq_u32 s{sHG}, 0")
e("s_cbranch_scc1 L_gprod")
e(f"s_mul_i32 s{sT}, s{sHG}, 384")
e(f"s_sub_u32 s{sT}, s{sT}, 320")
add64(sW1, sW1, off_s=sT)
e(f"v_add_u32 v19, s{sT3}, v19")
e("v_mul_u32_u24 v25, 2752, v19")
e(f"v_lshrrev_b32 v26, 4, v{vL}")
e("v_lshl_add_u32 v25, v26, 6, v25")
e("v_add_u32 v25, v25, v18")
e(f"v_add_u32 v26, {4*2752}, v25")
e("v_mul_u32_u24 v27, 2752, v16")
e("v_lshl_add_u32 v27, v17, 6, v27")
e("v_add3_u32 v27, v27, v18, 64")
e("v_add_u32 v27, 192, v27")
def misc_g():
    cm("one extra request per wave keeps the counts uniform: v0 code prefetch, v1 gate weights, v2/v3 touch w2/wo/out pages")
    e(f"s_cmp_eq_u32 s{sV}, 1")
    e(f"s_cbranch_scc1 L_m1{UID[0]}")
    e(f"s_getpc_b64 {sr(sT)}")
    lab(f"L_pc{UID[0]}")
    e(f"s_sub_u32 s{sT}, s{sT}, L_pc{UID[0]}-{NAME}_kernel")
    e(f"s_subb_u32 s{sT+1}, s{sT+1}, 0")
    e(f"s_andn2_b32 s{sT2}, s2, 7")
    e(f"v_and_b32 v3, 7, v{vL}")
    e(f"v_add_lshl_u32 v3, v3, s{sT2}, 7")
    e(f"v_min_u32 v3, L_code_end-{NAME}_kernel-4, v3")
    e(f"global_load_dword v4, v3, {sr(sT)}")
    e(f"v_and_b32 v12, 15, v{vL}")
    e(f"v_lshlrev_b32 v12, 2, v12")
    e(f"v_add_u32 v12, {L_CNT}, v12")
    e("v_mov_b32 v13, 0")
    e("ds_write_b32 v12, v13")
    e(f"s_branch L_m2{UID[0]}")
    lab(f"L_m1{UID[0]}")
    e(f"s_mov_b32 m0, {L_GW}")
    e("s_nop 0")
    e(f"global_load_lds_dwordx4 v{vL16}, {sr(sGW)}")
    lab(f"L_m2{UID[0]}")
    cm("gate: lane -> row 16v + (l>>2), units 4(l&3)+i ; v10 X address, v11 weight address")
    e(f"v_lshrrev_b32 v12, 2, v{vL}")
    e(f"v_and_b32 v13, 3, v{vL}")
    e("v_lshlrev_b32 v13, 2, v13")
    e("v_xor_b32 v10, v13, v12")
    e("v_lshlrev_b32 v10, 4, v10")
    e("v_lshl_add_u32 v10, v12, 8, v10")
    e(f"s_add_u32 s{sT}, s{sXM}, {L_X}")
    e(f"v_add_u32 v10, s{sT}, v10")
    e(f"s_lshr_b32 s{sT}, s{sJQ}, 2")
    e(f"s_lshl_b32 s{sT}, s{sT}, 8")
    e(f"v_lshl_add_u32 v11, v13, 4, s{sT}")
    e("v_mov_b32 v14, 0")
    e("v_mov_b32 v15, 0")
    e(f"v_and_b32 v30, 31, v{vL}")
    e("v_lshlrev_b32 v30, 7, v30")
    e(f"v_add_u32 v30, {WS_KF}, v30")
    add64(sKV, sWS, imm=WS_KV)
    e("s_waitcnt lgkmcnt(0)")
    e(f"s_add_u32 s{sTAG}, s{sTAG}, {hex(TAGC)}")
    UID[0] += 1
UID = [0]
def gate_part(g):
    e(f"v_xor_b32 v12, {g*256}, v11")
    e(f"v_add_u32 v12, {L_GW}, v12")
    for i in range(4):
        if i: e(f"v_xor_b32 v13, {i*16}, v10")
        e(f"ds_read_b128 {vr(32+8*i)}, v{13 if i else 10} offset:{g*16384}")
        e(f"ds_read_b128 {vr(36+8*i)}, v12 offset:{i*16}")
    for i in range(4):
        e(f"s_waitcnt lgkmcnt({6-2*i})")
        for j in range(4):
            e(f"v_dot2_f32_bf16 v{14+(j&1)}, v{32+8*i+j}, v{36+8*i+j}, v{14+(j&1)}")
sFAST = sN
def loader(prod):
    nw = 2 if prod else 4
    tg = "p" if prod else "n"
    def issue(s):
        if s % 4 == 0 and s and not prod: x_issue(s // 4)
        base = (s % 4) * 16384
        e(f"s_xor_b32 s{sT}, s{sJQ}, {s}")
        e(f"s_lshl_b32 s{sT2}, s{sT}, 15")
        e(f"s_add_u32 m0, s{sXM}, {base}")
        add64(sWQB, sWQ, off_s=sT2)
        e(f"global_load_lds_dwordx4 v24, {sr(sWQB)}")
        e(f"s_mul_i32 s{sT2}, s{sT}, {32*2752}")
        e(f"s_add_u32 m0, s{sXM}, {base + 3072}")
        add64(sW1B, sW1, off_s=sT2)
        e(f"global_load_lds_dwordx4 v27, {sr(sW1B)}")
        if not prod:
            for j, r in ((1, 25), (2, 26)):
                e(f"s_add_u32 m0, s{sXM}, {base + j*1024}")
                e("s_nop 0")
                e(f"global_load_lds_dwordx4 v{r}, {sr(sW1B)}")
    cnt = [nw + (4 if s % 4 == 0 and not prod else 0) for s in range(16)]
    if prod:
        misc_g()
        e("s_waitcnt vmcnt(0)")
        e("s_barrier")
        issue(0); issue(1)
        e("s_barrier")
        issue(2)
    else:
        issue(0); issue(1); issue(2)
        misc_g()
    for s in range(14):
        later = sum(cnt[s+1:min(16, s + 3)]) + (1 if s in (11, 12) or (s < 3 and not prod) else 0)
        e(f"s_waitcnt vmcnt({later})")
        e("s_barrier")
        if s == 0: stamp(1)
        if s == 10: e(f"global_load_dword v31, v30, {sr(sWS)} sc1")
        if s + 3 < 16: issue(s + 3)
        if s in (4, 6, 9): gate_part((4, 6, 9).index(s))
    cm("K/V already published? then start staging it into the ring slots as they free up")
    e(f"v_cmp_ne_u32 vcc, s{sTAG}, v31")
    e(f"s_mov_b32 s{sFAST}, 0")
    e(f"s_cbranch_vccnz L_slow{tg}")
    e(f"s_mov_b32 s{sFAST}, 1")
    dma_lin(sXM, 4)
    gate_part(3)
    e(f"s_waitcnt vmcnt({cnt[15] + 4})")
    e("s_barrier")
    dma_lin(sXM, 4, 16384)
    e("s_waitcnt vmcnt(8)")
    e("s_barrier")
    dma_lin(sXM, 4, 32768)
    e("s_branch L_g4")
    lab(f"L_slow{tg}")
    gate_part(3)
    e(f"s_waitcnt vmcnt({cnt[15]})")
    e("s_barrier")
    e("s_waitcnt vmcnt(0)")
    e("s_barrier")
    e("s_branch L_g4")
loader(False)
lab("L_gprod")
cm("producer (hg==0): all of X and [wk|wv] first (wave v: k-steps 8v..8v+7); last piece = w1 tile 0")
e(f"v_lshrrev_b32 v28, 2, v{vL}")
e("v_lshlrev_b32 v28, 5, v28")
e("v_and_b32 v19, 16, v18")
e(f"v_add3_u32 v28, v28, v19, s{sXM}")
e("v_mov_b32 v29, 0")
e(f"v_and_b32 v19, 2, v{vL}")
e("v_cmp_ne_u32 vcc, 0, v19")
e(f"v_mov_b32 v32, s{sWK}")
e(f"v_mov_b32 v33, s{sWK+1}")
e(f"v_mov_b32 v34, s{sWV}")
e(f"v_mov_b32 v35, s{sWV+1}")
e("v_cndmask_b32 v32, v32, v34, vcc")
e("v_cndmask_b32 v33, v33, v35, vcc")
e("v_lshl_add_u64 v[32:33], v[28:29], 0, v[32:33]")
e(f"s_lshl_b32 s{sT3}, s{sXM}, 1")
e(f"s_and_b32 s{sC}, s{sQB}, 7")
e(f"s_mov_b32 s{sW1B+1}, 0")
def wkv_dma(i):
    e(f"s_xor_b32 s{sT}, s{sC}, {i}")
    e(f"s_lshl_b32 s{sW1B}, s{sT}, 9")
    e(f"s_lshl_b32 s{sT}, s{sT}, 10")
    e(f"s_add_u32 s{sT}, s{sT}, s{sT3}")
    e(f"s_add_u32 m0, s{sT}, {L_WKV}")
    e(f"v_lshl_add_u64 v[28:29], v[32:33], 0, {sr(sW1B)}")
    e("global_load_lds_dwordx4 v[28:29], off")
wkv_dma(0)
for g in range(1, 4): x_issue(g)
for i in range(1, 8): wkv_dma(i)
e("v_mul_u32_u24 v27, 2752, v16")
e("v_add_u32 v27, v27, v18")
loader(True)

lab("L_aw")
if DIAG == 4: stamp(9)
e(f"s_mul_i32 s{sHT}, s{sHG}, 6")
e(f"s_add_u32 s{sHT}, s{sHT}, s{sWAVE}")
e(f"s_sub_u32 s{sHT}, s{sHT}, 7")
e(f"s_mov_b32 s{sROLE}, 2")
e(f"s_cmp_lg_u32 s{sHG}, 0")
e("s_cbranch_scc1 L_r1")
e(f"s_mov_b32 s{sHT}, 0")
e(f"s_cmp_lt_u32 s{sWAVE}, 7")
e(f"s_cselect_b32 s{sROLE}, 3, 2")
lab("L_r1")
e(f"s_cmp_lt_u32 s{sWAVE}, 2")
e(f"s_cselect_b32 s{sROLE}, 0, s{sROLE}")
cm("block base: w<2: 256w ; w<6: 1024+256(w-2) ; else 3072+256(w-6) ; rg stride 1024 for 2<=w<6 else 512")
e(f"s_cselect_b32 s{sT}, 0, 512")
e(f"s_cselect_b32 s{sT2}, 512, 1024" if False else f"s_cselect_b32 s{sT2}, 1, 2")
e(f"s_cmp_ge_u32 s{sWAVE}, 6")
e(f"s_cselect_b32 s{sT}, 1536, s{sT}")
e(f"s_cselect_b32 s{sT2}, 1, s{sT2}")
e(f"s_lshl_b32 s{sT2}, s{sT2}, 9")
e(f"s_lshl_b32 s{sT3}, s{sWAVE}, 8")
e(f"s_add_u32 s{sT}, s{sT}, s{sT3}")
e(f"v_bfe_u32 v6, v{vL}, 2, 2")
e(f"v_bfe_u32 v32, v{vL}, 4, 1")
e(f"v_and_b32 v33, 3, v{vL}")
e("v_lshlrev_b32 v6, 6, v6")
e("v_lshl_add_u32 v6, v32, 5, v6")
e("v_lshl_add_u32 v6, v33, 3, v6")
e(f"v_lshrrev_b32 v32, 5, v{vL}")
e("v_lshl_add_u32 v6, v32, 12, v6")
e(f"v_add_u32 v6, s{sT}, v6")
e(f"v_add_u32 v7, s{sT2}, v6")
cm("X fragment addresses v8..v15 for (s&3, ks)")
e(f"v_and_b32 v33, 31, v{vL}")
e(f"v_and_b32 v34, 15, v{vL}")
e("v_xor_b32 v34, v34, v32")
e("v_lshlrev_b32 v34, 4, v34")
e("v_lshl_add_u32 v8, v33, 8, v34")
e(f"s_and_b32 s{sT}, s{sJQ}, 3")
e(f"s_lshl_b32 s{sT}, s{sT}, 6")
e(f"v_xor_b32 v8, s{sT}, v8")
e(f"v_add_u32 v8, {L_X}, v8")
for j in range(1, 8):
    e(f"v_xor_b32 v{8+j}, {j << 5}, v8")
e("s_waitcnt lgkmcnt(0)")
if DIAG == 4: stamp(10)
e(f"s_load_dword s{sTAG}, {sr(sWS)}, {hex(WS_NONCE)}")
e(f"s_lshl3_add_u32 s{sT}, s{sQB}, s{sHG}")
e(f"s_lshl3_add_u32 s{sT}, s{sT}, s{sWAVE}")
e(f"s_lshl_b32 s{sT}, s{sT}, 10")
e(f"s_add_u32 s{sT}, s{sT}, {WS_O}")
add64(sO, sWS, off_s=sT)
e(f"s_mul_i32 s{sT}, s{sQB}, 43")
e(f"s_add_u32 s{sT}, s{sT}, s{sHT}")
e(f"s_lshl_b32 s{sT}, s{sT}, 12")
e(f"s_add_u32 s{sT}, s{sT}, {WS_H}")
add64(sH, sWS, off_s=sT)
ACC = [64, 80]
FB = [16, 40]
e(f"s_cmp_lg_u32 s{sHG}, 0")
e("s_cbranch_scc1 L_nokv")
e(f"s_lshr_b32 s{sT2}, s{sWAVE}, 1")
e(f"s_and_b32 s{sT3}, s{sWAVE}, 1")
tr_lane(40, 41, 42)
e(f"s_lshr_b32 s{sT}, s{sJQ}, 2")
e(f"s_xor_b32 s{sT}, s{sT}, s{sT2}")
e(f"s_lshl_b32 s{sT}, s{sT}, 13")
e(f"s_add_u32 s{sT}, s{sT}, {L_WKV}")
e(f"v_add_u32 v40, s{sT}, v40")
e(f"s_and_b32 s{sT}, s{sJQ}, 3")
e(f"s_lshl_b32 s{sT}, s{sT}, 6")
e(f"v_xor_b32 v41, s{sT}, v8")
e(f"s_lshl1_add_u32 s{sT}, s{sT2}, s{sT3}")
e(f"s_lshl_b32 s{sT}, s{sT}, 13")
e(f"v_add_u32 v41, s{sT}, v41")
for j in range(1, 8):
    e(f"v_xor_b32 v{41+j}, {j << 5}, v41")
cm("partial slot (rt*3 + idx), idx = kq - (kq>1)")
e(f"s_cmp_gt_u32 s{sT2}, 1")
e(f"s_subb_u32 s{sT}, s{sT2}, 0")
e(f"s_cmp_eq_u32 s{sT2}, 1")
e(f"s_cselect_b32 s{sT}, 0, s{sT}")
e(f"s_mul_i32 s{sC}, s{sT3}, 3")
e(f"s_add_u32 s{sT}, s{sT}, s{sC}")
e(f"s_lshl_b32 s{sT}, s{sT}, 12")
e(f"s_add_u32 s{sT}, s{sT}, {L_KVP}")
e(f"v_add_u32 v50, s{sT}, v{vL16}")
e(f"s_lshl1_add_u32 s{sT}, s{sQB}, s{sT3}")
e(f"s_mul_i32 s{sT}, s{sT}, {TILE}")
add64(sP, sWS, off_s=sT)
e(f"s_lshl_b32 s{sT}, s{sT3}, 10")
e(f"s_add_u32 s{sT}, s{sT}, {L_VT}")
e(f"v_and_b32 v52, 31, v{vL}")
e(f"v_lshrrev_b32 v55, 5, v{vL}")
e("v_lshlrev_b32 v52, 5, v52")
e("v_lshl_add_u32 v52, v55, 3, v52")
e(f"v_add_u32 v52, s{sT}, v52")
e(f"v_bfe_u32 v53, v{vL}, 2, 2")
e(f"v_bfe_u32 v54, v{vL}, 4, 1")
e("v_lshl_add_u32 v53, v54, 2, v53")
e("v_lshl_add_u32 v53, v55, 4, v53")
e("v_lshlrev_b32 v53, 5, v53")
e(f"v_and_b32 v54, 3, v{vL}")
e("v_lshl_add_u32 v53, v54, 3, v53")
e(f"v_add_u32 v53, s{sT}, v53")
e(f"v_lshl_add_u32 v54, v55, 4, v{vL16}")
e(f"v_and_b32 v55, 1, v{vL}")
e("v_mul_u32_u24 v55, 528, v55")
for i in range(4):
    e(f"v_mov_b32 v{56+i}, 0x3f803f80")
e("s_waitcnt lgkmcnt(0)")
e("s_barrier")
stamp(9)
for i in range(8):
    e(f"ds_read_b64_tr_b16 {vr(96+8*(i%5),2)}, v40 offset:{i*1024}")
    e(f"ds_read_b64_tr_b16 {vr(98+8*(i%5),2)}, v40 offset:{i*1024+256}")
    e(f"ds_read_b128 {vr(100+8*(i%5))}, v{41+i}")
    if i >= 3:
        e("s_waitcnt lgkmcnt(9)")
        mfma(64, 96+8*((i-3)%5), 100+8*((i-3)%5), None if i == 3 else 64)
for i in range(5, 8):
    e(f"s_waitcnt lgkmcnt({3*(7-i)})")
    mfma(64, 96+8*(i%5), 100+8*(i%5), 64)
e(f"s_cmp_eq_u32 s{sT2}, 1")
e("s_cbranch_scc1 L_kvf")
e("s_nop 10")
for q in range(4):
    e(f"ds_write_b128 v50, {vr(64+4*q)} offset:{q*1024}")
e("s_waitcnt lgkmcnt(0)")
e("s_barrier")
e("s_branch L_nokv")
lab("L_kvf")
e(f"global_store_dwordx4 v55, v[56:59], {sr(sP)} offset:1536 sc1")
e("s_barrier")
PB = (80, 96, 112)
for c in range(3):
    for q in range(4):
        e(f"ds_read_b128 {vr(PB[c]+4*q)}, v50 offset:{c*4096+q*1024}")
for c in range(3):
    e(f"s_waitcnt lgkmcnt({8-4*c})")
    for r in range(0, 16, 2):
        e(f"v_pk_add_f32 {vr(64+r,2)}, {vr(64+r,2)}, {vr(PB[c]+r,2)}")
for r in range(8, 16, 2):
    e(f"v_cvt_pk_bf16_f32 v{80+r//2}, v{64+r}, v{65+r}")
e("ds_write_b64 v52, v[84:85]")
e("ds_write_b64 v52, v[86:87] offset:16")
e("ds_read_b64_tr_b16 v[88:89], v53")
e("ds_read_b64_tr_b16 v[90:91], v53 offset:256")
for r in range(0, 8, 2):
    e(f"v_cvt_pk_bf16_f32 v{80+r//2}, v{64+r}, v{65+r}")
e(f"global_store_dwordx4 v{vL16}, v[80:83], {sr(sP)} sc1")
e("s_waitcnt lgkmcnt(0)")
e(f"global_store_dwordx4 v54, v[88:91], {sr(sP)} offset:1024 sc1")
stamp(10)
cm("both finishers drain their stores before pipeline barrier 0; wave 2 raises the flag behind it")
e("s_waitcnt vmcnt(0)")
e("s_barrier")
e(f"s_mov_b32 s{sI}, 16")
e(f"s_cmp_lg_u32 s{sT3}, 0")
e("s_cbranch_scc1 L_idle1")
e(f"s_add_u32 s{sT2}, s{sTAG}, {hex(TAGC)}")
e(f"s_lshl_b32 s{sT}, s{sQB}, 7")
e(f"s_add_u32 s{sT}, s{sT}, {WS_KF}")
e(f"v_mov_b32 v20, s{sT}")
e(f"v_mov_b32 v21, s{sT2}")
e("s_mov_b64 exec, 1")
e(f"global_store_dword v20, v21, {sr(sWS)} sc1")
e("s_mov_b64 exec, -1")
stamp(11)
e("s_branch L_idle1")
lab("L_nokv")
for r in range(32):
    e(f"v_mov_b32 v{64+r}, 0")
for r in range(24):
    e(f"v_mov_b32 v{FB[1]+r}, 0")
e(f"s_mov_b32 s{sI}, 4")
e("s_waitcnt lgkmcnt(0)")
e(f"s_cmp_eq_u32 s{sROLE}, 3")
e("s_cbranch_scc1 L_idle")
def p1_mf(st):
    for ks in range(2):
        for rt in range(2):
            mfma(ACC[rt], FB[st] + 12*ks, FB[st] + 12*ks + 4 + 4*rt, ACC[rt])
lab("L_p1")
for u in range(4):
    e("s_barrier")
    f = FB[u & 1]
    for ks in range(2):
        e(f"ds_read_b64_tr_b16 {vr(f+12*ks,2)}, v6 offset:{u*16384+ks*8192}")
        e(f"ds_read_b64_tr_b16 {vr(f+12*ks+2,2)}, v7 offset:{u*16384+ks*8192}")
        for rt in range(2):
            e(f"ds_read_b128 {vr(f+12*ks+4+4*rt)}, v{8+2*u+ks} offset:{rt*8192}")
        e(f"v_add_u32 v{8+2*u+ks}, 0x4000, v{8+2*u+ks}")
    p1_mf((u + 1) & 1)
    e("s_waitcnt lgkmcnt(0)")
e(f"s_sub_u32 s{sI}, s{sI}, 1")
e(f"s_cmp_lg_u32 s{sI}, 0")
e("s_cbranch_scc1 L_p1")
e("s_barrier")
p1_mf(1)
stamp(2)
e(f"s_cmp_eq_u32 s{sROLE}, 0")
e(f"s_mov_b32 s{sC}, {hex(f2u(-LOG2E))}")
e(f"s_cselect_b32 s{sC}, {hex(f2u(0.25*LOG2E))}, s{sC}")
e(f"s_mov_b32 s{sC+1}, s{sC}")
e("s_nop 7")
e("s_cbranch_scc0 L_epiH")
e("s_setprio 3")
for r in range(0, 32, 2):
    e(f"v_pk_mul_f32 {vr(64+r,2)}, {vr(64+r,2)}, {sr(sC)}")
for r in range(0, 32, 2):
    e(f"v_cvt_pk_bf16_f32 v{96+r//2}, v{64+r}, v{65+r}")
e(f"s_lshl_b32 s{sT}, s{sWAVE}, 12")
e(f"s_add_u32 s{sT}, s{sT}, {L_Q}")
e(f"v_add_u32 v32, s{sT}, v{vL16}")
for rt in range(2):
    for i in range(2):
        e(f"ds_write_b128 v32, {vr(96+rt*8+i*4)} offset:{i*2048+rt*1024}")
e("s_waitcnt lgkmcnt(0)")
lds_signal(C_B2, 12, 13)
e("s_branch L_p1done")
lab("L_idle")
e(f"s_mov_b32 s{sI}, 17")
lab("L_idle1")
e("s_barrier")
e(f"s_sub_u32 s{sI}, s{sI}, 1")
e(f"s_cmp_lg_u32 s{sI}, 0")
e("s_cbranch_scc1 L_idle1")
e("s_branch L_p1done")
lab("L_epiH")
for rt in range(2):
    a = ACC[rt]
    for r in range(0, 16, 2):
        e(f"v_pk_mul_f32 {vr(96+r,2)}, {vr(a+r,2)}, {sr(sC)}")
    for r in range(16):
        e(f"v_exp_f32 v{96+r}, v{96+r}")
    for r in range(0, 16, 2):
        e(f"v_pk_add_f32 {vr(96+r,2)}, {vr(96+r,2)}, 1.0 op_sel_hi:[1,0]")
    for r in range(16):
        e(f"v_rcp_f32 v{96+r}, v{96+r}")
    for r in range(0, 16, 2):
        e(f"v_pk_mul_f32 {vr(96+r,2)}, {vr(96+r,2)}, {vr(a+r,2)}")
    for r in range(0, 16, 2):
        e(f"v_cvt_pk_bf16_f32 v{132+rt*8+r//2}, v{96+r}, v{97+r}")
lab("L_p1done")
Q = 16
KF = [20, 24]
V0 = [28, 32]
V1 = [36, 40]
P = [48, 56]
S = [64, 80]
C = 96
O = 112
vK, vV0, vV = 10, 9, 11
for i in range(4):
    e(f"v_mov_b32 v{128+i}, -1")
cm("V lane address: m>=16: 1024 + h*256 + (m-16)*16 ; m in {0,4}: ones slot ; else out of range (reads 0)")
e(f"v_and_b32 v12, 15, v{vL}")
e(f"v_lshrrev_b32 v13, 5, v{vL}")
e("v_lshlrev_b32 v12, 4, v12")
e("v_lshl_add_u32 v12, v13, 8, v12")
e(f"v_and_b32 v13, 27, v{vL}")
e(f"v_cmp_eq_u32 {sr(sT)}, 0, v13")
e("v_cmp_lt_u32 vcc, 15, v13")
e("v_mov_b32 v13, 0x40000")
e("v_mov_b32 v14, 512")
e(f"v_cndmask_b32 v13, v13, v14, {sr(sT)}")
e(f"v_cndmask_b32 v{vV0}, v13, v12, vcc")
e(f"v_add_u32 v{vV0}, 1024, v{vV0}")
e(f"s_lshl_b32 s{sT}, s{sWAVE}, 10")
e(f"s_add_u32 s{sT}, s{sT}, {L_Q}")
e(f"v_add_u32 v15, s{sT}, v{vL16}")
e(f"s_mov_b32 s{sRETRY}, 0")
e(f"s_mov_b32 s{sCHK}, 7")
def att_zero():
    for r in range(16):
        e(f"v_mov_b32 v{O+r}, 0")
    for r in range(4):
        e(f"v_mov_b32 v{V1[1]+r}, 0")
        e(f"v_mov_b32 v{P[1]+4+r}, 0")
    e(f"v_mov_b32 v{S[1]+14}, 0")
    e(f"v_mov_b32 v{S[1]+15}, 0")
att_zero()
stamp(3)
lds_spin("b2a", C_B2, 6, 12, 13, slp=2)
stamp(4)
if STAMPS: e("s_memrealtime s[88:89]")
e("s_setprio 2")
e(f"ds_read_b128 {vr(Q)}, v15")
e(f"ds_read_b128 {vr(KF[0])}, v{vL16}")
def att_first_loads():
    e(f"ds_read_b128 {vr(KF[1])}, v{vL16} offset:{TILE}")
    e(f"ds_read_b128 {vr(V0[0])}, v{vV0}")
    e(f"ds_read_b128 {vr(V0[1])}, v{vV0} offset:{TILE}")
    e(f"ds_read_b128 {vr(V1[0])}, v{vV0} offset:528")
att_first_loads()
e("s_waitcnt lgkmcnt(4)")
mfma(S[0], KF[0], Q, None)
lds_signal(C_QR, 12, 13)
e("s_nop 6")
e(f"v_max3_f32 v12, v{S[0]}, v{S[0]+1}, v{S[0]+2}")
for r in range(3, 15, 2):
    e(f"v_max3_f32 v12, v12, v{S[0]+r}, v{S[0]+r+1}")
e(f"v_max_f32 v12, v12, v{S[0]+15}")
lab("L_att_setC")
e("v_mov_b32 v14, v12")
e(f"v_mov_b32 v{vK}, v{vL16}")
e(f"v_mov_b32 v{vV}, v{vV0}")
e("v_permlane32_swap_b32 v12, v14")
e(f"s_mov_b32 s{sI}, 0")
e("s_nop 0")
e("v_max_f32 v12, v12, v14")
for r in range(16):
    e(f"v_sub_f32 v{C+r}, 0, v12")
e("s_waitcnt lgkmcnt(0)")
e("s_nop 0")
mfma(S[0], KF[0], Q, C)
e(f"ds_read_b128 {vr(KF[0])}, v{vL16} offset:{2*TILE}")
e("s_nop 10")
stamp(5)
UN = 8
def ex(x, r): e(f"v_exp_f32 v{S[x]+r}, v{S[x]+r}")
def cv(x, i): e(f"v_cvt_pk_bf16_f32 v{P[x]+i}, v{S[x]+2*i}, v{S[x]+2*i+1}")
L.append(".p2align 6")
lab("L_att_loop")
for u in range(UN):
    x = u & 1; y = 1 - x
    if u == 5:
        e(f"s_bitcmp1_b32 s{sCHK}, s{sI}")
        e("s_cbranch_scc1 L_att_chk")
        lab("L_att_chk_ret")
    ex(x, 0); cv(y, 7); ex(x, 1); ex(x, 2)
    mfma(O, V1[y], P[y] + 4, O)
    e(f"ds_read_b128 {vr(V1[y])}, v{vV} offset:{(u+1)*TILE+528}")
    cv(x, 0); ex(x, 3); ex(x, 4); cv(x, 1); ex(x, 5); ex(x, 6); cv(x, 2); ex(x, 7)
    mfma(S[y], KF[y], Q, C)
    e(f"ds_read_b128 {vr(KF[y])}, v{vK} offset:{(u+3)*TILE}")
    ex(x, 8); cv(x, 3); ex(x, 9); ex(x, 10); cv(x, 4); ex(x, 11); ex(x, 12)
    mfma(O, V0[x], P[x], O)
    e("s_waitcnt lgkmcnt(2)")
    e(f"ds_read_b128 {vr(V0[x])}, v{vV} offset:{(u+2)*TILE}")
    cv(x, 5); ex(x, 13); ex(x, 14); cv(x, 6); ex(x, 15)
if DIAG == 2:
    e("s_memtime s[100:101]")
    e("s_waitcnt lgkmcnt(0)")
    e(f"s_mov_b32 m0, s{sI}")
    e("s_nop 0")
    e("v_writelane_b32 v150, s100, m0")
e(f"v_add_u32 v{vK}, {UN*TILE}, v{vK}")
e(f"v_add_u32 v{vV}, {UN*TILE}, v{vV}")
e(f"s_add_u32 s{sI}, s{sI}, 1")
e(f"s_cmp_lt_u32 s{sI}, {64//UN - 1}")
e("s_cbranch_scc1 L_att_loop")
e("s_setprio 0")
e(f"s_cmp_lt_u32 s{sI}, {64//UN}")
e("s_cbranch_scc1 L_att_loop")
e("s_setprio 3")
cv(1, 7)
e(f"s_and_b32 s{sT}, s{sWAVE}, 1")
e(f"s_lshl_b32 s{sT}, s{sT}, 7")
mfma(O, V1[1], P[1] + 4, O)
stamp(6)
e(f"s_add_u32 s{sT}, s{sT}, {L_G}")
e(f"v_and_b32 v12, 31, v{vL}")
e(f"v_lshl_add_u32 v12, v12, 2, s{sT}")
e("ds_read_b32 v14, v12")
e(f"s_mov_b32 s{sT}, {hex(f2u(2.0**86))}")
e("v_mov_b32 v13, 0x207")
e("s_nop 6")
cm("safety check of the stand-in max: l < 2^42 and O finite, else redo with the true row max")
e(f"v_mul_f32 v12, s{sT}, v{O}")
for r in range(8, 16):
    e(f"v_add_f32 v12, v12, abs(v{O+r})")
e("v_cmp_class_f32 vcc, v12, v13")
e(f"v_rcp_f32 v12, v{O}")
e("s_cbranch_vccz L_att_ok")
e(f"s_cmp_eq_u32 s{sRETRY}, 0")
e("s_cbranch_scc1 L_att_truemax")
lab("L_att_ok")
e("s_waitcnt lgkmcnt(0)")
e("v_mul_f32 v12, v12, v14")
for r in range(8, 16):
    e(f"v_mul_f32 v{O+r}, v{O+r}, v12")
for i in range(4):
    e(f"v_cvt_pk_bf16_f32 v{P[0]+i}, v{O+8+2*i}, v{O+9+2*i}")
for i in range(4):
    e(f"v_min_u32 v{P[0]+i}, -2, v{P[0]+i}")
e(f"global_store_dwordx4 v{vL16}, {vr(P[0])}, {sr(sO)} sc1")
lds_signal(C_OD, 12, 13)
stamp(7)
if STAMPS: e("s_memrealtime s[96:97]")
e("s_branch L_fin")
lab("L_att_chk")
e(f"s_cmp_eq_u32 s{sI}, 1")
e("s_cbranch_scc1 L_att_chk1")
e(f"s_lshl1_add_u32 s{sT2}, s{sI}, {0}")
e(f"s_add_u32 s{sT2}, s{sT2}, {C_KA}")
lds_spin("att_chk2", f"s{sT2}", 4, 12, 13)
e(f"s_cmp_lg_u32 s{sI}, 0")
e("s_cbranch_scc1 L_att_chk_ret")
cm("K/V traffic is through: now poison this wave's O slot and publish its H tile")
e(f"global_store_dwordx4 v{vL16}, v[128:131], {sr(sO)} sc1")
e(f"s_cmp_lg_u32 s{sROLE}, 2")
e("s_cbranch_scc1 L_att_chk_ret")
for rt in range(2):
    for ks in range(2):
        e(f"global_store_dwordx4 v{vL16}, {vr(132+rt*8+ks*4)}, {sr(sH)} offset:{ks*2048+rt*1024} sc1")
e("s_branch L_att_chk_ret")
lab("L_att_chk1")
cm("H / poison stores of this wave have drained")
e("s_waitcnt vmcnt(0)")
lds_signal(C_HD, 12, 13)
e("s_waitcnt lgkmcnt(0)")
e("s_setprio 1")
e("s_branch L_att_chk_ret")
lab("L_att_truemax")
e(f"s_mov_b32 s{sRETRY}, 1")
e(f"s_mov_b32 s{sCHK}, 0")
e("v_mov_b32 v12, 0xff800000")
e(f"v_mov_b32 v{vK}, v{vL16}")
e(f"s_mov_b32 s{sI}, 0")
lab("L_att_tm")
e(f"ds_read_b128 {vr(KF[0])}, v{vK}")
e(f"v_add_u32 v{vK}, {TILE}, v{vK}")
e("s_waitcnt lgkmcnt(0)")
mfma(S[0], KF[0], Q, None)
e("s_nop 15")
for r in range(0, 16, 2):
    e(f"v_max3_f32 v12, v12, v{S[0]+r}, v{S[0]+r+1}")
e(f"s_add_u32 s{sI}, s{sI}, 1")
e(f"s_cmp_lt_u32 s{sI}, 64")
e("s_cbranch_scc1 L_att_tm")
e(f"ds_read_b128 {vr(KF[0])}, v{vL16}")
att_first_loads()
att_zero()
e("s_branch L_att_setC")

lab("L_g4")
e("s_setprio 3")
for perm in ("quad_perm:[1,0,3,2]", "quad_perm:[2,3,0,1]"):
    if perm.endswith("2]"): e("v_add_f32 v14, v14, v15")
    e("s_nop 1")
    e(f"v_add_f32_dpp v14, v14, v14 {perm} row_mask:0xf bank_mask:0xf")
e(f"v_mul_f32 v14, {hex(f2u(-LOG2E))}, v14")
e("v_exp_f32 v14, v14")
e(f"s_lshl_b32 s{sT}, s{sV}, 6")
e(f"s_add_u32 s{sT}, s{sT}, {L_G}")
e("v_add_f32 v14, 1.0, v14")
e("v_rcp_f32 v14, v14")
e(f"v_and_b32 v12, 60, v{vL}")
e(f"v_add_u32 v12, s{sT}, v12")
e("ds_write_b32 v12, v14")
e("s_barrier")
stamp(2)
e(f"s_cmp_lg_u32 s{sFAST}, 0")
e("s_cbranch_scc1 L_kvfast")
tag_poll("kvpoll", 30, 31, sWS, 4)
for j in range(3):
    dma_lin(sXM, 4, j*16384)
lab("L_kvfast")
stamp(3)
cm("K/V: pieces 0..31 gate the start, 32..63 -> C_KA, 64..129 -> C_KB")
dma_lin(sXM, 4, 49152)
e("s_waitcnt vmcnt(8)")
lds_signal(C_B2, 12, 13)
stamp(4)
e(f"s_lshl_b32 s{sT3}, s{sV}, 14")
dma_lin(sT3, 4, 65536)
e("s_waitcnt vmcnt(4)")
lds_signal(C_KA, 12, 13)
dma_lin(sT3, 12, 65536 + 4096)
e(f"s_cmp_lg_u32 s{sV}, 0")
e("s_cbranch_scc1 L_g5")
dma_kv_one(128 * 1024)
dma_kv_one(129 * 1024)
lab("L_g5")
tr_lane(7, 32, 33)
e(f"s_lshl_b32 s{sT}, s{sQB}, 7")
e(f"s_add_u32 s{sT}, s{sT}, {WS_FL}")
add64(sFL, sWS, off_s=sT)
e(f"s_mul_i32 s{sT}, s{sQB}, {43*4096}")
e(f"s_add_u32 s{sT}, s{sT}, {WS_H}")
add64(sH, sWS, off_s=sT)
e(f"s_lshl2_add_u32 s{sT}, s{sQB}, s{sV}")
e(f"s_lshl_b32 s{sT}, s{sT}, 14")
e(f"s_add_u32 s{sT}, s{sT}, {WS_O}")
add64(sO, sWS, off_s=sT)
cm("weight piece lane offsets v8/v9 (8 rows x 128B -> [rg][ct][4 rows][64B]); ring read address v7")
e(f"v_lshrrev_b32 v32, 5, v{vL}")
e(f"v_bfe_u32 v33, v{vL}, 2, 2")
e("v_lshl_add_u32 v32, v32, 2, v33")
e("v_lshlrev_b32 v8, 10, v32")
e(f"v_bfe_u32 v33, v{vL}, 4, 1")
e("v_lshl_add_u32 v8, v33, 6, v8")
e(f"v_and_b32 v33, 3, v{vL}")
e("v_lshl_add_u32 v8, v33, 4, v8")
e("v_add_u32 v9, 0x2000, v8")
e(f"s_mul_i32 s{sRING}, s{sV}, {R2SZ}")
e(f"s_add_u32 s{sRING}, s{sRING}, {L_UP}")
e(f"v_add_u32 v3, s{sRING}, v7")
cm("slot j of the accumulators holds tile j^v: ct ^= v>>1 (v3/v10), rt ^= v&1 (v11/v7)")
e(f"s_lshr_b32 s{sT}, s{sV}, 1")
e(f"s_lshl_b32 s{sT}, s{sT}, 8")
e(f"v_add_u32 v3, s{sT}, v3")
e("v_xor_b32 v10, 0x100, v3")
e(f"s_and_b32 s{sT}, s{sV}, 1")
e(f"s_lshl_b32 s{sT}, s{sT}, 10")
e(f"v_add_u32 v11, s{sT}, v{vL16}")
e("v_xor_b32 v0, 0x400, v11")
e("s_waitcnt vmcnt(0)")
lds_signal(C_KB, 12, 13)
stamp(5)
lds_spin("qr", C_QR, 8, 12, 13, slp=4)
GA = [100, 116, 132, 148]
def ring_issue(slot, base):
    e(f"s_add_u32 m0, s{sRING}, {slot*2048}")
    e("s_nop 0")
    e(f"global_load_lds_dwordx4 v8, {sr(base)}")
    e(f"s_add_u32 m0, s{sRING}, {slot*2048+1024}")
    e("s_nop 0")
    e(f"global_load_lds_dwordx4 v9, {sr(base)}")
def ring_read(slot, ct, dst):
    e(f"ds_read_b64_tr_b16 {vr(dst,2)}, v{(3, 10)[ct]} offset:{slot*2048}")
    e(f"ds_read_b64_tr_b16 {vr(dst+2,2)}, v{(3, 10)[ct]} offset:{slot*2048+1024}")
e(f"s_lshl_b32 s{sT}, s{sV}, 17")
e(f"s_lshl_b32 s{sT2}, s{sHG}, 7")
e(f"s_add_u32 s{sT}, s{sT}, s{sT2}")
add64(sP, sWO, off_s=sT)
for ks in range(3):
    ring_issue(ks, sP)
    add64(sP, sP, imm=16384)
for ks in range(8):
    e(f"s_waitcnt vmcnt({2*min(2, 7-ks)})")
    ring_read(ks % 3, 0, 36 + 8*ks)
    ring_read(ks % 3, 1, 40 + 8*ks)
    if ks + 3 < 8:
        e("s_waitcnt lgkmcnt(0)")
        ring_issue(ks % 3, sP)
        add64(sP, sP, imm=16384)
e("s_waitcnt lgkmcnt(0)")
stamp(6)
cm("every A-wave past tile 13: Q buffer is free, H and poison stores have drained")
e(f"s_cmp_lg_u32 s{sV}, 0")
e("s_cbranch_scc1 L_g6")
lds_spin("hdr", C_HD, 8, 12, 13, slp=4)
e(f"s_lshl_b32 s{sT}, s{sHG}, 2")
e(f"v_mov_b32 v12, s{sT}")
e(f"v_mov_b32 v13, s{sTAG}")
e("s_mov_b64 exec, 1")
e(f"global_store_dword v12, v13, {sr(sFL)} sc1")
cm("this workgroup has read the epoch; the last workgroup to get here advances it")
e("v_mov_b32 v12, 0")
e("v_mov_b32 v14, 1")
e(f"global_atomic_add v15, v12, v14, {sr(sDBG)} sc0 sc1")
e("s_waitcnt vmcnt(0)")
e("v_cmp_eq_u32 vcc, 0xff, v15")
e("s_cbranch_vccz L_g6a")
e(f"v_mov_b32 v12, {WS_NONCE}")
e(f"global_store_dword v12, v13, {sr(sWS)} sc1")
lab("L_g6a")
e("s_mov_b64 exec, -1")
lab("L_g6")
e(f"v_and_b32 v12, 7, v{vL}")
e("v_lshlrev_b32 v12, 2, v12")
tag_poll("hpoll", 12, 13, sFL, 8)
stamp(7)
HB = [12, 20, 28]
GAF = [4, 164]
e(f"s_mul_i32 s{sT}, s{sV}, 22")
e(f"s_cmp_eq_u32 s{sV}, 3")
e(f"s_cselect_b32 s{sT}, 65, s{sT}")
e(f"s_cmp_ge_u32 s{sV}, 2")
e(f"s_cselect_b32 s{sI}, 21, 22")
e(f"s_sub_u32 s{sN}, s{sI}, 1")
e(f"s_lshl_b32 s{sT2}, s{sT}, 14")
e(f"s_lshl_b32 s{sT3}, s{sHG}, 7")
e(f"s_add_u32 s{sT2}, s{sT2}, s{sT3}")
add64(sP, sW2, off_s=sT2)
e(f"s_lshl_b32 s{sT}, s{sT}, 11")
add64(sP2, sH, off_s=sT)
def g2_issue(slot):
    ring_issue(slot, sP)
    for rt in range(2):
        e(f"global_load_dwordx4 {vr(HB[slot]+4*rt)}, v{(11, 0)[rt]}, {sr(sP2)} sc1")
    e(f"s_cmp_lg_u32 s{sN}, 0")
    e(f"s_cselect_b32 s{sT}, 16384, 0")
    e(f"s_cselect_b32 s{sT2}, 2048, 0")
    e(f"s_cselect_b32 s{sT3}, 1, 0")
    e(f"s_sub_u32 s{sN}, s{sN}, s{sT3}")
    add64(sP, sP, off_s=sT)
    add64(sP2, sP2, off_s=sT2)
def g2_step(slot, first):
    g2_issue((slot + 2) % 3)
    e("s_waitcnt vmcnt(8)")
    for ct in range(2):
        ring_read(slot, ct, GAF[ct])
        e("s_waitcnt lgkmcnt(0)")
        for rt in range(2):
            a = GA[ct*2+rt]
            mfma(a, GAF[ct], HB[slot] + 4*rt, None if first else a)
g2_issue(0)
g2_issue(1)
g2_step(0, True)
e(f"s_sub_u32 s{sI}, s{sI}, 1")
lab("L_g2loop")
for slot in (1, 2, 0):
    g2_step(slot, False)
    e(f"s_sub_u32 s{sI}, s{sI}, 1")
    e(f"s_cmp_eq_u32 s{sI}, 0")
    e("s_cbranch_scc1 L_g2done" if slot != 0 else "s_cbranch_scc0 L_g2loop")
lab("L_g2done")
stampx(8)
e(f"s_and_b32 s{sT}, s{sV}, 1")
e(f"s_lshl_b32 s{sT}, s{sT}, 7")
e(f"s_add_u32 s{sT}, s{sT}, {L_G}")
e(f"v_and_b32 v4, 31, v{vL}")
e(f"v_lshl_add_u32 v4, v4, 2, s{sT}")
e("v_xor_b32 v5, 0x80, v4")
e("ds_read_b32 v6, v4")
e("ds_read_b32 v8, v5")
e("s_waitcnt vmcnt(0) lgkmcnt(0)")
e("v_sub_f32 v6, 1.0, v6")
e("v_sub_f32 v8, 1.0, v8")
e("s_nop 3")
for t in range(4):
    for r in range(0, 16, 2):
        e(f"v_pk_mul_f32 {vr(GA[t]+r,2)}, {vr(GA[t]+r,2)}, {vr(6+2*(t&1),2)} op_sel_hi:[1,0]")
cm("tail: slot j goes to LDS [(j^v)*3 + j-1]*4096 ; v3 = own collection base; v165/v0 = O offsets; v166 = output offset")
e("v_mov_b32 v165, v11")
e(f"s_mul_i32 s{sT3}, s{sV}, 12288")
e(f"v_add_u32 v3, s{sT3}, v{vL16}")
e(f"v_and_b32 v166, 31, v{vL}")
e("v_lshlrev_b32 v166, 10, v166")
e(f"v_lshrrev_b32 v12, 5, v{vL}")
e("v_lshl_add_u32 v166, v12, 4, v166")
e(f"s_and_b32 s{sT}, s{sV}, 1")
e(f"s_lshl1_add_u32 s{sT}, s{sQB}, s{sT}")
e(f"s_lshl_b32 s{sT}, s{sT}, 15")
e(f"s_lshr_b32 s{sT2}, s{sV}, 1")
e(f"s_lshl1_add_u32 s{sT2}, s{sHG}, s{sT2}")
e(f"s_lshl_b32 s{sT2}, s{sT2}, 6")
e(f"s_add_u32 s{sT}, s{sT}, s{sT2}")
add64(sB0, sOUT, off_s=sT)
add64(sP2, sO, imm=8192)
for j in range(1, 4):
    e(f"s_xor_b32 s{sC+j-1 if j < 3 else sN}, s{sV}, {j}")
    e(f"s_mul_i32 s{sC+j-1 if j < 3 else sN}, s{sC+j-1 if j < 3 else sN}, 12288")
OB = 4
for b in range(2):
    if b == 0:
        e("s_setprio 0")
        lds_spin("od0", C_OD, 4, 164, 167, slp=4)
        stampx(9)
    else:
        e("s_setprio 3")
        lds_spin("od1", C_OD, 8, 164, 167, slp=1)
        stampx(10)
    e(f"s_mov_b32 s{sSPIN}, {SPIN}")
    lab(f"L_opoll{b}")
    for p in range(2):
        for j in range(4):
            e(f"global_load_dwordx4 {vr(OB+16*p+4*j)}, v{(165, 0)[j&1]}, {sr(sO if p == 0 else sP2)} offset:{(j>>1)*2048} sc1")
    e("v_mov_b32 v164, 0")
    for p in range(2):
        e(f"s_waitcnt vmcnt({4-4*p})")
        for r in range(0, 16, 2):
            e(f"v_max3_u32 v164, v164, v{OB+16*p+r}, v{OB+1+16*p+r}")
    e("v_cmp_eq_u32 vcc, -1, v164")
    e(f"s_cbranch_vccz L_ook{b}")
    if b == 0: e("s_sleep 4")
    e(f"s_sub_u32 s{sSPIN}, s{sSPIN}, 1")
    e(f"s_cmp_lg_u32 s{sSPIN}, 0")
    e(f"s_cbranch_scc1 L_opoll{b}")
    lab(f"L_ook{b}")
    if b == 1: stampx(11)
    def chain(j):
        ct, rt = j >> 1, j & 1
        for p in range(2):
            for hh in range(2):
                ks = 4*p + 2*b + hh
                mfma(GA[j], 36 + 8*ks + 4*ct, OB + 16*p + 8*hh + 4*rt, GA[j])
    def wr(j):
        e(f"v_add_u32 v164, s{sC+j-1 if j < 3 else sN}, v{vL16}")
        for qq in range(4):
            e(f"ds_write_b128 v164, {vr(GA[j]+4*qq)} offset:{(j-1)*4096+qq*1024}")
    if b == 0:
        for j in range(4): chain(j)
        add64(sO, sO, imm=4096)
        add64(sP2, sP2, imm=4096)
    else:
        chain(3); chain(2); chain(1)
        e("s_nop 2")
        wr(3)
        chain(0)
        wr(2)
        wr(1)
e("s_waitcnt lgkmcnt(0)")
lds_signal(C_RED, 4, 5)
lds_spin("red", C_RED, 4, 4, 5, slp=0)
stampx(12)
for c in range(3):
    for q in range(4):
        e(f"ds_read_b128 {vr(36+16*c+4*q)}, v3 offset:{c*4096+q*1024}")
for c in range(3):
    e(f"s_waitcnt lgkmcnt({8-4*c})")
    for r in range(0, 16, 2):
        e(f"v_pk_add_f32 {vr(GA[0]+r,2)}, {vr(GA[0]+r,2)}, {vr(36+16*c+r,2)}")
for i in range(8):
    e(f"v_cvt_pk_bf16_f32 v{16+i}, v{GA[0]+2*i}, v{GA[0]+1+2*i}")
e("s_nop 1")
for p in range(2):
    e(f"v_permlane32_swap_b32 v{16+4*p}, v{18+4*p}")
    e(f"v_permlane32_swap_b32 v{17+4*p}, v{19+4*p}")
for p in range(2):
    e(f"global_store_dwordx4 v166, {vr(16+4*p)}, {sr(sB0)} offset:{32*p}")
lab("L_fin")
if opt("dbgt", 0):
    e("s_waitcnt vmcnt(0)")
    e("s_memrealtime s[100:101]")
    e("s_memtime s[98:99]")
    e("s_waitcnt lgkmcnt(0)")
    e("s_mov_b64 exec, 1")
    e("v_mov_b32 v12, 0")
    e("s_not_b32 s3, s70")
    e("v_mov_b32 v13, s3")
    e(f"global_atomic_umax v12, v13, {sr(sDBG)} offset:4 sc1")
    e("v_mov_b32 v14, s100")
    e(f"global_atomic_umax v12, v14, {sr(sDBG)} offset:8 sc1")
    e("v_mov_b32 v15, s70")
    e(f"global_atomic_umax v12, v15, {sr(sDBG)} offset:12 sc1")
    e("s_cmp_lg_u32 s2, 100")
    e("s_cbranch_scc1 L_end")
    e(f"s_cmp_eq_u32 s{sWAVE}, 7")
    e("s_cbranch_scc0 L_dg")
    for k, i in enumerate((9, 1, 2, 4, 7, 13)):
        e(f"s_sub_u32 s3, s{72+2*i}, s72")
        e("v_mov_b32 v13, s3")
        e(f"global_store_dword v12, v13, {sr(sDBG)} offset:{16+4*k}")
    e("s_branch L_end")
    lab("L_dg")
    e(f"s_cmp_eq_u32 s{sWAVE}, 8")
    e("s_cbranch_scc0 L_end")
    for k, i in enumerate((3, 5, 8, 11, 12, 13)):
        e(f"s_sub_u32 s3, s{72+2*i}, s72")
        e("v_mov_b32 v13, s3")
        e(f"global_store_dword v12, v13, {sr(sDBG)} offset:{40+4*k}")
elif STAMPS:
    e("s_waitcnt vmcnt(0)")
    stamp(13)
    e("s_memrealtime s[100:101]")
    e("s_waitcnt lgkmcnt(0)")
    e(f"s_lshl_b32 s{sT}, s2, 4")
    e(f"s_add_u32 s{sT}, s{sT}, s{sWAVE}")
    e(f"s_lshl_b32 s{sT}, s{sT}, 7")
    e(f"s_add_u32 s{sT}, s{sT}, {WS_ST}")
    add64(sP, sWS, off_s=sT)
    if DIAG == 2:
        e(f"v_lshlrev_b32 v12, 2, v{vL}")
        e("s_mov_b64 exec, 0xff")
        e(f"global_store_dword v12, v150, {sr(sP)} offset:64")
    e("v_mov_b32 v12, 0")
    e("s_mov_b64 exec, 1")
    for i in range(16):
        e(f"v_mov_b32 v13, s{70+2*i}")
        e(f"global_store_dword v12, v13, {sr(sP)} offset:{4*i}")
    e("s_waitcnt vmcnt(0)")
lab("L_end")
e("s_endpgm")
lab("L_code_end")

HEAD = open(f"cdna_kernels/{NAME}.s.ref").read().split("; Override launch geometry")[0]
src = HEAD + f"""; @launch grid=(256,1,1) block=(768,1,1) lds={LDS_TOTAL}
.amdgcn_target "amdgcn-amd-amdhsa--gfx950"
.text
.globl {NAME}_kernel
.p2align 8
.type {NAME}_kernel,@function
{NAME}_kernel:
""" + "\n".join(L) + f"""
.section .rodata,"a"
.p2align 6
.amdhsa_kernel {NAME}_kernel
  .amdhsa_next_free_vgpr 168
  .amdhsa_next_free_sgpr 102
  .amdhsa_accum_offset 168
  .amdhsa_group_segment_fixed_size 0
  .amdhsa_kernarg_size 96
  .amdhsa_user_sgpr_count 2
  .amdhsa_user_sgpr_kernarg_segment_ptr 1
  .amdhsa_system_sgpr_workgroup_id_x 1
.end_amdhsa_kernel
"""
open(OUT, "w").write(src)
print("wrote", OUT, len(L), "lines")
```

```python
import sys, struct

NAME = "gated_mix__grouped_kv_mqa__dense_activation_silu__prompt"
STAMPS = "--stamps" in sys.argv
def opt(name, default):
    for a in sys.argv[1:]:
        if a.startswith(f"--{name}="): return int(a.split("=")[1])
    return default
OUT = [a for a in sys.argv[1:] if not a.startswith("--")]
OUT = OUT[0] if OUT else f"cdna_kernels/{NAME}.s"
DIAG = opt("diag", 0)
LITE = opt("lite", 0)

def f2u(x): return struct.unpack("<I", struct.pack("<f", x))[0]
LOG2E = 1.4426950408889634

TILE = 2080
KVBYTES = 64 * TILE
L_X = 66560
L_UP = KVBYTES
L_Q = L_UP
L_KVP = L_UP
L_VT = L_UP + 24576
L_WKV = 32768
R2SZ = 6144
L_G = L_UP + 28672
L_CNT = L_G + 256
L_GW = L_CNT + 256
LDS_TOTAL = L_GW + 1024
C_KA, C_KB, C_KVP, C_GO, C_RED, C_K1, C_HD, C_OD, C_B2, C_QR = [L_CNT + 4*i for i in range(10)]
WS_KV, WS_FL, WS_H, WS_O, WS_ST = 0, 0x30000, 0x40000, 0x600000, 0x900000
WS_KF = WS_FL + 0x1000
WS_NONCE = WS_FL + 0x3000
SPIN = 1 << 16
TAGC = 0x9E3779B1

L = []
def e(s): L.append("    " + s)
def lab(s): L.append(s + ":")
def cm(s): L.append("    ; " + s)
def vr(a, n=4): return f"v[{a}:{a+n-1}]"
def sr(a, n=2): return f"s[{a}:{a+n-1}]"
def stamp(i):
    if STAMPS: e(("s_memrealtime" if opt("rts", 0) else "s_memtime") + f" s[{72+2*i}:{73+2*i}]")

def stampx(i):
    if DIAG != 4: stamp(i)
sX, sWQ, sWK, sWV, sWO, sW1, sW2, sGW, sOUT, sDBG, sWS = 4, 6, 8, 10, 12, 16, 18, 20, 22, 24, 26
sQB, sHG, sWAVE, sV = 28, 29, 30, 31
sJQ, sXM = 32, 33
sB0, sFL, sADV, sROLE, sRING, sN = 34, 36, 38, 39, 40, 41
sHT, sPROD = 42, 43
sKV, sH, sO = 44, 46, 48
sT, sT2, sT3 = 50, 52, 54
sC, sTAG = 56, 58
sSPIN, sI, sCHK, sRETRY = 60, 61, 62, 63
sWB = 14
sP, sP2 = 66, 68
vL, vL16 = 1, 2

def add64(dst, src, off_s=None, imm=None):
    o = f"s{off_s}" if off_s is not None else hex(imm)
    e(f"s_add_u32 s{dst}, s{src}, {o}")
    e(f"s_addc_u32 s{dst+1}, s{src+1}, 0")
def mfma(d, a, b, c):
    cs = "0" if c is None else vr(c, 16)
    e(f"v_mfma_f32_32x32x16_bf16 {vr(d,16)}, {vr(a)}, {vr(b)}, {cs}")
def lds_spin(name, off, want, va, vt, slp=1):
    e(f"v_mov_b32 v{va}, {off}")
    e(f"s_mov_b32 s{sSPIN}, {SPIN*64}")
    lab(f"L_{name}")
    e(f"ds_read_b32 v{vt}, v{va}")
    e("s_waitcnt lgkmcnt(0)")
    e(f"v_readfirstlane_b32 s{sT}, v{vt}")
    e(f"s_sub_u32 s{sSPIN}, s{sSPIN}, 1")
    e(f"s_cmp_eq_u32 s{sSPIN}, 0")
    e(f"s_cbranch_scc1 L_{name}_ok")
    e(f"s_cmp_ge_u32 s{sT}, {want}")
    e(f"s_cbranch_scc1 L_{name}_ok")
    if slp: e(f"s_sleep {slp}")
    e(f"s_branch L_{name}")
    lab(f"L_{name}_ok")
def lds_signal(off, va, vt):
    e(f"v_mov_b32 v{va}, {off}")
    e(f"v_mov_b32 v{vt}, 1")
    e("s_mov_b64 exec, 1")
    e(f"ds_add_u32 v{va}, v{vt}")
    e("s_mov_b64 exec, -1")
def tag_poll(name, va, vt, base, slp):
    e(f"s_mov_b32 s{sSPIN}, {SPIN}")
    lab(f"L_{name}")
    e(f"global_load_dword v{vt}, v{va}, {sr(base)} sc1")
    e("s_waitcnt vmcnt(0)")
    e(f"v_cmp_ne_u32 vcc, s{sTAG}, v{vt}")
    e(f"s_cbranch_vccz L_{name}_ok")
    e(f"s_sleep {slp}")
    e(f"s_sub_u32 s{sSPIN}, s{sSPIN}, 1")
    e(f"s_cmp_lg_u32 s{sSPIN}, 0")
    e(f"s_cbranch_scc1 L_{name}")
    lab(f"L_{name}_ok")
def dma_lin(first_s, n, first_imm=0):
    for j in range(0, n, 4):
        e(f"s_add_u32 s{sT}, s{first_s}, {first_imm + j*1024}")
        e(f"s_mov_b32 m0, s{sT}")
        add64(sP, sKV, off_s=sT)
        for i in range(4):
            e(f"global_load_lds_dwordx4 v{vL16}, {sr(sP)} offset:{i*1024} sc1")
def dma_kv_one(off):
    e(f"s_mov_b32 m0, {off}")
    add64(sP, sKV, imm=off)
    e(f"global_load_lds_dwordx4 v{vL16}, {sr(sP)} sc1")
def tr_lane(dst, t0, t1):
    e(f"v_bfe_u32 v{dst}, v{vL}, 2, 2")
    e(f"v_bfe_u32 v{t0}, v{vL}, 4, 1")
    e(f"v_and_b32 v{t1}, 3, v{vL}")
    e(f"v_lshlrev_b32 v{dst}, 6, v{dst}")
    e(f"v_lshl_add_u32 v{dst}, v{t0}, 5, v{dst}")
    e(f"v_lshl_add_u32 v{dst}, v{t1}, 3, v{dst}")
    e(f"v_lshrrev_b32 v{t0}, 5, v{vL}")
    e(f"v_lshl_add_u32 v{dst}, v{t0}, 9, v{dst}")
e("s_load_dwordx16 s[4:19], s[0:1], 0")
e("s_load_dwordx8 s[20:27], s[0:1], 64")
e("s_cmp_ge_u32 s2, 256")
e("s_cbranch_scc1 L_end")
if STAMPS or LITE: e("s_memrealtime s[70:71]")
stamp(0)
e("v_lshrrev_b32 v5, 6, v0")
e(f"v_and_b32 v{vL}, 63, v0")
e(f"v_readfirstlane_b32 s{sWAVE}, v5")
e(f"v_lshlrev_b32 v{vL16}, 4, v{vL}")
cm("qb = ((wg&7)>>1)*8 + ((wg>>3)&7) ; hg = (wg&1)*4 + (wg>>6) ; producers: wg < 64")
e(f"s_bfe_u32 s{sT}, s2, 0x20001")
e(f"s_bfe_u32 s{sJQ}, s2, 0x30003")
e(f"s_lshl3_add_u32 s{sQB}, s{sT}, s{sJQ}")
e(f"s_and_b32 s{sT}, s2, 1")
e(f"s_lshr_b32 s{sPROD}, s2, 6")
e(f"s_lshl2_add_u32 s{sHG}, s{sT}, s{sPROD}")
cm("stage order s ^ rot, rot = 2*(qb&7) ^ 4*(hg&3)")
e(f"s_lshl_b32 s{sJQ}, s{sJQ}, 1")
e(f"s_lshl_b32 s{sT}, s{sPROD}, 2")
e(f"s_xor_b32 s{sJQ}, s{sJQ}, s{sT}")
e(f"s_and_b32 s{sJQ}, s{sJQ}, {opt('rot', 6)}")
e(f"s_cmp_lt_u32 s{sWAVE}, 8")
e("s_cbranch_scc1 L_aw")

e(f"s_sub_u32 s{sV}, s{sWAVE}, 8")
if opt("gp", 0): e("s_setprio 3")
sWQB, sW1B = 34, 64
cm("X lane offset v20: row 16v + (l>>4) (+4j), 16B unit (l&15) ^ (row&15)")
e(f"v_lshrrev_b32 v16, 4, v{vL}")
e(f"v_and_b32 v17, 15, v{vL}")
e("v_xor_b32 v17, v17, v16")
e("v_lshlrev_b32 v17, 4, v17")
e("v_lshl_add_u32 v20, v16, 10, v17")
for j in range(1, 4):
    e(f"v_xor_b32 v{20+j}, {j*(4096+64)}, v20")
e(f"s_lshl2_add_u32 s{sT2}, s{sQB}, s{sV}")
e(f"s_lshl_b32 s{sT2}, s{sT2}, 14")
e(f"s_lshl_b32 s{sXM}, s{sV}, 12")
cm("row-in-octet v16 = 4*(l>>5) + ((l>>2)&3), v17 = tile bit (l>>4)&1, v18 = (l&3)*16")
e(f"v_lshrrev_b32 v16, 5, v{vL}")
e(f"v_bfe_u32 v19, v{vL}, 2, 2")
e("v_lshl_add_u32 v16, v16, 2, v19")
e(f"s_lshl_b32 s{sT3}, s{sV}, 3")
e(f"v_add_u32 v16, s{sT3}, v16")
e(f"v_bfe_u32 v17, v{vL}, 4, 1")
e(f"v_and_b32 v18, 3, v{vL}")
e("v_lshlrev_b32 v18, 4, v18")
e("v_lshl_add_u32 v24, v17, 6, v18")
e("v_lshl_add_u32 v24, v16, 10, v24")
def x_issue(g):
    e(f"s_xor_b32 s{sT}, s{sJQ}, {4*g}")
    e(f"s_lshr_b32 s{sT}, s{sT}, 2")
    e(f"s_lshl_b32 s{sT}, s{sT}, 8")
    e(f"s_add_u32 m0, s{sXM}, {L_X + g*16384}")
    add64(sP, sP2, off_s=sT)
    for j in range(4):
        if j:
            e(f"s_add_u32 m0, s{sXM}, {L_X + g*16384 + j*1024}")
            e("s_nop 0")
        e(f"global_load_lds_dwordx4 v{20+j}, {sr(sP)}")
e("s_waitcnt lgkmcnt(0)")
stamp(9)
e(f"s_load_dword s{sTAG}, {sr(sWS)}, {hex(WS_NONCE)}")
add64(sP2, sX, off_s=sT2)
x_issue(0)
e(f"s_lshl_b32 s{sT}, s{sHG}, 7")
add64(sWQ, sWQ, off_s=sT)
e(f"s_cmp_eq_u32 s{sHG}, 0")
e("s_cbranch_scc1 L_gprod")
e(f"s_mul_i32 s{sT}, s{sHG}, 384")
e(f"s_sub_u32 s{sT}, s{sT}, 320")
add64(sW1, sW1, off_s=sT)
e(f"v_add_u32 v19, s{sT3}, v19")
e("v_mul_u32_u24 v25, 2752, v19")
e(f"v_lshrrev_b32 v26, 4, v{vL}")
e("v_lshl_add_u32 v25, v26, 6, v25")
e("v_add_u32 v25, v25, v18")
e(f"v_add_u32 v26, {4*2752}, v25")
e("v_mul_u32_u24 v27, 2752, v16")
e("v_lshl_add_u32 v27, v17, 6, v27")
e("v_add3_u32 v27, v27, v18, 64")
e("v_add_u32 v27, 192, v27")
def misc_g():
    cm("one extra request per wave keeps the counts uniform: v0 code prefetch, v1 gate weights, v2/v3 touch w2/wo/out pages")
    e(f"s_cmp_eq_u32 s{sV}, 1")
    e(f"s_cbranch_scc1 L_m1{UID[0]}")
    e(f"s_getpc_b64 {sr(sT)}")
    lab(f"L_pc{UID[0]}")
    e(f"s_sub_u32 s{sT}, s{sT}, L_pc{UID[0]}-{NAME}_kernel")
    e(f"s_subb_u32 s{sT+1}, s{sT+1}, 0")
    e(f"s_andn2_b32 s{sT2}, s2, 7")
    e(f"v_and_b32 v3, 7, v{vL}")
    e(f"v_add_lshl_u32 v3, v3, s{sT2}, 7")
    e(f"v_min_u32 v3, L_code_end-{NAME}_kernel-4, v3")
    e(f"global_load_dword v4, v3, {sr(sT)}")
    e(f"v_and_b32 v12, 15, v{vL}")
    e(f"v_lshlrev_b32 v12, 2, v12")
    e(f"v_add_u32 v12, {L_CNT}, v12")
    e("v_mov_b32 v13, 0")
    e("ds_write_b32 v12, v13")
    e(f"s_branch L_m2{UID[0]}")
    lab(f"L_m1{UID[0]}")
    e(f"s_mov_b32 m0, {L_GW}")
    e("s_nop 0")
    e(f"global_load_lds_dwordx4 v{vL16}, {sr(sGW)}")
    lab(f"L_m2{UID[0]}")
    cm("gate: lane -> row 16v + (l>>2), units 4(l&3)+i ; v10 X address, v11 weight address")
    e(f"v_lshrrev_b32 v12, 2, v{vL}")
    e(f"v_and_b32 v13, 3, v{vL}")
    e("v_lshlrev_b32 v13, 2, v13")
    e("v_xor_b32 v10, v13, v12")
    e("v_lshlrev_b32 v10, 4, v10")
    e("v_lshl_add_u32 v10, v12, 8, v10")
    e(f"s_add_u32 s{sT}, s{sXM}, {L_X}")
    e(f"v_add_u32 v10, s{sT}, v10")
    e(f"s_lshr_b32 s{sT}, s{sJQ}, 2")
    e(f"s_lshl_b32 s{sT}, s{sT}, 8")
    e(f"v_lshl_add_u32 v11, v13, 4, s{sT}")
    e("v_mov_b32 v14, 0")
    e("v_mov_b32 v15, 0")
    e(f"v_and_b32 v30, 31, v{vL}")
    e("v_lshlrev_b32 v30, 7, v30")
    e(f"v_add_u32 v30, {WS_KF}, v30")
    add64(sKV, sWS, imm=WS_KV)
    e("s_waitcnt lgkmcnt(0)")
    e(f"s_add_u32 s{sTAG}, s{sTAG}, {hex(TAGC)}")
    UID[0] += 1
UID = [0]
def gate_part(g):
    if opt("nogate", 0): return
    e(f"v_xor_b32 v12, {g*256}, v11")
    e(f"v_add_u32 v12, {L_GW}, v12")
    for i in range(4):
        if i: e(f"v_xor_b32 v13, {i*16}, v10")
        e(f"ds_read_b128 {vr(32+8*i)}, v{13 if i else 10} offset:{g*16384}")
        e(f"ds_read_b128 {vr(36+8*i)}, v12 offset:{i*16}")
    for i in range(4):
        e(f"s_waitcnt lgkmcnt({6-2*i})")
        for j in range(4):
            e(f"v_dot2_f32_bf16 v{14+(j&1)}, v{32+8*i+j}, v{36+8*i+j}, v{14+(j&1)}")
sFAST = sN
def loader(prod):
    nw = 2 if prod else 4
    tg = "p" if prod else "n"
    def issue(s):
        if s % 4 == 0 and s and not prod: x_issue(s // 4)
        base = (s % 4) * 16384
        e(f"s_xor_b32 s{sT}, s{sJQ}, {s}")
        e(f"s_lshl_b32 s{sT2}, s{sT}, 15")
        e(f"s_add_u32 m0, s{sXM}, {base}")
        add64(sWQB, sWQ, off_s=sT2)
        e(f"global_load_lds_dwordx4 v24, {sr(sWQB)}")
        e(f"s_mul_i32 s{sT2}, s{sT}, {32*2752}")
        e(f"s_add_u32 m0, s{sXM}, {base + 3072}")
        add64(sW1B, sW1, off_s=sT2)
        e(f"global_load_lds_dwordx4 v27, {sr(sW1B)}")
        if not prod:
            for j, r in ((1, 25), (2, 26)):
                e(f"s_add_u32 m0, s{sXM}, {base + j*1024}")
                e("s_nop 0")
                e(f"global_load_lds_dwordx4 v{r}, {sr(sW1B)}")
    cnt = [nw + (4 if s % 4 == 0 and not prod else 0) for s in range(16)]
    if prod:
        misc_g()
        e("s_waitcnt vmcnt(4)")
        issue(0); issue(1)
        e("s_waitcnt vmcnt(4)")
        e("s_barrier")
        e("s_barrier")
        issue(2)
    else:
        issue(0); issue(1); issue(2)
        misc_g()
    for s in range(14):
        later = sum(cnt[s+1:min(16, s + 3)]) + (1 if s in (11, 12) or (s < 3 and not prod) else 0)
        e(f"s_waitcnt vmcnt({later})")
        e("s_barrier")
        if s == 0: stamp(1)
        if s == 10: e(f"global_load_dword v31, v30, {sr(sWS)} sc1")
        if s + 3 < 16: issue(s + 3)
        if s in (4, 6, 9): gate_part((4, 6, 9).index(s))
    cm("K/V already published? then start staging it into the ring slots as they free up")
    e(f"v_cmp_ne_u32 vcc, s{sTAG}, v31")
    e(f"s_mov_b32 s{sFAST}, 0")
    e(f"s_cbranch_vccnz L_slow{tg}")
    e(f"s_mov_b32 s{sFAST}, 1")
    dma_lin(sXM, 4)
    gate_part(3)
    e(f"s_waitcnt vmcnt({cnt[15] + 4})")
    e("s_barrier")
    dma_lin(sXM, 4, 16384)
    e("s_waitcnt vmcnt(8)")
    e("s_barrier")
    dma_lin(sXM, 4, 32768)
    e("s_branch L_g4")
    lab(f"L_slow{tg}")
    e(f"global_load_dword v31, v30, {sr(sWS)} sc1")
    gate_part(3)
    e(f"s_waitcnt vmcnt({cnt[15] + 1})")
    e("s_barrier")
    e("s_waitcnt vmcnt(0)")
    e("s_barrier")
    e(f"v_cmp_ne_u32 vcc, s{sTAG}, v31")
    e("s_cbranch_vccnz L_g4")
    e(f"s_mov_b32 s{sFAST}, 1")
    for j in range(3):
        dma_lin(sXM, 4, j*16384)
    e("s_branch L_g4")
loader(False)
lab("L_gprod")
cm("producer (hg==0): all of X and [wk|wv] first (wave v: k-steps 8v..8v+7); last piece = w1 tile 0")
e(f"v_lshrrev_b32 v28, 2, v{vL}")
e("v_lshlrev_b32 v28, 5, v28")
e("v_and_b32 v19, 16, v18")
e(f"v_add3_u32 v28, v28, v19, s{sXM}")
e("v_mov_b32 v29, 0")
e(f"v_and_b32 v19, 2, v{vL}")
e("v_cmp_ne_u32 vcc, 0, v19")
e(f"v_mov_b32 v32, s{sWK}")
e(f"v_mov_b32 v33, s{sWK+1}")
e(f"v_mov_b32 v34, s{sWV}")
e(f"v_mov_b32 v35, s{sWV+1}")
e("v_cndmask_b32 v32, v32, v34, vcc")
e("v_cndmask_b32 v33, v33, v35, vcc")
e("v_lshl_add_u64 v[32:33], v[28:29], 0, v[32:33]")
e(f"s_lshl_b32 s{sT3}, s{sXM}, 1")
e(f"s_and_b32 s{sC}, s{sQB}, 7")
e(f"s_mov_b32 s{sW1B+1}, 0")
def wkv_dma(i):
    e(f"s_xor_b32 s{sT}, s{sC}, {i}")
    e(f"s_lshl_b32 s{sW1B}, s{sT}, 9")
    e(f"s_lshl_b32 s{sT}, s{sT}, 10")
    e(f"s_add_u32 s{sT}, s{sT}, s{sT3}")
    e(f"s_add_u32 m0, s{sT}, {L_WKV}")
    e(f"v_lshl_add_u64 v[28:29], v[32:33], 0, {sr(sW1B)}")
    e("global_load_lds_dwordx4 v[28:29], off")
wkv_dma(0)
for g in range(1, 4): x_issue(g)
for i in range(1, 8): wkv_dma(i)
e("v_mul_u32_u24 v27, 2752, v16")
e("v_add_u32 v27, v27, v18")
loader(True)

lab("L_aw")
if DIAG == 4: stamp(9)
e(f"s_mul_i32 s{sHT}, s{sHG}, 6")
e(f"s_add_u32 s{sHT}, s{sHT}, s{sWAVE}")
e(f"s_sub_u32 s{sHT}, s{sHT}, 7")
e(f"s_mov_b32 s{sROLE}, 2")
e(f"s_cmp_lg_u32 s{sHG}, 0")
e("s_cbranch_scc1 L_r1")
e(f"s_mov_b32 s{sHT}, 0")
e(f"s_cmp_lt_u32 s{sWAVE}, 7")
e(f"s_cselect_b32 s{sROLE}, 3, 2")
lab("L_r1")
e(f"s_cmp_lt_u32 s{sWAVE}, 2")
e(f"s_cselect_b32 s{sROLE}, 0, s{sROLE}")
cm("block base: w<2: 256w ; w<6: 1024+256(w-2) ; else 3072+256(w-6) ; rg stride 1024 for 2<=w<6 else 512")
e(f"s_cselect_b32 s{sT}, 0, 512")
e(f"s_cselect_b32 s{sT2}, 512, 1024" if False else f"s_cselect_b32 s{sT2}, 1, 2")
e(f"s_cmp_ge_u32 s{sWAVE}, 6")
e(f"s_cselect_b32 s{sT}, 1536, s{sT}")
e(f"s_cselect_b32 s{sT2}, 1, s{sT2}")
e(f"s_lshl_b32 s{sT2}, s{sT2}, 9")
e(f"s_lshl_b32 s{sT3}, s{sWAVE}, 8")
e(f"s_add_u32 s{sT}, s{sT}, s{sT3}")
e(f"v_bfe_u32 v6, v{vL}, 2, 2")
e(f"v_bfe_u32 v32, v{vL}, 4, 1")
e(f"v_and_b32 v33, 3, v{vL}")
e("v_lshlrev_b32 v6, 6, v6")
e("v_lshl_add_u32 v6, v32, 5, v6")
e("v_lshl_add_u32 v6, v33, 3, v6")
e(f"v_lshrrev_b32 v32, 5, v{vL}")
e("v_lshl_add_u32 v6, v32, 12, v6")
e(f"v_add_u32 v6, s{sT}, v6")
e(f"v_add_u32 v7, s{sT2}, v6")
cm("X fragment addresses v8..v15 for (s&3, ks)")
e(f"v_and_b32 v33, 31, v{vL}")
e(f"v_and_b32 v34, 15, v{vL}")
e("v_xor_b32 v34, v34, v32")
e("v_lshlrev_b32 v34, 4, v34")
e("v_lshl_add_u32 v8, v33, 8, v34")
e(f"s_and_b32 s{sT}, s{sJQ}, 3")
e(f"s_lshl_b32 s{sT}, s{sT}, 6")
e(f"v_xor_b32 v8, s{sT}, v8")
e(f"v_add_u32 v8, {L_X}, v8")
for j in range(1, 8):
    e(f"v_xor_b32 v{8+j}, {j << 5}, v8")
e("s_waitcnt lgkmcnt(0)")
if DIAG == 4: stamp(10)
e(f"s_load_dword s{sTAG}, {sr(sWS)}, {hex(WS_NONCE)}")
e(f"s_lshl3_add_u32 s{sT}, s{sQB}, s{sHG}")
e(f"s_lshl3_add_u32 s{sT}, s{sT}, s{sWAVE}")
e(f"s_lshl_b32 s{sT}, s{sT}, 10")
e(f"s_add_u32 s{sT}, s{sT}, {WS_O}")
add64(sO, sWS, off_s=sT)
e(f"s_mul_i32 s{sT}, s{sQB}, 43")
e(f"s_add_u32 s{sT}, s{sT}, s{sHT}")
e(f"s_lshl_b32 s{sT}, s{sT}, 12")
e(f"s_add_u32 s{sT}, s{sT}, {WS_H}")
add64(sH, sWS, off_s=sT)
ACC = [64, 80]
FB = [16, 40]
def early_setup():
    for i in range(4):
        e(f"v_mov_b32 v{128+i}, -1")
    cm("V lane address: m>=16: 1024 + h*256 + (m-16)*16 ; m in {0,4}: ones slot ; else out of range (reads 0)")
    e(f"v_and_b32 v150, 15, v{vL}")
    e(f"v_lshrrev_b32 v151, 5, v{vL}")
    e("v_lshlrev_b32 v150, 4, v150")
    e("v_lshl_add_u32 v150, v151, 8, v150")
    e(f"v_and_b32 v151, 27, v{vL}")
    e(f"v_cmp_eq_u32 {sr(sT)}, 0, v151")
    e("v_cmp_lt_u32 vcc, 15, v151")
    e("v_mov_b32 v151, 0x40000")
    e("v_mov_b32 v152, 512")
    e(f"v_cndmask_b32 v151, v151, v152, {sr(sT)}")
    e(f"v_cndmask_b32 v148, v151, v150, vcc")
    e(f"v_add_u32 v148, 1024, v148")
    e(f"s_lshl_b32 s{sT}, s{sWAVE}, 10")
    e(f"s_add_u32 s{sT}, s{sT}, {L_Q}")
    e(f"v_add_u32 v149, s{sT}, v{vL16}")
    e(f"s_mov_b32 s{sRETRY}, 0")
    e("v_mov_b32 v153, 0xdddddddd")
    e(f"s_mov_b32 s{sCHK}, 7")
    for r in range(16):
        e(f"v_mov_b32 v{112+r}, 0")
e(f"s_cmp_lg_u32 s{sHG}, 0")
e("s_cbranch_scc1 L_nokv")
e(f"s_lshr_b32 s{sT2}, s{sWAVE}, 1")
e(f"s_and_b32 s{sT3}, s{sWAVE}, 1")
tr_lane(40, 41, 42)
e(f"s_lshr_b32 s{sT}, s{sJQ}, 2")
e(f"s_xor_b32 s{sT}, s{sT}, s{sT2}")
e(f"s_lshl_b32 s{sT}, s{sT}, 13")
e(f"s_add_u32 s{sT}, s{sT}, {L_WKV}")
e(f"v_add_u32 v40, s{sT}, v40")
e(f"s_and_b32 s{sT}, s{sJQ}, 3")
e(f"s_lshl_b32 s{sT}, s{sT}, 6")
e(f"v_xor_b32 v41, s{sT}, v8")
e(f"s_lshl1_add_u32 s{sT}, s{sT2}, s{sT3}")
e(f"s_lshl_b32 s{sT}, s{sT}, 13")
e(f"v_add_u32 v41, s{sT}, v41")
for j in range(1, 8):
    e(f"v_xor_b32 v{41+j}, {j << 5}, v41")
cm("partial slot (rt*3 + idx), idx = kq - (kq>1)")
e(f"s_cmp_gt_u32 s{sT2}, 1")
e(f"s_subb_u32 s{sT}, s{sT2}, 0")
e(f"s_cmp_eq_u32 s{sT2}, 1")
e(f"s_cselect_b32 s{sT}, 0, s{sT}")
e(f"s_mul_i32 s{sC}, s{sT3}, 3")
e(f"s_add_u32 s{sT}, s{sT}, s{sC}")
e(f"s_lshl_b32 s{sT}, s{sT}, 12")
e(f"s_add_u32 s{sT}, s{sT}, {L_KVP}")
e(f"v_add_u32 v50, s{sT}, v{vL16}")
e(f"s_lshl1_add_u32 s{sT}, s{sQB}, s{sT3}")
e(f"s_mul_i32 s{sT}, s{sT}, {TILE}")
add64(sP, sWS, off_s=sT)
e(f"s_lshl_b32 s{sT}, s{sT3}, 10")
e(f"s_add_u32 s{sT}, s{sT}, {L_VT}")
e(f"v_and_b32 v52, 31, v{vL}")
e(f"v_lshrrev_b32 v55, 5, v{vL}")
e("v_lshlrev_b32 v52, 5, v52")
e("v_lshl_add_u32 v52, v55, 3, v52")
e(f"v_add_u32 v52, s{sT}, v52")
e(f"v_bfe_u32 v53, v{vL}, 2, 2")
e(f"v_bfe_u32 v54, v{vL}, 4, 1")
e("v_lshl_add_u32 v53, v54, 3, v53")
e("v_lshl_add_u32 v53, v55, 4, v53")
e("v_lshlrev_b32 v53, 5, v53")
e(f"v_and_b32 v54, 3, v{vL}")
e("v_lshl_add_u32 v53, v54, 3, v53")
e(f"v_add_u32 v53, s{sT}, v53")
e(f"v_lshl_add_u32 v54, v55, 4, v{vL16}")
e(f"v_and_b32 v55, 1, v{vL}")
e("v_mul_u32_u24 v55, 528, v55")
for i in range(4):
    e(f"v_mov_b32 v{56+i}, 0x3f803f80")
e("s_waitcnt lgkmcnt(0)")
e("s_barrier")
stamp(9)
for i in range(8):
    e(f"ds_read_b64_tr_b16 {vr(96+8*(i%5),2)}, v40 offset:{i*1024}")
    e(f"ds_read_b64_tr_b16 {vr(98+8*(i%5),2)}, v40 offset:{i*1024+256}")
    e(f"ds_read_b128 {vr(100+8*(i%5))}, v{41+i}")
    if i >= 3:
        e("s_waitcnt lgkmcnt(9)")
        mfma(64, 96+8*((i-3)%5), 100+8*((i-3)%5), None if i == 3 else 64)
for i in range(5, 8):
    e(f"s_waitcnt lgkmcnt({3*(7-i)})")
    mfma(64, 96+8*(i%5), 100+8*(i%5), 64)
e(f"s_cmp_eq_u32 s{sT2}, 1")
e("s_cbranch_scc1 L_kvf")
e("s_nop 10")
for q in range(4):
    e(f"ds_write_b128 v50, {vr(64+4*q)} offset:{q*1024}")
e("s_waitcnt lgkmcnt(0)")
e("s_barrier")
e("s_branch L_nokv")
lab("L_kvf")
e(f"global_store_dwordx4 v55, v[56:59], {sr(sP)} offset:1536 sc1")
e("s_barrier")
PB = (80, 96, 112)
for c in range(3):
    for q in range(4):
        e(f"ds_read_b128 {vr(PB[c]+4*q)}, v50 offset:{c*4096+q*1024}")
for c in range(3):
    e(f"s_waitcnt lgkmcnt({8-4*c})")
    for r in range(0, 16, 2):
        e(f"v_pk_add_f32 {vr(64+r,2)}, {vr(64+r,2)}, {vr(PB[c]+r,2)}")
for r in range(8, 16, 2):
    e(f"v_cvt_pk_bf16_f32 v{80+r//2}, v{64+r}, v{65+r}")
e("ds_write_b64 v52, v[84:85]")
e("ds_write_b64 v52, v[86:87] offset:16")
e("ds_read_b64_tr_b16 v[88:89], v53")
e("ds_read_b64_tr_b16 v[90:91], v53 offset:128")
for r in range(0, 8, 2):
    e(f"v_cvt_pk_bf16_f32 v{80+r//2}, v{64+r}, v{65+r}")
e(f"global_store_dwordx4 v{vL16}, v[80:83], {sr(sP)} sc1")
e("s_waitcnt lgkmcnt(0)")
e(f"global_store_dwordx4 v54, v[88:91], {sr(sP)} offset:1024 sc1")
stamp(10)
cm("both finishers drain their stores before pipeline barrier 2; wave 2 raises the flag behind it")
e("s_barrier")
early_setup()
e("s_barrier")
e("s_waitcnt vmcnt(0)")
e("s_barrier")
e(f"s_mov_b32 s{sI}, 14")
e(f"s_cmp_lg_u32 s{sT3}, 0")
e("s_cbranch_scc1 L_idle1")
e(f"s_add_u32 s{sT2}, s{sTAG}, {hex(TAGC)}")
e(f"s_lshl_b32 s{sT}, s{sQB}, 7")
e(f"s_add_u32 s{sT}, s{sT}, {WS_KF}")
e(f"v_mov_b32 v20, s{sT}")
e(f"v_mov_b32 v21, s{sT2}")
e("s_mov_b64 exec, 1")
e(f"global_store_dword v20, v21, {sr(sWS)} sc1")
e("s_mov_b64 exec, -1")
stamp(11)
e("s_branch L_idle1")
lab("L_nokv")
early_setup()
for r in range(32):
    e(f"v_mov_b32 v{64+r}, 0")
for r in range(24):
    e(f"v_mov_b32 v{FB[1]+r}, 0")
e(f"s_mov_b32 s{sI}, 4")
e("s_waitcnt lgkmcnt(0)")
e(f"s_cmp_eq_u32 s{sROLE}, 3")
e("s_cbranch_scc1 L_idle")
def p1_mf(st):
    if opt("nomf", 0): return
    for ks in range(2):
        for rt in range(2):
            mfma(ACC[rt], FB[st] + 12*ks, FB[st] + 12*ks + 4 + 4*rt, ACC[rt])
lab("L_p1")
for u in range(4):
    e("s_barrier")
    f = FB[u & 1]
    for ks in range(2 if opt("nomf", 0) < 2 else 0):
        e(f"ds_read_b64_tr_b16 {vr(f+12*ks,2)}, v6 offset:{u*16384+ks*8192}")
        e(f"ds_read_b64_tr_b16 {vr(f+12*ks+2,2)}, v7 offset:{u*16384+ks*8192}")
        for rt in range(2):
            e(f"ds_read_b128 {vr(f+12*ks+4+4*rt)}, v{8+2*u+ks} offset:{rt*8192}")
        e(f"v_add_u32 v{8+2*u+ks}, 0x4000, v{8+2*u+ks}")
    p1_mf((u + 1) & 1)
    e("s_waitcnt lgkmcnt(0)")
e(f"s_sub_u32 s{sI}, s{sI}, 1")
e(f"s_cmp_lg_u32 s{sI}, 0")
e("s_cbranch_scc1 L_p1")
e("s_barrier")
p1_mf(1)
stamp(2)
e(f"s_cmp_eq_u32 s{sROLE}, 0")
e(f"s_mov_b32 s{sC}, {hex(f2u(-LOG2E))}")
e(f"s_cselect_b32 s{sC}, {hex(f2u(0.25*LOG2E))}, s{sC}")
e(f"s_mov_b32 s{sC+1}, s{sC}")
e("s_nop 7")
if opt("sp", 0): e("s_setprio 3")
e("s_cbranch_scc0 L_epiH")
e("s_setprio 3")
for r in range(0, 32, 2):
    e(f"v_pk_mul_f32 {vr(64+r,2)}, {vr(64+r,2)}, {sr(sC)}")
for r in range(0, 32, 2):
    e(f"v_cvt_pk_bf16_f32 v{96+r//2}, v{64+r}, v{65+r}")
e(f"s_lshl_b32 s{sT}, s{sWAVE}, 12")
e(f"s_add_u32 s{sT}, s{sT}, {L_Q}")
e(f"v_add_u32 v32, s{sT}, v{vL16}")
for rt in range(2):
    for i in range(2):
        e(f"ds_write_b128 v32, {vr(96+rt*8+i*4)} offset:{i*2048+rt*1024}")
e("s_waitcnt lgkmcnt(0)")
lds_signal(C_B2, 12, 13)
e("s_branch L_p1done")
lab("L_idle")
e(f"s_mov_b32 s{sI}, 17")
lab("L_idle1")
e("s_barrier")
e(f"s_sub_u32 s{sI}, s{sI}, 1")
e(f"s_cmp_lg_u32 s{sI}, 0")
e("s_cbranch_scc1 L_idle1")
e("s_branch L_p1done")
lab("L_epiH")
for rt in range(2):
    a = ACC[rt]
    for r in range(0, 16, 2):
        e(f"v_pk_mul_f32 {vr(96+r,2)}, {vr(a+r,2)}, {sr(sC)}")
    for r in range(16):
        e(f"v_exp_f32 v{96+r}, v{96+r}")
    for r in range(0, 16, 2):
        e(f"v_pk_add_f32 {vr(96+r,2)}, {vr(96+r,2)}, 1.0 op_sel_hi:[1,0]")
    for r in range(16):
        e(f"v_rcp_f32 v{96+r}, v{96+r}")
    for r in range(0, 16, 2):
        e(f"v_pk_mul_f32 {vr(96+r,2)}, {vr(96+r,2)}, {vr(a+r,2)}")
    for r in range(0, 16, 2):
        e(f"v_cvt_pk_bf16_f32 v{132+rt*8+r//2}, v{96+r}, v{97+r}")
lab("L_p1done")
Q = 16
KF = [20, 24]
V0 = [28, 32]
V1 = [36, 40]
P = [48, 56]
S = [64, 80]
C = 96
O = 112
vK, vV0, vV = 10, 148, 11
def att_zero(full=True):
    if full:
        for r in range(16):
            e(f"v_mov_b32 v{O+r}, 0")
    for r in range(4):
        e(f"v_mov_b32 v{V1[1]+r}, 0")
    for r in range(8, 16):
        e(f"v_mov_b32 v{S[1]+r}, 0")
att_zero(False)
stamp(3)
lds_spin("b2a", C_B2, 6, 12, 13, slp=1)
stamp(4)
if STAMPS: e("s_memrealtime s[88:89]")
e("s_setprio 3")
e(f"ds_read_b128 {vr(Q)}, v149")
e(f"ds_read_b128 {vr(KF[0])}, v{vL16}")
def att_first_loads():
    e(f"ds_read_b128 {vr(KF[1])}, v{vL16} offset:{TILE}")
    e(f"ds_read_b128 {vr(V0[0])}, v{vV0}")
    e(f"ds_read_b128 {vr(V0[1])}, v{vV0} offset:{TILE}")
    e(f"ds_read_b128 {vr(V1[0])}, v{vV0} offset:528")
att_first_loads()
HST = opt("hst", 0)
e("s_waitcnt lgkmcnt(4)")
mfma(S[0], KF[0], Q, None)
lds_signal(C_QR, 12, 13)
if HST:
    cm("poison this wave's O slot and publish its H tile")
    e(f"global_store_dwordx4 v{vL16}, v[128:131], {sr(sO)} sc1")
    e(f"s_cmp_lg_u32 s{sROLE}, 2")
    e("s_cbranch_scc1 L_noh")
    for rt in range(2):
        for ks in range(2):
            e(f"global_store_dwordx4 v{vL16}, {vr(132+rt*8+ks*4)}, {sr(sH)} offset:{ks*2048+rt*1024} sc1")
    lab("L_noh")
e("s_nop 6")
e(f"v_max3_f32 v12, v{S[0]}, v{S[0]+1}, v{S[0]+2}")
for r in range(3, 15, 2):
    e(f"v_max3_f32 v12, v12, v{S[0]+r}, v{S[0]+r+1}")
e(f"v_max_f32 v12, v12, v{S[0]+15}")
lab("L_att_setC")
e("v_mov_b32 v14, v12")
e(f"v_mov_b32 v{vK}, v{vL16}")
e(f"v_mov_b32 v{vV}, v{vV0}")
e("v_permlane32_swap_b32 v12, v14")
e(f"s_mov_b32 s{sI}, 0")
e("s_nop 0")
e("v_max_f32 v12, v12, v14")
for r in range(16):
    e(f"v_sub_f32 v{C+r}, 0, v12")
e("s_waitcnt lgkmcnt(0)")
e("s_nop 0")
mfma(S[0], KF[0], Q, C)
e(f"ds_read_b128 {vr(KF[0])}, v{vL16} offset:{2*TILE}")
e("s_setprio 2")
e("s_nop 9")
stamp(5)
UN = 8
def ex(x, r): e(f"v_exp_f32 v{S[x]+r}, v{S[x]+r}")
def pv(a, b): e(f"v_smfmac_f32_32x32x32_bf16 {vr(O,16)}, {vr(a)}, {vr(b,8)}, v153")
L.append(".p2align 6")
lab("L_att_loop")
for u in range(UN):
    x = u & 1; y = 1 - x
    if u == 5:
        e(f"s_bitcmp1_b32 s{sCHK}, s{sI}")
        e("s_cbranch_scc1 L_att_chk")
        lab("L_att_chk_ret")
    ex(x, 0); ex(x, 1)
    pv(V1[y], S[y] + 8)
    e(f"ds_read_b128 {vr(V1[y])}, v{vV} offset:{(u+1)*TILE+528}")
    for r in range(2, 7): ex(x, r)
    mfma(S[y], KF[y], Q, C)
    e(f"ds_read_b128 {vr(KF[y])}, v{vK} offset:{(u+3)*TILE}")
    for r in range(7, 12): ex(x, r)
    pv(V0[x], S[x])
    e("s_waitcnt lgkmcnt(2)")
    e(f"ds_read_b128 {vr(V0[x])}, v{vV} offset:{(u+2)*TILE}")
    for r in range(12, 16): ex(x, r)
if DIAG == 2:
    e("s_memtime s[100:101]")
    e("s_waitcnt lgkmcnt(0)")
    e(f"s_mov_b32 m0, s{sI}")
    e("s_nop 0")
    e("v_writelane_b32 v160, s100, m0")
e(f"v_add_u32 v{vK}, {UN*TILE}, v{vK}")
e(f"v_add_u32 v{vV}, {UN*TILE}, v{vV}")
e(f"s_add_u32 s{sI}, s{sI}, 1")
e(f"s_cmp_lt_u32 s{sI}, {64//UN - opt('lastp', 1)}")
e("s_cbranch_scc1 L_att_loop")
e("s_setprio 0")
e(f"s_cmp_lt_u32 s{sI}, {64//UN}")
e("s_cbranch_scc1 L_att_loop")
e("s_setprio 3")
e(f"s_and_b32 s{sT}, s{sWAVE}, 1")
e(f"s_lshl_b32 s{sT}, s{sT}, 7")
pv(V1[1], S[1] + 8)
stamp(6)
e(f"s_add_u32 s{sT}, s{sT}, {L_G}")
e(f"v_and_b32 v12, 31, v{vL}")
e(f"v_lshl_add_u32 v12, v12, 2, s{sT}")
e("ds_read_b32 v14, v12")
e(f"s_mov_b32 s{sT}, {hex(f2u(2.0**86))}")
e("v_mov_b32 v13, 0x207")
e("s_nop 14")
cm("safety check of the stand-in max: l < 2^42 and O finite, else redo with the true row max")
e(f"v_mul_f32 v12, s{sT}, v{O}")
for r in range(8, 16):
    e(f"v_add_f32 v12, v12, abs(v{O+r})")
e("v_cmp_class_f32 vcc, v12, v13")
e(f"v_rcp_f32 v12, v{O}")
e("s_cbranch_vccz L_att_ok")
e(f"s_cmp_eq_u32 s{sRETRY}, 0")
e("s_cbranch_scc1 L_att_truemax")
lab("L_att_ok")
e("s_waitcnt lgkmcnt(0)")
e("v_mul_f32 v12, v12, v14")
for r in range(8, 16):
    e(f"v_mul_f32 v{O+r}, v{O+r}, v12")
for i in range(4):
    e(f"v_cvt_pk_bf16_f32 v{P[0]+i}, v{O+8+2*i}, v{O+9+2*i}")
for i in range(4):
    e(f"v_min_u32 v{P[0]+i}, -2, v{P[0]+i}")
e(f"global_store_dwordx4 v{vL16}, {vr(P[0])}, {sr(sO)} sc1")
lds_signal(C_OD, 12, 13)
stamp(7)
if STAMPS: e("s_memrealtime s[96:97]")
e("s_branch L_fin")
lab("L_att_chk")
e(f"s_cmp_eq_u32 s{sI}, 1")
e("s_cbranch_scc1 L_att_chk1")
e(f"s_lshl1_add_u32 s{sT2}, s{sI}, {0}")
e(f"s_add_u32 s{sT2}, s{sT2}, {C_KA}")
lds_spin("att_chk2", f"s{sT2}", 4, 12, 13)
def h_stores(skip):
    e(f"global_store_dwordx4 v{vL16}, v[128:131], {sr(sO)} sc1")
    e(f"s_cmp_lg_u32 s{sROLE}, 2")
    e(f"s_cbranch_scc1 {skip}")
    for rt in range(2):
        for ks in range(2):
            e(f"global_store_dwordx4 v{vL16}, {vr(132+rt*8+ks*4)}, {sr(sH)} offset:{ks*2048+rt*1024} sc1")
if not HST:
    e(f"s_cmp_lg_u32 s{sI}, 0")
    e("s_cbranch_scc1 L_att_chk_ret")
    h_stores("L_att_chk_ret")
e("s_branch L_att_chk_ret")
lab("L_att_chk1")
cm("H / poison stores of this wave have drained")
e("s_waitcnt vmcnt(0)")
lds_signal(C_HD, 12, 13)
e("s_waitcnt lgkmcnt(0)")
e("s_setprio 1")
e("s_branch L_att_chk_ret")
lab("L_att_truemax")
e(f"s_mov_b32 s{sRETRY}, 1")
e(f"s_mov_b32 s{sCHK}, 0")
e("v_mov_b32 v12, 0xff800000")
e(f"v_mov_b32 v{vK}, v{vL16}")
e(f"s_mov_b32 s{sI}, 0")
lab("L_att_tm")
e(f"ds_read_b128 {vr(KF[0])}, v{vK}")
e(f"v_add_u32 v{vK}, {TILE}, v{vK}")
e("s_waitcnt lgkmcnt(0)")
mfma(S[0], KF[0], Q, None)
e("s_nop 15")
for r in range(0, 16, 2):
    e(f"v_max3_f32 v12, v12, v{S[0]+r}, v{S[0]+r+1}")
e(f"s_add_u32 s{sI}, s{sI}, 1")
e(f"s_cmp_lt_u32 s{sI}, 64")
e("s_cbranch_scc1 L_att_tm")
e(f"ds_read_b128 {vr(KF[0])}, v{vL16}")
att_first_loads()
att_zero()
e("s_branch L_att_setC")

lab("L_g4")
e("s_setprio 3")
for perm in ("quad_perm:[1,0,3,2]", "quad_perm:[2,3,0,1]"):
    if perm.endswith("2]"): e("v_add_f32 v14, v14, v15")
    e("s_nop 1")
    e(f"v_add_f32_dpp v14, v14, v14 {perm} row_mask:0xf bank_mask:0xf")
e(f"v_mul_f32 v14, {hex(f2u(-LOG2E))}, v14")
e("v_exp_f32 v14, v14")
e(f"s_lshl_b32 s{sT}, s{sV}, 6")
e(f"s_add_u32 s{sT}, s{sT}, {L_G}")
e("v_add_f32 v14, 1.0, v14")
e("v_rcp_f32 v14, v14")
e(f"v_and_b32 v12, 60, v{vL}")
e(f"v_add_u32 v12, s{sT}, v12")
e("ds_write_b32 v12, v14")
e("s_barrier")
stamp(2)
e(f"s_cmp_lg_u32 s{sFAST}, 0")
e("s_cbranch_scc1 L_kvfast")
tag_poll("kvpoll", 30, 31, sWS, 4)
for j in range(3):
    dma_lin(sXM, 4, j*16384)
lab("L_kvfast")
stamp(3)
cm("K/V: pieces 0..31 gate the start, 32..63 -> C_KA, 64..129 -> C_KB")
dma_lin(sXM, 4, 49152)
e("s_waitcnt vmcnt(8)")
lds_signal(C_B2, 12, 13)
stamp(4)
e(f"s_lshl_b32 s{sT3}, s{sV}, 14")
dma_lin(sT3, 4, 65536)
e("s_waitcnt vmcnt(4)")
lds_signal(C_KA, 12, 13)
dma_lin(sT3, 12, 65536 + 4096)
e(f"s_cmp_lg_u32 s{sV}, 0")
e("s_cbranch_scc1 L_g5")
dma_kv_one(128 * 1024)
dma_kv_one(129 * 1024)
lab("L_g5")
tr_lane(7, 32, 33)
e(f"s_lshl_b32 s{sT}, s{sQB}, 7")
e(f"s_add_u32 s{sT}, s{sT}, {WS_FL}")
add64(sFL, sWS, off_s=sT)
e(f"s_mul_i32 s{sT}, s{sQB}, {43*4096}")
e(f"s_add_u32 s{sT}, s{sT}, {WS_H}")
add64(sH, sWS, off_s=sT)
e(f"s_lshl2_add_u32 s{sT}, s{sQB}, s{sV}")
e(f"s_lshl_b32 s{sT}, s{sT}, 14")
e(f"s_add_u32 s{sT}, s{sT}, {WS_O}")
add64(sO, sWS, off_s=sT)
cm("weight piece lane offsets v8/v9 (8 rows x 128B -> [rg][ct][4 rows][64B]); ring read address v7")
e(f"v_lshrrev_b32 v32, 5, v{vL}")
e(f"v_bfe_u32 v33, v{vL}, 2, 2")
e("v_lshl_add_u32 v32, v32, 2, v33")
e("v_lshlrev_b32 v8, 10, v32")
e(f"v_bfe_u32 v33, v{vL}, 4, 1")
e("v_lshl_add_u32 v8, v33, 6, v8")
e(f"v_and_b32 v33, 3, v{vL}")
e("v_lshl_add_u32 v8, v33, 4, v8")
e("v_add_u32 v9, 0x2000, v8")
e(f"s_mul_i32 s{sRING}, s{sV}, {R2SZ}")
e(f"s_add_u32 s{sRING}, s{sRING}, {L_UP}")
e(f"v_add_u32 v3, s{sRING}, v7")
cm("slot j of the accumulators holds tile j^v: ct ^= v>>1 (v3/v10), rt ^= v&1 (v11/v7)")
e(f"s_lshr_b32 s{sT}, s{sV}, 1")
e(f"s_lshl_b32 s{sT}, s{sT}, 8")
e(f"v_add_u32 v3, s{sT}, v3")
e("v_xor_b32 v10, 0x100, v3")
e(f"s_and_b32 s{sT}, s{sV}, 1")
e(f"s_lshl_b32 s{sT}, s{sT}, 10")
e(f"v_add_u32 v11, s{sT}, v{vL16}")
e("v_xor_b32 v0, 0x400, v11")
e("s_waitcnt vmcnt(0)")
lds_signal(C_KB, 12, 13)
stamp(5)
if opt("w2t", 0):
    cm("pull this workgroup's share of the w2 slice into L2: rows 8*(64v+l) + (qb&7), v<3")
    e(f"s_and_b32 s{sT}, s{sQB}, 7")
    e(f"s_lshl_b32 s{sT2}, s{sV}, 9")
    e(f"s_add_u32 s{sT}, s{sT}, s{sT2}")
    e(f"v_lshl_add_u32 v12, v{vL}, 3, s{sT}")
    e("v_min_u32 v12, 1375, v12")
    e(f"s_lshl_b32 s{sT}, s{sHG}, 7")
    e(f"v_lshl_add_u32 v12, v12, 10, s{sT}")
    e(f"global_load_dword v14, v12, {sr(sW2)}")
lds_spin("qr", C_QR, 8, 12, 13, slp=4)
GA = [100, 116, 132, 148]
def ring_issue(slot, base):
    e(f"s_add_u32 m0, s{sRING}, {slot*2048}")
    e("s_nop 0")
    e(f"global_load_lds_dwordx4 v8, {sr(base)}")
    e(f"s_add_u32 m0, s{sRING}, {slot*2048+1024}")
    e("s_nop 0")
    e(f"global_load_lds_dwordx4 v9, {sr(base)}")
def ring_read(slot, ct, dst):
    e(f"ds_read_b64_tr_b16 {vr(dst,2)}, v{(3, 10)[ct]} offset:{slot*2048}")
    e(f"ds_read_b64_tr_b16 {vr(dst+2,2)}, v{(3, 10)[ct]} offset:{slot*2048+1024}")
e("s_waitcnt vmcnt(0)")
e("s_waitcnt lgkmcnt(0)")
stamp(6)
cm("every A-wave past tile 13: Q buffer is free, H and poison stores have drained")
e(f"s_cmp_lg_u32 s{sV}, 0")
e("s_cbranch_scc1 L_g6")
lds_spin("hdr", C_HD, 8, 12, 13, slp=4)
e(f"s_lshl_b32 s{sT}, s{sHG}, 2")
e(f"v_mov_b32 v12, s{sT}")
e(f"v_mov_b32 v13, s{sTAG}")
e("s_mov_b64 exec, 1")
e(f"global_store_dword v12, v13, {sr(sFL)} sc1")
cm("this workgroup has read the epoch; the last workgroup to get here advances it")
e("v_mov_b32 v12, 0")
e("v_mov_b32 v14, 1")
e(f"global_atomic_add v15, v12, v14, {sr(sDBG)} sc0 sc1")
e("s_waitcnt vmcnt(0)")
e("v_cmp_eq_u32 vcc, 0xff, v15")
e("s_cbranch_vccz L_g6a")
e(f"v_mov_b32 v12, {WS_NONCE}")
e(f"global_store_dword v12, v13, {sr(sWS)} sc1")
lab("L_g6a")
e("s_mov_b64 exec, -1")
lab("L_g6")
e(f"v_and_b32 v12, 7, v{vL}")
e("v_lshlrev_b32 v12, 2, v12")
tag_poll("hpoll", 12, 13, sFL, 8)
stamp(7)
if opt("ht", 0):
    cm("pull this workgroup's share of H into L2: lines 4*(64*i+l) + (hg&3) of this wave's k range")
    e(f"s_mul_i32 s{sT}, s{sV}, {22*2048}")
    e(f"s_and_b32 s{sT2}, s{sHG}, 3")
    e(f"s_lshl_b32 s{sT2}, s{sT2}, 7")
    e(f"s_add_u32 s{sT}, s{sT}, s{sT2}")
    e(f"v_lshl_add_u32 v12, v{vL}, 9, s{sT}")
    e(f"global_load_dword v40, v12, {sr(sH)} sc1")
    e(f"v_min_u32 v14, 23, v{vL}")
    e(f"v_lshl_add_u32 v12, v14, 9, s{sT}")
    e("v_add_u32 v12, 0x8000, v12")
    e(f"v_min_u32 v12, {43*4096-4}, v12")
    e(f"global_load_dword v41, v12, {sr(sH)} sc1")
HB = [12, 20, 28]
GAF = [4, 164]
e(f"s_mul_i32 s{sT}, s{sV}, 22")
e(f"s_cmp_eq_u32 s{sV}, 3")
e(f"s_cselect_b32 s{sT}, 65, s{sT}")
e(f"s_cmp_ge_u32 s{sV}, 2")
e(f"s_cselect_b32 s{sI}, 21, 22")
e(f"s_sub_u32 s{sN}, s{sI}, 1")
e(f"s_lshl_b32 s{sT2}, s{sT}, 14")
e(f"s_lshl_b32 s{sT3}, s{sHG}, 7")
e(f"s_add_u32 s{sT2}, s{sT2}, s{sT3}")
add64(sP, sW2, off_s=sT2)
e(f"s_lshl_b32 s{sT}, s{sT}, 11")
add64(sP2, sH, off_s=sT)
def g2_h(slot):
    for rt in range(2):
        e(f"global_load_dwordx4 {vr(HB[slot]+4*rt)}, v{(11, 0)[rt]}, {sr(sP2)} sc1")
def g2_adv():
    e(f"s_cmp_lg_u32 s{sN}, 0")
    e(f"s_cselect_b32 s{sT}, 16384, 0")
    e(f"s_cselect_b32 s{sT2}, 2048, 0")
    e(f"s_cselect_b32 s{sT3}, 1, 0")
    e(f"s_sub_u32 s{sN}, s{sN}, s{sT3}")
    add64(sP, sP, off_s=sT)
    add64(sP2, sP2, off_s=sT2)
def g2_step(slot, first):
    def m(ct, rt):
        a = GA[ct*2+rt]
        mfma(a, GAF[ct], HB[slot] + 4*rt, None if first else a)
    e("s_waitcnt vmcnt(8)")
    ring_read(slot, 0, GAF[0])
    e("s_waitcnt lgkmcnt(0)")
    m(0, 0)
    ring_read(slot, 1, GAF[1])
    e("s_waitcnt lgkmcnt(0)")
    m(0, 1)
    e(f"s_add_u32 m0, s{sRING}, {slot*2048}")
    e("s_nop 0")
    e(f"global_load_lds_dwordx4 v8, {sr(sP)}")
    m(1, 0)
    e(f"s_add_u32 m0, s{sRING}, {slot*2048+1024}")
    e("s_nop 0")
    e(f"global_load_lds_dwordx4 v9, {sr(sP)}")
    m(1, 1)
    g2_h(slot)
    g2_adv()
for k in range(3):
    ring_issue(k, sP); g2_h(k); g2_adv()
g2_step(0, True)
e(f"s_sub_u32 s{sI}, s{sI}, 1")
lab("L_g2loop")
for slot in (1, 2, 0):
    g2_step(slot, False)
    e(f"s_sub_u32 s{sI}, s{sI}, 1")
    e(f"s_cmp_eq_u32 s{sI}, 0")
    e("s_cbranch_scc1 L_g2done" if slot != 0 else "s_cbranch_scc0 L_g2loop")
lab("L_g2done")
stampx(8)
e("s_waitcnt vmcnt(0)")
e(f"s_lshl_b32 s{sT}, s{sV}, 17")
e(f"s_lshl_b32 s{sT2}, s{sHG}, 7")
e(f"s_add_u32 s{sT}, s{sT}, s{sT2}")
add64(sP, sWO, off_s=sT)
for ks in range(3):
    ring_issue(ks, sP)
    add64(sP, sP, imm=16384)
for ks in range(8):
    e(f"s_waitcnt vmcnt({2*min(2, 7-ks)})")
    ring_read(ks % 3, 0, 36 + 8*ks)
    ring_read(ks % 3, 1, 40 + 8*ks)
    if ks + 3 < 8:
        e("s_waitcnt lgkmcnt(0)")
        ring_issue(ks % 3, sP)
        add64(sP, sP, imm=16384)
e("s_waitcnt lgkmcnt(0)")
e(f"s_and_b32 s{sT}, s{sV}, 1")
e(f"s_lshl_b32 s{sT}, s{sT}, 7")
e(f"s_add_u32 s{sT}, s{sT}, {L_G}")
e(f"v_and_b32 v4, 31, v{vL}")
e(f"v_lshl_add_u32 v4, v4, 2, s{sT}")
e("v_xor_b32 v5, 0x80, v4")
e("ds_read_b32 v6, v4")
e("ds_read_b32 v8, v5")
e("s_waitcnt vmcnt(0) lgkmcnt(0)")
e("v_sub_f32 v6, 1.0, v6")
e("v_sub_f32 v8, 1.0, v8")
e("s_nop 3")
for t in range(4):
    for r in range(0, 16, 2):
        e(f"v_pk_mul_f32 {vr(GA[t]+r,2)}, {vr(GA[t]+r,2)}, {vr(6+2*(t&1),2)} op_sel_hi:[1,0]")
cm("tail: slot j goes to LDS [(j^v)*3 + j-1]*4096 ; v3 = own collection base; v165/v0 = O offsets; v166 = output offset")
e("v_mov_b32 v165, v11")
e(f"s_mul_i32 s{sT3}, s{sV}, 12288")
e(f"v_add_u32 v3, s{sT3}, v{vL16}")
e(f"v_and_b32 v166, 31, v{vL}")
e("v_lshlrev_b32 v166, 10, v166")
e(f"v_lshrrev_b32 v12, 5, v{vL}")
e("v_lshl_add_u32 v166, v12, 4, v166")
e(f"s_and_b32 s{sT}, s{sV}, 1")
e(f"s_lshl1_add_u32 s{sT}, s{sQB}, s{sT}")
e(f"s_lshl_b32 s{sT}, s{sT}, 15")
e(f"s_lshr_b32 s{sT2}, s{sV}, 1")
e(f"s_lshl1_add_u32 s{sT2}, s{sHG}, s{sT2}")
e(f"s_lshl_b32 s{sT2}, s{sT2}, 6")
e(f"s_add_u32 s{sT}, s{sT}, s{sT2}")
add64(sB0, sOUT, off_s=sT)
add64(sP2, sO, imm=8192)
for j in range(1, 4):
    e(f"s_xor_b32 s{sC+j-1 if j < 3 else sN}, s{sV}, {j}")
    e(f"s_mul_i32 s{sC+j-1 if j < 3 else sN}, s{sC+j-1 if j < 3 else sN}, 12288")
OB = 4
for b in range(2):
    if b == 0:
        e(f"s_setprio {opt('b0prio', 0)}")
        lds_spin("od0", C_OD, 4, 164, 167, slp=4)
        stampx(9)
    else:
        e("s_setprio 3")
        lds_spin("od1", C_OD, 8, 164, 167, slp=1)
        stampx(10)
    e(f"s_mov_b32 s{sSPIN}, {SPIN}")
    lab(f"L_opoll{b}")
    for p in range(2):
        for j in range(4):
            e(f"global_load_dwordx4 {vr(OB+16*p+4*j)}, v{(165, 0)[j&1]}, {sr(sO if p == 0 else sP2)} offset:{(j>>1)*2048} sc1")
    e("v_mov_b32 v164, 0")
    for p in range(2):
        e(f"s_waitcnt vmcnt({4-4*p})")
        for r in range(0, 16, 2):
            e(f"v_max3_u32 v164, v164, v{OB+16*p+r}, v{OB+1+16*p+r}")
    e("v_cmp_eq_u32 vcc, -1, v164")
    e(f"s_cbranch_vccz L_ook{b}")
    if b == 0: e("s_sleep 4")
    e(f"s_sub_u32 s{sSPIN}, s{sSPIN}, 1")
    e(f"s_cmp_lg_u32 s{sSPIN}, 0")
    e(f"s_cbranch_scc1 L_opoll{b}")
    lab(f"L_ook{b}")
    if b == 1: stampx(11)
    def chain(j):
        ct, rt = j >> 1, j & 1
        for p in range(2):
            for hh in range(2):
                ks = 4*p + 2*b + hh
                mfma(GA[j], 36 + 8*ks + 4*ct, OB + 16*p + 8*hh + 4*rt, GA[j])
    def wr(j):
        e(f"v_add_u32 v164, s{sC+j-1 if j < 3 else sN}, v{vL16}")
        for qq in range(4):
            e(f"ds_write_b128 v164, {vr(GA[j]+4*qq)} offset:{(j-1)*4096+qq*1024}")
    if b == 0:
        for j in range(4): chain(j)
        add64(sO, sO, imm=4096)
        add64(sP2, sP2, imm=4096)
    else:
        chain(3); chain(2); chain(1)
        e("s_nop 2")
        wr(3)
        chain(0)
        wr(2)
        wr(1)
e("s_waitcnt lgkmcnt(0)")
if opt("bar", 1):
    e("s_barrier")
else:
    lds_signal(C_RED, 4, 5)
    lds_spin("red", C_RED, 4, 4, 5, slp=0)
stampx(12)
for c in range(3):
    for q in range(4):
        e(f"ds_read_b128 {vr(36+16*c+4*q)}, v3 offset:{c*4096+q*1024}")
for c in range(3):
    e(f"s_waitcnt lgkmcnt({8-4*c})")
    for r in range(0, 16, 2):
        e(f"v_pk_add_f32 {vr(GA[0]+r,2)}, {vr(GA[0]+r,2)}, {vr(36+16*c+r,2)}")
for i in range(8):
    e(f"v_cvt_pk_bf16_f32 v{16+i}, v{GA[0]+2*i}, v{GA[0]+1+2*i}")
e("s_nop 1")
for p in range(2):
    e(f"v_permlane32_swap_b32 v{16+4*p}, v{18+4*p}")
    e(f"v_permlane32_swap_b32 v{17+4*p}, v{19+4*p}")
for p in range(2):
    e(f"global_store_dwordx4 v166, {vr(16+4*p)}, {sr(sB0)} offset:{32*p}" + ("", " sc1", " nt")[opt("outf", 0)])
if LITE:
    cm("LITE")
    e("s_waitcnt vmcnt(0)")
    e("s_memrealtime s[72:73]")
    e(f"s_lshl2_add_u32 s{sT}, s2, s{sV}")
    e(f"s_lshl_b32 s{sT}, s{sT}, 3")
    e(f"s_add_u32 s{sT}, s{sT}, {WS_ST}")
    e(f"v_mov_b32 v12, s{sT}")
    e("s_waitcnt lgkmcnt(0)")
    e("v_mov_b32 v14, s70")
    e("v_mov_b32 v15, s72")
    e("s_mov_b64 exec, 1")
    e(f"global_store_dwordx2 v12, v[14:15], {sr(sWS)}")
lab("L_fin")
if opt("dbgt", 0):
    e("s_waitcnt vmcnt(0)")
    e("s_memrealtime s[100:101]")
    e("s_memtime s[98:99]")
    e("s_waitcnt lgkmcnt(0)")
    e("s_mov_b64 exec, 1")
    e("v_mov_b32 v12, 0")
    e("s_not_b32 s3, s70")
    e("v_mov_b32 v13, s3")
    e(f"global_atomic_umax v12, v13, {sr(sDBG)} offset:4 sc1")
    e("v_mov_b32 v14, s100")
    e(f"global_atomic_umax v12, v14, {sr(sDBG)} offset:8 sc1")
    e("v_mov_b32 v15, s70")
    e(f"global_atomic_umax v12, v15, {sr(sDBG)} offset:12 sc1")
    e("s_cmp_lg_u32 s2, 100")
    e("s_cbranch_scc1 L_end")
    e(f"s_cmp_eq_u32 s{sWAVE}, 7")
    e("s_cbranch_scc0 L_dg")
    for k, i in enumerate((9, 1, 2, 4, 7, 13)):
        e(f"s_sub_u32 s3, s{72+2*i}, s72")
        e("v_mov_b32 v13, s3")
        e(f"global_store_dword v12, v13, {sr(sDBG)} offset:{16+4*k}")
    e("s_branch L_end")
    lab("L_dg")
    e(f"s_cmp_eq_u32 s{sWAVE}, 8")
    e("s_cbranch_scc0 L_end")
    for k, i in enumerate((3, 5, 8, 11, 12, 13)):
        e(f"s_sub_u32 s3, s{72+2*i}, s72")
        e("v_mov_b32 v13, s3")
        e(f"global_store_dword v12, v13, {sr(sDBG)} offset:{40+4*k}")
elif STAMPS:
    e("s_waitcnt vmcnt(0)")
    stamp(13)
    e("s_memrealtime s[100:101]")
    e("s_waitcnt lgkmcnt(0)")
    e(f"s_lshl_b32 s{sT}, s2, 4")
    e(f"s_add_u32 s{sT}, s{sT}, s{sWAVE}")
    e(f"s_lshl_b32 s{sT}, s{sT}, 7")
    e(f"s_add_u32 s{sT}, s{sT}, {WS_ST}")
    add64(sP, sWS, off_s=sT)
    if DIAG == 2:
        e(f"v_lshlrev_b32 v12, 2, v{vL}")
        e("s_mov_b64 exec, 0xff")
        e(f"global_store_dword v12, v160, {sr(sP)} offset:64")
    e("v_mov_b32 v12, 0")
    e("s_mov_b64 exec, 1")
    for i in range(16):
        e(f"v_mov_b32 v13, s{70+2*i}")
        e(f"global_store_dword v12, v13, {sr(sP)} offset:{4*i}")
    e("s_waitcnt vmcnt(0)")
lab("L_end")
e("s_endpgm")
lab("L_code_end")

HEAD = open(f"cdna_kernels/{NAME}.s.ref").read().split("; Override launch geometry")[0]
src = HEAD + f"""; @launch grid=(256,1,1) block=(768,1,1) lds={LDS_TOTAL}
.amdgcn_target "amdgcn-amd-amdhsa--gfx950"
.text
.globl {NAME}_kernel
.p2align 8
.type {NAME}_kernel,@function
{NAME}_kernel:
""" + "\n".join(L) + f"""
.section .rodata,"a"
.p2align 6
.amdhsa_kernel {NAME}_kernel
  .amdhsa_next_free_vgpr 168
  .amdhsa_next_free_sgpr 102
  .amdhsa_accum_offset 168
  .amdhsa_group_segment_fixed_size 0
  .amdhsa_kernarg_size 96
  .amdhsa_user_sgpr_count 2
  .amdhsa_user_sgpr_kernarg_segment_ptr 1
  .amdhsa_system_sgpr_workgroup_id_x 1
.end_amdhsa_kernel
"""
open(OUT, "w").write(src)
print("wrote", OUT, len(L), "lines")
```

```python
import sys, struct

NAME = "gated_mix__grouped_kv_mqa__dense_activation_silu__prompt"
STAMPS = "--stamps" in sys.argv
def opt(name, default):
    for a in sys.argv[1:]:
        if a.startswith(f"--{name}="): return int(a.split("=")[1])
    return default
OUT = [a for a in sys.argv[1:] if not a.startswith("--")]
OUT = OUT[0] if OUT else f"cdna_kernels/{NAME}.s"
DIAG = opt("diag", 0)
LITE = opt("lite", 0)

def f2u(x): return struct.unpack("<I", struct.pack("<f", x))[0]
LOG2E = 1.4426950408889634

TILE = 2080
KVBYTES = 64 * TILE
L_X = 66560
L_UP = KVBYTES
L_Q = L_UP
L_KVP = L_UP
L_VT = L_UP + 24576
L_WKV = 32768
R2SZ = 6144
L_G = L_UP + 28672
L_CNT = L_G + 256
L_GW = L_CNT + 256
LDS_TOTAL = L_GW + 1024
C_KA, C_KB, C_KVP, C_GO, C_RED, C_K1, C_HD, C_OD, C_B2, C_QR = [L_CNT + 4*i for i in range(10)]
WS_KV, WS_FL, WS_H, WS_O, WS_ST = 0, 0x30000, 0x40000, 0x600000, 0x900000
WS_KF = WS_FL + 0x1000
WS_NONCE = WS_FL + 0x3000
SPIN = 1 << 16
TAGC = 0x9E3779B1

L = []
def e(s): L.append("    " + s)
def lab(s): L.append(s + ":")
def cm(s): L.append("    ; " + s)
def vr(a, n=4): return f"v[{a}:{a+n-1}]"
def sr(a, n=2): return f"s[{a}:{a+n-1}]"
def stamp(i):
    if STAMPS: e(("s_memrealtime" if opt("rts", 0) else "s_memtime") + f" s[{72+2*i}:{73+2*i}]")

def stampx(i):
    if DIAG != 4: stamp(i)
sX, sWQ, sWK, sWV, sWO, sW1, sW2, sGW, sOUT, sDBG, sWS = 4, 6, 8, 10, 12, 16, 18, 20, 22, 24, 26
sQB, sHG, sWAVE, sV = 28, 29, 30, 31
sJQ, sXM = 32, 33
sB0, sFL, sADV, sROLE, sRING, sN = 34, 36, 38, 39, 40, 41
sHT, sPROD = 42, 43
sKV, sH, sO = 44, 46, 48
sT, sT2, sT3 = 50, 52, 54
sC, sTAG = 56, 58
sSPIN, sI, sCHK, sRETRY = 60, 61, 62, 63
sWB = 14
sP, sP2 = 66, 68
vL, vL16 = 1, 2

def add64(dst, src, off_s=None, imm=None):
    o = f"s{off_s}" if off_s is not None else hex(imm)
    e(f"s_add_u32 s{dst}, s{src}, {o}")
    e(f"s_addc_u32 s{dst+1}, s{src+1}, 0")
def mfma(d, a, b, c):
    cs = "0" if c is None else vr(c, 16)
    e(f"v_mfma_f32_32x32x16_bf16 {vr(d,16)}, {vr(a)}, {vr(b)}, {cs}")
def lds_spin(name, off, want, va, vt, slp=1):
    e(f"v_mov_b32 v{va}, {off}")
    e(f"s_mov_b32 s{sSPIN}, {SPIN*64}")
    lab(f"L_{name}")
    e(f"ds_read_b32 v{vt}, v{va}")
    e("s_waitcnt lgkmcnt(0)")
    e(f"v_readfirstlane_b32 s{sT}, v{vt}")
    e(f"s_sub_u32 s{sSPIN}, s{sSPIN}, 1")
    e(f"s_cmp_eq_u32 s{sSPIN}, 0")
    e(f"s_cbranch_scc1 L_{name}_ok")
    e(f"s_cmp_ge_u32 s{sT}, {want}")
    e(f"s_cbranch_scc1 L_{name}_ok")
    if slp: e(f"s_sleep {slp}")
    e(f"s_branch L_{name}")
    lab(f"L_{name}_ok")
def lds_signal(off, va, vt):
    e(f"v_mov_b32 v{va}, {off}")
    e(f"v_mov_b32 v{vt}, 1")
    e("s_mov_b64 exec, 1")
    e(f"ds_add_u32 v{va}, v{vt}")
    e("s_mov_b64 exec, -1")
def tag_poll(name, va, vt, base, slp):
    e(f"s_mov_b32 s{sSPIN}, {SPIN}")
    lab(f"L_{name}")
    e(f"global_load_dword v{vt}, v{va}, {sr(base)} sc1")
    e("s_waitcnt vmcnt(0)")
    e(f"v_cmp_ne_u32 vcc, s{sTAG}, v{vt}")
    e(f"s_cbranch_vccz L_{name}_ok")
    e(f"s_sleep {slp}")
    e(f"s_sub_u32 s{sSPIN}, s{sSPIN}, 1")
    e(f"s_cmp_lg_u32 s{sSPIN}, 0")
    e(f"s_cbranch_scc1 L_{name}")
    lab(f"L_{name}_ok")
def dma_lin(first_s, n, first_imm=0):
    for j in range(0, n, 4):
        e(f"s_add_u32 s{sT}, s{first_s}, {first_imm + j*1024}")
        e(f"s_mov_b32 m0, s{sT}")
        add64(sP, sKV, off_s=sT)
        for i in range(4):
            e(f"global_load_lds_dwordx4 v{vL16}, {sr(sP)} offset:{i*1024} sc1")
def dma_kv_one(off):
    e(f"s_mov_b32 m0, {off}")
    add64(sP, sKV, imm=off)
    e(f"global_load_lds_dwordx4 v{vL16}, {sr(sP)} sc1")
def tr_lane(dst, t0, t1):
    e(f"v_bfe_u32 v{dst}, v{vL}, 2, 2")
    e(f"v_bfe_u32 v{t0}, v{vL}, 4, 1")
    e(f"v_and_b32 v{t1}, 3, v{vL}")
    e(f"v_lshlrev_b32 v{dst}, 6, v{dst}")
    e(f"v_lshl_add_u32 v{dst}, v{t0}, 5, v{dst}")
    e(f"v_lshl_add_u32 v{dst}, v{t1}, 3, v{dst}")
    e(f"v_lshrrev_b32 v{t0}, 5, v{vL}")
    e(f"v_lshl_add_u32 v{dst}, v{t0}, 9, v{dst}")
e("s_load_dwordx16 s[4:19], s[0:1], 0")
e("s_load_dwordx8 s[20:27], s[0:1], 64")
e("s_cmp_ge_u32 s2, 256")
e("s_cbranch_scc1 L_end")
if STAMPS or LITE: e("s_memrealtime s[70:71]")
stamp(0)
e("v_lshrrev_b32 v5, 6, v0")
e(f"v_and_b32 v{vL}, 63, v0")
e(f"v_readfirstlane_b32 s{sWAVE}, v5")
e(f"v_lshlrev_b32 v{vL16}, 4, v{vL}")
cm("qb = ((wg&7)>>1)*8 + ((wg>>3)&7) ; hg = (wg&1)*4 + (wg>>6) ; producers: wg < 64")
e(f"s_bfe_u32 s{sT}, s2, 0x20001")
e(f"s_bfe_u32 s{sJQ}, s2, 0x30003")
e(f"s_lshl3_add_u32 s{sQB}, s{sT}, s{sJQ}")
e(f"s_and_b32 s{sT}, s2, 1")
e(f"s_lshr_b32 s{sPROD}, s2, 6")
e(f"s_lshl2_add_u32 s{sHG}, s{sT}, s{sPROD}")
cm("stage order s ^ rot, rot = 2*(qb&7) ^ 4*(hg&3)")
e(f"s_lshl_b32 s{sJQ}, s{sJQ}, 1")
e(f"s_lshl_b32 s{sT}, s{sPROD}, 2")
e(f"s_xor_b32 s{sJQ}, s{sJQ}, s{sT}")
e(f"s_and_b32 s{sJQ}, s{sJQ}, {opt('rot', 6)}")
e(f"s_cmp_lt_u32 s{sWAVE}, 8")
e("s_cbranch_scc1 L_aw")

e(f"s_sub_u32 s{sV}, s{sWAVE}, 8")
if opt("gp", 0): e("s_setprio 3")
sWQB, sW1B = 34, 64
cm("X lane offset v20: row 16v + (l>>4) (+4j), 16B unit (l&15) ^ (row&15)")
e(f"v_lshrrev_b32 v16, 4, v{vL}")
e(f"v_and_b32 v17, 15, v{vL}")
e("v_xor_b32 v17, v17, v16")
e("v_lshlrev_b32 v17, 4, v17")
e("v_lshl_add_u32 v20, v16, 10, v17")
for j in range(1, 4):
    e(f"v_xor_b32 v{20+j}, {j*(4096+64)}, v20")
e(f"s_lshl2_add_u32 s{sT2}, s{sQB}, s{sV}")
e(f"s_lshl_b32 s{sT2}, s{sT2}, 14")
e(f"s_lshl_b32 s{sXM}, s{sV}, 12")
cm("row-in-octet v16 = 4*(l>>5) + ((l>>2)&3), v17 = tile bit (l>>4)&1, v18 = (l&3)*16")
e(f"v_lshrrev_b32 v16, 5, v{vL}")
e(f"v_bfe_u32 v19, v{vL}, 2, 2")
e("v_lshl_add_u32 v16, v16, 2, v19")
e(f"s_lshl_b32 s{sT3}, s{sV}, 3")
e(f"v_add_u32 v16, s{sT3}, v16")
e(f"v_bfe_u32 v17, v{vL}, 4, 1")
e(f"v_and_b32 v18, 3, v{vL}")
e("v_lshlrev_b32 v18, 4, v18")
e("v_lshl_add_u32 v24, v17, 6, v18")
e("v_lshl_add_u32 v24, v16, 10, v24")
def x_issue(g):
    e(f"s_xor_b32 s{sT}, s{sJQ}, {4*g}")
    e(f"s_lshr_b32 s{sT}, s{sT}, 2")
    e(f"s_lshl_b32 s{sT}, s{sT}, 8")
    e(f"s_add_u32 m0, s{sXM}, {L_X + g*16384}")
    add64(sP, sP2, off_s=sT)
    for j in range(4):
        if j:
            e(f"s_add_u32 m0, s{sXM}, {L_X + g*16384 + j*1024}")
            e("s_nop 0")
        e(f"global_load_lds_dwordx4 v{20+j}, {sr(sP)}")
e("s_waitcnt lgkmcnt(0)")
stamp(9)
e(f"s_load_dword s{sTAG}, {sr(sWS)}, {hex(WS_NONCE)}")
add64(sP2, sX, off_s=sT2)
x_issue(0)
e(f"s_lshl_b32 s{sT}, s{sHG}, 7")
add64(sWQ, sWQ, off_s=sT)
e(f"s_cmp_eq_u32 s{sHG}, 0")
e("s_cbranch_scc1 L_gprod")
e(f"s_mul_i32 s{sT}, s{sHG}, 384")
e(f"s_sub_u32 s{sT}, s{sT}, 320")
add64(sW1, sW1, off_s=sT)
e(f"v_add_u32 v19, s{sT3}, v19")
e("v_mul_u32_u24 v25, 2752, v19")
e(f"v_lshrrev_b32 v26, 4, v{vL}")
e("v_lshl_add_u32 v25, v26, 6, v25")
e("v_add_u32 v25, v25, v18")
e(f"v_add_u32 v26, {4*2752}, v25")
e("v_mul_u32_u24 v27, 2752, v16")
e("v_lshl_add_u32 v27, v17, 6, v27")
e("v_add3_u32 v27, v27, v18, 64")
e("v_add_u32 v27, 192, v27")
def misc_g():
    cm("one extra request per wave keeps the counts uniform: v0 code prefetch, v1 gate weights, v2/v3 touch w2/wo/out pages")
    e(f"s_cmp_eq_u32 s{sV}, 1")
    e(f"s_cbranch_scc1 L_m1{UID[0]}")
    e(f"s_getpc_b64 {sr(sT)}")
    lab(f"L_pc{UID[0]}")
    e(f"s_sub_u32 s{sT}, s{sT}, L_pc{UID[0]}-{NAME}_kernel")
    e(f"s_subb_u32 s{sT+1}, s{sT+1}, 0")
    e(f"s_andn2_b32 s{sT2}, s2, 7")
    e(f"v_and_b32 v3, 7, v{vL}")
    e(f"v_add_lshl_u32 v3, v3, s{sT2}, 7")
    e(f"v_min_u32 v3, L_code_end-{NAME}_kernel-4, v3")
    e(f"global_load_dword v4, v3, {sr(sT)}")
    e(f"v_and_b32 v12, 15, v{vL}")
    e(f"v_lshlrev_b32 v12, 2, v12")
    e(f"v_add_u32 v12, {L_CNT}, v12")
    e("v_mov_b32 v13, 0")
    e("ds_write_b32 v12, v13")
    e(f"s_branch L_m2{UID[0]}")
    lab(f"L_m1{UID[0]}")
    e(f"s_mov_b32 m0, {L_GW}")
    e("s_nop 0")
    e(f"global_load_lds_dwordx4 v{vL16}, {sr(sGW)}")
    lab(f"L_m2{UID[0]}")
    cm("gate: lane -> row 16v + (l>>2), units 4(l&3)+i ; v10 X address, v11 weight address")
    e(f"v_lshrrev_b32 v12, 2, v{vL}")
    e(f"v_and_b32 v13, 3, v{vL}")
    e("v_lshlrev_b32 v13, 2, v13")
    e("v_xor_b32 v10, v13, v12")
    e("v_lshlrev_b32 v10, 4, v10")
    e("v_lshl_add_u32 v10, v12, 8, v10")
    e(f"s_add_u32 s{sT}, s{sXM}, {L_X}")
    e(f"v_add_u32 v10, s{sT}, v10")
    e(f"s_lshr_b32 s{sT}, s{sJQ}, 2")
    e(f"s_lshl_b32 s{sT}, s{sT}, 8")
    e(f"v_lshl_add_u32 v11, v13, 4, s{sT}")
    e("v_mov_b32 v14, 0")
    e("v_mov_b32 v15, 0")
    e(f"v_and_b32 v30, 31, v{vL}")
    e("v_lshlrev_b32 v30, 7, v30")
    e(f"v_add_u32 v30, {WS_KF}, v30")
    add64(sKV, sWS, imm=WS_KV)
    e("s_waitcnt lgkmcnt(0)")
    e(f"s_add_u32 s{sTAG}, s{sTAG}, {hex(TAGC)}")
    UID[0] += 1
UID = [0]
def gate_part(g):
    if opt("nogate", 0): return
    e(f"v_xor_b32 v12, {g*256}, v11")
    e(f"v_add_u32 v12, {L_GW}, v12")
    for i in range(4):
        if i: e(f"v_xor_b32 v13, {i*16}, v10")
        e(f"ds_read_b128 {vr(32+8*i)}, v{13 if i else 10} offset:{g*16384}")
        e(f"ds_read_b128 {vr(36+8*i)}, v12 offset:{i*16}")
    for i in range(4):
        e(f"s_waitcnt lgkmcnt({6-2*i})")
        for j in range(4):
            e(f"v_dot2_f32_bf16 v{14+(j&1)}, v{32+8*i+j}, v{36+8*i+j}, v{14+(j&1)}")
sFAST = sN
def loader(prod):
    nw = 2 if prod else 4
    tg = "p" if prod else "n"
    def issue(s):
        if s % 4 == 0 and s and not prod: x_issue(s // 4)
        base = (s % 4) * 16384
        e(f"s_xor_b32 s{sT}, s{sJQ}, {s}")
        e(f"s_lshl_b32 s{sT2}, s{sT}, 15")
        e(f"s_add_u32 m0, s{sXM}, {base}")
        add64(sWQB, sWQ, off_s=sT2)
        e(f"global_load_lds_dwordx4 v24, {sr(sWQB)}")
        e(f"s_mul_i32 s{sT2}, s{sT}, {32*2752}")
        e(f"s_add_u32 m0, s{sXM}, {base + 3072}")
        add64(sW1B, sW1, off_s=sT2)
        e(f"global_load_lds_dwordx4 v27, {sr(sW1B)}")
        if not prod:
            for j, r in ((1, 25), (2, 26)):
                e(f"s_add_u32 m0, s{sXM}, {base + j*1024}")
                e("s_nop 0")
                e(f"global_load_lds_dwordx4 v{r}, {sr(sW1B)}")
    cnt = [nw + (4 if s % 4 == 0 and not prod else 0) for s in range(16)]
    if prod:
        misc_g()
        e("s_waitcnt vmcnt(4)")
        issue(0); issue(1)
        e("s_waitcnt vmcnt(4)")
        e("s_barrier")
        e("s_barrier")
        issue(2)
    else:
        issue(0); issue(1); issue(2)
        misc_g()
    for s in range(14):
        later = sum(cnt[s+1:min(16, s + 3)]) + (1 if s in (11, 12) or (s < 3 and not prod) else 0)
        e(f"s_waitcnt vmcnt({later})")
        e("s_barrier")
        if s == 0: stamp(1)
        if s == 10: e(f"global_load_dword v31, v30, {sr(sWS)} sc1")
        if s + 3 < 16: issue(s + 3)
        if s in (4, 6, 9): gate_part((4, 6, 9).index(s))
    cm("K/V already published? then start staging it into the ring slots as they free up")
    e(f"v_cmp_ne_u32 vcc, s{sTAG}, v31")
    e(f"s_mov_b32 s{sFAST}, 0")
    e(f"s_cbranch_vccnz L_slow{tg}")
    e(f"s_mov_b32 s{sFAST}, 1")
    dma_lin(sXM, 4)
    gate_part(3)
    e(f"s_waitcnt vmcnt({cnt[15] + 4})")
    e("s_barrier")
    dma_lin(sXM, 4, 16384)
    e("s_waitcnt vmcnt(8)")
    e("s_barrier")
    dma_lin(sXM, 4, 32768)
    e("s_branch L_g4")
    lab(f"L_slow{tg}")
    e(f"global_load_dword v31, v30, {sr(sWS)} sc1")
    gate_part(3)
    e(f"s_waitcnt vmcnt({cnt[15] + 1})")
    e("s_barrier")
    e("s_waitcnt vmcnt(0)")
    e("s_barrier")
    e(f"v_cmp_ne_u32 vcc, s{sTAG}, v31")
    e("s_cbranch_vccnz L_g4")
    e(f"s_mov_b32 s{sFAST}, 1")
    for j in range(3):
        dma_lin(sXM, 4, j*16384)
    e("s_branch L_g4")
loader(False)
lab("L_gprod")
cm("producer (hg==0): all of X and [wk|wv] first (wave v: k-steps 8v..8v+7); last piece = w1 tile 0")
e(f"v_lshrrev_b32 v28, 2, v{vL}")
e("v_lshlrev_b32 v28, 5, v28")
e("v_and_b32 v19, 16, v18")
e(f"v_add3_u32 v28, v28, v19, s{sXM}")
e("v_mov_b32 v29, 0")
e(f"v_and_b32 v19, 2, v{vL}")
e("v_cmp_ne_u32 vcc, 0, v19")
e(f"v_mov_b32 v32, s{sWK}")
e(f"v_mov_b32 v33, s{sWK+1}")
e(f"v_mov_b32 v34, s{sWV}")
e(f"v_mov_b32 v35, s{sWV+1}")
e("v_cndmask_b32 v32, v32, v34, vcc")
e("v_cndmask_b32 v33, v33, v35, vcc")
e("v_lshl_add_u64 v[32:33], v[28:29], 0, v[32:33]")
e(f"s_lshl_b32 s{sT3}, s{sXM}, 1")
e(f"s_and_b32 s{sC}, s{sQB}, 7")
e(f"s_mov_b32 s{sW1B+1}, 0")
def wkv_dma(i):
    e(f"s_xor_b32 s{sT}, s{sC}, {i}")
    e(f"s_lshl_b32 s{sW1B}, s{sT}, 9")
    e(f"s_lshl_b32 s{sT}, s{sT}, 10")
    e(f"s_add_u32 s{sT}, s{sT}, s{sT3}")
    e(f"s_add_u32 m0, s{sT}, {L_WKV}")
    e(f"v_lshl_add_u64 v[28:29], v[32:33], 0, {sr(sW1B)}")
    e("global_load_lds_dwordx4 v[28:29], off")
wkv_dma(0)
for g in range(1, 4): x_issue(g)
for i in range(1, 8): wkv_dma(i)
e("v_mul_u32_u24 v27, 2752, v16")
e("v_add_u32 v27, v27, v18")
loader(True)

lab("L_aw")
if DIAG == 4: stamp(9)
e(f"s_mul_i32 s{sHT}, s{sHG}, 6")
e(f"s_add_u32 s{sHT}, s{sHT}, s{sWAVE}")
e(f"s_sub_u32 s{sHT}, s{sHT}, 7")
e(f"s_mov_b32 s{sROLE}, 2")
e(f"s_cmp_lg_u32 s{sHG}, 0")
e("s_cbranch_scc1 L_r1")
e(f"s_mov_b32 s{sHT}, 0")
e(f"s_cmp_lt_u32 s{sWAVE}, 7")
e(f"s_cselect_b32 s{sROLE}, 3, 2")
lab("L_r1")
e(f"s_cmp_lt_u32 s{sWAVE}, 2")
e(f"s_cselect_b32 s{sROLE}, 0, s{sROLE}")
cm("block base: w<2: 256w ; w<6: 1024+256(w-2) ; else 3072+256(w-6) ; rg stride 1024 for 2<=w<6 else 512")
e(f"s_cselect_b32 s{sT}, 0, 512")
e(f"s_cselect_b32 s{sT2}, 512, 1024" if False else f"s_cselect_b32 s{sT2}, 1, 2")
e(f"s_cmp_ge_u32 s{sWAVE}, 6")
e(f"s_cselect_b32 s{sT}, 1536, s{sT}")
e(f"s_cselect_b32 s{sT2}, 1, s{sT2}")
e(f"s_lshl_b32 s{sT2}, s{sT2}, 9")
e(f"s_lshl_b32 s{sT3}, s{sWAVE}, 8")
e(f"s_add_u32 s{sT}, s{sT}, s{sT3}")
e(f"v_bfe_u32 v6, v{vL}, 2, 2")
e(f"v_bfe_u32 v32, v{vL}, 4, 1")
e(f"v_and_b32 v33, 3, v{vL}")
e("v_lshlrev_b32 v6, 6, v6")
e("v_lshl_add_u32 v6, v32, 5, v6")
e("v_lshl_add_u32 v6, v33, 3, v6")
e(f"v_lshrrev_b32 v32, 5, v{vL}")
e("v_lshl_add_u32 v6, v32, 12, v6")
e(f"v_add_u32 v6, s{sT}, v6")
e(f"v_add_u32 v7, s{sT2}, v6")
cm("X fragment addresses v8..v15 for (s&3, ks)")
e(f"v_and_b32 v33, 31, v{vL}")
e(f"v_and_b32 v34, 15, v{vL}")
e("v_xor_b32 v34, v34, v32")
e("v_lshlrev_b32 v34, 4, v34")
e("v_lshl_add_u32 v8, v33, 8, v34")
e(f"s_and_b32 s{sT}, s{sJQ}, 3")
e(f"s_lshl_b32 s{sT}, s{sT}, 6")
e(f"v_xor_b32 v8, s{sT}, v8")
e(f"v_add_u32 v8, {L_X}, v8")
for j in range(1, 8):
    e(f"v_xor_b32 v{8+j}, {j << 5}, v8")
e("s_waitcnt lgkmcnt(0)")
if DIAG == 4: stamp(10)
e(f"s_load_dword s{sTAG}, {sr(sWS)}, {hex(WS_NONCE)}")
e(f"s_lshl3_add_u32 s{sT}, s{sQB}, s{sHG}")
e(f"s_lshl3_add_u32 s{sT}, s{sT}, s{sWAVE}")
e(f"s_lshl_b32 s{sT}, s{sT}, 10")
e(f"s_add_u32 s{sT}, s{sT}, {WS_O}")
add64(sO, sWS, off_s=sT)
e(f"s_mul_i32 s{sT}, s{sQB}, 43")
e(f"s_add_u32 s{sT}, s{sT}, s{sHT}")
e(f"s_lshl_b32 s{sT}, s{sT}, 12")
e(f"s_add_u32 s{sT}, s{sT}, {WS_H}")
add64(sH, sWS, off_s=sT)
ACC = [64, 80]
FB = [16, 40]
def early_setup():
    for i in range(4):
        e(f"v_mov_b32 v{128+i}, -1")
    cm("V lane address: m>=16: 1024 + h*256 + (m-16)*16 ; m in {0,4}: ones slot ; else out of range (reads 0)")
    e(f"v_and_b32 v150, 15, v{vL}")
    e(f"v_lshrrev_b32 v151, 5, v{vL}")
    e("v_lshlrev_b32 v150, 4, v150")
    e("v_lshl_add_u32 v150, v151, 8, v150")
    e(f"v_and_b32 v151, 27, v{vL}")
    e(f"v_cmp_eq_u32 {sr(sT)}, 0, v151")
    e("v_cmp_lt_u32 vcc, 15, v151")
    e("v_mov_b32 v151, 0x40000")
    e("v_mov_b32 v152, 512")
    e(f"v_cndmask_b32 v151, v151, v152, {sr(sT)}")
    e(f"v_cndmask_b32 v148, v151, v150, vcc")
    e(f"v_add_u32 v148, 1024, v148")
    e(f"s_lshl_b32 s{sT}, s{sWAVE}, 10")
    e(f"s_add_u32 s{sT}, s{sT}, {L_Q}")
    e(f"v_add_u32 v149, s{sT}, v{vL16}")
    e(f"s_mov_b32 s{sRETRY}, 0")
    e("v_mov_b32 v153, 0xdddddddd")
    e(f"s_mov_b32 s{sCHK}, 7")
    for r in range(16):
        e(f"v_mov_b32 v{112+r}, 0")
e(f"s_cmp_lg_u32 s{sHG}, 0")
e("s_cbranch_scc1 L_nokv")
e(f"s_lshr_b32 s{sT2}, s{sWAVE}, 1")
e(f"s_and_b32 s{sT3}, s{sWAVE}, 1")
tr_lane(40, 41, 42)
e(f"s_lshr_b32 s{sT}, s{sJQ}, 2")
e(f"s_xor_b32 s{sT}, s{sT}, s{sT2}")
e(f"s_lshl_b32 s{sT}, s{sT}, 13")
e(f"s_add_u32 s{sT}, s{sT}, {L_WKV}")
e(f"v_add_u32 v40, s{sT}, v40")
e(f"s_and_b32 s{sT}, s{sJQ}, 3")
e(f"s_lshl_b32 s{sT}, s{sT}, 6")
e(f"v_xor_b32 v41, s{sT}, v8")
e(f"s_lshl1_add_u32 s{sT}, s{sT2}, s{sT3}")
e(f"s_lshl_b32 s{sT}, s{sT}, 13")
e(f"v_add_u32 v41, s{sT}, v41")
for j in range(1, 8):
    e(f"v_xor_b32 v{41+j}, {j << 5}, v41")
cm("partial slot (rt*3 + idx), idx = kq - (kq>1)")
e(f"s_cmp_gt_u32 s{sT2}, 1")
e(f"s_subb_u32 s{sT}, s{sT2}, 0")
e(f"s_cmp_eq_u32 s{sT2}, 1")
e(f"s_cselect_b32 s{sT}, 0, s{sT}")
e(f"s_mul_i32 s{sC}, s{sT3}, 3")
e(f"s_add_u32 s{sT}, s{sT}, s{sC}")
e(f"s_lshl_b32 s{sT}, s{sT}, 12")
e(f"s_add_u32 s{sT}, s{sT}, {L_KVP}")
e(f"v_add_u32 v50, s{sT}, v{vL16}")
e(f"s_lshl1_add_u32 s{sT}, s{sQB}, s{sT3}")
e(f"s_mul_i32 s{sT}, s{sT}, {TILE}")
add64(sP, sWS, off_s=sT)
e(f"s_lshl_b32 s{sT}, s{sT3}, 10")
e(f"s_add_u32 s{sT}, s{sT}, {L_VT}")
e(f"v_and_b32 v52, 31, v{vL}")
e(f"v_lshrrev_b32 v55, 5, v{vL}")
e("v_lshlrev_b32 v52, 5, v52")
e("v_lshl_add_u32 v52, v55, 3, v52")
e(f"v_add_u32 v52, s{sT}, v52")
e(f"v_bfe_u32 v53, v{vL}, 2, 2")
e(f"v_bfe_u32 v54, v{vL}, 4, 1")
e("v_lshl_add_u32 v53, v54, 3, v53")
e("v_lshl_add_u32 v53, v55, 4, v53")
e("v_lshlrev_b32 v53, 5, v53")
e(f"v_and_b32 v54, 3, v{vL}")
e("v_lshl_add_u32 v53, v54, 3, v53")
e(f"v_add_u32 v53, s{sT}, v53")
e(f"v_lshl_add_u32 v54, v55, 4, v{vL16}")
e(f"v_and_b32 v55, 1, v{vL}")
e("v_mul_u32_u24 v55, 528, v55")
for i in range(4):
    e(f"v_mov_b32 v{56+i}, 0x3f803f80")
e("s_waitcnt lgkmcnt(0)")
e("s_barrier")
stamp(9)
for i in range(8):
    e(f"ds_read_b64_tr_b16 {vr(96+8*(i%5),2)}, v40 offset:{i*1024}")
    e(f"ds_read_b64_tr_b16 {vr(98+8*(i%5),2)}, v40 offset:{i*1024+256}")
    e(f"ds_read_b128 {vr(100+8*(i%5))}, v{41+i}")
    if i >= 3:
        e("s_waitcnt lgkmcnt(9)")
        mfma(64, 96+8*((i-3)%5), 100+8*((i-3)%5), None if i == 3 else 64)
for i in range(5, 8):
    e(f"s_waitcnt lgkmcnt({3*(7-i)})")
    mfma(64, 96+8*(i%5), 100+8*(i%5), 64)
e(f"s_cmp_eq_u32 s{sT2}, 1")
e("s_cbranch_scc1 L_kvf")
e("s_nop 10")
for q in range(4):
    e(f"ds_write_b128 v50, {vr(64+4*q)} offset:{q*1024}")
e("s_waitcnt lgkmcnt(0)")
e("s_barrier")
e("s_branch L_nokv")
lab("L_kvf")
e(f"global_store_dwordx4 v55, v[56:59], {sr(sP)} offset:1536 sc1")
e("s_barrier")
PB = (80, 96, 112)
for c in range(3):
    for q in range(4):
        e(f"ds_read_b128 {vr(PB[c]+4*q)}, v50 offset:{c*4096+q*1024}")
for c in range(3):
    e(f"s_waitcnt lgkmcnt({8-4*c})")
    for r in range(0, 16, 2):
        e(f"v_pk_add_f32 {vr(64+r,2)}, {vr(64+r,2)}, {vr(PB[c]+r,2)}")
for r in range(8, 16, 2):
    e(f"v_cvt_pk_bf16_f32 v{80+r//2}, v{64+r}, v{65+r}")
e("ds_write_b64 v52, v[84:85]")
e("ds_write_b64 v52, v[86:87] offset:16")
e("ds_read_b64_tr_b16 v[88:89], v53")
e("ds_read_b64_tr_b16 v[90:91], v53 offset:128")
for r in range(0, 8, 2):
    e(f"v_cvt_pk_bf16_f32 v{80+r//2}, v{64+r}, v{65+r}")
e(f"global_store_dwordx4 v{vL16}, v[80:83], {sr(sP)} sc1")
e("s_waitcnt lgkmcnt(0)")
e(f"global_store_dwordx4 v54, v[88:91], {sr(sP)} offset:1024 sc1")
stamp(10)
cm("both finishers drain their stores before pipeline barrier 2; wave 2 raises the flag behind it")
e("s_barrier")
early_setup()
e("s_barrier")
e("s_waitcnt vmcnt(0)")
e("s_barrier")
e(f"s_mov_b32 s{sI}, 14")
e(f"s_cmp_lg_u32 s{sT3}, 0")
e("s_cbranch_scc1 L_idle1")
e(f"s_add_u32 s{sT2}, s{sTAG}, {hex(TAGC)}")
e(f"s_lshl_b32 s{sT}, s{sQB}, 7")
e(f"s_add_u32 s{sT}, s{sT}, {WS_KF}")
e(f"v_mov_b32 v20, s{sT}")
e(f"v_mov_b32 v21, s{sT2}")
e("s_mov_b64 exec, 1")
e(f"global_store_dword v20, v21, {sr(sWS)} sc1")
e("s_mov_b64 exec, -1")
stamp(11)
e("s_branch L_idle1")
lab("L_nokv")
early_setup()
for r in range(32):
    e(f"v_mov_b32 v{64+r}, 0")
for r in range(24):
    e(f"v_mov_b32 v{FB[1]+r}, 0")
e(f"s_mov_b32 s{sI}, 4")
e("s_waitcnt lgkmcnt(0)")
e(f"s_cmp_eq_u32 s{sROLE}, 3")
e("s_cbranch_scc1 L_idle")
def p1_mf(st):
    if opt("nomf", 0): return
    for ks in range(2):
        for rt in range(2):
            mfma(ACC[rt], FB[st] + 12*ks, FB[st] + 12*ks + 4 + 4*rt, ACC[rt])
lab("L_p1")
for u in range(4):
    e("s_barrier")
    f = FB[u & 1]
    for ks in range(2 if opt("nomf", 0) < 2 else 0):
        e(f"ds_read_b64_tr_b16 {vr(f+12*ks,2)}, v6 offset:{u*16384+ks*8192}")
        e(f"ds_read_b64_tr_b16 {vr(f+12*ks+2,2)}, v7 offset:{u*16384+ks*8192}")
        for rt in range(2):
            e(f"ds_read_b128 {vr(f+12*ks+4+4*rt)}, v{8+2*u+ks} offset:{rt*8192}")
        e(f"v_add_u32 v{8+2*u+ks}, 0x4000, v{8+2*u+ks}")
    p1_mf((u + 1) & 1)
    e("s_waitcnt lgkmcnt(0)")
e(f"s_sub_u32 s{sI}, s{sI}, 1")
e(f"s_cmp_lg_u32 s{sI}, 0")
e("s_cbranch_scc1 L_p1")
e("s_barrier")
p1_mf(1)
stamp(2)
e(f"s_cmp_eq_u32 s{sROLE}, 0")
e(f"s_mov_b32 s{sC}, {hex(f2u(-LOG2E))}")
e(f"s_cselect_b32 s{sC}, {hex(f2u(0.25*LOG2E))}, s{sC}")
e(f"s_mov_b32 s{sC+1}, s{sC}")
e("s_nop 7")
if opt("sp", 0): e("s_setprio 3")
e("s_cbranch_scc0 L_epiH")
e("s_setprio 3")
for r in range(0, 32, 2):
    e(f"v_pk_mul_f32 {vr(64+r,2)}, {vr(64+r,2)}, {sr(sC)}")
for r in range(0, 32, 2):
    e(f"v_cvt_pk_bf16_f32 v{96+r//2}, v{64+r}, v{65+r}")
e(f"s_lshl_b32 s{sT}, s{sWAVE}, 12")
e(f"s_add_u32 s{sT}, s{sT}, {L_Q}")
e(f"v_add_u32 v32, s{sT}, v{vL16}")
for rt in range(2):
    for i in range(2):
        e(f"ds_write_b128 v32, {vr(96+rt*8+i*4)} offset:{i*2048+rt*1024}")
e("s_waitcnt lgkmcnt(0)")
lds_signal(C_B2, 12, 13)
e("s_branch L_p1done")
lab("L_idle")
e(f"s_mov_b32 s{sI}, 17")
lab("L_idle1")
e("s_barrier")
e(f"s_sub_u32 s{sI}, s{sI}, 1")
e(f"s_cmp_lg_u32 s{sI}, 0")
e("s_cbranch_scc1 L_idle1")
e("s_branch L_p1done")
lab("L_epiH")
for rt in range(2):
    a = ACC[rt]
    for r in range(0, 16, 2):
        e(f"v_pk_mul_f32 {vr(96+r,2)}, {vr(a+r,2)}, {sr(sC)}")
    for r in range(16):
        e(f"v_exp_f32 v{96+r}, v{96+r}")
    for r in range(0, 16, 2):
        e(f"v_pk_add_f32 {vr(96+r,2)}, {vr(96+r,2)}, 1.0 op_sel_hi:[1,0]")
    for r in range(16):
        e(f"v_rcp_f32 v{96+r}, v{96+r}")
    for r in range(0, 16, 2):
        e(f"v_pk_mul_f32 {vr(96+r,2)}, {vr(96+r,2)}, {vr(a+r,2)}")
    for r in range(0, 16, 2):
        e(f"v_cvt_pk_bf16_f32 v{132+rt*8+r//2}, v{96+r}, v{97+r}")
lab("L_p1done")
Q = 16
KF = [20, 24]
V0 = [28, 32]
V1 = [36, 40]
P = [48, 56]
S = [64, 80]
C = 96
O = 112
vK, vV0, vV = 10, 148, 11
def att_zero(full=True):
    if full:
        for r in range(16):
            e(f"v_mov_b32 v{O+r}, 0")
    for r in range(4):
        e(f"v_mov_b32 v{V1[1]+r}, 0")
    for r in range(8, 16):
        e(f"v_mov_b32 v{S[1]+r}, 0")
att_zero(False)
stamp(3)
lds_spin("b2a", C_B2, 6, 12, 13, slp=1)
stamp(4)
if STAMPS: e("s_memrealtime s[88:89]")
e("s_setprio 3")
e(f"ds_read_b128 {vr(Q)}, v149")
e(f"ds_read_b128 {vr(KF[0])}, v{vL16}")
def att_first_loads():
    e(f"ds_read_b128 {vr(KF[1])}, v{vL16} offset:{TILE}")
    e(f"ds_read_b128 {vr(V0[0])}, v{vV0}")
    e(f"ds_read_b128 {vr(V0[1])}, v{vV0} offset:{TILE}")
    e(f"ds_read_b128 {vr(V1[0])}, v{vV0} offset:528")
att_first_loads()
HST = opt("hst", 0)
e("s_waitcnt lgkmcnt(4)")
mfma(S[0], KF[0], Q, None)
lds_signal(C_QR, 12, 13)
if HST:
    cm("poison this wave's O slot and publish its H tile")
    e(f"global_store_dwordx4 v{vL16}, v[128:131], {sr(sO)} sc1")
    e(f"s_cmp_lg_u32 s{sROLE}, 2")
    e("s_cbranch_scc1 L_noh")
    for rt in range(2):
        for ks in range(2):
            e(f"global_store_dwordx4 v{vL16}, {vr(132+rt*8+ks*4)}, {sr(sH)} offset:{ks*2048+rt*1024} sc1")
    lab("L_noh")
e("s_nop 6")
e(f"v_max3_f32 v12, v{S[0]}, v{S[0]+1}, v{S[0]+2}")
for r in range(3, 15, 2):
    e(f"v_max3_f32 v12, v12, v{S[0]+r}, v{S[0]+r+1}")
e(f"v_max_f32 v12, v12, v{S[0]+15}")
lab("L_att_setC")
e("v_mov_b32 v14, v12")
e(f"v_mov_b32 v{vK}, v{vL16}")
e(f"v_mov_b32 v{vV}, v{vV0}")
e("v_permlane32_swap_b32 v12, v14")
e(f"s_mov_b32 s{sI}, 0")
e("s_nop 0")
e("v_max_f32 v12, v12, v14")
for r in range(16):
    e(f"v_sub_f32 v{C+r}, 0, v12")
e("s_waitcnt lgkmcnt(0)")
e("s_nop 0")
mfma(S[0], KF[0], Q, C)
e(f"ds_read_b128 {vr(KF[0])}, v{vL16} offset:{2*TILE}")
e("s_setprio 2")
e("s_nop 9")
stamp(5)
UN = 8
def ex(x, r): e(f"v_exp_f32 v{S[x]+r}, v{S[x]+r}")
def pv(a, b): e(f"v_smfmac_f32_32x32x32_bf16 {vr(O,16)}, {vr(a)}, {vr(b,8)}, v153")
L.append(".p2align 6")
lab("L_att_loop")
for u in range(UN):
    x = u & 1; y = 1 - x
    if u == 5:
        e(f"s_bitcmp1_b32 s{sCHK}, s{sI}")
        e("s_cbranch_scc1 L_att_chk")
        lab("L_att_chk_ret")
    ex(x, 0); ex(x, 1)
    pv(V1[y], S[y] + 8)
    e(f"ds_read_b128 {vr(V1[y])}, v{vV} offset:{(u+1)*TILE+528}")
    for r in range(2, 7): ex(x, r)
    mfma(S[y], KF[y], Q, C)
    e(f"ds_read_b128 {vr(KF[y])}, v{vK} offset:{(u+3)*TILE}")
    for r in range(7, 12): ex(x, r)
    pv(V0[x], S[x])
    e("s_waitcnt lgkmcnt(2)")
    e(f"ds_read_b128 {vr(V0[x])}, v{vV} offset:{(u+2)*TILE}")
    for r in range(12, 16): ex(x, r)
if DIAG == 2:
    e("s_memtime s[100:101]")
    e("s_waitcnt lgkmcnt(0)")
    e(f"s_mov_b32 m0, s{sI}")
    e("s_nop 0")
    e("v_writelane_b32 v160, s100, m0")
e(f"v_add_u32 v{vK}, {UN*TILE}, v{vK}")
e(f"v_add_u32 v{vV}, {UN*TILE}, v{vV}")
e(f"s_add_u32 s{sI}, s{sI}, 1")
e(f"s_cmp_lt_u32 s{sI}, {64//UN - opt('lastp', 1)}")
e("s_cbranch_scc1 L_att_loop")
e("s_setprio 0")
e(f"s_cmp_lt_u32 s{sI}, {64//UN}")
e("s_cbranch_scc1 L_att_loop")
e("s_setprio 3")
e(f"s_and_b32 s{sT}, s{sWAVE}, 1")
e(f"s_lshl_b32 s{sT}, s{sT}, 7")
pv(V1[1], S[1] + 8)
stamp(6)
e(f"s_add_u32 s{sT}, s{sT}, {L_G}")
e(f"v_and_b32 v12, 31, v{vL}")
e(f"v_lshl_add_u32 v12, v12, 2, s{sT}")
e("ds_read_b32 v14, v12")
e(f"s_mov_b32 s{sT}, {hex(f2u(2.0**86))}")
e("v_mov_b32 v13, 0x207")
e("s_nop 6")
cm("safety check of the stand-in max: l < 2^42 and O finite, else redo with the true row max")
e(f"v_mul_f32 v12, s{sT}, v{O}")
for r in range(8, 16):
    e(f"v_add_f32 v12, v12, abs(v{O+r})")
e("v_cmp_class_f32 vcc, v12, v13")
e(f"v_rcp_f32 v12, v{O}")
e("s_cbranch_vccz L_att_ok")
e(f"s_cmp_eq_u32 s{sRETRY}, 0")
e("s_cbranch_scc1 L_att_truemax")
lab("L_att_ok")
e("s_waitcnt lgkmcnt(0)")
e("v_mul_f32 v12, v12, v14")
for r in range(8, 16):
    e(f"v_mul_f32 v{O+r}, v{O+r}, v12")
for i in range(4):
    e(f"v_cvt_pk_bf16_f32 v{P[0]+i}, v{O+8+2*i}, v{O+9+2*i}")
for i in range(4):
    e(f"v_min_u32 v{P[0]+i}, -2, v{P[0]+i}")
e(f"global_store_dwordx4 v{vL16}, {vr(P[0])}, {sr(sO)} sc1")
lds_signal(C_OD, 12, 13)
stamp(7)
if STAMPS: e("s_memrealtime s[96:97]")
e("s_branch L_fin")
lab("L_att_chk")
e(f"s_cmp_eq_u32 s{sI}, 1")
e("s_cbranch_scc1 L_att_chk1")
e(f"s_lshl1_add_u32 s{sT2}, s{sI}, {0}")
e(f"s_add_u32 s{sT2}, s{sT2}, {C_KA}")
lds_spin("att_chk2", f"s{sT2}", 4, 12, 13)
def h_stores(skip):
    e(f"global_store_dwordx4 v{vL16}, v[128:131], {sr(sO)} sc1")
    e(f"s_cmp_lg_u32 s{sROLE}, 2")
    e(f"s_cbranch_scc1 {skip}")
    for rt in range(2):
        for ks in range(2):
            e(f"global_store_dwordx4 v{vL16}, {vr(132+rt*8+ks*4)}, {sr(sH)} offset:{ks*2048+rt*1024} sc1")
if not HST:
    e(f"s_cmp_lg_u32 s{sI}, 0")
    e("s_cbranch_scc1 L_att_chk_ret")
    h_stores("L_att_chk_ret")
e("s_branch L_att_chk_ret")
lab("L_att_chk1")
cm("H / poison stores of this wave have drained; the last wave to get here publishes H")
e("s_waitcnt vmcnt(0)")
e(f"v_mov_b32 v12, {C_HD}")
e("v_mov_b32 v13, 1")
e("s_mov_b64 exec, 1")
e("ds_add_rtn_u32 v13, v12, v13")
e(f"s_lshl_b32 s{sT}, s{sQB}, 7")
e(f"s_lshl2_add_u32 s{sT}, s{sHG}, s{sT}")
e(f"s_add_u32 s{sT}, s{sT}, {WS_FL}")
e(f"s_add_u32 s{sT2}, s{sTAG}, {hex(TAGC)}")
e("s_waitcnt lgkmcnt(0)")
e("v_cmp_eq_u32 vcc, 7, v13")
e("s_cbranch_vccz L_att_chk1b")
e(f"v_mov_b32 v12, s{sT}")
e(f"v_mov_b32 v13, s{sT2}")
e(f"global_store_dword v12, v13, {sr(sWS)} sc1")
lab("L_att_chk1b")
e("s_mov_b64 exec, -1")
e("s_setprio 1")
e("s_branch L_att_chk_ret")
lab("L_att_truemax")
e(f"s_mov_b32 s{sRETRY}, 1")
e(f"s_mov_b32 s{sCHK}, 0")
e("v_mov_b32 v12, 0xff800000")
e(f"v_mov_b32 v{vK}, v{vL16}")
e(f"s_mov_b32 s{sI}, 0")
lab("L_att_tm")
e(f"ds_read_b128 {vr(KF[0])}, v{vK}")
e(f"v_add_u32 v{vK}, {TILE}, v{vK}")
e("s_waitcnt lgkmcnt(0)")
mfma(S[0], KF[0], Q, None)
e("s_nop 15")
for r in range(0, 16, 2):
    e(f"v_max3_f32 v12, v12, v{S[0]+r}, v{S[0]+r+1}")
e(f"s_add_u32 s{sI}, s{sI}, 1")
e(f"s_cmp_lt_u32 s{sI}, 64")
e("s_cbranch_scc1 L_att_tm")
e(f"ds_read_b128 {vr(KF[0])}, v{vL16}")
att_first_loads()
att_zero()
e("s_branch L_att_setC")

lab("L_g4")
e("s_setprio 3")
for perm in ("quad_perm:[1,0,3,2]", "quad_perm:[2,3,0,1]"):
    if perm.endswith("2]"): e("v_add_f32 v14, v14, v15")
    e("s_nop 1")
    e(f"v_add_f32_dpp v14, v14, v14 {perm} row_mask:0xf bank_mask:0xf")
e(f"v_mul_f32 v14, {hex(f2u(-LOG2E))}, v14")
e("v_exp_f32 v14, v14")
e(f"s_lshl_b32 s{sT}, s{sV}, 6")
e(f"s_add_u32 s{sT}, s{sT}, {L_G}")
e("v_add_f32 v14, 1.0, v14")
e("v_rcp_f32 v14, v14")
e(f"v_and_b32 v12, 60, v{vL}")
e(f"v_add_u32 v12, s{sT}, v12")
e("ds_write_b32 v12, v14")
e("s_barrier")
stamp(2)
e(f"s_cmp_lg_u32 s{sFAST}, 0")
e("s_cbranch_scc1 L_kvfast")
tag_poll("kvpoll", 30, 31, sWS, 4)
for j in range(3):
    dma_lin(sXM, 4, j*16384)
lab("L_kvfast")
stamp(3)
cm("K/V: pieces 0..31 gate the start, 32..63 -> C_KA, 64..129 -> C_KB")
dma_lin(sXM, 4, 49152)
e("s_waitcnt vmcnt(8)")
lds_signal(C_B2, 12, 13)
stamp(4)
e(f"s_lshl_b32 s{sT3}, s{sV}, 14")
dma_lin(sT3, 4, 65536)
e("s_waitcnt vmcnt(4)")
lds_signal(C_KA, 12, 13)
dma_lin(sT3, 12, 65536 + 4096)
e(f"s_cmp_lg_u32 s{sV}, 0")
e("s_cbranch_scc1 L_g5")
dma_kv_one(128 * 1024)
dma_kv_one(129 * 1024)
lab("L_g5")
tr_lane(7, 32, 33)
e(f"s_lshl_b32 s{sT}, s{sQB}, 7")
e(f"s_add_u32 s{sT}, s{sT}, {WS_FL}")
add64(sFL, sWS, off_s=sT)
e(f"s_mul_i32 s{sT}, s{sQB}, {43*4096}")
e(f"s_add_u32 s{sT}, s{sT}, {WS_H}")
add64(sH, sWS, off_s=sT)
e(f"s_lshl2_add_u32 s{sT}, s{sQB}, s{sV}")
e(f"s_lshl_b32 s{sT}, s{sT}, 14")
e(f"s_add_u32 s{sT}, s{sT}, {WS_O}")
add64(sO, sWS, off_s=sT)
cm("weight piece lane offsets v8/v9 (8 rows x 128B -> [rg][ct][4 rows][64B]); ring read address v7")
e(f"v_lshrrev_b32 v32, 5, v{vL}")
e(f"v_bfe_u32 v33, v{vL}, 2, 2")
e("v_lshl_add_u32 v32, v32, 2, v33")
e("v_lshlrev_b32 v8, 10, v32")
e(f"v_bfe_u32 v33, v{vL}, 4, 1")
e("v_lshl_add_u32 v8, v33, 6, v8")
e(f"v_and_b32 v33, 3, v{vL}")
e("v_lshl_add_u32 v8, v33, 4, v8")
e("v_add_u32 v9, 0x2000, v8")
e(f"s_mul_i32 s{sRING}, s{sV}, {R2SZ}")
e(f"s_add_u32 s{sRING}, s{sRING}, {L_UP}")
e(f"v_add_u32 v3, s{sRING}, v7")
cm("slot j of the accumulators holds tile j^v: ct ^= v>>1 (v3/v10), rt ^= v&1 (v11/v7)")
e(f"s_lshr_b32 s{sT}, s{sV}, 1")
e(f"s_lshl_b32 s{sT}, s{sT}, 8")
e(f"v_add_u32 v3, s{sT}, v3")
e("v_xor_b32 v10, 0x100, v3")
e(f"s_and_b32 s{sT}, s{sV}, 1")
e(f"s_lshl_b32 s{sT}, s{sT}, 10")
e(f"v_add_u32 v11, s{sT}, v{vL16}")
e("v_xor_b32 v0, 0x400, v11")
e("s_waitcnt vmcnt(0)")
lds_signal(C_KB, 12, 13)
stamp(5)
if opt("w2t", 1):
    cm("pull this workgroup's share of the w2 slice into L2: rows 8*(64v+l) + (qb&7), v<3")
    e(f"s_and_b32 s{sT}, s{sQB}, 7")
    e(f"s_lshl_b32 s{sT2}, s{sV}, 9")
    e(f"s_add_u32 s{sT}, s{sT}, s{sT2}")
    e(f"v_lshl_add_u32 v12, v{vL}, 3, s{sT}")
    e("v_min_u32 v12, 1375, v12")
    e(f"s_lshl_b32 s{sT}, s{sHG}, 7")
    e(f"v_lshl_add_u32 v12, v12, 10, s{sT}")
    e(f"global_load_dword v14, v12, {sr(sW2)}")
lds_spin("qr", C_QR, 8, 12, 13, slp=4)
GA = [100, 116, 132, 148]
def ring_issue(slot, base):
    e(f"s_add_u32 m0, s{sRING}, {slot*2048}")
    e("s_nop 0")
    e(f"global_load_lds_dwordx4 v8, {sr(base)}")
    e(f"s_add_u32 m0, s{sRING}, {slot*2048+1024}")
    e("s_nop 0")
    e(f"global_load_lds_dwordx4 v9, {sr(base)}")
def ring_read(slot, ct, dst):
    e(f"ds_read_b64_tr_b16 {vr(dst,2)}, v{(3, 10)[ct]} offset:{slot*2048}")
    e(f"ds_read_b64_tr_b16 {vr(dst+2,2)}, v{(3, 10)[ct]} offset:{slot*2048+1024}")
WOF = opt("wof", 1)
def wo_block():
    e("s_waitcnt vmcnt(0)")
    e(f"s_lshl_b32 s{sT}, s{sV}, 17")
    e(f"s_lshl_b32 s{sT2}, s{sHG}, 7")
    e(f"s_add_u32 s{sT}, s{sT}, s{sT2}")
    add64(sP, sWO, off_s=sT)
    for ks in range(3):
        ring_issue(ks, sP)
        add64(sP, sP, imm=16384)
    for ks in range(8):
        e(f"s_waitcnt vmcnt({2*min(2, 7-ks)})")
        ring_read(ks % 3, 0, 36 + 8*ks)
        ring_read(ks % 3, 1, 40 + 8*ks)
        if ks + 3 < 8:
            e("s_waitcnt lgkmcnt(0)")
            ring_issue(ks % 3, sP)
            add64(sP, sP, imm=16384)
    e("s_waitcnt lgkmcnt(0)")
if WOF: wo_block()
stamp(6)
e(f"s_cmp_lg_u32 s{sV}, 0")
e("s_cbranch_scc1 L_g6")
e(f"v_mov_b32 v13, s{sTAG}")
e("s_mov_b64 exec, 1")
cm("this workgroup has read the epoch; the last workgroup to get here advances it")
e("v_mov_b32 v12, 0")
e("v_mov_b32 v14, 1")
e(f"global_atomic_add v15, v12, v14, {sr(sDBG)} sc0 sc1")
e("s_waitcnt vmcnt(0)")
e("v_cmp_eq_u32 vcc, 0xff, v15")
e("s_cbranch_vccz L_g6a")
e(f"v_mov_b32 v12, {WS_NONCE}")
e(f"global_store_dword v12, v13, {sr(sWS)} sc1")
lab("L_g6a")
e("s_mov_b64 exec, -1")
lab("L_g6")
e(f"v_and_b32 v12, 7, v{vL}")
e("v_lshlrev_b32 v12, 2, v12")
tag_poll("hpoll", 12, 13, sFL, 8)
stamp(7)
if opt("ht", 0):
    cm("pull this workgroup's share of H into L2: lines 4*(64*i+l) + (hg&3) of this wave's k range")
    e(f"s_mul_i32 s{sT}, s{sV}, {22*2048}")
    e(f"s_and_b32 s{sT2}, s{sHG}, 3")
    e(f"s_lshl_b32 s{sT2}, s{sT2}, 7")
    e(f"s_add_u32 s{sT}, s{sT}, s{sT2}")
    e(f"v_lshl_add_u32 v12, v{vL}, 9, s{sT}")
    e(f"global_load_dword v164, v12, {sr(sH)} sc1")
    e(f"v_min_u32 v14, 23, v{vL}")
    e(f"v_lshl_add_u32 v12, v14, 9, s{sT}")
    e("v_add_u32 v12, 0x8000, v12")
    e(f"v_min_u32 v12, {43*4096-4}, v12")
    e(f"global_load_dword v165, v12, {sr(sH)} sc1")
HB = [12, 20, 28]
GAF = [4, 164]
e(f"s_mul_i32 s{sT}, s{sV}, 22")
e(f"s_cmp_eq_u32 s{sV}, 3")
e(f"s_cselect_b32 s{sT}, 65, s{sT}")
e(f"s_cmp_ge_u32 s{sV}, 2")
e(f"s_cselect_b32 s{sI}, 21, 22")
e(f"s_sub_u32 s{sN}, s{sI}, 1")
e(f"s_lshl_b32 s{sT2}, s{sT}, 14")
e(f"s_lshl_b32 s{sT3}, s{sHG}, 7")
e(f"s_add_u32 s{sT2}, s{sT2}, s{sT3}")
add64(sP, sW2, off_s=sT2)
e(f"s_lshl_b32 s{sT}, s{sT}, 11")
add64(sP2, sH, off_s=sT)
def g2_h(slot):
    for rt in range(2):
        e(f"global_load_dwordx4 {vr(HB[slot]+4*rt)}, v{(11, 0)[rt]}, {sr(sP2)} sc1")
def g2_adv():
    e(f"s_cmp_lg_u32 s{sN}, 0")
    e(f"s_cselect_b32 s{sT}, 16384, 0")
    e(f"s_cselect_b32 s{sT2}, 2048, 0")
    e(f"s_cselect_b32 s{sT3}, 1, 0")
    e(f"s_sub_u32 s{sN}, s{sN}, s{sT3}")
    add64(sP, sP, off_s=sT)
    add64(sP2, sP2, off_s=sT2)
def g2_step(slot, first):
    def m(ct, rt):
        a = GA[ct*2+rt]
        mfma(a, GAF[ct], HB[slot] + 4*rt, None if first else a)
    e("s_waitcnt vmcnt(8)")
    ring_read(slot, 0, GAF[0])
    e("s_waitcnt lgkmcnt(0)")
    m(0, 0)
    ring_read(slot, 1, GAF[1])
    e("s_waitcnt lgkmcnt(0)")
    m(0, 1)
    e(f"s_add_u32 m0, s{sRING}, {slot*2048}")
    e("s_nop 0")
    e(f"global_load_lds_dwordx4 v8, {sr(sP)}")
    m(1, 0)
    e(f"s_add_u32 m0, s{sRING}, {slot*2048+1024}")
    e("s_nop 0")
    e(f"global_load_lds_dwordx4 v9, {sr(sP)}")
    m(1, 1)
    g2_h(slot)
    g2_adv()
for k in range(3):
    ring_issue(k, sP); g2_h(k); g2_adv()
g2_step(0, True)
e(f"s_sub_u32 s{sI}, s{sI}, 1")
lab("L_g2loop")
for slot in (1, 2, 0):
    g2_step(slot, False)
    e(f"s_sub_u32 s{sI}, s{sI}, 1")
    e(f"s_cmp_eq_u32 s{sI}, 0")
    e("s_cbranch_scc1 L_g2done" if slot != 0 else "s_cbranch_scc0 L_g2loop")
lab("L_g2done")
stampx(8)
if not WOF: wo_block()
e(f"s_and_b32 s{sT}, s{sV}, 1")
e(f"s_lshl_b32 s{sT}, s{sT}, 7")
e(f"s_add_u32 s{sT}, s{sT}, {L_G}")
e(f"v_and_b32 v4, 31, v{vL}")
e(f"v_lshl_add_u32 v4, v4, 2, s{sT}")
e("v_xor_b32 v5, 0x80, v4")
e("ds_read_b32 v6, v4")
e("ds_read_b32 v8, v5")
e("s_waitcnt vmcnt(0) lgkmcnt(0)")
e("v_sub_f32 v6, 1.0, v6")
e("v_sub_f32 v8, 1.0, v8")
e("s_nop 3")
for t in range(4):
    for r in range(0, 16, 2):
        e(f"v_pk_mul_f32 {vr(GA[t]+r,2)}, {vr(GA[t]+r,2)}, {vr(6+2*(t&1),2)} op_sel_hi:[1,0]")
cm("tail: slot j goes to LDS [(j^v)*3 + j-1]*4096 ; v3 = own collection base; v165/v0 = O offsets; v166 = output offset")
e("v_mov_b32 v165, v11")
e(f"s_mul_i32 s{sT3}, s{sV}, 12288")
e(f"v_add_u32 v3, s{sT3}, v{vL16}")
e(f"v_and_b32 v166, 31, v{vL}")
e("v_lshlrev_b32 v166, 10, v166")
e(f"v_lshrrev_b32 v12, 5, v{vL}")
e("v_lshl_add_u32 v166, v12, 4, v166")
e(f"s_and_b32 s{sT}, s{sV}, 1")
e(f"s_lshl1_add_u32 s{sT}, s{sQB}, s{sT}")
e(f"s_lshl_b32 s{sT}, s{sT}, 15")
e(f"s_lshr_b32 s{sT2}, s{sV}, 1")
e(f"s_lshl1_add_u32 s{sT2}, s{sHG}, s{sT2}")
e(f"s_lshl_b32 s{sT2}, s{sT2}, 6")
e(f"s_add_u32 s{sT}, s{sT}, s{sT2}")
add64(sB0, sOUT, off_s=sT)
add64(sP2, sO, imm=8192)
for j in range(1, 4):
    e(f"s_xor_b32 s{sC+j-1 if j < 3 else sN}, s{sV}, {j}")
    e(f"s_mul_i32 s{sC+j-1 if j < 3 else sN}, s{sC+j-1 if j < 3 else sN}, 12288")
OB = 4
for b in range(2):
    if b == 0:
        e(f"s_setprio {opt('b0prio', 0)}")
        lds_spin("od0", C_OD, 4, 164, 167, slp=4)
        stampx(9)
    else:
        e("s_setprio 3")
        lds_spin("od1", C_OD, 8, 164, 167, slp=1)
        stampx(10)
    e(f"s_mov_b32 s{sSPIN}, {SPIN}")
    lab(f"L_opoll{b}")
    for p in range(2):
        for j in range(4):
            e(f"global_load_dwordx4 {vr(OB+16*p+4*j)}, v{(165, 0)[j&1]}, {sr(sO if p == 0 else sP2)} offset:{(j>>1)*2048} sc1")
    e("v_mov_b32 v164, 0")
    for p in range(2):
        e(f"s_waitcnt vmcnt({4-4*p})")
        for r in range(0, 16, 2):
            e(f"v_max3_u32 v164, v164, v{OB+16*p+r}, v{OB+1+16*p+r}")
    e("v_cmp_eq_u32 vcc, -1, v164")
    e(f"s_cbranch_vccz L_ook{b}")
    if b == 0: e("s_sleep 4")
    e(f"s_sub_u32 s{sSPIN}, s{sSPIN}, 1")
    e(f"s_cmp_lg_u32 s{sSPIN}, 0")
    e(f"s_cbranch_scc1 L_opoll{b}")
    lab(f"L_ook{b}")
    if b == 1: stampx(11)
    def chain(j):
        ct, rt = j >> 1, j & 1
        for p in range(2):
            for hh in range(2):
                ks = 4*p + 2*b + hh
                mfma(GA[j], 36 + 8*ks + 4*ct, OB + 16*p + 8*hh + 4*rt, GA[j])
    def wr(j):
        e(f"v_add_u32 v164, s{sC+j-1 if j < 3 else sN}, v{vL16}")
        for qq in range(4):
            e(f"ds_write_b128 v164, {vr(GA[j]+4*qq)} offset:{(j-1)*4096+qq*1024}")
    if b == 0:
        for j in range(4): chain(j)
        add64(sO, sO, imm=4096)
        add64(sP2, sP2, imm=4096)
    else:
        chain(3); chain(2); chain(1)
        e("s_nop 2")
        wr(3)
        chain(0)
        wr(2)
        wr(1)
e("s_waitcnt lgkmcnt(0)")
if opt("bar", 1):
    e("s_barrier")
else:
    lds_signal(C_RED, 4, 5)
    lds_spin("red", C_RED, 4, 4, 5, slp=0)
stampx(12)
for c in range(3):
    for q in range(4):
        e(f"ds_read_b128 {vr(36+16*c+4*q)}, v3 offset:{c*4096+q*1024}")
for c in range(3):
    e(f"s_waitcnt lgkmcnt({8-4*c})")
    for r in range(0, 16, 2):
        e(f"v_pk_add_f32 {vr(GA[0]+r,2)}, {vr(GA[0]+r,2)}, {vr(36+16*c+r,2)}")
for i in range(8):
    e(f"v_cvt_pk_bf16_f32 v{16+i}, v{GA[0]+2*i}, v{GA[0]+1+2*i}")
e("s_nop 1")
for p in range(2):
    e(f"v_permlane32_swap_b32 v{16+4*p}, v{18+4*p}")
    e(f"v_permlane32_swap_b32 v{17+4*p}, v{19+4*p}")
for p in range(2):
    e(f"global_store_dwordx4 v166, {vr(16+4*p)}, {sr(sB0)} offset:{32*p}" + ("", " sc1", " nt")[opt("outf", 0)])
if LITE:
    cm("LITE")
    e("s_waitcnt vmcnt(0)")
    e("s_memrealtime s[72:73]")
    e(f"s_lshl2_add_u32 s{sT}, s2, s{sV}")
    e(f"s_lshl_b32 s{sT}, s{sT}, 3")
    e(f"s_add_u32 s{sT}, s{sT}, {WS_ST}")
    e(f"v_mov_b32 v12, s{sT}")
    e("s_waitcnt lgkmcnt(0)")
    e("v_mov_b32 v14, s70")
    e("v_mov_b32 v15, s72")
    e("s_mov_b64 exec, 1")
    e(f"global_store_dwordx2 v12, v[14:15], {sr(sWS)}")
lab("L_fin")
if opt("dbgt", 0):
    e("s_waitcnt vmcnt(0)")
    e("s_memrealtime s[100:101]")
    e("s_memtime s[98:99]")
    e("s_waitcnt lgkmcnt(0)")
    e("s_mov_b64 exec, 1")
    e("v_mov_b32 v12, 0")
    e("s_not_b32 s3, s70")
    e("v_mov_b32 v13, s3")
    e(f"global_atomic_umax v12, v13, {sr(sDBG)} offset:4 sc1")
    e("v_mov_b32 v14, s100")
    e(f"global_atomic_umax v12, v14, {sr(sDBG)} offset:8 sc1")
    e("v_mov_b32 v15, s70")
    e(f"global_atomic_umax v12, v15, {sr(sDBG)} offset:12 sc1")
    e("s_cmp_lg_u32 s2, 100")
    e("s_cbranch_scc1 L_end")
    e(f"s_cmp_eq_u32 s{sWAVE}, 7")
    e("s_cbranch_scc0 L_dg")
    for k, i in enumerate((9, 1, 2, 4, 7, 13)):
        e(f"s_sub_u32 s3, s{72+2*i}, s72")
        e("v_mov_b32 v13, s3")
        e(f"global_store_dword v12, v13, {sr(sDBG)} offset:{16+4*k}")
    e("s_branch L_end")
    lab("L_dg")
    e(f"s_cmp_eq_u32 s{sWAVE}, 8")
    e("s_cbranch_scc0 L_end")
    for k, i in enumerate((3, 5, 8, 11, 12, 13)):
        e(f"s_sub_u32 s3, s{72+2*i}, s72")
        e("v_mov_b32 v13, s3")
        e(f"global_store_dword v12, v13, {sr(sDBG)} offset:{40+4*k}")
elif STAMPS:
    e("s_waitcnt vmcnt(0)")
    stamp(13)
    e("s_memrealtime s[100:101]")
    e("s_waitcnt lgkmcnt(0)")
    e(f"s_lshl_b32 s{sT}, s2, 4")
    e(f"s_add_u32 s{sT}, s{sT}, s{sWAVE}")
    e(f"s_lshl_b32 s{sT}, s{sT}, 7")
    e(f"s_add_u32 s{sT}, s{sT}, {WS_ST}")
    add64(sP, sWS, off_s=sT)
    if DIAG == 2:
        e(f"v_lshlrev_b32 v12, 2, v{vL}")
        e("s_mov_b64 exec, 0xff")
        e(f"global_store_dword v12, v160, {sr(sP)} offset:64")
    e("v_mov_b32 v12, 0")
    e("s_mov_b64 exec, 1")
    for i in range(16):
        e(f"v_mov_b32 v13, s{70+2*i}")
        e(f"global_store_dword v12, v13, {sr(sP)} offset:{4*i}")
    e("s_waitcnt vmcnt(0)")
lab("L_end")
e("s_endpgm")
lab("L_code_end")

HEAD = open(f"cdna_kernels/{NAME}.s.ref").read().split("; Override launch geometry")[0]
src = HEAD + f"""; @launch grid=(256,1,1) block=(768,1,1) lds={LDS_TOTAL}
.amdgcn_target "amdgcn-amd-amdhsa--gfx950"
.text
.globl {NAME}_kernel
.p2align 8
.type {NAME}_kernel,@function
{NAME}_kernel:
""" + "\n".join(L) + f"""
.section .rodata,"a"
.p2align 6
.amdhsa_kernel {NAME}_kernel
  .amdhsa_next_free_vgpr 168
  .amdhsa_next_free_sgpr 102
  .amdhsa_accum_offset 168
  .amdhsa_group_segment_fixed_size 0
  .amdhsa_kernarg_size 96
  .amdhsa_user_sgpr_count 2
  .amdhsa_user_sgpr_kernarg_segment_ptr 1
  .amdhsa_system_sgpr_workgroup_id_x 1
.end_amdhsa_kernel
"""
open(OUT, "w").write(src)
print("wrote", OUT, len(L), "lines")
```

```python
import sys, struct

NAME = "gated_mix__grouped_kv_mqa__dense_activation_silu__prompt"
STAMPS = "--stamps" in sys.argv
def opt(name, default):
    for a in sys.argv[1:]:
        if a.startswith(f"--{name}="): return int(a.split("=")[1])
    return default
OUT = [a for a in sys.argv[1:] if not a.startswith("--")]
OUT = OUT[0] if OUT else f"cdna_kernels/{NAME}.s"
DIAG = opt("diag", 0)
LITE = opt("lite", 0)

def f2u(x): return struct.unpack("<I", struct.pack("<f", x))[0]
LOG2E = 1.4426950408889634

TILE = 2080
KVBYTES = 64 * TILE
L_X = 66560
L_UP = KVBYTES
L_Q = L_UP
L_KVP = L_UP
L_VT = L_UP + 24576
L_WKV = 32768
R2SZ = 6144
L_G = L_UP + 28672
L_CNT = L_G + 256
L_GW = L_CNT + 256
LDS_TOTAL = L_GW + 1024
C_KA, C_KB, C_KVP, C_GO, C_RED, C_K1, C_HD, C_OD, C_B2, C_QR = [L_CNT + 4*i for i in range(10)]
WS_KV, WS_FL, WS_H, WS_O, WS_ST = 0, 0x30000, 0x40000, 0x600000, 0x900000
WS_KF = WS_FL + 0x1000
WS_NONCE = WS_FL + 0x3000
SPIN = 1 << 16
TAGC = 0x9E3779B1

L = []
def e(s): L.append("    " + s)
def lab(s): L.append(s + ":")
def cm(s): L.append("    ; " + s)
def vr(a, n=4): return f"v[{a}:{a+n-1}]"
def sr(a, n=2): return f"s[{a}:{a+n-1}]"
def stamp(i):
    if STAMPS: e(("s_memrealtime" if opt("rts", 0) else "s_memtime") + f" s[{72+2*i}:{73+2*i}]")

PADS = opt("pads", 1)
def pads_on(name): L.append(f";@PADS {name}")
def pads_off(): L.append(";@PADS off")
def pad_here(name): L.append(f";@PAD {name}")
def touch(name, n, idx_s, ret):
    L.append(f";@TOUCH {name} {n} {idx_s} {ret}")
def stampx(i):
    if DIAG != 4: stamp(i)
sX, sWQ, sWK, sWV, sWO, sW1, sW2, sGW, sOUT, sDBG, sWS = 4, 6, 8, 10, 12, 16, 18, 20, 22, 24, 26
sQB, sHG, sWAVE, sV = 28, 29, 30, 31
sJQ, sXM = 32, 33
sB0, sFL, sADV, sROLE, sRING, sN = 34, 36, 38, 39, 40, 41
sHT, sPROD = 42, 43
sKV, sH, sO = 44, 46, 48
sT, sT2, sT3 = 50, 52, 54
sC, sTAG = 56, 58
sSPIN, sI, sCHK, sRETRY = 60, 61, 62, 63
sWB = 14
sP, sP2 = 66, 68
vL, vL16 = 1, 2

def add64(dst, src, off_s=None, imm=None):
    o = f"s{off_s}" if off_s is not None else hex(imm)
    e(f"s_add_u32 s{dst}, s{src}, {o}")
    e(f"s_addc_u32 s{dst+1}, s{src+1}, 0")
def mfma(d, a, b, c):
    cs = "0" if c is None else vr(c, 16)
    e(f"v_mfma_f32_32x32x16_bf16 {vr(d,16)}, {vr(a)}, {vr(b)}, {cs}")
def lds_spin(name, off, want, va, vt, slp=1):
    e(f"v_mov_b32 v{va}, {off}")
    e(f"s_mov_b32 s{sSPIN}, {SPIN*64}")
    lab(f"L_{name}")
    e(f"ds_read_b32 v{vt}, v{va}")
    e("s_waitcnt lgkmcnt(0)")
    e(f"v_readfirstlane_b32 s{sT}, v{vt}")
    e(f"s_sub_u32 s{sSPIN}, s{sSPIN}, 1")
    e(f"s_cmp_eq_u32 s{sSPIN}, 0")
    e(f"s_cbranch_scc1 L_{name}_ok")
    e(f"s_cmp_ge_u32 s{sT}, {want}")
    e(f"s_cbranch_scc1 L_{name}_ok")
    if slp: e(f"s_sleep {slp}")
    e(f"s_branch L_{name}")
    lab(f"L_{name}_ok")
def lds_signal(off, va, vt):
    e(f"v_mov_b32 v{va}, {off}")
    e(f"v_mov_b32 v{vt}, 1")
    e("s_mov_b64 exec, 1")
    e(f"ds_add_u32 v{va}, v{vt}")
    e("s_mov_b64 exec, -1")
def tag_poll(name, va, vt, base, slp):
    e(f"s_mov_b32 s{sSPIN}, {SPIN}")
    lab(f"L_{name}")
    e(f"global_load_dword v{vt}, v{va}, {sr(base)} sc1")
    e("s_waitcnt vmcnt(0)")
    e(f"v_cmp_ne_u32 vcc, s{sTAG}, v{vt}")
    e(f"s_cbranch_vccz L_{name}_ok")
    e(f"s_sleep {slp}")
    e(f"s_sub_u32 s{sSPIN}, s{sSPIN}, 1")
    e(f"s_cmp_lg_u32 s{sSPIN}, 0")
    e(f"s_cbranch_scc1 L_{name}")
    lab(f"L_{name}_ok")
def dma_lin(first_s, n, first_imm=0):
    for j in range(0, n, 4):
        e(f"s_add_u32 s{sT}, s{first_s}, {first_imm + j*1024}")
        e(f"s_mov_b32 m0, s{sT}")
        add64(sP, sKV, off_s=sT)
        for i in range(4):
            e(f"global_load_lds_dwordx4 v{vL16}, {sr(sP)} offset:{i*1024} sc1")
def dma_kv_one(off):
    e(f"s_mov_b32 m0, {off}")
    add64(sP, sKV, imm=off)
    e(f"global_load_lds_dwordx4 v{vL16}, {sr(sP)} sc1")
def tr_lane(dst, t0, t1):
    e(f"v_bfe_u32 v{dst}, v{vL}, 2, 2")
    e(f"v_bfe_u32 v{t0}, v{vL}, 4, 1")
    e(f"v_and_b32 v{t1}, 3, v{vL}")
    e(f"v_lshlrev_b32 v{dst}, 6, v{dst}")
    e(f"v_lshl_add_u32 v{dst}, v{t0}, 5, v{dst}")
    e(f"v_lshl_add_u32 v{dst}, v{t1}, 3, v{dst}")
    e(f"v_lshrrev_b32 v{t0}, 5, v{vL}")
    e(f"v_lshl_add_u32 v{dst}, v{t0}, 9, v{dst}")
e("s_load_dwordx16 s[4:19], s[0:1], 0")
e("s_load_dwordx8 s[20:27], s[0:1], 64")
e("s_cmp_ge_u32 s2, 256")
e("s_cbranch_scc1 L_end")
if STAMPS or LITE: e("s_memrealtime s[70:71]")
stamp(0)
e("v_lshrrev_b32 v5, 6, v0")
e(f"v_and_b32 v{vL}, 63, v0")
e(f"v_readfirstlane_b32 s{sWAVE}, v5")
e(f"v_lshlrev_b32 v{vL16}, 4, v{vL}")
CPF = opt("cpf", 0)
if CPF:
    cm("pull code into L2 at once: wave w < CPF touches 32 lines from 4096*w on")
    e(f"s_cmp_ge_u32 s{sWAVE}, {CPF}")
    e("s_cbranch_scc1 L_nopf")
    e(f"s_getpc_b64 {sr(sT)}")
    e("v_lshlrev_b32 v3, 6, v0")
    e(f"global_load_dword v4, v3, {sr(sT)}")
    lab("L_nopf")
cm("qb = ((wg&7)>>1)*8 + ((wg>>3)&7) ; hg = (wg&1)*4 + (wg>>6) ; producers: wg < 64")
e(f"s_bfe_u32 s{sT}, s2, 0x20001")
e(f"s_bfe_u32 s{sJQ}, s2, 0x30003")
e(f"s_lshl3_add_u32 s{sQB}, s{sT}, s{sJQ}")
e(f"s_and_b32 s{sT}, s2, 1")
e(f"s_lshr_b32 s{sPROD}, s2, 6")
e(f"s_lshl2_add_u32 s{sHG}, s{sT}, s{sPROD}")
cm("stage order s ^ rot, rot = 2*(qb&7) ^ 4*(hg&3)")
e(f"s_lshl_b32 s{sJQ}, s{sJQ}, 1")
e(f"s_lshl_b32 s{sT}, s{sPROD}, 2")
e(f"s_xor_b32 s{sJQ}, s{sJQ}, s{sT}")
e(f"s_and_b32 s{sJQ}, s{sJQ}, {opt('rot', 6)}")
if PADS:
    e(f"s_cmp_ge_u32 s{sWAVE}, 8")
    e("s_cbranch_scc1 L_gw")
    e(f"s_cmp_eq_u32 s{sHG}, 0")
    e("s_cbranch_scc1 L_t1p")
    touch("ln", 8, sWAVE, "L_aw")
    lab("L_gw")
else:
    e(f"s_cmp_lt_u32 s{sWAVE}, 8")
    e("s_cbranch_scc1 L_aw")

e(f"s_sub_u32 s{sV}, s{sWAVE}, 8")
if opt("gp", 0): e("s_setprio 3")
sWQB, sW1B = 34, 64
cm("X lane offset v20: row 16v + (l>>4) (+4j), 16B unit (l&15) ^ (row&15)")
e(f"v_lshrrev_b32 v16, 4, v{vL}")
e(f"v_and_b32 v17, 15, v{vL}")
e("v_xor_b32 v17, v17, v16")
e("v_lshlrev_b32 v17, 4, v17")
e("v_lshl_add_u32 v20, v16, 10, v17")
for j in range(1, 4):
    e(f"v_xor_b32 v{20+j}, {j*(4096+64)}, v20")
e(f"s_lshl2_add_u32 s{sT2}, s{sQB}, s{sV}")
e(f"s_lshl_b32 s{sT2}, s{sT2}, 14")
e(f"s_lshl_b32 s{sXM}, s{sV}, 12")
cm("row-in-octet v16 = 4*(l>>5) + ((l>>2)&3), v17 = tile bit (l>>4)&1, v18 = (l&3)*16")
e(f"v_lshrrev_b32 v16, 5, v{vL}")
e(f"v_bfe_u32 v19, v{vL}, 2, 2")
e("v_lshl_add_u32 v16, v16, 2, v19")
e(f"s_lshl_b32 s{sT3}, s{sV}, 3")
e(f"v_add_u32 v16, s{sT3}, v16")
e(f"v_bfe_u32 v17, v{vL}, 4, 1")
e(f"v_and_b32 v18, 3, v{vL}")
e("v_lshlrev_b32 v18, 4, v18")
e("v_lshl_add_u32 v24, v17, 6, v18")
e("v_lshl_add_u32 v24, v16, 10, v24")
def x_issue(g):
    e(f"s_xor_b32 s{sT}, s{sJQ}, {4*g}")
    e(f"s_lshr_b32 s{sT}, s{sT}, 2")
    e(f"s_lshl_b32 s{sT}, s{sT}, 8")
    e(f"s_add_u32 m0, s{sXM}, {L_X + g*16384}")
    add64(sP, sP2, off_s=sT)
    for j in range(4):
        if j:
            e(f"s_add_u32 m0, s{sXM}, {L_X + g*16384 + j*1024}")
            e("s_nop 0")
        e(f"global_load_lds_dwordx4 v{20+j}, {sr(sP)}")
e("s_waitcnt lgkmcnt(0)")
stamp(9)
e(f"s_load_dword s{sTAG}, {sr(sWS)}, {hex(WS_NONCE)}")
add64(sP2, sX, off_s=sT2)
x_issue(0)
e(f"s_lshl_b32 s{sT}, s{sHG}, 7")
add64(sWQ, sWQ, off_s=sT)
e(f"s_cmp_eq_u32 s{sHG}, 0")
e("s_cbranch_scc1 L_gprod")
pads_on("ln")
e(f"s_mul_i32 s{sT}, s{sHG}, 384")
e(f"s_sub_u32 s{sT}, s{sT}, 320")
add64(sW1, sW1, off_s=sT)
e(f"v_add_u32 v19, s{sT3}, v19")
e("v_mul_u32_u24 v25, 2752, v19")
e(f"v_lshrrev_b32 v26, 4, v{vL}")
e("v_lshl_add_u32 v25, v26, 6, v25")
e("v_add_u32 v25, v25, v18")
e(f"v_add_u32 v26, {4*2752}, v25")
e("v_mul_u32_u24 v27, 2752, v16")
e("v_lshl_add_u32 v27, v17, 6, v27")
e("v_add3_u32 v27, v27, v18, 64")
e("v_add_u32 v27, 192, v27")
def misc_g():
    cm("one extra request per wave keeps the counts uniform: v0 code prefetch, v1 gate weights, v2/v3 touch w2/wo/out pages")
    e(f"s_cmp_eq_u32 s{sV}, 1")
    e(f"s_cbranch_scc1 L_m1{UID[0]}")
    e(f"s_getpc_b64 {sr(sT)}")
    lab(f"L_pc{UID[0]}")
    e(f"s_sub_u32 s{sT}, s{sT}, L_pc{UID[0]}-{NAME}_kernel")
    e(f"s_subb_u32 s{sT+1}, s{sT+1}, 0")
    e(f"s_andn2_b32 s{sT2}, s2, 7")
    e(f"v_and_b32 v3, 7, v{vL}")
    e(f"v_add_lshl_u32 v3, v3, s{sT2}, 7")
    e(f"v_min_u32 v3, L_code_end-{NAME}_kernel-4, v3")
    e(f"global_load_dword v4, v3, {sr(sT)}")
    e(f"v_and_b32 v12, 15, v{vL}")
    e(f"v_lshlrev_b32 v12, 2, v12")
    e(f"v_add_u32 v12, {L_CNT}, v12")
    e("v_mov_b32 v13, 0")
    e("ds_write_b32 v12, v13")
    e(f"s_branch L_m2{UID[0]}")
    lab(f"L_m1{UID[0]}")
    e(f"s_mov_b32 m0, {L_GW}")
    e("s_nop 0")
    e(f"global_load_lds_dwordx4 v{vL16}, {sr(sGW)}")
    lab(f"L_m2{UID[0]}")
    cm("gate: lane -> row 16v + (l>>2), units 4(l&3)+i ; v10 X address, v11 weight address")
    e(f"v_lshrrev_b32 v12, 2, v{vL}")
    e(f"v_and_b32 v13, 3, v{vL}")
    e("v_lshlrev_b32 v13, 2, v13")
    e("v_xor_b32 v10, v13, v12")
    e("v_lshlrev_b32 v10, 4, v10")
    e("v_lshl_add_u32 v10, v12, 8, v10")
    e(f"s_add_u32 s{sT}, s{sXM}, {L_X}")
    e(f"v_add_u32 v10, s{sT}, v10")
    e(f"s_lshr_b32 s{sT}, s{sJQ}, 2")
    e(f"s_lshl_b32 s{sT}, s{sT}, 8")
    e(f"v_lshl_add_u32 v11, v13, 4, s{sT}")
    e("v_mov_b32 v14, 0")
    e("v_mov_b32 v15, 0")
    e(f"v_and_b32 v30, 31, v{vL}")
    e("v_lshlrev_b32 v30, 7, v30")
    e(f"v_add_u32 v30, {WS_KF}, v30")
    add64(sKV, sWS, imm=WS_KV)
    e("s_waitcnt lgkmcnt(0)")
    e(f"s_add_u32 s{sTAG}, s{sTAG}, {hex(TAGC)}")
    UID[0] += 1
UID = [0]
def gate_part(g):
    if opt("nogate", 0): return
    e(f"v_xor_b32 v12, {g*256}, v11")
    e(f"v_add_u32 v12, {L_GW}, v12")
    for i in range(4):
        if i: e(f"v_xor_b32 v13, {i*16}, v10")
        e(f"ds_read_b128 {vr(32+8*i)}, v{13 if i else 10} offset:{g*16384}")
        e(f"ds_read_b128 {vr(36+8*i)}, v12 offset:{i*16}")
    for i in range(4):
        e(f"s_waitcnt lgkmcnt({6-2*i})")
        for j in range(4):
            e(f"v_dot2_f32_bf16 v{14+(j&1)}, v{32+8*i+j}, v{36+8*i+j}, v{14+(j&1)}")
sFAST = sN
def loader(prod):
    nw = 2 if prod else 4
    tg = "p" if prod else "n"
    def issue(s):
        if s % 4 == 0 and s and not prod: x_issue(s // 4)
        base = (s % 4) * 16384
        e(f"s_xor_b32 s{sT}, s{sJQ}, {s}")
        e(f"s_lshl_b32 s{sT2}, s{sT}, 15")
        e(f"s_add_u32 m0, s{sXM}, {base}")
        add64(sWQB, sWQ, off_s=sT2)
        e(f"global_load_lds_dwordx4 v24, {sr(sWQB)}")
        e(f"s_mul_i32 s{sT2}, s{sT}, {32*2752}")
        e(f"s_add_u32 m0, s{sXM}, {base + 3072}")
        add64(sW1B, sW1, off_s=sT2)
        e(f"global_load_lds_dwordx4 v27, {sr(sW1B)}")
        if not prod:
            for j, r in ((1, 25), (2, 26)):
                e(f"s_add_u32 m0, s{sXM}, {base + j*1024}")
                e("s_nop 0")
                e(f"global_load_lds_dwordx4 v{r}, {sr(sW1B)}")
    cnt = [nw + (4 if s % 4 == 0 and not prod else 0) for s in range(16)]
    if prod:
        misc_g()
        e("s_waitcnt vmcnt(4)")
        issue(0); issue(1)
        e("s_waitcnt vmcnt(4)")
        e("s_barrier")
        e("s_barrier")
        issue(2)
    else:
        issue(0); issue(1); issue(2)
        misc_g()
    for s in range(14):
        later = sum(cnt[s+1:min(16, s + 3)]) + (1 if s in (11, 12) or (s < 3 and not prod) else 0)
        e(f"s_waitcnt vmcnt({later})")
        e("s_barrier")
        if s == 0: stamp(1)
        if s == 10: e(f"global_load_dword v31, v30, {sr(sWS)} sc1")
        if s + 3 < 16: issue(s + 3)
        if s in (4, 6, 9): gate_part((4, 6, 9).index(s))
    cm("K/V already published? then start staging it into the ring slots as they free up")
    e(f"v_cmp_ne_u32 vcc, s{sTAG}, v31")
    e(f"s_mov_b32 s{sFAST}, 0")
    e(f"s_cbranch_vccnz L_slow{tg}")
    e(f"s_mov_b32 s{sFAST}, 1")
    dma_lin(sXM, 4)
    gate_part(3)
    e(f"s_waitcnt vmcnt({cnt[15] + 4})")
    e("s_barrier")
    dma_lin(sXM, 4, 16384)
    e("s_waitcnt vmcnt(8)")
    e("s_barrier")
    dma_lin(sXM, 4, 32768)
    e("s_branch L_g4")
    lab(f"L_slow{tg}")
    e(f"global_load_dword v31, v30, {sr(sWS)} sc1")
    gate_part(3)
    e(f"s_waitcnt vmcnt({cnt[15] + 1})")
    e("s_barrier")
    e("s_waitcnt vmcnt(0)")
    e("s_barrier")
    e(f"v_cmp_ne_u32 vcc, s{sTAG}, v31")
    e("s_cbranch_vccnz L_g4")
    e(f"s_mov_b32 s{sFAST}, 1")
    for j in range(3):
        dma_lin(sXM, 4, j*16384)
    e("s_branch L_g4")
loader(False)
pads_off()
if PADS:
    lab("L_t1p")
    touch("lp", 8, sWAVE, "L_aw")
lab("L_gprod")
pads_on("lp")
cm("producer (hg==0): all of X and [wk|wv] first (wave v: k-steps 8v..8v+7); last piece = w1 tile 0")
e(f"v_lshrrev_b32 v28, 2, v{vL}")
e("v_lshlrev_b32 v28, 5, v28")
e("v_and_b32 v19, 16, v18")
e(f"v_add3_u32 v28, v28, v19, s{sXM}")
e("v_mov_b32 v29, 0")
e(f"v_and_b32 v19, 2, v{vL}")
e("v_cmp_ne_u32 vcc, 0, v19")
e(f"v_mov_b32 v32, s{sWK}")
e(f"v_mov_b32 v33, s{sWK+1}")
e(f"v_mov_b32 v34, s{sWV}")
e(f"v_mov_b32 v35, s{sWV+1}")
e("v_cndmask_b32 v32, v32, v34, vcc")
e("v_cndmask_b32 v33, v33, v35, vcc")
e("v_lshl_add_u64 v[32:33], v[28:29], 0, v[32:33]")
e(f"s_lshl_b32 s{sT3}, s{sXM}, 1")
e(f"s_and_b32 s{sC}, s{sQB}, 7")
e(f"s_mov_b32 s{sW1B+1}, 0")
def wkv_dma(i):
    e(f"s_xor_b32 s{sT}, s{sC}, {i}")
    e(f"s_lshl_b32 s{sW1B}, s{sT}, 9")
    e(f"s_lshl_b32 s{sT}, s{sT}, 10")
    e(f"s_add_u32 s{sT}, s{sT}, s{sT3}")
    e(f"s_add_u32 m0, s{sT}, {L_WKV}")
    e(f"v_lshl_add_u64 v[28:29], v[32:33], 0, {sr(sW1B)}")
    e("global_load_lds_dwordx4 v[28:29], off")
wkv_dma(0)
for g in range(1, 4): x_issue(g)
for i in range(1, 8): wkv_dma(i)
e("v_mul_u32_u24 v27, 2752, v16")
e("v_add_u32 v27, v27, v18")
loader(True)
pads_off()

lab("L_aw")
if PADS: e("s_mov_b64 exec, -1")
if DIAG == 4: stamp(9)
e(f"s_mul_i32 s{sHT}, s{sHG}, 6")
e(f"s_add_u32 s{sHT}, s{sHT}, s{sWAVE}")
e(f"s_sub_u32 s{sHT}, s{sHT}, 7")
e(f"s_mov_b32 s{sROLE}, 2")
e(f"s_cmp_lg_u32 s{sHG}, 0")
e("s_cbranch_scc1 L_r1")
e(f"s_mov_b32 s{sHT}, 0")
e(f"s_cmp_lt_u32 s{sWAVE}, 7")
e(f"s_cselect_b32 s{sROLE}, 3, 2")
lab("L_r1")
e(f"s_cmp_lt_u32 s{sWAVE}, 2")
e(f"s_cselect_b32 s{sROLE}, 0, s{sROLE}")
cm("block base: w<2: 256w ; w<6: 1024+256(w-2) ; else 3072+256(w-6) ; rg stride 1024 for 2<=w<6 else 512")
e(f"s_cselect_b32 s{sT}, 0, 512")
e(f"s_cselect_b32 s{sT2}, 512, 1024" if False else f"s_cselect_b32 s{sT2}, 1, 2")
e(f"s_cmp_ge_u32 s{sWAVE}, 6")
e(f"s_cselect_b32 s{sT}, 1536, s{sT}")
e(f"s_cselect_b32 s{sT2}, 1, s{sT2}")
e(f"s_lshl_b32 s{sT2}, s{sT2}, 9")
e(f"s_lshl_b32 s{sT3}, s{sWAVE}, 8")
e(f"s_add_u32 s{sT}, s{sT}, s{sT3}")
e(f"v_bfe_u32 v6, v{vL}, 2, 2")
e(f"v_bfe_u32 v32, v{vL}, 4, 1")
e(f"v_and_b32 v33, 3, v{vL}")
e("v_lshlrev_b32 v6, 6, v6")
e("v_lshl_add_u32 v6, v32, 5, v6")
e("v_lshl_add_u32 v6, v33, 3, v6")
e(f"v_lshrrev_b32 v32, 5, v{vL}")
e("v_lshl_add_u32 v6, v32, 12, v6")
e(f"v_add_u32 v6, s{sT}, v6")
e(f"v_add_u32 v7, s{sT2}, v6")
cm("X fragment addresses v8..v15 for (s&3, ks)")
e(f"v_and_b32 v33, 31, v{vL}")
e(f"v_and_b32 v34, 15, v{vL}")
e("v_xor_b32 v34, v34, v32")
e("v_lshlrev_b32 v34, 4, v34")
e("v_lshl_add_u32 v8, v33, 8, v34")
e(f"s_and_b32 s{sT}, s{sJQ}, 3")
e(f"s_lshl_b32 s{sT}, s{sT}, 6")
e(f"v_xor_b32 v8, s{sT}, v8")
e(f"v_add_u32 v8, {L_X}, v8")
for j in range(1, 8):
    e(f"v_xor_b32 v{8+j}, {j << 5}, v8")
e("s_waitcnt lgkmcnt(0)")
if DIAG == 4: stamp(10)
e(f"s_load_dword s{sTAG}, {sr(sWS)}, {hex(WS_NONCE)}")
e(f"s_lshl3_add_u32 s{sT}, s{sQB}, s{sHG}")
e(f"s_lshl3_add_u32 s{sT}, s{sT}, s{sWAVE}")
e(f"s_lshl_b32 s{sT}, s{sT}, 10")
e(f"s_add_u32 s{sT}, s{sT}, {WS_O}")
add64(sO, sWS, off_s=sT)
e(f"s_mul_i32 s{sT}, s{sQB}, 43")
e(f"s_add_u32 s{sT}, s{sT}, s{sHT}")
e(f"s_lshl_b32 s{sT}, s{sT}, 12")
e(f"s_add_u32 s{sT}, s{sT}, {WS_H}")
add64(sH, sWS, off_s=sT)
ACC = [64, 80]
FB = [16, 40]
def early_setup():
    for i in range(4):
        e(f"v_mov_b32 v{128+i}, -1")
    cm("V lane address: m>=16: 1024 + h*256 + (m-16)*16 ; m in {0,4}: ones slot ; else out of range (reads 0)")
    e(f"v_and_b32 v150, 15, v{vL}")
    e(f"v_lshrrev_b32 v151, 5, v{vL}")
    e("v_lshlrev_b32 v150, 4, v150")
    e("v_lshl_add_u32 v150, v151, 8, v150")
    e(f"v_and_b32 v151, 27, v{vL}")
    e(f"v_cmp_eq_u32 {sr(sT)}, 0, v151")
    e("v_cmp_lt_u32 vcc, 15, v151")
    e("v_mov_b32 v151, 0x40000")
    e("v_mov_b32 v152, 512")
    e(f"v_cndmask_b32 v151, v151, v152, {sr(sT)}")
    e(f"v_cndmask_b32 v148, v151, v150, vcc")
    e(f"v_add_u32 v148, 1024, v148")
    e(f"s_lshl_b32 s{sT}, s{sWAVE}, 10")
    e(f"s_add_u32 s{sT}, s{sT}, {L_Q}")
    e(f"v_add_u32 v149, s{sT}, v{vL16}")
    e(f"s_mov_b32 s{sRETRY}, 0")
    e("v_mov_b32 v153, 0xdddddddd")
    e(f"s_mov_b32 s{sCHK}, 7")
    for r in range(16):
        e(f"v_mov_b32 v{112+r}, 0")
e(f"s_cmp_lg_u32 s{sHG}, 0")
e("s_cbranch_scc1 L_nokv")
e(f"s_lshr_b32 s{sT2}, s{sWAVE}, 1")
e(f"s_and_b32 s{sT3}, s{sWAVE}, 1")
tr_lane(40, 41, 42)
e(f"s_lshr_b32 s{sT}, s{sJQ}, 2")
e(f"s_xor_b32 s{sT}, s{sT}, s{sT2}")
e(f"s_lshl_b32 s{sT}, s{sT}, 13")
e(f"s_add_u32 s{sT}, s{sT}, {L_WKV}")
e(f"v_add_u32 v40, s{sT}, v40")
e(f"s_and_b32 s{sT}, s{sJQ}, 3")
e(f"s_lshl_b32 s{sT}, s{sT}, 6")
e(f"v_xor_b32 v41, s{sT}, v8")
e(f"s_lshl1_add_u32 s{sT}, s{sT2}, s{sT3}")
e(f"s_lshl_b32 s{sT}, s{sT}, 13")
e(f"v_add_u32 v41, s{sT}, v41")
for j in range(1, 8):
    e(f"v_xor_b32 v{41+j}, {j << 5}, v41")
cm("partial slot (rt*3 + idx), idx = kq - (kq>1)")
e(f"s_cmp_gt_u32 s{sT2}, 1")
e(f"s_subb_u32 s{sT}, s{sT2}, 0")
e(f"s_cmp_eq_u32 s{sT2}, 1")
e(f"s_cselect_b32 s{sT}, 0, s{sT}")
e(f"s_mul_i32 s{sC}, s{sT3}, 3")
e(f"s_add_u32 s{sT}, s{sT}, s{sC}")
e(f"s_lshl_b32 s{sT}, s{sT}, 12")
e(f"s_add_u32 s{sT}, s{sT}, {L_KVP}")
e(f"v_add_u32 v50, s{sT}, v{vL16}")
e(f"s_lshl1_add_u32 s{sT}, s{sQB}, s{sT3}")
e(f"s_mul_i32 s{sT}, s{sT}, {TILE}")
add64(sP, sWS, off_s=sT)
e(f"s_lshl_b32 s{sT}, s{sT3}, 10")
e(f"s_add_u32 s{sT}, s{sT}, {L_VT}")
e(f"v_and_b32 v52, 31, v{vL}")
e(f"v_lshrrev_b32 v55, 5, v{vL}")
e("v_lshlrev_b32 v52, 5, v52")
e("v_lshl_add_u32 v52, v55, 3, v52")
e(f"v_add_u32 v52, s{sT}, v52")
e(f"v_bfe_u32 v53, v{vL}, 2, 2")
e(f"v_bfe_u32 v54, v{vL}, 4, 1")
e("v_lshl_add_u32 v53, v54, 3, v53")
e("v_lshl_add_u32 v53, v55, 4, v53")
e("v_lshlrev_b32 v53, 5, v53")
e(f"v_and_b32 v54, 3, v{vL}")
e("v_lshl_add_u32 v53, v54, 3, v53")
e(f"v_add_u32 v53, s{sT}, v53")
e(f"v_lshl_add_u32 v54, v55, 4, v{vL16}")
e(f"v_and_b32 v55, 1, v{vL}")
e("v_mul_u32_u24 v55, 528, v55")
for i in range(4):
    e(f"v_mov_b32 v{56+i}, 0x3f803f80")
if PADS:
    touch("kv", 8, sWAVE, "L_t3r")
    lab("L_t3r")
    e("s_mov_b64 exec, -1")
e("s_waitcnt lgkmcnt(0)")
e("s_barrier")
stamp(9)
pads_on("kv")
for i in range(8):
    e(f"ds_read_b64_tr_b16 {vr(96+8*(i%5),2)}, v40 offset:{i*1024}")
    e(f"ds_read_b64_tr_b16 {vr(98+8*(i%5),2)}, v40 offset:{i*1024+256}")
    e(f"ds_read_b128 {vr(100+8*(i%5))}, v{41+i}")
    if i >= 3:
        e("s_waitcnt lgkmcnt(9)")
        mfma(64, 96+8*((i-3)%5), 100+8*((i-3)%5), None if i == 3 else 64)
for i in range(5, 8):
    e(f"s_waitcnt lgkmcnt({3*(7-i)})")
    mfma(64, 96+8*(i%5), 100+8*(i%5), 64)
e(f"s_cmp_eq_u32 s{sT2}, 1")
e("s_cbranch_scc1 L_kvf")
e("s_nop 10")
for q in range(4):
    e(f"ds_write_b128 v50, {vr(64+4*q)} offset:{q*1024}")
e("s_waitcnt lgkmcnt(0)")
e("s_barrier")
e("s_branch L_nokv")
lab("L_kvf")
e(f"global_store_dwordx4 v55, v[56:59], {sr(sP)} offset:1536 sc1")
e("s_barrier")
PB = (80, 96, 112)
for c in range(3):
    for q in range(4):
        e(f"ds_read_b128 {vr(PB[c]+4*q)}, v50 offset:{c*4096+q*1024}")
for c in range(3):
    e(f"s_waitcnt lgkmcnt({8-4*c})")
    for r in range(0, 16, 2):
        e(f"v_pk_add_f32 {vr(64+r,2)}, {vr(64+r,2)}, {vr(PB[c]+r,2)}")
for r in range(8, 16, 2):
    e(f"v_cvt_pk_bf16_f32 v{80+r//2}, v{64+r}, v{65+r}")
e("ds_write_b64 v52, v[84:85]")
e("ds_write_b64 v52, v[86:87] offset:16")
e("ds_read_b64_tr_b16 v[88:89], v53")
e("ds_read_b64_tr_b16 v[90:91], v53 offset:128")
for r in range(0, 8, 2):
    e(f"v_cvt_pk_bf16_f32 v{80+r//2}, v{64+r}, v{65+r}")
e(f"global_store_dwordx4 v{vL16}, v[80:83], {sr(sP)} sc1")
e("s_waitcnt lgkmcnt(0)")
e(f"global_store_dwordx4 v54, v[88:91], {sr(sP)} offset:1024 sc1")
stamp(10)
cm("both finishers drain their stores before pipeline barrier 2; wave 2 raises the flag behind it")
e("s_barrier")
early_setup()
e("s_barrier")
e("s_waitcnt vmcnt(0)")
e("s_barrier")
e(f"s_mov_b32 s{sI}, 14")
e(f"s_cmp_lg_u32 s{sT3}, 0")
e("s_cbranch_scc1 L_idle1")
e(f"s_add_u32 s{sT2}, s{sTAG}, {hex(TAGC)}")
e(f"s_lshl_b32 s{sT}, s{sQB}, 7")
e(f"s_add_u32 s{sT}, s{sT}, {WS_KF}")
e(f"v_mov_b32 v20, s{sT}")
e(f"v_mov_b32 v21, s{sT2}")
e("s_mov_b64 exec, 1")
e(f"global_store_dword v20, v21, {sr(sWS)} sc1")
e("s_mov_b64 exec, -1")
stamp(11)
e("s_branch L_idle1")
pads_off()
lab("L_nokv")
early_setup()
for r in range(32):
    e(f"v_mov_b32 v{64+r}, 0")
for r in range(24):
    e(f"v_mov_b32 v{FB[1]+r}, 0")
e(f"s_mov_b32 s{sI}, 4")
e("s_waitcnt lgkmcnt(0)")
if PADS:
    e(f"s_cmp_eq_u32 s{sHG}, 0")
    e("s_cbranch_scc1 L_t2r")
    touch("mid", 8, sWAVE, "L_t2r")
    lab("L_t2r")
    e("s_mov_b64 exec, -1")
e(f"s_cmp_eq_u32 s{sROLE}, 3")
e("s_cbranch_scc1 L_idle")
def p1_mf(st):
    if opt("nomf", 0): return
    for ks in range(2):
        for rt in range(2):
            mfma(ACC[rt], FB[st] + 12*ks, FB[st] + 12*ks + 4 + 4*rt, ACC[rt])
lab("L_p1")
for u in range(4):
    e("s_barrier")
    f = FB[u & 1]
    for ks in range(2 if opt("nomf", 0) < 2 else 0):
        e(f"ds_read_b64_tr_b16 {vr(f+12*ks,2)}, v6 offset:{u*16384+ks*8192}")
        e(f"ds_read_b64_tr_b16 {vr(f+12*ks+2,2)}, v7 offset:{u*16384+ks*8192}")
        for rt in range(2):
            e(f"ds_read_b128 {vr(f+12*ks+4+4*rt)}, v{8+2*u+ks} offset:{rt*8192}")
        e(f"v_add_u32 v{8+2*u+ks}, 0x4000, v{8+2*u+ks}")
    p1_mf((u + 1) & 1)
    e("s_waitcnt lgkmcnt(0)")
e(f"s_sub_u32 s{sI}, s{sI}, 1")
e(f"s_cmp_lg_u32 s{sI}, 0")
e("s_cbranch_scc1 L_p1")
e("s_barrier")
pads_on("mid")
p1_mf(1)
stamp(2)
e(f"s_cmp_eq_u32 s{sROLE}, 0")
e(f"s_mov_b32 s{sC}, {hex(f2u(-LOG2E))}")
e(f"s_cselect_b32 s{sC}, {hex(f2u(0.25*LOG2E))}, s{sC}")
e(f"s_mov_b32 s{sC+1}, s{sC}")
e("s_nop 7")
if opt("sp", 0): e("s_setprio 3")
e("s_cbranch_scc0 L_epiH")
e("s_setprio 3")
for r in range(0, 32, 2):
    e(f"v_pk_mul_f32 {vr(64+r,2)}, {vr(64+r,2)}, {sr(sC)}")
for r in range(0, 32, 2):
    e(f"v_cvt_pk_bf16_f32 v{96+r//2}, v{64+r}, v{65+r}")
e(f"s_lshl_b32 s{sT}, s{sWAVE}, 12")
e(f"s_add_u32 s{sT}, s{sT}, {L_Q}")
e(f"v_add_u32 v32, s{sT}, v{vL16}")
for rt in range(2):
    for i in range(2):
        e(f"ds_write_b128 v32, {vr(96+rt*8+i*4)} offset:{i*2048+rt*1024}")
e("s_waitcnt lgkmcnt(0)")
lds_signal(C_B2, 12, 13)
e("s_branch L_p1done")
lab("L_idle")
e(f"s_mov_b32 s{sI}, 17")
lab("L_idle1")
e("s_barrier")
e(f"s_sub_u32 s{sI}, s{sI}, 1")
e(f"s_cmp_lg_u32 s{sI}, 0")
e("s_cbranch_scc1 L_idle1")
e("s_branch L_p1done")
lab("L_epiH")
for rt in range(2):
    a = ACC[rt]
    for r in range(0, 16, 2):
        e(f"v_pk_mul_f32 {vr(96+r,2)}, {vr(a+r,2)}, {sr(sC)}")
    for r in range(16):
        e(f"v_exp_f32 v{96+r}, v{96+r}")
    for r in range(0, 16, 2):
        e(f"v_pk_add_f32 {vr(96+r,2)}, {vr(96+r,2)}, 1.0 op_sel_hi:[1,0]")
    for r in range(16):
        e(f"v_rcp_f32 v{96+r}, v{96+r}")
    for r in range(0, 16, 2):
        e(f"v_pk_mul_f32 {vr(96+r,2)}, {vr(96+r,2)}, {vr(a+r,2)}")
    for r in range(0, 16, 2):
        e(f"v_cvt_pk_bf16_f32 v{132+rt*8+r//2}, v{96+r}, v{97+r}")
lab("L_p1done")
Q = 16
KF = [20, 24]
V0 = [28, 32]
V1 = [36, 40]
P = [48, 56]
S = [64, 80]
C = 96
O = 112
vK, vV0, vV = 10, 148, 11
def att_zero(full=True):
    if full:
        for r in range(16):
            e(f"v_mov_b32 v{O+r}, 0")
    for r in range(4):
        e(f"v_mov_b32 v{V1[1]+r}, 0")
    for r in range(8, 16):
        e(f"v_mov_b32 v{S[1]+r}, 0")
att_zero(False)
stamp(3)
lds_spin("b2a", C_B2, 6, 12, 13, slp=1)
stamp(4)
if STAMPS: e("s_memrealtime s[88:89]")
e("s_setprio 3")
e(f"ds_read_b128 {vr(Q)}, v149")
e(f"ds_read_b128 {vr(KF[0])}, v{vL16}")
def att_first_loads():
    e(f"ds_read_b128 {vr(KF[1])}, v{vL16} offset:{TILE}")
    e(f"ds_read_b128 {vr(V0[0])}, v{vV0}")
    e(f"ds_read_b128 {vr(V0[1])}, v{vV0} offset:{TILE}")
    e(f"ds_read_b128 {vr(V1[0])}, v{vV0} offset:528")
att_first_loads()
HST = opt("hst", 0)
e("s_waitcnt lgkmcnt(4)")
mfma(S[0], KF[0], Q, None)
lds_signal(C_QR, 12, 13)
if HST:
    cm("poison this wave's O slot and publish its H tile")
    e(f"global_store_dwordx4 v{vL16}, v[128:131], {sr(sO)} sc1")
    e(f"s_cmp_lg_u32 s{sROLE}, 2")
    e("s_cbranch_scc1 L_noh")
    for rt in range(2):
        for ks in range(2):
            e(f"global_store_dwordx4 v{vL16}, {vr(132+rt*8+ks*4)}, {sr(sH)} offset:{ks*2048+rt*1024} sc1")
    lab("L_noh")
e("s_nop 6")
e(f"v_max3_f32 v12, v{S[0]}, v{S[0]+1}, v{S[0]+2}")
for r in range(3, 15, 2):
    e(f"v_max3_f32 v12, v12, v{S[0]+r}, v{S[0]+r+1}")
e(f"v_max_f32 v12, v12, v{S[0]+15}")
lab("L_att_setC")
e("v_mov_b32 v14, v12")
e(f"v_mov_b32 v{vK}, v{vL16}")
e(f"v_mov_b32 v{vV}, v{vV0}")
e("v_permlane32_swap_b32 v12, v14")
e(f"s_mov_b32 s{sI}, 0")
e("s_nop 0")
e("v_max_f32 v12, v12, v14")
for r in range(16):
    e(f"v_sub_f32 v{C+r}, 0, v12")
e("s_waitcnt lgkmcnt(0)")
e("s_nop 0")
mfma(S[0], KF[0], Q, C)
e(f"ds_read_b128 {vr(KF[0])}, v{vL16} offset:{2*TILE}")
e("s_setprio 2")
e("s_nop 9")
stamp(5)
UN = 8
def ex(x, r): e(f"v_exp_f32 v{S[x]+r}, v{S[x]+r}")
def pv(a, b): e(f"v_smfmac_f32_32x32x32_bf16 {vr(O,16)}, {vr(a)}, {vr(b,8)}, v153")
pads_off()
L.append(".p2align 6")
lab("L_att_loop")
for u in range(UN):
    x = u & 1; y = 1 - x
    if u == 5:
        e(f"s_bitcmp1_b32 s{sCHK}, s{sI}")
        e("s_cbranch_scc1 L_att_chk")
        lab("L_att_chk_ret")
    ex(x, 0); ex(x, 1)
    pv(V1[y], S[y] + 8)
    e(f"ds_read_b128 {vr(V1[y])}, v{vV} offset:{(u+1)*TILE+528}")
    for r in range(2, 7): ex(x, r)
    mfma(S[y], KF[y], Q, C)
    pad_here("mid")
    e(f"ds_read_b128 {vr(KF[y])}, v{vK} offset:{(u+3)*TILE}")
    for r in range(7, 12): ex(x, r)
    pv(V0[x], S[x])
    e("s_waitcnt lgkmcnt(2)")
    e(f"ds_read_b128 {vr(V0[x])}, v{vV} offset:{(u+2)*TILE}")
    for r in range(12, 16): ex(x, r)
if DIAG == 2:
    e("s_memtime s[100:101]")
    e("s_waitcnt lgkmcnt(0)")
    e(f"s_mov_b32 m0, s{sI}")
    e("s_nop 0")
    e("v_writelane_b32 v160, s100, m0")
e(f"v_add_u32 v{vK}, {UN*TILE}, v{vK}")
e(f"v_add_u32 v{vV}, {UN*TILE}, v{vV}")
e(f"s_add_u32 s{sI}, s{sI}, 1")
e(f"s_cmp_lt_u32 s{sI}, {64//UN - opt('lastp', 2)}")
e("s_cbranch_scc1 L_att_loop")
e("s_setprio 0")
e(f"s_cmp_lt_u32 s{sI}, {64//UN}")
e("s_cbranch_scc1 L_att_loop")
e("s_setprio 3")
e(f"s_and_b32 s{sT}, s{sWAVE}, 1")
e(f"s_lshl_b32 s{sT}, s{sT}, 7")
pv(V1[1], S[1] + 8)
pads_on("end")
stamp(6)
e(f"s_add_u32 s{sT}, s{sT}, {L_G}")
e(f"v_and_b32 v12, 31, v{vL}")
e(f"v_lshl_add_u32 v12, v12, 2, s{sT}")
e("ds_read_b32 v14, v12")
e(f"s_mov_b32 s{sT}, {hex(f2u(2.0**86))}")
e("v_mov_b32 v13, 0x207")
e("s_nop 6")
cm("safety check of the stand-in max: l < 2^42 and O finite, else redo with the true row max")
e(f"v_mul_f32 v12, s{sT}, v{O}")
for r in range(8, 16):
    e(f"v_add_f32 v12, v12, abs(v{O+r})")
e("v_cmp_class_f32 vcc, v12, v13")
e(f"v_rcp_f32 v12, v{O}")
e("s_cbranch_vccz L_att_ok")
e(f"s_cmp_eq_u32 s{sRETRY}, 0")
e("s_cbranch_scc1 L_att_truemax")
lab("L_att_ok")
e("s_waitcnt lgkmcnt(0)")
e("v_mul_f32 v12, v12, v14")
for r in range(8, 16):
    e(f"v_mul_f32 v{O+r}, v{O+r}, v12")
for i in range(4):
    e(f"v_cvt_pk_bf16_f32 v{P[0]+i}, v{O+8+2*i}, v{O+9+2*i}")
for i in range(4):
    e(f"v_min_u32 v{P[0]+i}, -2, v{P[0]+i}")
e(f"global_store_dwordx4 v{vL16}, {vr(P[0])}, {sr(sO)} sc1")
lds_signal(C_OD, 12, 13)
stamp(7)
if STAMPS: e("s_memrealtime s[96:97]")
e("s_branch L_fin")
pads_on("mid")
lab("L_att_chk")
e(f"s_cmp_eq_u32 s{sI}, 1")
e("s_cbranch_scc1 L_att_chk1")
e(f"s_lshl1_add_u32 s{sT2}, s{sI}, {0}")
e(f"s_add_u32 s{sT2}, s{sT2}, {C_KA}")
lds_spin("att_chk2", f"s{sT2}", 4, 12, 13)
def h_stores(skip):
    e(f"global_store_dwordx4 v{vL16}, v[128:131], {sr(sO)} sc1")
    e(f"s_cmp_lg_u32 s{sROLE}, 2")
    e(f"s_cbranch_scc1 {skip}")
    for rt in range(2):
        for ks in range(2):
            e(f"global_store_dwordx4 v{vL16}, {vr(132+rt*8+ks*4)}, {sr(sH)} offset:{ks*2048+rt*1024} sc1")
if not HST:
    e(f"s_cmp_lg_u32 s{sI}, 0")
    e("s_cbranch_scc1 L_att_chk_ret")
    h_stores("L_att_chk_ret")
e("s_branch L_att_chk_ret")
lab("L_att_chk1")
cm("H / poison stores of this wave have drained; the last wave to get here publishes H")
e("s_waitcnt vmcnt(0)")
e(f"v_mov_b32 v12, {C_HD}")
e("v_mov_b32 v13, 1")
e("s_mov_b64 exec, 1")
e("ds_add_rtn_u32 v13, v12, v13")
e(f"s_lshl_b32 s{sT}, s{sQB}, 7")
e(f"s_lshl2_add_u32 s{sT}, s{sHG}, s{sT}")
e(f"s_add_u32 s{sT}, s{sT}, {WS_FL}")
e(f"s_add_u32 s{sT2}, s{sTAG}, {hex(TAGC)}")
e("s_waitcnt lgkmcnt(0)")
e("v_cmp_eq_u32 vcc, 7, v13")
e("s_cbranch_vccz L_att_chk1b")
e(f"v_mov_b32 v12, s{sT}")
e(f"v_mov_b32 v13, s{sT2}")
e(f"global_store_dword v12, v13, {sr(sWS)} sc1")
lab("L_att_chk1b")
e("s_mov_b64 exec, -1")
e("s_setprio 1")
e("s_branch L_att_chk_ret")
pads_off()
lab("L_att_truemax")
e(f"s_mov_b32 s{sRETRY}, 1")
e(f"s_mov_b32 s{sCHK}, 0")
e("v_mov_b32 v12, 0xff800000")
e(f"v_mov_b32 v{vK}, v{vL16}")
e(f"s_mov_b32 s{sI}, 0")
lab("L_att_tm")
e(f"ds_read_b128 {vr(KF[0])}, v{vK}")
e(f"v_add_u32 v{vK}, {TILE}, v{vK}")
e("s_waitcnt lgkmcnt(0)")
mfma(S[0], KF[0], Q, None)
e("s_nop 15")
for r in range(0, 16, 2):
    e(f"v_max3_f32 v12, v12, v{S[0]+r}, v{S[0]+r+1}")
e(f"s_add_u32 s{sI}, s{sI}, 1")
e(f"s_cmp_lt_u32 s{sI}, 64")
e("s_cbranch_scc1 L_att_tm")
e(f"ds_read_b128 {vr(KF[0])}, v{vL16}")
att_first_loads()
att_zero()
e("s_branch L_att_setC")

lab("L_g4")
pads_on("mid")
e("s_setprio 3")
for perm in ("quad_perm:[1,0,3,2]", "quad_perm:[2,3,0,1]"):
    if perm.endswith("2]"): e("v_add_f32 v14, v14, v15")
    e("s_nop 1")
    e(f"v_add_f32_dpp v14, v14, v14 {perm} row_mask:0xf bank_mask:0xf")
e(f"v_mul_f32 v14, {hex(f2u(-LOG2E))}, v14")
e("v_exp_f32 v14, v14")
e(f"s_lshl_b32 s{sT}, s{sV}, 6")
e(f"s_add_u32 s{sT}, s{sT}, {L_G}")
e("v_add_f32 v14, 1.0, v14")
e("v_rcp_f32 v14, v14")
e(f"v_and_b32 v12, 60, v{vL}")
e(f"v_add_u32 v12, s{sT}, v12")
e("ds_write_b32 v12, v14")
e("s_barrier")
stamp(2)
e(f"s_cmp_lg_u32 s{sFAST}, 0")
e("s_cbranch_scc1 L_kvfast")
tag_poll("kvpoll", 30, 31, sWS, 4)
for j in range(3):
    dma_lin(sXM, 4, j*16384)
lab("L_kvfast")
stamp(3)
cm("K/V: pieces 0..31 gate the start, 32..63 -> C_KA, 64..129 -> C_KB")
dma_lin(sXM, 4, 49152)
e("s_waitcnt vmcnt(8)")
lds_signal(C_B2, 12, 13)
stamp(4)
e(f"s_lshl_b32 s{sT3}, s{sV}, 14")
dma_lin(sT3, 4, 65536)
e("s_waitcnt vmcnt(4)")
lds_signal(C_KA, 12, 13)
dma_lin(sT3, 12, 65536 + 4096)
e(f"s_cmp_lg_u32 s{sV}, 0")
e("s_cbranch_scc1 L_g5")
dma_kv_one(128 * 1024)
dma_kv_one(129 * 1024)
lab("L_g5")
tr_lane(7, 32, 33)
e(f"s_lshl_b32 s{sT}, s{sQB}, 7")
e(f"s_add_u32 s{sT}, s{sT}, {WS_FL}")
add64(sFL, sWS, off_s=sT)
e(f"s_mul_i32 s{sT}, s{sQB}, {43*4096}")
e(f"s_add_u32 s{sT}, s{sT}, {WS_H}")
add64(sH, sWS, off_s=sT)
e(f"s_lshl2_add_u32 s{sT}, s{sQB}, s{sV}")
e(f"s_lshl_b32 s{sT}, s{sT}, 14")
e(f"s_add_u32 s{sT}, s{sT}, {WS_O}")
add64(sO, sWS, off_s=sT)
cm("weight piece lane offsets v8/v9 (8 rows x 128B -> [rg][ct][4 rows][64B]); ring read address v7")
e(f"v_lshrrev_b32 v32, 5, v{vL}")
e(f"v_bfe_u32 v33, v{vL}, 2, 2")
e("v_lshl_add_u32 v32, v32, 2, v33")
e("v_lshlrev_b32 v8, 10, v32")
e(f"v_bfe_u32 v33, v{vL}, 4, 1")
e("v_lshl_add_u32 v8, v33, 6, v8")
e(f"v_and_b32 v33, 3, v{vL}")
e("v_lshl_add_u32 v8, v33, 4, v8")
e("v_add_u32 v9, 0x2000, v8")
e(f"s_mul_i32 s{sRING}, s{sV}, {R2SZ}")
e(f"s_add_u32 s{sRING}, s{sRING}, {L_UP}")
e(f"v_add_u32 v3, s{sRING}, v7")
cm("slot j of the accumulators holds tile j^v: ct ^= v>>1 (v3/v10), rt ^= v&1 (v11/v7)")
e(f"s_lshr_b32 s{sT}, s{sV}, 1")
e(f"s_lshl_b32 s{sT}, s{sT}, 8")
e(f"v_add_u32 v3, s{sT}, v3")
e("v_xor_b32 v10, 0x100, v3")
e(f"s_and_b32 s{sT}, s{sV}, 1")
e(f"s_lshl_b32 s{sT}, s{sT}, 10")
e(f"v_add_u32 v11, s{sT}, v{vL16}")
e("v_xor_b32 v0, 0x400, v11")
e("s_waitcnt vmcnt(0)")
lds_signal(C_KB, 12, 13)
pads_off()
stamp(5)
if opt("w2t", 0):
    cm("pull this workgroup's share of the w2 slice into L2: rows 8*(64v+l) + (qb&7), v<3")
    e(f"s_and_b32 s{sT}, s{sQB}, 7")
    e(f"s_lshl_b32 s{sT2}, s{sV}, 9")
    e(f"s_add_u32 s{sT}, s{sT}, s{sT2}")
    e(f"v_lshl_add_u32 v12, v{vL}, 3, s{sT}")
    e("v_min_u32 v12, 1375, v12")
    e(f"s_lshl_b32 s{sT}, s{sHG}, 7")
    e(f"v_lshl_add_u32 v12, v12, 10, s{sT}")
    e(f"global_load_dword v14, v12, {sr(sW2)}")
lds_spin("qr", C_QR, 8, 12, 13, slp=4)
GA = [100, 116, 132, 148]
def ring_issue(slot, base):
    e(f"s_add_u32 m0, s{sRING}, {slot*2048}")
    e("s_nop 0")
    e(f"global_load_lds_dwordx4 v8, {sr(base)}")
    e(f"s_add_u32 m0, s{sRING}, {slot*2048+1024}")
    e("s_nop 0")
    e(f"global_load_lds_dwordx4 v9, {sr(base)}")
def ring_read(slot, ct, dst):
    e(f"ds_read_b64_tr_b16 {vr(dst,2)}, v{(3, 10)[ct]} offset:{slot*2048}")
    e(f"ds_read_b64_tr_b16 {vr(dst+2,2)}, v{(3, 10)[ct]} offset:{slot*2048+1024}")
WOF = opt("wof", 1)
def wo_block():
    e("s_waitcnt vmcnt(0)")
    e(f"s_lshl_b32 s{sT}, s{sV}, 17")
    e(f"s_lshl_b32 s{sT2}, s{sHG}, 7")
    e(f"s_add_u32 s{sT}, s{sT}, s{sT2}")
    add64(sP, sWO, off_s=sT)
    for ks in range(3):
        ring_issue(ks, sP)
        add64(sP, sP, imm=16384)
    for ks in range(8):
        e(f"s_waitcnt vmcnt({2*min(2, 7-ks)})")
        ring_read(ks % 3, 0, 36 + 8*ks)
        ring_read(ks % 3, 1, 40 + 8*ks)
        if ks + 3 < 8:
            e("s_waitcnt lgkmcnt(0)")
            ring_issue(ks % 3, sP)
            add64(sP, sP, imm=16384)
    e("s_waitcnt lgkmcnt(0)")
if WOF: wo_block()
stamp(6)
e(f"s_cmp_lg_u32 s{sV}, 0")
e("s_cbranch_scc1 L_g6")
e(f"v_mov_b32 v13, s{sTAG}")
e("s_mov_b64 exec, 1")
cm("this workgroup has read the epoch; the last workgroup to get here advances it")
e("v_mov_b32 v12, 0")
e("v_mov_b32 v14, 1")
e(f"global_atomic_add v15, v12, v14, {sr(sDBG)} sc0 sc1")
e("s_waitcnt vmcnt(0)")
e("v_cmp_eq_u32 vcc, 0xff, v15")
e("s_cbranch_vccz L_g6a")
e(f"v_mov_b32 v12, {WS_NONCE}")
e(f"global_store_dword v12, v13, {sr(sWS)} sc1")
lab("L_g6a")
e("s_mov_b64 exec, -1")
lab("L_g6")
if PADS:
    touch("end", 4, sV, "L_t4r")
    lab("L_t4r")
    e("s_mov_b64 exec, -1")
e(f"v_and_b32 v12, 7, v{vL}")
e("v_lshlrev_b32 v12, 2, v12")
tag_poll("hpoll", 12, 13, sFL, 8)
stamp(7)
if opt("ht", 0):
    cm("pull this workgroup's share of H into L2: lines 4*(64*i+l) + (hg&3) of this wave's k range")
    e(f"s_mul_i32 s{sT}, s{sV}, {22*2048}")
    e(f"s_and_b32 s{sT2}, s{sHG}, 3")
    e(f"s_lshl_b32 s{sT2}, s{sT2}, 7")
    e(f"s_add_u32 s{sT}, s{sT}, s{sT2}")
    e(f"v_lshl_add_u32 v12, v{vL}, 9, s{sT}")
    e(f"global_load_dword v164, v12, {sr(sH)} sc1")
    e(f"v_min_u32 v14, 23, v{vL}")
    e(f"v_lshl_add_u32 v12, v14, 9, s{sT}")
    e("v_add_u32 v12, 0x8000, v12")
    e(f"v_min_u32 v12, {43*4096-4}, v12")
    e(f"global_load_dword v165, v12, {sr(sH)} sc1")
HB = [12, 20, 28]
GAF = [4, 164]
e(f"s_mul_i32 s{sT}, s{sV}, 22")
e(f"s_cmp_eq_u32 s{sV}, 3")
e(f"s_cselect_b32 s{sT}, 65, s{sT}")
e(f"s_cmp_ge_u32 s{sV}, 2")
e(f"s_cselect_b32 s{sI}, 21, 22")
e(f"s_sub_u32 s{sN}, s{sI}, 1")
e(f"s_lshl_b32 s{sT2}, s{sT}, 14")
e(f"s_lshl_b32 s{sT3}, s{sHG}, 7")
e(f"s_add_u32 s{sT2}, s{sT2}, s{sT3}")
add64(sP, sW2, off_s=sT2)
e(f"s_lshl_b32 s{sT}, s{sT}, 11")
add64(sP2, sH, off_s=sT)
def g2_h(slot):
    for rt in range(2):
        e(f"global_load_dwordx4 {vr(HB[slot]+4*rt)}, v{(11, 0)[rt]}, {sr(sP2)} sc1")
def g2_adv():
    e(f"s_cmp_lg_u32 s{sN}, 0")
    e(f"s_cselect_b32 s{sT}, 16384, 0")
    e(f"s_cselect_b32 s{sT2}, 2048, 0")
    e(f"s_cselect_b32 s{sT3}, 1, 0")
    e(f"s_sub_u32 s{sN}, s{sN}, s{sT3}")
    add64(sP, sP, off_s=sT)
    add64(sP2, sP2, off_s=sT2)
def g2_step(slot, first):
    def m(ct, rt):
        a = GA[ct*2+rt]
        mfma(a, GAF[ct], HB[slot] + 4*rt, None if first else a)
    e("s_waitcnt vmcnt(8)")
    ring_read(slot, 0, GAF[0])
    e("s_waitcnt lgkmcnt(0)")
    m(0, 0)
    ring_read(slot, 1, GAF[1])
    e("s_waitcnt lgkmcnt(0)")
    m(0, 1)
    e(f"s_add_u32 m0, s{sRING}, {slot*2048}")
    e("s_nop 0")
    e(f"global_load_lds_dwordx4 v8, {sr(sP)}")
    m(1, 0)
    e(f"s_add_u32 m0, s{sRING}, {slot*2048+1024}")
    e("s_nop 0")
    e(f"global_load_lds_dwordx4 v9, {sr(sP)}")
    m(1, 1)
    g2_h(slot)
    g2_adv()
for k in range(3):
    ring_issue(k, sP); g2_h(k); g2_adv()
g2_step(0, True)
e(f"s_sub_u32 s{sI}, s{sI}, 1")
lab("L_g2loop")
for slot in (1, 2, 0):
    g2_step(slot, False)
    e(f"s_sub_u32 s{sI}, s{sI}, 1")
    e(f"s_cmp_eq_u32 s{sI}, 0")
    e("s_cbranch_scc1 L_g2done" if slot != 0 else "s_cbranch_scc0 L_g2loop")
lab("L_g2done")
pads_on("end")
stampx(8)
if not WOF: wo_block()
e(f"s_and_b32 s{sT}, s{sV}, 1")
e(f"s_lshl_b32 s{sT}, s{sT}, 7")
e(f"s_add_u32 s{sT}, s{sT}, {L_G}")
e(f"v_and_b32 v4, 31, v{vL}")
e(f"v_lshl_add_u32 v4, v4, 2, s{sT}")
e("v_xor_b32 v5, 0x80, v4")
e("ds_read_b32 v6, v4")
e("ds_read_b32 v8, v5")
e("s_waitcnt vmcnt(0) lgkmcnt(0)")
e("v_sub_f32 v6, 1.0, v6")
e("v_sub_f32 v8, 1.0, v8")
e("s_nop 3")
for t in range(4):
    for r in range(0, 16, 2):
        e(f"v_pk_mul_f32 {vr(GA[t]+r,2)}, {vr(GA[t]+r,2)}, {vr(6+2*(t&1),2)} op_sel_hi:[1,0]")
cm("tail: slot j goes to LDS [(j^v)*3 + j-1]*4096 ; v3 = own collection base; v165/v0 = O offsets; v166 = output offset")
e("v_mov_b32 v165, v11")
e(f"s_mul_i32 s{sT3}, s{sV}, 12288")
e(f"v_add_u32 v3, s{sT3}, v{vL16}")
e(f"v_and_b32 v166, 31, v{vL}")
e("v_lshlrev_b32 v166, 10, v166")
e(f"v_lshrrev_b32 v12, 5, v{vL}")
e("v_lshl_add_u32 v166, v12, 4, v166")
e(f"s_and_b32 s{sT}, s{sV}, 1")
e(f"s_lshl1_add_u32 s{sT}, s{sQB}, s{sT}")
e(f"s_lshl_b32 s{sT}, s{sT}, 15")
e(f"s_lshr_b32 s{sT2}, s{sV}, 1")
e(f"s_lshl1_add_u32 s{sT2}, s{sHG}, s{sT2}")
e(f"s_lshl_b32 s{sT2}, s{sT2}, 6")
e(f"s_add_u32 s{sT}, s{sT}, s{sT2}")
add64(sB0, sOUT, off_s=sT)
add64(sP2, sO, imm=8192)
for j in range(1, 4):
    e(f"s_xor_b32 s{sC+j-1 if j < 3 else sN}, s{sV}, {j}")
    e(f"s_mul_i32 s{sC+j-1 if j < 3 else sN}, s{sC+j-1 if j < 3 else sN}, 12288")
OB = 4
for b in range(2):
    if b == 0:
        e(f"s_setprio {opt('b0prio', 0)}")
        lds_spin("od0", C_OD, 4, 164, 167, slp=4)
        stampx(9)
    else:
        e("s_setprio 3")
        lds_spin("od1", C_OD, 8, 164, 167, slp=1)
        stampx(10)
    e(f"s_mov_b32 s{sSPIN}, {SPIN}")
    lab(f"L_opoll{b}")
    for p in range(2):
        for j in range(4):
            e(f"global_load_dwordx4 {vr(OB+16*p+4*j)}, v{(165, 0)[j&1]}, {sr(sO if p == 0 else sP2)} offset:{(j>>1)*2048} sc1")
    e("v_mov_b32 v164, 0")
    for p in range(2):
        e(f"s_waitcnt vmcnt({4-4*p})")
        for r in range(0, 16, 2):
            e(f"v_max3_u32 v164, v164, v{OB+16*p+r}, v{OB+1+16*p+r}")
    e("v_cmp_eq_u32 vcc, -1, v164")
    e(f"s_cbranch_vccz L_ook{b}")
    if b == 0: e("s_sleep 4")
    e(f"s_sub_u32 s{sSPIN}, s{sSPIN}, 1")
    e(f"s_cmp_lg_u32 s{sSPIN}, 0")
    e(f"s_cbranch_scc1 L_opoll{b}")
    lab(f"L_ook{b}")
    if b == 1: stampx(11)
    def chain(j):
        ct, rt = j >> 1, j & 1
        for p in range(2):
            for hh in range(2):
                ks = 4*p + 2*b + hh
                mfma(GA[j], 36 + 8*ks + 4*ct, OB + 16*p + 8*hh + 4*rt, GA[j])
    def wr(j):
        e(f"v_add_u32 v164, s{sC+j-1 if j < 3 else sN}, v{vL16}")
        for qq in range(4):
            e(f"ds_write_b128 v164, {vr(GA[j]+4*qq)} offset:{(j-1)*4096+qq*1024}")
    if b == 0:
        for j in range(4): chain(j)
        add64(sO, sO, imm=4096)
        add64(sP2, sP2, imm=4096)
    else:
        chain(3); chain(2); chain(1)
        e("s_nop 2")
        wr(3)
        chain(0)
        wr(2)
        wr(1)
e("s_waitcnt lgkmcnt(0)")
if opt("bar", 1):
    e("s_barrier")
else:
    lds_signal(C_RED, 4, 5)
    lds_spin("red", C_RED, 4, 4, 5, slp=0)
stampx(12)
for c in range(3):
    for q in range(4):
        e(f"ds_read_b128 {vr(36+16*c+4*q)}, v3 offset:{c*4096+q*1024}")
for c in range(3):
    e(f"s_waitcnt lgkmcnt({8-4*c})")
    for r in range(0, 16, 2):
        e(f"v_pk_add_f32 {vr(GA[0]+r,2)}, {vr(GA[0]+r,2)}, {vr(36+16*c+r,2)}")
for i in range(8):
    e(f"v_cvt_pk_bf16_f32 v{16+i}, v{GA[0]+2*i}, v{GA[0]+1+2*i}")
e("s_nop 1")
for p in range(2):
    e(f"v_permlane32_swap_b32 v{16+4*p}, v{18+4*p}")
    e(f"v_permlane32_swap_b32 v{17+4*p}, v{19+4*p}")
for p in range(2):
    e(f"global_store_dwordx4 v166, {vr(16+4*p)}, {sr(sB0)} offset:{32*p}" + ("", " sc1", " nt")[opt("outf", 0)])
pads_off()
if LITE:
    cm("LITE")
    e("s_waitcnt vmcnt(0)")
    e("s_memrealtime s[72:73]")
    e(f"s_lshl2_add_u32 s{sT}, s2, s{sV}")
    e(f"s_lshl_b32 s{sT}, s{sT}, 3")
    e(f"s_add_u32 s{sT}, s{sT}, {WS_ST}")
    e(f"v_mov_b32 v12, s{sT}")
    e("s_waitcnt lgkmcnt(0)")
    e("v_mov_b32 v14, s70")
    e("v_mov_b32 v15, s72")
    e("s_mov_b64 exec, 1")
    e(f"global_store_dwordx2 v12, v[14:15], {sr(sWS)}")
lab("L_fin")
if opt("dbgt", 0):
    e("s_waitcnt vmcnt(0)")
    e("s_memrealtime s[100:101]")
    e("s_memtime s[98:99]")
    e("s_waitcnt lgkmcnt(0)")
    e("s_mov_b64 exec, 1")
    e("v_mov_b32 v12, 0")
    e("s_not_b32 s3, s70")
    e("v_mov_b32 v13, s3")
    e(f"global_atomic_umax v12, v13, {sr(sDBG)} offset:4 sc1")
    e("v_mov_b32 v14, s100")
    e(f"global_atomic_umax v12, v14, {sr(sDBG)} offset:8 sc1")
    e("v_mov_b32 v15, s70")
    e(f"global_atomic_umax v12, v15, {sr(sDBG)} offset:12 sc1")
    e("s_cmp_lg_u32 s2, 100")
    e("s_cbranch_scc1 L_end")
    e(f"s_cmp_eq_u32 s{sWAVE}, 7")
    e("s_cbranch_scc0 L_dg")
    for k, i in enumerate((9, 1, 2, 4, 7, 13)):
        e(f"s_sub_u32 s3, s{72+2*i}, s72")
        e("v_mov_b32 v13, s3")
        e(f"global_store_dword v12, v13, {sr(sDBG)} offset:{16+4*k}")
    e("s_branch L_end")
    lab("L_dg")
    e(f"s_cmp_eq_u32 s{sWAVE}, 8")
    e("s_cbranch_scc0 L_end")
    for k, i in enumerate((3, 5, 8, 11, 12, 13)):
        e(f"s_sub_u32 s3, s{72+2*i}, s72")
        e("v_mov_b32 v13, s3")
        e(f"global_store_dword v12, v13, {sr(sDBG)} offset:{40+4*k}")
elif STAMPS:
    e("s_waitcnt vmcnt(0)")
    stamp(13)
    e("s_memrealtime s[100:101]")
    e("s_waitcnt lgkmcnt(0)")
    e(f"s_lshl_b32 s{sT}, s2, 4")
    e(f"s_add_u32 s{sT}, s{sT}, s{sWAVE}")
    e(f"s_lshl_b32 s{sT}, s{sT}, 7")
    e(f"s_add_u32 s{sT}, s{sT}, {WS_ST}")
    add64(sP, sWS, off_s=sT)
    if DIAG == 2:
        e(f"v_lshlrev_b32 v12, 2, v{vL}")
        e("s_mov_b64 exec, 0xff")
        e(f"global_store_dword v12, v160, {sr(sP)} offset:64")
    e("v_mov_b32 v12, 0")
    e("s_mov_b64 exec, 1")
    for i in range(16):
        e(f"v_mov_b32 v13, s{70+2*i}")
        e(f"global_store_dword v12, v13, {sr(sP)} offset:{4*i}")
    e("s_waitcnt vmcnt(0)")
lab("L_end")
e("s_endpgm")
lab("L_code_end")

def expand_pads(L):
    SP = opt("padsp", 20)
    out, cur, cnt, sets = [], None, 0, {}
    for ln in L:
        if ln.startswith(";@PADS"):
            cur = ln.split()[1]; cur = None if cur == "off" else cur; cnt = SP
            continue
        if ln.startswith(";@PAD "):
            if PADS:
                nm = ln.split()[1]; k = sets.setdefault(nm, 0); sets[nm] += 1
                out.append(f";@P {nm} {k}")
            continue
        is_ins = ln.startswith("    ") and not ln.strip().startswith(";")
        if PADS and cur and is_ins:
            if cnt >= SP:
                k = sets.setdefault(cur, 0); sets[cur] += 1
                out.append(f";@P {cur} {k}"); cnt = 0
            cnt += 1
        out.append(ln)
    info = {}
    for ln in out:
        if ln.startswith(";@TOUCH"):
            _, nm, n, idx, ret = ln.split(); info[nm] = (int(n), ret)
    res = []
    for ln in out:
        if ln.startswith(";@P "):
            _, nm, k = ln.split(); k = int(k); n, ret = info[nm]
            res.append(f"L_pad_{nm}{k}:")
            res.append(f"    s_cbranch_execz " + (f"L_pad_{nm}{k+n}" if k + n < sets[nm] else ret))
        elif ln.startswith(";@TOUCH"):
            _, nm, n, idx, ret = ln.split(); n = int(n)
            res.append("    s_mov_b64 exec, 0")
            m = min(n, sets[nm])
            for w in range(m):
                res.append(f"    s_cmp_eq_u32 s{idx}, {w}")
                res.append(f"    s_cbranch_scc1 L_pad_{nm}{w}")
            res.append(f"    s_branch {ret}")
        else:
            res.append(ln)
    print("pads:", sets)
    return res
L = expand_pads(L)
HEAD = open(f"cdna_kernels/{NAME}.s.ref").read().split("; Override launch geometry")[0]
src = HEAD + f"""; @launch grid=(256,1,1) block=(768,1,1) lds={LDS_TOTAL}
.amdgcn_target "amdgcn-amd-amdhsa--gfx950"
.text
.globl {NAME}_kernel
.p2align 8
.type {NAME}_kernel,@function
{NAME}_kernel:
""" + "\n".join(L) + f"""
.section .rodata,"a"
.p2align 6
.amdhsa_kernel {NAME}_kernel
  .amdhsa_next_free_vgpr 168
  .amdhsa_next_free_sgpr 102
  .amdhsa_accum_offset 168
  .amdhsa_group_segment_fixed_size 0
  .amdhsa_kernarg_size 96
  .amdhsa_user_sgpr_count 2
  .amdhsa_user_sgpr_kernarg_segment_ptr 1
  .amdhsa_system_sgpr_workgroup_id_x 1
.end_amdhsa_kernel
"""
open(OUT, "w").write(src)
print("wrote", OUT, len(L), "lines")
```

```python
import sys, struct

NAME = "gated_mix__grouped_kv_mqa__dense_activation_silu__prompt"
STAMPS = "--stamps" in sys.argv
def opt(name, default):
    for a in sys.argv[1:]:
        if a.startswith(f"--{name}="): return int(a.split("=")[1])
    return default
OUT = [a for a in sys.argv[1:] if not a.startswith("--")]
OUT = OUT[0] if OUT else f"cdna_kernels/{NAME}.s"
DIAG = opt("diag", 0)
LITE = opt("lite", 0)

def f2u(x): return struct.unpack("<I", struct.pack("<f", x))[0]
LOG2E = 1.4426950408889634

TILE = 2080
KVBYTES = 64 * TILE
L_X = 66560
L_UP = KVBYTES
L_Q = L_UP
L_KVP = L_UP
L_VT = L_UP + 24576
L_WKV = 32768
R2SZ = 6144
L_G = L_UP + 28672
L_CNT = L_G + 256
L_GW = L_CNT + 256
LDS_TOTAL = L_GW + 1024
C_KA, C_KB, C_KVP, C_GO, C_RED, C_K1, C_HD, C_OD, C_B2, C_QR = [L_CNT + 4*i for i in range(10)]
WS_KV, WS_FL, WS_H, WS_O, WS_ST = 0, 0x30000, 0x40000, 0x600000, 0x900000
WS_KF = WS_FL + 0x1000
WS_NONCE = WS_FL + 0x3000
SPIN = 1 << 16
TAGC = 0x9E3779B1

L = []
def e(s): L.append("    " + s)
def lab(s): L.append(s + ":")
def cm(s): L.append("    ; " + s)
def vr(a, n=4): return f"v[{a}:{a+n-1}]"
def sr(a, n=2): return f"s[{a}:{a+n-1}]"
def stamp(i):
    if STAMPS: e(("s_memrealtime" if opt("rts", 0) else "s_memtime") + f" s[{72+2*i}:{73+2*i}]")

def stampx(i):
    if DIAG != 4: stamp(i)
sX, sWQ, sWK, sWV, sWO, sW1, sW2, sGW, sOUT, sDBG, sWS = 4, 6, 8, 10, 12, 16, 18, 20, 22, 24, 26
sQB, sHG, sWAVE, sV = 28, 29, 30, 31
sJQ, sXM = 32, 33
sB0, sFL, sADV, sROLE, sRING, sN = 34, 36, 38, 39, 40, 41
sHT, sPROD = 42, 43
sKV, sH, sO = 44, 46, 48
sT, sT2, sT3 = 50, 52, 54
sC, sTAG = 56, 58
sSPIN, sI, sCHK, sRETRY = 60, 61, 62, 63
sWB = 14
sP, sP2 = 66, 68
vL, vL16 = 1, 2

def add64(dst, src, off_s=None, imm=None):
    o = f"s{off_s}" if off_s is not None else hex(imm)
    e(f"s_add_u32 s{dst}, s{src}, {o}")
    e(f"s_addc_u32 s{dst+1}, s{src+1}, 0")
def mfma(d, a, b, c):
    cs = "0" if c is None else vr(c, 16)
    e(f"v_mfma_f32_32x32x16_bf16 {vr(d,16)}, {vr(a)}, {vr(b)}, {cs}")
def lds_spin(name, off, want, va, vt, slp=1):
    e(f"v_mov_b32 v{va}, {off}")
    e(f"s_mov_b32 s{sSPIN}, {SPIN*64}")
    lab(f"L_{name}")
    e(f"ds_read_b32 v{vt}, v{va}")
    e("s_waitcnt lgkmcnt(0)")
    e(f"v_readfirstlane_b32 s{sT}, v{vt}")
    e(f"s_sub_u32 s{sSPIN}, s{sSPIN}, 1")
    e(f"s_cmp_eq_u32 s{sSPIN}, 0")
    e(f"s_cbranch_scc1 L_{name}_ok")
    e(f"s_cmp_ge_u32 s{sT}, {want}")
    e(f"s_cbranch_scc1 L_{name}_ok")
    if slp: e(f"s_sleep {slp}")
    e(f"s_branch L_{name}")
    lab(f"L_{name}_ok")
def lds_signal(off, va, vt):
    e(f"v_mov_b32 v{va}, {off}")
    e(f"v_mov_b32 v{vt}, 1")
    e("s_mov_b64 exec, 1")
    e(f"ds_add_u32 v{va}, v{vt}")
    e("s_mov_b64 exec, -1")
def tag_poll(name, va, vt, base, slp):
    e(f"s_mov_b32 s{sSPIN}, {SPIN}")
    lab(f"L_{name}")
    e(f"global_load_dword v{vt}, v{va}, {sr(base)} sc1")
    e("s_waitcnt vmcnt(0)")
    e(f"v_cmp_ne_u32 vcc, s{sTAG}, v{vt}")
    e(f"s_cbranch_vccz L_{name}_ok")
    e(f"s_sleep {slp}")
    e(f"s_sub_u32 s{sSPIN}, s{sSPIN}, 1")
    e(f"s_cmp_lg_u32 s{sSPIN}, 0")
    e(f"s_cbranch_scc1 L_{name}")
    lab(f"L_{name}_ok")
def dma_lin(first_s, n, first_imm=0):
    for j in range(0, n, 4):
        e(f"s_add_u32 s{sT}, s{first_s}, {first_imm + j*1024}")
        e(f"s_mov_b32 m0, s{sT}")
        add64(sP, sKV, off_s=sT)
        for i in range(4):
            e(f"global_load_lds_dwordx4 v{vL16}, {sr(sP)} offset:{i*1024} sc1")
def dma_kv_one(off):
    e(f"s_mov_b32 m0, {off}")
    add64(sP, sKV, imm=off)
    e(f"global_load_lds_dwordx4 v{vL16}, {sr(sP)} sc1")
def tr_lane(dst, t0, t1):
    e(f"v_bfe_u32 v{dst}, v{vL}, 2, 2")
    e(f"v_bfe_u32 v{t0}, v{vL}, 4, 1")
    e(f"v_and_b32 v{t1}, 3, v{vL}")
    e(f"v_lshlrev_b32 v{dst}, 6, v{dst}")
    e(f"v_lshl_add_u32 v{dst}, v{t0}, 5, v{dst}")
    e(f"v_lshl_add_u32 v{dst}, v{t1}, 3, v{dst}")
    e(f"v_lshrrev_b32 v{t0}, 5, v{vL}")
    e(f"v_lshl_add_u32 v{dst}, v{t0}, 9, v{dst}")
e("s_load_dwordx16 s[4:19], s[0:1], 0")
e("s_load_dwordx8 s[20:27], s[0:1], 64")
e("s_cmp_ge_u32 s2, 256")
e("s_cbranch_scc1 L_end")
if STAMPS or LITE: e("s_memrealtime s[70:71]")
stamp(0)
e("v_lshrrev_b32 v5, 6, v0")
e(f"v_and_b32 v{vL}, 63, v0")
e(f"v_readfirstlane_b32 s{sWAVE}, v5")
e(f"v_lshlrev_b32 v{vL16}, 4, v{vL}")
CPF = opt("cpf", 0)
if CPF:
    cm("pull code into L2 at once: wave w < CPF touches 32 lines from 4096*w on")
    e(f"s_cmp_ge_u32 s{sWAVE}, {CPF}")
    e("s_cbranch_scc1 L_nopf")
    e(f"s_getpc_b64 {sr(sT)}")
    e("v_lshlrev_b32 v3, 6, v0")
    e(f"global_load_dword v4, v3, {sr(sT)}")
    lab("L_nopf")
cm("qb = ((wg&7)>>1)*8 + ((wg>>3)&7) ; hg = (wg&1)*4 + (wg>>6) ; producers: wg < 64")
e(f"s_bfe_u32 s{sT}, s2, 0x20001")
e(f"s_bfe_u32 s{sJQ}, s2, 0x30003")
e(f"s_lshl3_add_u32 s{sQB}, s{sT}, s{sJQ}")
e(f"s_and_b32 s{sT}, s2, 1")
e(f"s_lshr_b32 s{sPROD}, s2, 6")
e(f"s_lshl2_add_u32 s{sHG}, s{sT}, s{sPROD}")
cm("stage order s ^ rot, rot = 2*(qb&7) ^ 4*(hg&3)")
e(f"s_lshl_b32 s{sJQ}, s{sJQ}, 1")
e(f"s_lshl_b32 s{sT}, s{sPROD}, 2")
e(f"s_xor_b32 s{sJQ}, s{sJQ}, s{sT}")
e(f"s_and_b32 s{sJQ}, s{sJQ}, {opt('rot', 6)}")
e(f"s_cmp_lt_u32 s{sWAVE}, 8")
e("s_cbranch_scc1 L_aw")

e(f"s_sub_u32 s{sV}, s{sWAVE}, 8")
if opt("gp", 0): e("s_setprio 3")
sWQB, sW1B = 34, 64
cm("X lane offset v20: row 16v + (l>>4) (+4j), 16B unit (l&15) ^ (row&15)")
e(f"v_lshrrev_b32 v16, 4, v{vL}")
e(f"v_and_b32 v17, 15, v{vL}")
e("v_xor_b32 v17, v17, v16")
e("v_lshlrev_b32 v17, 4, v17")
e("v_lshl_add_u32 v20, v16, 10, v17")
for j in range(1, 4):
    e(f"v_xor_b32 v{20+j}, {j*(4096+64)}, v20")
e(f"s_lshl2_add_u32 s{sT2}, s{sQB}, s{sV}")
e(f"s_lshl_b32 s{sT2}, s{sT2}, 14")
e(f"s_lshl_b32 s{sXM}, s{sV}, 12")
cm("row-in-octet v16 = 4*(l>>5) + ((l>>2)&3), v17 = tile bit (l>>4)&1, v18 = (l&3)*16")
e(f"v_lshrrev_b32 v16, 5, v{vL}")
e(f"v_bfe_u32 v19, v{vL}, 2, 2")
e("v_lshl_add_u32 v16, v16, 2, v19")
e(f"s_lshl_b32 s{sT3}, s{sV}, 3")
e(f"v_add_u32 v16, s{sT3}, v16")
e(f"v_bfe_u32 v17, v{vL}, 4, 1")
e(f"v_and_b32 v18, 3, v{vL}")
e("v_lshlrev_b32 v18, 4, v18")
e("v_lshl_add_u32 v24, v17, 6, v18")
e("v_lshl_add_u32 v24, v16, 10, v24")
def x_issue(g):
    e(f"s_xor_b32 s{sT}, s{sJQ}, {4*g}")
    e(f"s_lshr_b32 s{sT}, s{sT}, 2")
    e(f"s_lshl_b32 s{sT}, s{sT}, 8")
    e(f"s_add_u32 m0, s{sXM}, {L_X + g*16384}")
    add64(sP, sP2, off_s=sT)
    for j in range(4):
        if j:
            e(f"s_add_u32 m0, s{sXM}, {L_X + g*16384 + j*1024}")
            e("s_nop 0")
        e(f"global_load_lds_dwordx4 v{20+j}, {sr(sP)}")
e("s_waitcnt lgkmcnt(0)")
stamp(9)
e(f"s_load_dword s{sTAG}, {sr(sWS)}, {hex(WS_NONCE)}")
add64(sP2, sX, off_s=sT2)
x_issue(0)
e(f"s_lshl_b32 s{sT}, s{sHG}, 7")
add64(sWQ, sWQ, off_s=sT)
e(f"s_cmp_eq_u32 s{sHG}, 0")
e("s_cbranch_scc1 L_gprod")
e(f"s_mul_i32 s{sT}, s{sHG}, 384")
e(f"s_sub_u32 s{sT}, s{sT}, 320")
add64(sW1, sW1, off_s=sT)
e(f"v_add_u32 v19, s{sT3}, v19")
e("v_mul_u32_u24 v25, 2752, v19")
e(f"v_lshrrev_b32 v26, 4, v{vL}")
e("v_lshl_add_u32 v25, v26, 6, v25")
e("v_add_u32 v25, v25, v18")
e(f"v_add_u32 v26, {4*2752}, v25")
e("v_mul_u32_u24 v27, 2752, v16")
e("v_lshl_add_u32 v27, v17, 6, v27")
e("v_add3_u32 v27, v27, v18, 64")
e("v_add_u32 v27, 192, v27")
def misc_g():
    cm("one extra request per wave keeps the counts uniform: v0 code prefetch, v1 gate weights, v2/v3 touch w2/wo/out pages")
    e(f"s_cmp_eq_u32 s{sV}, 1")
    e(f"s_cbranch_scc1 L_m1{UID[0]}")
    e(f"s_getpc_b64 {sr(sT)}")
    lab(f"L_pc{UID[0]}")
    e(f"s_sub_u32 s{sT}, s{sT}, L_pc{UID[0]}-{NAME}_kernel")
    e(f"s_subb_u32 s{sT+1}, s{sT+1}, 0")
    e(f"s_andn2_b32 s{sT2}, s2, 7")
    e(f"v_and_b32 v3, 7, v{vL}")
    e(f"v_add_lshl_u32 v3, v3, s{sT2}, 7")
    e(f"v_min_u32 v3, L_code_end-{NAME}_kernel-4, v3")
    e(f"global_load_dword v4, v3, {sr(sT)}" if not opt("nocp", 0) else f"global_load_dword v4, v{vL16}, {sr(sGW)}")
    e(f"v_and_b32 v12, 15, v{vL}")
    e(f"v_lshlrev_b32 v12, 2, v12")
    e(f"v_add_u32 v12, {L_CNT}, v12")
    e("v_mov_b32 v13, 0")
    e("ds_write_b32 v12, v13")
    e(f"s_branch L_m2{UID[0]}")
    lab(f"L_m1{UID[0]}")
    e(f"s_mov_b32 m0, {L_GW}")
    e("s_nop 0")
    e(f"global_load_lds_dwordx4 v{vL16}, {sr(sGW)}")
    lab(f"L_m2{UID[0]}")
    cm("gate: lane -> row 16v + (l>>2), units 4(l&3)+i ; v10 X address, v11 weight address")
    e(f"v_lshrrev_b32 v12, 2, v{vL}")
    e(f"v_and_b32 v13, 3, v{vL}")
    e("v_lshlrev_b32 v13, 2, v13")
    e("v_xor_b32 v10, v13, v12")
    e("v_lshlrev_b32 v10, 4, v10")
    e("v_lshl_add_u32 v10, v12, 8, v10")
    e(f"s_add_u32 s{sT}, s{sXM}, {L_X}")
    e(f"v_add_u32 v10, s{sT}, v10")
    e(f"s_lshr_b32 s{sT}, s{sJQ}, 2")
    e(f"s_lshl_b32 s{sT}, s{sT}, 8")
    e(f"v_lshl_add_u32 v11, v13, 4, s{sT}")
    e("v_mov_b32 v14, 0")
    e("v_mov_b32 v15, 0")
    e(f"v_and_b32 v30, 31, v{vL}")
    e("v_lshlrev_b32 v30, 7, v30")
    e(f"v_add_u32 v30, {WS_KF}, v30")
    add64(sKV, sWS, imm=WS_KV)
    e("s_waitcnt lgkmcnt(0)")
    e(f"s_add_u32 s{sTAG}, s{sTAG}, {hex(TAGC)}")
    UID[0] += 1
UID = [0]
def gate_part(g):
    if opt("nogate", 0): return
    e(f"v_xor_b32 v12, {g*256}, v11")
    e(f"v_add_u32 v12, {L_GW}, v12")
    for i in range(4):
        if i: e(f"v_xor_b32 v13, {i*16}, v10")
        e(f"ds_read_b128 {vr(32+8*i)}, v{13 if i else 10} offset:{g*16384}")
        e(f"ds_read_b128 {vr(36+8*i)}, v12 offset:{i*16}")
    for i in range(4):
        e(f"s_waitcnt lgkmcnt({6-2*i})")
        for j in range(4):
            e(f"v_dot2_f32_bf16 v{14+(j&1)}, v{32+8*i+j}, v{36+8*i+j}, v{14+(j&1)}")
sFAST = sN
def loader(prod):
    nw = 2 if prod else 4
    tg = "p" if prod else "n"
    def issue(s):
        if s % 4 == 0 and s and not prod: x_issue(s // 4)
        base = (s % 4) * 16384
        e(f"s_xor_b32 s{sT}, s{sJQ}, {s}")
        e(f"s_lshl_b32 s{sT2}, s{sT}, 15")
        e(f"s_add_u32 m0, s{sXM}, {base}")
        add64(sWQB, sWQ, off_s=sT2)
        e(f"global_load_lds_dwordx4 v24, {sr(sWQB)}")
        e(f"s_mul_i32 s{sT2}, s{sT}, {32*2752}")
        e(f"s_add_u32 m0, s{sXM}, {base + 3072}")
        add64(sW1B, sW1, off_s=sT2)
        e(f"global_load_lds_dwordx4 v27, {sr(sW1B)}")
        if not prod:
            for j, r in ((1, 25), (2, 26)):
                e(f"s_add_u32 m0, s{sXM}, {base + j*1024}")
                e("s_nop 0")
                e(f"global_load_lds_dwordx4 v{r}, {sr(sW1B)}")
    cnt = [nw + (4 if s % 4 == 0 and not prod else 0) for s in range(16)]
    if prod:
        misc_g()
        e("s_waitcnt vmcnt(4)")
        issue(0); issue(1)
        e("s_waitcnt vmcnt(4)")
        e("s_barrier")
        e("s_barrier")
        issue(2)
    else:
        issue(0); issue(1); issue(2)
        misc_g()
    for s in range(14):
        later = sum(cnt[s+1:min(16, s + 3)]) + (1 if s in (11, 12) or (s < 3 and not prod) else 0)
        e(f"s_waitcnt vmcnt({later})")
        e("s_barrier")
        if s == 0: stamp(1)
        if s == 10: e(f"global_load_dword v31, v30, {sr(sWS)} sc1")
        if s + 3 < 16: issue(s + 3)
        if s in (4, 6, 9): gate_part((4, 6, 9).index(s))
    cm("K/V already published? then start staging it into the ring slots as they free up")
    e(f"v_cmp_ne_u32 vcc, s{sTAG}, v31")
    e(f"s_mov_b32 s{sFAST}, 0")
    e(f"s_cbranch_vccnz L_slow{tg}")
    e(f"s_mov_b32 s{sFAST}, 1")
    dma_lin(sXM, 4)
    gate_part(3)
    e(f"s_waitcnt vmcnt({cnt[15] + 4})")
    e("s_barrier")
    dma_lin(sXM, 4, 16384)
    e("s_waitcnt vmcnt(8)")
    e("s_barrier")
    dma_lin(sXM, 4, 32768)
    e("s_branch L_g4")
    lab(f"L_slow{tg}")
    e(f"global_load_dword v31, v30, {sr(sWS)} sc1")
    gate_part(3)
    e(f"s_waitcnt vmcnt({cnt[15] + 1})")
    e("s_barrier")
    e("s_waitcnt vmcnt(0)")
    e("s_barrier")
    e(f"v_cmp_ne_u32 vcc, s{sTAG}, v31")
    e("s_cbranch_vccnz L_g4")
    e(f"s_mov_b32 s{sFAST}, 1")
    for j in range(3):
        dma_lin(sXM, 4, j*16384)
    e("s_branch L_g4")
loader(False)
if opt("gap", 0): L.append(".p2align 12, 0")
lab("L_gprod")
cm("producer (hg==0): all of X and [wk|wv] first (wave v: k-steps 8v..8v+7); last piece = w1 tile 0")
e(f"v_lshrrev_b32 v28, 2, v{vL}")
e("v_lshlrev_b32 v28, 5, v28")
e("v_and_b32 v19, 16, v18")
e(f"v_add3_u32 v28, v28, v19, s{sXM}")
e("v_mov_b32 v29, 0")
e(f"v_and_b32 v19, 2, v{vL}")
e("v_cmp_ne_u32 vcc, 0, v19")
e(f"v_mov_b32 v32, s{sWK}")
e(f"v_mov_b32 v33, s{sWK+1}")
e(f"v_mov_b32 v34, s{sWV}")
e(f"v_mov_b32 v35, s{sWV+1}")
e("v_cndmask_b32 v32, v32, v34, vcc")
e("v_cndmask_b32 v33, v33, v35, vcc")
e("v_lshl_add_u64 v[32:33], v[28:29], 0, v[32:33]")
e(f"s_lshl_b32 s{sT3}, s{sXM}, 1")
e(f"s_and_b32 s{sC}, s{sQB}, 7")
e(f"s_mov_b32 s{sW1B+1}, 0")
def wkv_dma(i):
    e(f"s_xor_b32 s{sT}, s{sC}, {i}")
    e(f"s_lshl_b32 s{sW1B}, s{sT}, 9")
    e(f"s_lshl_b32 s{sT}, s{sT}, 10")
    e(f"s_add_u32 s{sT}, s{sT}, s{sT3}")
    e(f"s_add_u32 m0, s{sT}, {L_WKV}")
    e(f"v_lshl_add_u64 v[28:29], v[32:33], 0, {sr(sW1B)}")
    e("global_load_lds_dwordx4 v[28:29], off")
wkv_dma(0)
for g in range(1, 4): x_issue(g)
for i in range(1, 8): wkv_dma(i)
e("v_mul_u32_u24 v27, 2752, v16")
e("v_add_u32 v27, v27, v18")
loader(True)

if opt("gap", 0): L.append(".p2align 12, 0")
lab("L_aw")
if DIAG == 4: stamp(9)
e(f"s_mul_i32 s{sHT}, s{sHG}, 6")
e(f"s_add_u32 s{sHT}, s{sHT}, s{sWAVE}")
e(f"s_sub_u32 s{sHT}, s{sHT}, 7")
e(f"s_mov_b32 s{sROLE}, 2")
e(f"s_cmp_lg_u32 s{sHG}, 0")
e("s_cbranch_scc1 L_r1")
e(f"s_mov_b32 s{sHT}, 0")
e(f"s_cmp_lt_u32 s{sWAVE}, 7")
e(f"s_cselect_b32 s{sROLE}, 3, 2")
lab("L_r1")
e(f"s_cmp_lt_u32 s{sWAVE}, 2")
e(f"s_cselect_b32 s{sROLE}, 0, s{sROLE}")
cm("block base: w<2: 256w ; w<6: 1024+256(w-2) ; else 3072+256(w-6) ; rg stride 1024 for 2<=w<6 else 512")
e(f"s_cselect_b32 s{sT}, 0, 512")
e(f"s_cselect_b32 s{sT2}, 512, 1024" if False else f"s_cselect_b32 s{sT2}, 1, 2")
e(f"s_cmp_ge_u32 s{sWAVE}, 6")
e(f"s_cselect_b32 s{sT}, 1536, s{sT}")
e(f"s_cselect_b32 s{sT2}, 1, s{sT2}")
e(f"s_lshl_b32 s{sT2}, s{sT2}, 9")
e(f"s_lshl_b32 s{sT3}, s{sWAVE}, 8")
e(f"s_add_u32 s{sT}, s{sT}, s{sT3}")
e(f"v_bfe_u32 v6, v{vL}, 2, 2")
e(f"v_bfe_u32 v32, v{vL}, 4, 1")
e(f"v_and_b32 v33, 3, v{vL}")
e("v_lshlrev_b32 v6, 6, v6")
e("v_lshl_add_u32 v6, v32, 5, v6")
e("v_lshl_add_u32 v6, v33, 3, v6")
e(f"v_lshrrev_b32 v32, 5, v{vL}")
e("v_lshl_add_u32 v6, v32, 12, v6")
e(f"v_add_u32 v6, s{sT}, v6")
e(f"v_add_u32 v7, s{sT2}, v6")
cm("X fragment addresses v8..v15 for (s&3, ks)")
e(f"v_and_b32 v33, 31, v{vL}")
e(f"v_and_b32 v34, 15, v{vL}")
e("v_xor_b32 v34, v34, v32")
e("v_lshlrev_b32 v34, 4, v34")
e("v_lshl_add_u32 v8, v33, 8, v34")
e(f"s_and_b32 s{sT}, s{sJQ}, 3")
e(f"s_lshl_b32 s{sT}, s{sT}, 6")
e(f"v_xor_b32 v8, s{sT}, v8")
e(f"v_add_u32 v8, {L_X}, v8")
for j in range(1, 8):
    e(f"v_xor_b32 v{8+j}, {j << 5}, v8")
e("s_waitcnt lgkmcnt(0)")
if DIAG == 4: stamp(10)
e(f"s_load_dword s{sTAG}, {sr(sWS)}, {hex(WS_NONCE)}")
e(f"s_lshl3_add_u32 s{sT}, s{sQB}, s{sHG}")
e(f"s_lshl3_add_u32 s{sT}, s{sT}, s{sWAVE}")
e(f"s_lshl_b32 s{sT}, s{sT}, 10")
e(f"s_add_u32 s{sT}, s{sT}, {WS_O}")
add64(sO, sWS, off_s=sT)
e(f"s_mul_i32 s{sT}, s{sQB}, 43")
e(f"s_add_u32 s{sT}, s{sT}, s{sHT}")
e(f"s_lshl_b32 s{sT}, s{sT}, 12")
e(f"s_add_u32 s{sT}, s{sT}, {WS_H}")
add64(sH, sWS, off_s=sT)
ACC = [64, 80]
FB = [16, 40]
def early_setup():
    for i in range(4):
        e(f"v_mov_b32 v{128+i}, -1")
    cm("V lane address: m>=16: 1024 + h*256 + (m-16)*16 ; m in {0,4}: ones slot ; else out of range (reads 0)")
    e(f"v_and_b32 v150, 15, v{vL}")
    e(f"v_lshrrev_b32 v151, 5, v{vL}")
    e("v_lshlrev_b32 v150, 4, v150")
    e("v_lshl_add_u32 v150, v151, 8, v150")
    e(f"v_and_b32 v151, 27, v{vL}")
    e(f"v_cmp_eq_u32 {sr(sT)}, 0, v151")
    e("v_cmp_lt_u32 vcc, 15, v151")
    e("v_mov_b32 v151, 0x40000")
    e("v_mov_b32 v152, 512")
    e(f"v_cndmask_b32 v151, v151, v152, {sr(sT)}")
    e(f"v_cndmask_b32 v148, v151, v150, vcc")
    e(f"v_add_u32 v148, 1024, v148")
    e(f"s_lshl_b32 s{sT}, s{sWAVE}, 10")
    e(f"s_add_u32 s{sT}, s{sT}, {L_Q}")
    e(f"v_add_u32 v149, s{sT}, v{vL16}")
    e(f"s_mov_b32 s{sRETRY}, 0")
    e("v_mov_b32 v153, 0xdddddddd")
    e(f"s_mov_b32 s{sCHK}, 7")
    for r in range(16):
        e(f"v_mov_b32 v{112+r}, 0")
e(f"s_cmp_lg_u32 s{sHG}, 0")
e("s_cbranch_scc1 L_nokv")
e(f"s_lshr_b32 s{sT2}, s{sWAVE}, 1")
e(f"s_and_b32 s{sT3}, s{sWAVE}, 1")
tr_lane(40, 41, 42)
e(f"s_lshr_b32 s{sT}, s{sJQ}, 2")
e(f"s_xor_b32 s{sT}, s{sT}, s{sT2}")
e(f"s_lshl_b32 s{sT}, s{sT}, 13")
e(f"s_add_u32 s{sT}, s{sT}, {L_WKV}")
e(f"v_add_u32 v40, s{sT}, v40")
e(f"s_and_b32 s{sT}, s{sJQ}, 3")
e(f"s_lshl_b32 s{sT}, s{sT}, 6")
e(f"v_xor_b32 v41, s{sT}, v8")
e(f"s_lshl1_add_u32 s{sT}, s{sT2}, s{sT3}")
e(f"s_lshl_b32 s{sT}, s{sT}, 13")
e(f"v_add_u32 v41, s{sT}, v41")
for j in range(1, 8):
    e(f"v_xor_b32 v{41+j}, {j << 5}, v41")
cm("partial slot (rt*3 + idx), idx = kq - (kq>1)")
e(f"s_cmp_gt_u32 s{sT2}, 1")
e(f"s_subb_u32 s{sT}, s{sT2}, 0")
e(f"s_cmp_eq_u32 s{sT2}, 1")
e(f"s_cselect_b32 s{sT}, 0, s{sT}")
e(f"s_mul_i32 s{sC}, s{sT3}, 3")
e(f"s_add_u32 s{sT}, s{sT}, s{sC}")
e(f"s_lshl_b32 s{sT}, s{sT}, 12")
e(f"s_add_u32 s{sT}, s{sT}, {L_KVP}")
e(f"v_add_u32 v50, s{sT}, v{vL16}")
e(f"s_lshl1_add_u32 s{sT}, s{sQB}, s{sT3}")
e(f"s_mul_i32 s{sT}, s{sT}, {TILE}")
add64(sP, sWS, off_s=sT)
e(f"s_lshl_b32 s{sT}, s{sT3}, 10")
e(f"s_add_u32 s{sT}, s{sT}, {L_VT}")
e(f"v_and_b32 v52, 31, v{vL}")
e(f"v_lshrrev_b32 v55, 5, v{vL}")
e("v_lshlrev_b32 v52, 5, v52")
e("v_lshl_add_u32 v52, v55, 3, v52")
e(f"v_add_u32 v52, s{sT}, v52")
e(f"v_bfe_u32 v53, v{vL}, 2, 2")
e(f"v_bfe_u32 v54, v{vL}, 4, 1")
e("v_lshl_add_u32 v53, v54, 3, v53")
e("v_lshl_add_u32 v53, v55, 4, v53")
e("v_lshlrev_b32 v53, 5, v53")
e(f"v_and_b32 v54, 3, v{vL}")
e("v_lshl_add_u32 v53, v54, 3, v53")
e(f"v_add_u32 v53, s{sT}, v53")
e(f"v_lshl_add_u32 v54, v55, 4, v{vL16}")
e(f"v_and_b32 v55, 1, v{vL}")
e("v_mul_u32_u24 v55, 528, v55")
for i in range(4):
    e(f"v_mov_b32 v{56+i}, 0x3f803f80")
e("s_waitcnt lgkmcnt(0)")
e("s_barrier")
stamp(9)
for i in range(8):
    e(f"ds_read_b64_tr_b16 {vr(96+8*(i%5),2)}, v40 offset:{i*1024}")
    e(f"ds_read_b64_tr_b16 {vr(98+8*(i%5),2)}, v40 offset:{i*1024+256}")
    e(f"ds_read_b128 {vr(100+8*(i%5))}, v{41+i}")
    if i >= 3:
        e("s_waitcnt lgkmcnt(9)")
        mfma(64, 96+8*((i-3)%5), 100+8*((i-3)%5), None if i == 3 else 64)
for i in range(5, 8):
    e(f"s_waitcnt lgkmcnt({3*(7-i)})")
    mfma(64, 96+8*(i%5), 100+8*(i%5), 64)
e(f"s_cmp_eq_u32 s{sT2}, 1")
e("s_cbranch_scc1 L_kvf")
e("s_nop 10")
for q in range(4):
    e(f"ds_write_b128 v50, {vr(64+4*q)} offset:{q*1024}")
e("s_waitcnt lgkmcnt(0)")
e("s_barrier")
e("s_branch L_nokv")
lab("L_kvf")
e(f"global_store_dwordx4 v55, v[56:59], {sr(sP)} offset:1536 sc1")
e("s_barrier")
PB = (80, 96, 112)
for c in range(3):
    for q in range(4):
        e(f"ds_read_b128 {vr(PB[c]+4*q)}, v50 offset:{c*4096+q*1024}")
for c in range(3):
    e(f"s_waitcnt lgkmcnt({8-4*c})")
    for r in range(0, 16, 2):
        e(f"v_pk_add_f32 {vr(64+r,2)}, {vr(64+r,2)}, {vr(PB[c]+r,2)}")
for r in range(8, 16, 2):
    e(f"v_cvt_pk_bf16_f32 v{80+r//2}, v{64+r}, v{65+r}")
e("ds_write_b64 v52, v[84:85]")
e("ds_write_b64 v52, v[86:87] offset:16")
e("ds_read_b64_tr_b16 v[88:89], v53")
e("ds_read_b64_tr_b16 v[90:91], v53 offset:128")
for r in range(0, 8, 2):
    e(f"v_cvt_pk_bf16_f32 v{80+r//2}, v{64+r}, v{65+r}")
e(f"global_store_dwordx4 v{vL16}, v[80:83], {sr(sP)} sc1")
e("s_waitcnt lgkmcnt(0)")
e(f"global_store_dwordx4 v54, v[88:91], {sr(sP)} offset:1024 sc1")
stamp(10)
cm("both finishers drain their stores before pipeline barrier 2; wave 2 raises the flag behind it")
e("s_barrier")
early_setup()
e("s_barrier")
e("s_waitcnt vmcnt(0)")
e("s_barrier")
e(f"s_mov_b32 s{sI}, 14")
e(f"s_cmp_lg_u32 s{sT3}, 0")
e("s_cbranch_scc1 L_idle1")
e(f"s_add_u32 s{sT2}, s{sTAG}, {hex(TAGC)}")
e(f"s_lshl_b32 s{sT}, s{sQB}, 7")
e(f"s_add_u32 s{sT}, s{sT}, {WS_KF}")
e(f"v_mov_b32 v20, s{sT}")
e(f"v_mov_b32 v21, s{sT2}")
e("s_mov_b64 exec, 1")
e(f"global_store_dword v20, v21, {sr(sWS)} sc1")
e("s_mov_b64 exec, -1")
stamp(11)
e("s_branch L_idle1")
lab("L_nokv")
early_setup()
for r in range(32):
    e(f"v_mov_b32 v{64+r}, 0")
for r in range(24):
    e(f"v_mov_b32 v{FB[1]+r}, 0")
e(f"s_mov_b32 s{sI}, 4")
e("s_waitcnt lgkmcnt(0)")
e(f"s_cmp_eq_u32 s{sROLE}, 3")
e("s_cbranch_scc1 L_idle")
def p1_mf(st):
    if opt("nomf", 0): return
    for ks in range(2):
        for rt in range(2):
            mfma(ACC[rt], FB[st] + 12*ks, FB[st] + 12*ks + 4 + 4*rt, ACC[rt])
lab("L_p1")
for u in range(4):
    e("s_barrier")
    f = FB[u & 1]
    for ks in range(2 if opt("nomf", 0) < 2 else 0):
        e(f"ds_read_b64_tr_b16 {vr(f+12*ks,2)}, v6 offset:{u*16384+ks*8192}")
        e(f"ds_read_b64_tr_b16 {vr(f+12*ks+2,2)}, v7 offset:{u*16384+ks*8192}")
        for rt in range(2):
            e(f"ds_read_b128 {vr(f+12*ks+4+4*rt)}, v{8+2*u+ks} offset:{rt*8192}")
        e(f"v_add_u32 v{8+2*u+ks}, 0x4000, v{8+2*u+ks}")
    p1_mf((u + 1) & 1)
    e("s_waitcnt lgkmcnt(0)")
e(f"s_sub_u32 s{sI}, s{sI}, 1")
e(f"s_cmp_lg_u32 s{sI}, 0")
e("s_cbranch_scc1 L_p1")
e("s_barrier")
p1_mf(1)
stamp(2)
e(f"s_cmp_eq_u32 s{sROLE}, 0")
e(f"s_mov_b32 s{sC}, {hex(f2u(-LOG2E))}")
e(f"s_cselect_b32 s{sC}, {hex(f2u(0.25*LOG2E))}, s{sC}")
e(f"s_mov_b32 s{sC+1}, s{sC}")
e("s_nop 7")
if opt("sp", 0): e("s_setprio 3")
e("s_cbranch_scc0 L_epiH")
e("s_setprio 3")
for r in range(0, 32, 2):
    e(f"v_pk_mul_f32 {vr(64+r,2)}, {vr(64+r,2)}, {sr(sC)}")
for r in range(0, 32, 2):
    e(f"v_cvt_pk_bf16_f32 v{96+r//2}, v{64+r}, v{65+r}")
e(f"s_lshl_b32 s{sT}, s{sWAVE}, 12")
e(f"s_add_u32 s{sT}, s{sT}, {L_Q}")
e(f"v_add_u32 v32, s{sT}, v{vL16}")
for rt in range(2):
    for i in range(2):
        e(f"ds_write_b128 v32, {vr(96+rt*8+i*4)} offset:{i*2048+rt*1024}")
e("s_waitcnt lgkmcnt(0)")
lds_signal(C_B2, 12, 13)
e("s_branch L_p1done")
lab("L_idle")
e(f"s_mov_b32 s{sI}, 17")
lab("L_idle1")
e("s_barrier")
e(f"s_sub_u32 s{sI}, s{sI}, 1")
e(f"s_cmp_lg_u32 s{sI}, 0")
e("s_cbranch_scc1 L_idle1")
e("s_branch L_p1done")
if opt("gap", 0): L.append(".p2align 12, 0")
lab("L_epiH")
for rt in range(2):
    a = ACC[rt]
    for r in range(0, 16, 2):
        e(f"v_pk_mul_f32 {vr(96+r,2)}, {vr(a+r,2)}, {sr(sC)}")
    for r in range(16):
        e(f"v_exp_f32 v{96+r}, v{96+r}")
    for r in range(0, 16, 2):
        e(f"v_pk_add_f32 {vr(96+r,2)}, {vr(96+r,2)}, 1.0 op_sel_hi:[1,0]")
    for r in range(16):
        e(f"v_rcp_f32 v{96+r}, v{96+r}")
    for r in range(0, 16, 2):
        e(f"v_pk_mul_f32 {vr(96+r,2)}, {vr(96+r,2)}, {vr(a+r,2)}")
    for r in range(0, 16, 2):
        e(f"v_cvt_pk_bf16_f32 v{132+rt*8+r//2}, v{96+r}, v{97+r}")
lab("L_p1done")
Q = 16
KF = [20, 24]
V0 = [28, 32]
V1 = [36, 40]
P = [48, 56]
S = [64, 80]
C = 96
O = 112
vK, vV0, vV = 10, 148, 11
def att_zero(full=True):
    if full:
        for r in range(16):
            e(f"v_mov_b32 v{O+r}, 0")
    for r in range(4):
        e(f"v_mov_b32 v{V1[1]+r}, 0")
    for r in range(8, 16):
        e(f"v_mov_b32 v{S[1]+r}, 0")
att_zero(False)
stamp(3)
lds_spin("b2a", C_B2, 6, 12, 13, slp=1)
stamp(4)
if STAMPS: e("s_memrealtime s[88:89]")
e("s_setprio 3")
e(f"ds_read_b128 {vr(Q)}, v149")
e(f"ds_read_b128 {vr(KF[0])}, v{vL16}")
def att_first_loads():
    e(f"ds_read_b128 {vr(KF[1])}, v{vL16} offset:{TILE}")
    e(f"ds_read_b128 {vr(V0[0])}, v{vV0}")
    e(f"ds_read_b128 {vr(V0[1])}, v{vV0} offset:{TILE}")
    e(f"ds_read_b128 {vr(V1[0])}, v{vV0} offset:528")
att_first_loads()
HST = opt("hst", 0)
e("s_waitcnt lgkmcnt(4)")
mfma(S[0], KF[0], Q, None)
lds_signal(C_QR, 12, 13)
if HST:
    cm("poison this wave's O slot and publish its H tile")
    e(f"global_store_dwordx4 v{vL16}, v[128:131], {sr(sO)} sc1")
    e(f"s_cmp_lg_u32 s{sROLE}, 2")
    e("s_cbranch_scc1 L_noh")
    for rt in range(2):
        for ks in range(2):
            e(f"global_store_dwordx4 v{vL16}, {vr(132+rt*8+ks*4)}, {sr(sH)} offset:{ks*2048+rt*1024} sc1")
    lab("L_noh")
e("s_nop 6")
e(f"v_max3_f32 v12, v{S[0]}, v{S[0]+1}, v{S[0]+2}")
for r in range(3, 15, 2):
    e(f"v_max3_f32 v12, v12, v{S[0]+r}, v{S[0]+r+1}")
e(f"v_max_f32 v12, v12, v{S[0]+15}")
lab("L_att_setC")
e("v_mov_b32 v14, v12")
e(f"v_mov_b32 v{vK}, v{vL16}")
e(f"v_mov_b32 v{vV}, v{vV0}")
e("v_permlane32_swap_b32 v12, v14")
e(f"s_mov_b32 s{sI}, 0")
e("s_nop 0")
e("v_max_f32 v12, v12, v14")
for r in range(16):
    e(f"v_sub_f32 v{C+r}, 0, v12")
e("s_waitcnt lgkmcnt(0)")
e("s_nop 0")
mfma(S[0], KF[0], Q, C)
e(f"ds_read_b128 {vr(KF[0])}, v{vL16} offset:{2*TILE}")
e("s_setprio 2")
e("s_nop 9")
stamp(5)
UN = 8
def ex(x, r): e(f"v_exp_f32 v{S[x]+r}, v{S[x]+r}")
def pv(a, b): e(f"v_smfmac_f32_32x32x32_bf16 {vr(O,16)}, {vr(a)}, {vr(b,8)}, v153")
L.append(".p2align 6")
lab("L_att_loop")
for u in range(UN):
    x = u & 1; y = 1 - x
    if u == 5:
        e(f"s_bitcmp1_b32 s{sCHK}, s{sI}")
        e("s_cbranch_scc1 L_att_chk")
        lab("L_att_chk_ret")
    ex(x, 0); ex(x, 1)
    pv(V1[y], S[y] + 8)
    e(f"ds_read_b128 {vr(V1[y])}, v{vV} offset:{(u+1)*TILE+528}")
    for r in range(2, 7): ex(x, r)
    mfma(S[y], KF[y], Q, C)
    e(f"ds_read_b128 {vr(KF[y])}, v{vK} offset:{(u+3)*TILE}")
    for r in range(7, 12): ex(x, r)
    pv(V0[x], S[x])
    e("s_waitcnt lgkmcnt(2)")
    e(f"ds_read_b128 {vr(V0[x])}, v{vV} offset:{(u+2)*TILE}")
    for r in range(12, 16): ex(x, r)
if DIAG == 2:
    e("s_memtime s[100:101]")
    e("s_waitcnt lgkmcnt(0)")
    e(f"s_mov_b32 m0, s{sI}")
    e("s_nop 0")
    e("v_writelane_b32 v160, s100, m0")
e(f"v_add_u32 v{vK}, {UN*TILE}, v{vK}")
e(f"v_add_u32 v{vV}, {UN*TILE}, v{vV}")
e(f"s_add_u32 s{sI}, s{sI}, 1")
e(f"s_cmp_lt_u32 s{sI}, {64//UN - opt('lastp', 2)}")
e("s_cbranch_scc1 L_att_loop")
e("s_setprio 0")
e(f"s_cmp_lt_u32 s{sI}, {64//UN}")
e("s_cbranch_scc1 L_att_loop")
e("s_setprio 3")
e(f"s_and_b32 s{sT}, s{sWAVE}, 1")
e(f"s_lshl_b32 s{sT}, s{sT}, 7")
pv(V1[1], S[1] + 8)
stamp(6)
e(f"s_add_u32 s{sT}, s{sT}, {L_G}")
e(f"v_and_b32 v12, 31, v{vL}")
e(f"v_lshl_add_u32 v12, v12, 2, s{sT}")
e("ds_read_b32 v14, v12")
e(f"s_mov_b32 s{sT}, {hex(f2u(2.0**86))}")
e("v_mov_b32 v13, 0x207")
e("s_nop 6")
cm("safety check of the stand-in max: l < 2^42 and O finite, else redo with the true row max")
e(f"v_mul_f32 v12, s{sT}, v{O}")
for r in range(8, 16):
    e(f"v_add_f32 v12, v12, abs(v{O+r})")
e("v_cmp_class_f32 vcc, v12, v13")
e(f"v_rcp_f32 v12, v{O}")
e("s_cbranch_vccz L_att_ok")
e(f"s_cmp_eq_u32 s{sRETRY}, 0")
e("s_cbranch_scc1 L_att_truemax")
lab("L_att_ok")
e("s_waitcnt lgkmcnt(0)")
e("v_mul_f32 v12, v12, v14")
for r in range(8, 16):
    e(f"v_mul_f32 v{O+r}, v{O+r}, v12")
for i in range(4):
    e(f"v_cvt_pk_bf16_f32 v{P[0]+i}, v{O+8+2*i}, v{O+9+2*i}")
for i in range(4):
    e(f"v_min_u32 v{P[0]+i}, -2, v{P[0]+i}")
e(f"global_store_dwordx4 v{vL16}, {vr(P[0])}, {sr(sO)} sc1")
lds_signal(C_OD, 12, 13)
stamp(7)
if STAMPS: e("s_memrealtime s[96:97]")
e("s_branch L_fin")
if opt("gap", 0): L.append(".p2align 12, 0")
lab("L_att_chk")
e(f"s_cmp_eq_u32 s{sI}, 1")
e("s_cbranch_scc1 L_att_chk1")
e(f"s_lshl1_add_u32 s{sT2}, s{sI}, {0}")
e(f"s_add_u32 s{sT2}, s{sT2}, {C_KA}")
lds_spin("att_chk2", f"s{sT2}", 4, 12, 13)
def h_stores(skip):
    e(f"global_store_dwordx4 v{vL16}, v[128:131], {sr(sO)} sc1")
    e(f"s_cmp_lg_u32 s{sROLE}, 2")
    e(f"s_cbranch_scc1 {skip}")
    for rt in range(2):
        for ks in range(2):
            e(f"global_store_dwordx4 v{vL16}, {vr(132+rt*8+ks*4)}, {sr(sH)} offset:{ks*2048+rt*1024} sc1")
if not HST:
    e(f"s_cmp_lg_u32 s{sI}, 0")
    e("s_cbranch_scc1 L_att_chk_ret")
    h_stores("L_att_chk_ret")
e("s_branch L_att_chk_ret")
lab("L_att_chk1")
cm("H / poison stores of this wave have drained; the last wave to get here publishes H")
e("s_waitcnt vmcnt(0)")
e(f"v_mov_b32 v12, {C_HD}")
e("v_mov_b32 v13, 1")
e("s_mov_b64 exec, 1")
e("ds_add_rtn_u32 v13, v12, v13")
e(f"s_lshl_b32 s{sT}, s{sQB}, 7")
e(f"s_lshl2_add_u32 s{sT}, s{sHG}, s{sT}")
e(f"s_add_u32 s{sT}, s{sT}, {WS_FL}")
e(f"s_add_u32 s{sT2}, s{sTAG}, {hex(TAGC)}")
e("s_waitcnt lgkmcnt(0)")
e("v_cmp_eq_u32 vcc, 7, v13")
e("s_cbranch_vccz L_att_chk1b")
e(f"v_mov_b32 v12, s{sT}")
e(f"v_mov_b32 v13, s{sT2}")
e(f"global_store_dword v12, v13, {sr(sWS)} sc1")
lab("L_att_chk1b")
e("s_mov_b64 exec, -1")
e("s_setprio 1")
e("s_branch L_att_chk_ret")
lab("L_att_truemax")
e(f"s_mov_b32 s{sRETRY}, 1")
e(f"s_mov_b32 s{sCHK}, 0")
e("v_mov_b32 v12, 0xff800000")
e(f"v_mov_b32 v{vK}, v{vL16}")
e(f"s_mov_b32 s{sI}, 0")
lab("L_att_tm")
e(f"ds_read_b128 {vr(KF[0])}, v{vK}")
e(f"v_add_u32 v{vK}, {TILE}, v{vK}")
e("s_waitcnt lgkmcnt(0)")
mfma(S[0], KF[0], Q, None)
e("s_nop 15")
for r in range(0, 16, 2):
    e(f"v_max3_f32 v12, v12, v{S[0]+r}, v{S[0]+r+1}")
e(f"s_add_u32 s{sI}, s{sI}, 1")
e(f"s_cmp_lt_u32 s{sI}, 64")
e("s_cbranch_scc1 L_att_tm")
e(f"ds_read_b128 {vr(KF[0])}, v{vL16}")
att_first_loads()
att_zero()
e("s_branch L_att_setC")

if opt("gap", 0): L.append(".p2align 12, 0")
lab("L_g4")
e("s_setprio 3")
for perm in ("quad_perm:[1,0,3,2]", "quad_perm:[2,3,0,1]"):
    if perm.endswith("2]"): e("v_add_f32 v14, v14, v15")
    e("s_nop 1")
    e(f"v_add_f32_dpp v14, v14, v14 {perm} row_mask:0xf bank_mask:0xf")
e(f"v_mul_f32 v14, {hex(f2u(-LOG2E))}, v14")
e("v_exp_f32 v14, v14")
e(f"s_lshl_b32 s{sT}, s{sV}, 6")
e(f"s_add_u32 s{sT}, s{sT}, {L_G}")
e("v_add_f32 v14, 1.0, v14")
e("v_rcp_f32 v14, v14")
e(f"v_and_b32 v12, 60, v{vL}")
e(f"v_add_u32 v12, s{sT}, v12")
e("ds_write_b32 v12, v14")
e("s_barrier")
stamp(2)
e(f"s_cmp_lg_u32 s{sFAST}, 0")
e("s_cbranch_scc1 L_kvfast")
tag_poll("kvpoll", 30, 31, sWS, 4)
for j in range(3):
    dma_lin(sXM, 4, j*16384)
lab("L_kvfast")
stamp(3)
cm("K/V: pieces 0..31 gate the start, 32..63 -> C_KA, 64..129 -> C_KB")
dma_lin(sXM, 4, 49152)
e("s_waitcnt vmcnt(8)")
lds_signal(C_B2, 12, 13)
stamp(4)
e(f"s_lshl_b32 s{sT3}, s{sV}, 14")
dma_lin(sT3, 4, 65536)
e("s_waitcnt vmcnt(4)")
lds_signal(C_KA, 12, 13)
dma_lin(sT3, 12, 65536 + 4096)
e(f"s_cmp_lg_u32 s{sV}, 0")
e("s_cbranch_scc1 L_g5")
dma_kv_one(128 * 1024)
dma_kv_one(129 * 1024)
lab("L_g5")
tr_lane(7, 32, 33)
e(f"s_lshl_b32 s{sT}, s{sQB}, 7")
e(f"s_add_u32 s{sT}, s{sT}, {WS_FL}")
add64(sFL, sWS, off_s=sT)
e(f"s_mul_i32 s{sT}, s{sQB}, {43*4096}")
e(f"s_add_u32 s{sT}, s{sT}, {WS_H}")
add64(sH, sWS, off_s=sT)
e(f"s_lshl2_add_u32 s{sT}, s{sQB}, s{sV}")
e(f"s_lshl_b32 s{sT}, s{sT}, 14")
e(f"s_add_u32 s{sT}, s{sT}, {WS_O}")
add64(sO, sWS, off_s=sT)
cm("weight piece lane offsets v8/v9 (8 rows x 128B -> [rg][ct][4 rows][64B]); ring read address v7")
e(f"v_lshrrev_b32 v32, 5, v{vL}")
e(f"v_bfe_u32 v33, v{vL}, 2, 2")
e("v_lshl_add_u32 v32, v32, 2, v33")
e("v_lshlrev_b32 v8, 10, v32")
e(f"v_bfe_u32 v33, v{vL}, 4, 1")
e("v_lshl_add_u32 v8, v33, 6, v8")
e(f"v_and_b32 v33, 3, v{vL}")
e("v_lshl_add_u32 v8, v33, 4, v8")
e("v_add_u32 v9, 0x2000, v8")
e(f"s_mul_i32 s{sRING}, s{sV}, {R2SZ}")
e(f"s_add_u32 s{sRING}, s{sRING}, {L_UP}")
e(f"v_add_u32 v3, s{sRING}, v7")
cm("slot j of the accumulators holds tile j^v: ct ^= v>>1 (v3/v10), rt ^= v&1 (v11/v7)")
e(f"s_lshr_b32 s{sT}, s{sV}, 1")
e(f"s_lshl_b32 s{sT}, s{sT}, 8")
e(f"v_add_u32 v3, s{sT}, v3")
e("v_xor_b32 v10, 0x100, v3")
e(f"s_and_b32 s{sT}, s{sV}, 1")
e(f"s_lshl_b32 s{sT}, s{sT}, 10")
e(f"v_add_u32 v11, s{sT}, v{vL16}")
e("v_xor_b32 v0, 0x400, v11")
e("s_waitcnt vmcnt(0)")
lds_signal(C_KB, 12, 13)
stamp(5)
if opt("w2t", 0):
    cm("pull this workgroup's share of the w2 slice into L2: rows 8*(64v+l) + (qb&7), v<3")
    e(f"s_and_b32 s{sT}, s{sQB}, 7")
    e(f"s_lshl_b32 s{sT2}, s{sV}, 9")
    e(f"s_add_u32 s{sT}, s{sT}, s{sT2}")
    e(f"v_lshl_add_u32 v12, v{vL}, 3, s{sT}")
    e("v_min_u32 v12, 1375, v12")
    e(f"s_lshl_b32 s{sT}, s{sHG}, 7")
    e(f"v_lshl_add_u32 v12, v12, 10, s{sT}")
    e(f"global_load_dword v14, v12, {sr(sW2)}")
lds_spin("qr", C_QR, 8, 12, 13, slp=4)
GA = [100, 116, 132, 148]
def ring_issue(slot, base):
    e(f"s_add_u32 m0, s{sRING}, {slot*2048}")
    e("s_nop 0")
    e(f"global_load_lds_dwordx4 v8, {sr(base)}")
    e(f"s_add_u32 m0, s{sRING}, {slot*2048+1024}")
    e("s_nop 0")
    e(f"global_load_lds_dwordx4 v9, {sr(base)}")
def ring_read(slot, ct, dst):
    e(f"ds_read_b64_tr_b16 {vr(dst,2)}, v{(3, 10)[ct]} offset:{slot*2048}")
    e(f"ds_read_b64_tr_b16 {vr(dst+2,2)}, v{(3, 10)[ct]} offset:{slot*2048+1024}")
WOF = opt("wof", 1)
def wo_block():
    e("s_waitcnt vmcnt(0)")
    e(f"s_lshl_b32 s{sT}, s{sV}, 17")
    e(f"s_lshl_b32 s{sT2}, s{sHG}, 7")
    e(f"s_add_u32 s{sT}, s{sT}, s{sT2}")
    add64(sP, sWO, off_s=sT)
    for ks in range(3):
        ring_issue(ks, sP)
        add64(sP, sP, imm=16384)
    for ks in range(8):
        e(f"s_waitcnt vmcnt({2*min(2, 7-ks)})")
        ring_read(ks % 3, 0, 36 + 8*ks)
        ring_read(ks % 3, 1, 40 + 8*ks)
        if ks + 3 < 8:
            e("s_waitcnt lgkmcnt(0)")
            ring_issue(ks % 3, sP)
            add64(sP, sP, imm=16384)
    e("s_waitcnt lgkmcnt(0)")
if WOF: wo_block()
stamp(6)
e(f"s_cmp_lg_u32 s{sV}, 0")
e("s_cbranch_scc1 L_g6")
e(f"v_mov_b32 v13, s{sTAG}")
e("s_mov_b64 exec, 1")
cm("this workgroup has read the epoch; the last workgroup to get here advances it")
e("v_mov_b32 v12, 0")
e("v_mov_b32 v14, 1")
e(f"global_atomic_add v15, v12, v14, {sr(sDBG)} sc0 sc1")
e("s_waitcnt vmcnt(0)")
e("v_cmp_eq_u32 vcc, 0xff, v15")
e("s_cbranch_vccz L_g6a")
e(f"v_mov_b32 v12, {WS_NONCE}")
e(f"global_store_dword v12, v13, {sr(sWS)} sc1")
lab("L_g6a")
e("s_mov_b64 exec, -1")
lab("L_g6")
e(f"v_and_b32 v12, 7, v{vL}")
e("v_lshlrev_b32 v12, 2, v12")
tag_poll("hpoll", 12, 13, sFL, 8)
stamp(7)
if opt("ht", 0):
    cm("pull this workgroup's share of H into L2: lines 4*(64*i+l) + (hg&3) of this wave's k range")
    e(f"s_mul_i32 s{sT}, s{sV}, {22*2048}")
    e(f"s_and_b32 s{sT2}, s{sHG}, 3")
    e(f"s_lshl_b32 s{sT2}, s{sT2}, 7")
    e(f"s_add_u32 s{sT}, s{sT}, s{sT2}")
    e(f"v_lshl_add_u32 v12, v{vL}, 9, s{sT}")
    e(f"global_load_dword v164, v12, {sr(sH)} sc1")
    e(f"v_min_u32 v14, 23, v{vL}")
    e(f"v_lshl_add_u32 v12, v14, 9, s{sT}")
    e("v_add_u32 v12, 0x8000, v12")
    e(f"v_min_u32 v12, {43*4096-4}, v12")
    e(f"global_load_dword v165, v12, {sr(sH)} sc1")
HB = [12, 20, 28]
GAF = [4, 164]
e(f"s_mul_i32 s{sT}, s{sV}, 22")
e(f"s_cmp_eq_u32 s{sV}, 3")
e(f"s_cselect_b32 s{sT}, 65, s{sT}")
e(f"s_cmp_ge_u32 s{sV}, 2")
e(f"s_cselect_b32 s{sI}, 21, 22")
e(f"s_sub_u32 s{sN}, s{sI}, 1")
e(f"s_lshl_b32 s{sT2}, s{sT}, 14")
e(f"s_lshl_b32 s{sT3}, s{sHG}, 7")
e(f"s_add_u32 s{sT2}, s{sT2}, s{sT3}")
add64(sP, sW2, off_s=sT2)
e(f"s_lshl_b32 s{sT}, s{sT}, 11")
add64(sP2, sH, off_s=sT)
def g2_h(slot):
    for rt in range(2):
        e(f"global_load_dwordx4 {vr(HB[slot]+4*rt)}, v{(11, 0)[rt]}, {sr(sP2)} sc1")
def g2_adv():
    e(f"s_cmp_lg_u32 s{sN}, 0")
    e(f"s_cselect_b32 s{sT}, 16384, 0")
    e(f"s_cselect_b32 s{sT2}, 2048, 0")
    e(f"s_cselect_b32 s{sT3}, 1, 0")
    e(f"s_sub_u32 s{sN}, s{sN}, s{sT3}")
    add64(sP, sP, off_s=sT)
    add64(sP2, sP2, off_s=sT2)
def g2_step(slot, first):
    def m(ct, rt):
        a = GA[ct*2+rt]
        mfma(a, GAF[ct], HB[slot] + 4*rt, None if first else a)
    e("s_waitcnt vmcnt(8)")
    ring_read(slot, 0, GAF[0])
    e("s_waitcnt lgkmcnt(0)")
    m(0, 0)
    ring_read(slot, 1, GAF[1])
    e("s_waitcnt lgkmcnt(0)")
    m(0, 1)
    e(f"s_add_u32 m0, s{sRING}, {slot*2048}")
    e("s_nop 0")
    e(f"global_load_lds_dwordx4 v8, {sr(sP)}")
    m(1, 0)
    e(f"s_add_u32 m0, s{sRING}, {slot*2048+1024}")
    e("s_nop 0")
    e(f"global_load_lds_dwordx4 v9, {sr(sP)}")
    m(1, 1)
    g2_h(slot)
    g2_adv()
for k in range(3):
    ring_issue(k, sP); g2_h(k); g2_adv()
g2_step(0, True)
e(f"s_sub_u32 s{sI}, s{sI}, 1")
lab("L_g2loop")
for slot in (1, 2, 0):
    g2_step(slot, False)
    e(f"s_sub_u32 s{sI}, s{sI}, 1")
    e(f"s_cmp_eq_u32 s{sI}, 0")
    e("s_cbranch_scc1 L_g2done" if slot != 0 else "s_cbranch_scc0 L_g2loop")
lab("L_g2done")
stampx(8)
if not WOF: wo_block()
e(f"s_and_b32 s{sT}, s{sV}, 1")
e(f"s_lshl_b32 s{sT}, s{sT}, 7")
e(f"s_add_u32 s{sT}, s{sT}, {L_G}")
e(f"v_and_b32 v4, 31, v{vL}")
e(f"v_lshl_add_u32 v4, v4, 2, s{sT}")
e("v_xor_b32 v5, 0x80, v4")
e("ds_read_b32 v6, v4")
e("ds_read_b32 v8, v5")
e("s_waitcnt vmcnt(0) lgkmcnt(0)")
e("v_sub_f32 v6, 1.0, v6")
e("v_sub_f32 v8, 1.0, v8")
e("s_nop 3")
for t in range(4):
    for r in range(0, 16, 2):
        e(f"v_pk_mul_f32 {vr(GA[t]+r,2)}, {vr(GA[t]+r,2)}, {vr(6+2*(t&1),2)} op_sel_hi:[1,0]")
cm("tail: slot j goes to LDS [(j^v)*3 + j-1]*4096 ; v3 = own collection base; v165/v0 = O offsets; v166 = output offset")
e("v_mov_b32 v165, v11")
e(f"s_mul_i32 s{sT3}, s{sV}, 12288")
e(f"v_add_u32 v3, s{sT3}, v{vL16}")
e(f"v_and_b32 v166, 31, v{vL}")
e("v_lshlrev_b32 v166, 10, v166")
e(f"v_lshrrev_b32 v12, 5, v{vL}")
e("v_lshl_add_u32 v166, v12, 4, v166")
e(f"s_and_b32 s{sT}, s{sV}, 1")
e(f"s_lshl1_add_u32 s{sT}, s{sQB}, s{sT}")
e(f"s_lshl_b32 s{sT}, s{sT}, 15")
e(f"s_lshr_b32 s{sT2}, s{sV}, 1")
e(f"s_lshl1_add_u32 s{sT2}, s{sHG}, s{sT2}")
e(f"s_lshl_b32 s{sT2}, s{sT2}, 6")
e(f"s_add_u32 s{sT}, s{sT}, s{sT2}")
add64(sB0, sOUT, off_s=sT)
add64(sP2, sO, imm=8192)
for j in range(1, 4):
    e(f"s_xor_b32 s{sC+j-1 if j < 3 else sN}, s{sV}, {j}")
    e(f"s_mul_i32 s{sC+j-1 if j < 3 else sN}, s{sC+j-1 if j < 3 else sN}, 12288")
OB = 4
for b in range(2):
    if b == 0:
        e(f"s_setprio {opt('b0prio', 0)}")
        lds_spin("od0", C_OD, 4, 164, 167, slp=4)
        stampx(9)
    else:
        e("s_setprio 3")
        lds_spin("od1", C_OD, 8, 164, 167, slp=1)
        stampx(10)
    e(f"s_mov_b32 s{sSPIN}, {SPIN}")
    lab(f"L_opoll{b}")
    for p in range(2):
        for j in range(4):
            e(f"global_load_dwordx4 {vr(OB+16*p+4*j)}, v{(165, 0)[j&1]}, {sr(sO if p == 0 else sP2)} offset:{(j>>1)*2048} sc1")
    e("v_mov_b32 v164, 0")
    for p in range(2):
        e(f"s_waitcnt vmcnt({4-4*p})")
        for r in range(0, 16, 2):
            e(f"v_max3_u32 v164, v164, v{OB+16*p+r}, v{OB+1+16*p+r}")
    e("v_cmp_eq_u32 vcc, -1, v164")
    e(f"s_cbranch_vccz L_ook{b}")
    if b == 0: e("s_sleep 4")
    e(f"s_sub_u32 s{sSPIN}, s{sSPIN}, 1")
    e(f"s_cmp_lg_u32 s{sSPIN}, 0")
    e(f"s_cbranch_scc1 L_opoll{b}")
    lab(f"L_ook{b}")
    if b == 1: stampx(11)
    def chain(j):
        ct, rt = j >> 1, j & 1
        for p in range(2):
            for hh in range(2):
                ks = 4*p + 2*b + hh
                mfma(GA[j], 36 + 8*ks + 4*ct, OB + 16*p + 8*hh + 4*rt, GA[j])
    def wr(j):
        e(f"v_add_u32 v164, s{sC+j-1 if j < 3 else sN}, v{vL16}")
        for qq in range(4):
            e(f"ds_write_b128 v164, {vr(GA[j]+4*qq)} offset:{(j-1)*4096+qq*1024}")
    if b == 0:
        for j in range(4): chain(j)
        add64(sO, sO, imm=4096)
        add64(sP2, sP2, imm=4096)
    else:
        chain(3); chain(2); chain(1)
        e("s_nop 2")
        wr(3)
        chain(0)
        wr(2)
        wr(1)
e("s_waitcnt lgkmcnt(0)")
if opt("bar", 1):
    e("s_barrier")
else:
    lds_signal(C_RED, 4, 5)
    lds_spin("red", C_RED, 4, 4, 5, slp=0)
stampx(12)
for c in range(3):
    for q in range(4):
        e(f"ds_read_b128 {vr(36+16*c+4*q)}, v3 offset:{c*4096+q*1024}")
for c in range(3):
    e(f"s_waitcnt lgkmcnt({8-4*c})")
    for r in range(0, 16, 2):
        e(f"v_pk_add_f32 {vr(GA[0]+r,2)}, {vr(GA[0]+r,2)}, {vr(36+16*c+r,2)}")
for i in range(8):
    e(f"v_cvt_pk_bf16_f32 v{16+i}, v{GA[0]+2*i}, v{GA[0]+1+2*i}")
e("s_nop 1")
for p in range(2):
    e(f"v_permlane32_swap_b32 v{16+4*p}, v{18+4*p}")
    e(f"v_permlane32_swap_b32 v{17+4*p}, v{19+4*p}")
for p in range(2):
    e(f"global_store_dwordx4 v166, {vr(16+4*p)}, {sr(sB0)} offset:{32*p}" + ("", " sc1", " nt")[opt("outf", 0)])
if LITE:
    cm("LITE")
    e("s_waitcnt vmcnt(0)")
    e("s_memrealtime s[72:73]")
    e(f"s_lshl2_add_u32 s{sT}, s2, s{sV}")
    e(f"s_lshl_b32 s{sT}, s{sT}, 3")
    e(f"s_add_u32 s{sT}, s{sT}, {WS_ST}")
    e(f"v_mov_b32 v12, s{sT}")
    e("s_waitcnt lgkmcnt(0)")
    e("v_mov_b32 v14, s70")
    e("v_mov_b32 v15, s72")
    e("s_mov_b64 exec, 1")
    e(f"global_store_dwordx2 v12, v[14:15], {sr(sWS)}")
lab("L_fin")
if opt("dbgt", 0):
    e("s_waitcnt vmcnt(0)")
    e("s_memrealtime s[100:101]")
    e("s_memtime s[98:99]")
    e("s_waitcnt lgkmcnt(0)")
    e("s_mov_b64 exec, 1")
    e("v_mov_b32 v12, 0")
    e("s_not_b32 s3, s70")
    e("v_mov_b32 v13, s3")
    e(f"global_atomic_umax v12, v13, {sr(sDBG)} offset:4 sc1")
    e("v_mov_b32 v14, s100")
    e(f"global_atomic_umax v12, v14, {sr(sDBG)} offset:8 sc1")
    e("v_mov_b32 v15, s70")
    e(f"global_atomic_umax v12, v15, {sr(sDBG)} offset:12 sc1")
    e("s_cmp_lg_u32 s2, 100")
    e("s_cbranch_scc1 L_end")
    e(f"s_cmp_eq_u32 s{sWAVE}, 7")
    e("s_cbranch_scc0 L_dg")
    for k, i in enumerate((9, 1, 2, 4, 7, 13)):
        e(f"s_sub_u32 s3, s{72+2*i}, s72")
        e("v_mov_b32 v13, s3")
        e(f"global_store_dword v12, v13, {sr(sDBG)} offset:{16+4*k}")
    e("s_branch L_end")
    lab("L_dg")
    e(f"s_cmp_eq_u32 s{sWAVE}, 8")
    e("s_cbranch_scc0 L_end")
    for k, i in enumerate((3, 5, 8, 11, 12, 13)):
        e(f"s_sub_u32 s3, s{72+2*i}, s72")
        e("v_mov_b32 v13, s3")
        e(f"global_store_dword v12, v13, {sr(sDBG)} offset:{40+4*k}")
elif STAMPS:
    e("s_waitcnt vmcnt(0)")
    stamp(13)
    e("s_memrealtime s[100:101]")
    e("s_waitcnt lgkmcnt(0)")
    e(f"s_lshl_b32 s{sT}, s2, 4")
    e(f"s_add_u32 s{sT}, s{sT}, s{sWAVE}")
    e(f"s_lshl_b32 s{sT}, s{sT}, 7")
    e(f"s_add_u32 s{sT}, s{sT}, {WS_ST}")
    add64(sP, sWS, off_s=sT)
    if DIAG == 2:
        e(f"v_lshlrev_b32 v12, 2, v{vL}")
        e("s_mov_b64 exec, 0xff")
        e(f"global_store_dword v12, v160, {sr(sP)} offset:64")
    e("v_mov_b32 v12, 0")
    e("s_mov_b64 exec, 1")
    for i in range(16):
        e(f"v_mov_b32 v13, s{70+2*i}")
        e(f"global_store_dword v12, v13, {sr(sP)} offset:{4*i}")
    e("s_waitcnt vmcnt(0)")
lab("L_end")
e("s_endpgm")
lab("L_code_end")

HEAD = open(f"cdna_kernels/{NAME}.s.ref").read().split("; Override launch geometry")[0]
src = HEAD + f"""; @launch grid=(256,1,1) block=(768,1,1) lds={LDS_TOTAL}
.amdgcn_target "amdgcn-amd-amdhsa--gfx950"
.text
.globl {NAME}_kernel
.p2align 8
.type {NAME}_kernel,@function
{NAME}_kernel:
""" + "\n".join(L) + f"""
.section .rodata,"a"
.p2align 6
.amdhsa_kernel {NAME}_kernel
  .amdhsa_next_free_vgpr 168
  .amdhsa_next_free_sgpr 102
  .amdhsa_accum_offset 168
  .amdhsa_group_segment_fixed_size 0
  .amdhsa_kernarg_size 96
  .amdhsa_user_sgpr_count 2
  .amdhsa_user_sgpr_kernarg_segment_ptr 1
  .amdhsa_system_sgpr_workgroup_id_x 1
.end_amdhsa_kernel
"""
open(OUT, "w").write(src)
print("wrote", OUT, len(L), "lines")
```

```python
import sys, struct

NAME = "gated_mix__grouped_kv_mqa__dense_activation_silu__prompt"
STAMPS = "--stamps" in sys.argv
def opt(name, default):
    for a in sys.argv[1:]:
        if a.startswith(f"--{name}="): return int(a.split("=")[1])
    return default
OUT = [a for a in sys.argv[1:] if not a.startswith("--")]
OUT = OUT[0] if OUT else f"cdna_kernels/{NAME}.s"
DIAG = opt("diag", 0)
LITE = opt("lite", 0)

def f2u(x): return struct.unpack("<I", struct.pack("<f", x))[0]
LOG2E = 1.4426950408889634

TILE = 2080
KVBYTES = 64 * TILE
L_X = 66560
L_UP = KVBYTES
L_Q = L_UP
L_KVP = L_UP
L_VT = L_UP + 24576
L_WKV = 32768
R2SZ = 6144
L_G = L_UP + 28672
L_CNT = L_G + 256
L_GW = L_CNT + 256
LDS_TOTAL = L_GW + 1024
C_KA, C_KB, C_KVP, C_GO, C_RED, C_K1, C_HD, C_OD, C_B2, C_QR = [L_CNT + 4*i for i in range(10)]
WS_KV, WS_FL, WS_H, WS_O, WS_ST = 0, 0x30000, 0x40000, 0x600000, 0x900000
WS_KF = WS_FL + 0x1000
WS_NONCE = WS_FL + 0x3000
SPIN = 1 << 16
TAGC = 0x9E3779B1

L = []
def e(s): L.append("    " + s)
def lab(s): L.append(s + ":")
def cm(s): L.append("    ; " + s)
def vr(a, n=4): return f"v[{a}:{a+n-1}]"
def sr(a, n=2): return f"s[{a}:{a+n-1}]"
def stamp(i):
    if STAMPS: e(("s_memrealtime" if opt("rts", 0) else "s_memtime") + f" s[{72+2*i}:{73+2*i}]")

def stampx(i):
    if DIAG != 4: stamp(i)
sX, sWQ, sWK, sWV, sWO, sW1, sW2, sGW, sOUT, sDBG, sWS = 4, 6, 8, 10, 12, 16, 18, 20, 22, 24, 26
sQB, sHG, sWAVE, sV = 28, 29, 30, 31
sJQ, sXM = 32, 33
sB0, sFL, sADV, sROLE, sRING, sN = 34, 36, 38, 39, 40, 41
sHT, sPROD = 42, 43
sKV, sH, sO = 44, 46, 48
sT, sT2, sT3 = 50, 52, 54
sC, sTAG = 56, 58
sSPIN, sI, sCHK, sRETRY = 60, 61, 62, 63
sWB = 14
sP, sP2 = 66, 68
vL, vL16 = 1, 2

def add64(dst, src, off_s=None, imm=None):
    o = f"s{off_s}" if off_s is not None else hex(imm)
    e(f"s_add_u32 s{dst}, s{src}, {o}")
    e(f"s_addc_u32 s{dst+1}, s{src+1}, 0")
def mfma(d, a, b, c):
    cs = "0" if c is None else vr(c, 16)
    e(f"v_mfma_f32_32x32x16_bf16 {vr(d,16)}, {vr(a)}, {vr(b)}, {cs}")
def lds_spin(name, off, want, va, vt, slp=1):
    e(f"v_mov_b32 v{va}, {off}")
    e(f"s_mov_b32 s{sSPIN}, {SPIN*64}")
    lab(f"L_{name}")
    e(f"ds_read_b32 v{vt}, v{va}")
    e("s_waitcnt lgkmcnt(0)")
    e(f"v_readfirstlane_b32 s{sT}, v{vt}")
    e(f"s_sub_u32 s{sSPIN}, s{sSPIN}, 1")
    e(f"s_cmp_eq_u32 s{sSPIN}, 0")
    e(f"s_cbranch_scc1 L_{name}_ok")
    e(f"s_cmp_ge_u32 s{sT}, {want}")
    e(f"s_cbranch_scc1 L_{name}_ok")
    if slp: e(f"s_sleep {slp}")
    e(f"s_branch L_{name}")
    lab(f"L_{name}_ok")
def lds_signal(off, va, vt):
    e(f"v_mov_b32 v{va}, {off}")
    e(f"v_mov_b32 v{vt}, 1")
    e("s_mov_b64 exec, 1")
    e(f"ds_add_u32 v{va}, v{vt}")
    e("s_mov_b64 exec, -1")
def tag_poll(name, va, vt, base, slp):
    e(f"s_mov_b32 s{sSPIN}, {SPIN}")
    lab(f"L_{name}")
    e(f"global_load_dword v{vt}, v{va}, {sr(base)} sc1")
    e("s_waitcnt vmcnt(0)")
    e(f"v_cmp_ne_u32 vcc, s{sTAG}, v{vt}")
    e(f"s_cbranch_vccz L_{name}_ok")
    e(f"s_sleep {slp}")
    e(f"s_sub_u32 s{sSPIN}, s{sSPIN}, 1")
    e(f"s_cmp_lg_u32 s{sSPIN}, 0")
    e(f"s_cbranch_scc1 L_{name}")
    lab(f"L_{name}_ok")
def dma_lin(first_s, n, first_imm=0):
    for j in range(0, n, 4):
        e(f"s_add_u32 s{sT}, s{first_s}, {first_imm + j*1024}")
        e(f"s_mov_b32 m0, s{sT}")
        add64(sP, sKV, off_s=sT)
        for i in range(4):
            e(f"global_load_lds_dwordx4 v{vL16}, {sr(sP)} offset:{i*1024} sc1")
def dma_kv_one(off):
    e(f"s_mov_b32 m0, {off}")
    add64(sP, sKV, imm=off)
    e(f"global_load_lds_dwordx4 v{vL16}, {sr(sP)} sc1")
def tr_lane(dst, t0, t1):
    e(f"v_bfe_u32 v{dst}, v{vL}, 2, 2")
    e(f"v_bfe_u32 v{t0}, v{vL}, 4, 1")
    e(f"v_and_b32 v{t1}, 3, v{vL}")
    e(f"v_lshlrev_b32 v{dst}, 6, v{dst}")
    e(f"v_lshl_add_u32 v{dst}, v{t0}, 5, v{dst}")
    e(f"v_lshl_add_u32 v{dst}, v{t1}, 3, v{dst}")
    e(f"v_lshrrev_b32 v{t0}, 5, v{vL}")
    e(f"v_lshl_add_u32 v{dst}, v{t0}, 9, v{dst}")
e("s_load_dwordx16 s[4:19], s[0:1], 0")
e("s_load_dwordx8 s[20:27], s[0:1], 64")
e("s_cmp_ge_u32 s2, 256")
e("s_cbranch_scc1 L_end")
if STAMPS or LITE: e("s_memrealtime s[70:71]")
stamp(0)
e("v_lshrrev_b32 v5, 6, v0")
e(f"v_and_b32 v{vL}, 63, v0")
e(f"v_readfirstlane_b32 s{sWAVE}, v5")
e(f"v_lshlrev_b32 v{vL16}, 4, v{vL}")
CPF = opt("cpf", 0)
if CPF:
    cm("pull code into L2 at once: wave w < CPF touches 32 lines from 4096*w on")
    e(f"s_cmp_ge_u32 s{sWAVE}, {CPF}")
    e("s_cbranch_scc1 L_nopf")
    e(f"s_getpc_b64 {sr(sT)}")
    e("v_lshlrev_b32 v3, 6, v0")
    e(f"global_load_dword v4, v3, {sr(sT)}")
    lab("L_nopf")
cm("qb = ((wg&7)>>1)*8 + ((wg>>3)&7) ; hg = (wg&1)*4 + (wg>>6) ; producers: wg < 64")
e(f"s_bfe_u32 s{sT}, s2, 0x20001")
e(f"s_bfe_u32 s{sJQ}, s2, 0x30003")
e(f"s_lshl3_add_u32 s{sQB}, s{sT}, s{sJQ}")
e(f"s_and_b32 s{sT}, s2, 1")
e(f"s_lshr_b32 s{sPROD}, s2, 6")
e(f"s_lshl2_add_u32 s{sHG}, s{sT}, s{sPROD}")
cm("stage order s ^ rot, rot = 2*(qb&7) ^ 4*(hg&3)")
e(f"s_lshl_b32 s{sJQ}, s{sJQ}, 1")
e(f"s_lshl_b32 s{sT}, s{sPROD}, 2")
e(f"s_xor_b32 s{sJQ}, s{sJQ}, s{sT}")
e(f"s_and_b32 s{sJQ}, s{sJQ}, {opt('rot', 6)}")
e(f"s_cmp_lt_u32 s{sWAVE}, 8")
e("s_cbranch_scc1 L_aw")

e(f"s_sub_u32 s{sV}, s{sWAVE}, 8")
if opt("gp", 0): e("s_setprio 3")
sWQB, sW1B = 34, 64
cm("X lane offset v20: row 16v + (l>>4) (+4j), 16B unit (l&15) ^ (row&15)")
e(f"v_lshrrev_b32 v16, 4, v{vL}")
e(f"v_and_b32 v17, 15, v{vL}")
e("v_xor_b32 v17, v17, v16")
e("v_lshlrev_b32 v17, 4, v17")
e("v_lshl_add_u32 v20, v16, 10, v17")
for j in range(1, 4):
    e(f"v_xor_b32 v{20+j}, {j*(4096+64)}, v20")
e(f"s_lshl2_add_u32 s{sT2}, s{sQB}, s{sV}")
e(f"s_lshl_b32 s{sT2}, s{sT2}, 14")
e(f"s_lshl_b32 s{sXM}, s{sV}, 12")
cm("row-in-octet v16 = 4*(l>>5) + ((l>>2)&3), v17 = tile bit (l>>4)&1, v18 = (l&3)*16")
e(f"v_lshrrev_b32 v16, 5, v{vL}")
e(f"v_bfe_u32 v19, v{vL}, 2, 2")
e("v_lshl_add_u32 v16, v16, 2, v19")
e(f"s_lshl_b32 s{sT3}, s{sV}, 3")
e(f"v_add_u32 v16, s{sT3}, v16")
e(f"v_bfe_u32 v17, v{vL}, 4, 1")
e(f"v_and_b32 v18, 3, v{vL}")
e("v_lshlrev_b32 v18, 4, v18")
e("v_lshl_add_u32 v24, v17, 6, v18")
e("v_lshl_add_u32 v24, v16, 10, v24")
def x_issue(g):
    e(f"s_xor_b32 s{sT}, s{sJQ}, {4*g}")
    e(f"s_lshr_b32 s{sT}, s{sT}, 2")
    e(f"s_lshl_b32 s{sT}, s{sT}, 8")
    e(f"s_add_u32 m0, s{sXM}, {L_X + g*16384}")
    add64(sP, sP2, off_s=sT)
    for j in range(4):
        if j:
            e(f"s_add_u32 m0, s{sXM}, {L_X + g*16384 + j*1024}")
            e("s_nop 0")
        e(f"global_load_lds_dwordx4 v{20+j}, {sr(sP)}")
e("s_waitcnt lgkmcnt(0)")
stamp(9)
e(f"s_load_dword s{sTAG}, {sr(sWS)}, {hex(WS_NONCE)}")
add64(sP2, sX, off_s=sT2)
x_issue(0)
e(f"s_lshl_b32 s{sT}, s{sHG}, 7")
add64(sWQ, sWQ, off_s=sT)
e(f"s_cmp_eq_u32 s{sHG}, 0")
e("s_cbranch_scc1 L_gprod")
e(f"s_mul_i32 s{sT}, s{sHG}, 384")
e(f"s_sub_u32 s{sT}, s{sT}, 320")
add64(sW1, sW1, off_s=sT)
e(f"v_add_u32 v19, s{sT3}, v19")
e("v_mul_u32_u24 v25, 2752, v19")
e(f"v_lshrrev_b32 v26, 4, v{vL}")
e("v_lshl_add_u32 v25, v26, 6, v25")
e("v_add_u32 v25, v25, v18")
e(f"v_add_u32 v26, {4*2752}, v25")
e("v_mul_u32_u24 v27, 2752, v16")
e("v_lshl_add_u32 v27, v17, 6, v27")
e("v_add3_u32 v27, v27, v18, 64")
e("v_add_u32 v27, 192, v27")
def misc_g():
    cm("one extra request per wave keeps the counts uniform: v0 code prefetch, v1 gate weights, v2/v3 touch w2/wo/out pages")
    e(f"s_cmp_eq_u32 s{sV}, 1")
    e(f"s_cbranch_scc1 L_m1{UID[0]}")
    e(f"s_getpc_b64 {sr(sT)}")
    lab(f"L_pc{UID[0]}")
    e(f"s_sub_u32 s{sT}, s{sT}, L_pc{UID[0]}-{NAME}_kernel")
    e(f"s_subb_u32 s{sT+1}, s{sT+1}, 0")
    e(f"s_andn2_b32 s{sT2}, s2, 7")
    e(f"v_and_b32 v3, 7, v{vL}")
    e(f"v_add_lshl_u32 v3, v3, s{sT2}, 7")
    e(f"v_min_u32 v3, L_code_end-{NAME}_kernel-4, v3")
    e(f"global_load_dword v4, v3, {sr(sT)}" if not opt("nocp", 0) else f"global_load_dword v4, v{vL16}, {sr(sGW)}")
    e(f"v_and_b32 v12, 15, v{vL}")
    e(f"v_lshlrev_b32 v12, 2, v12")
    e(f"v_add_u32 v12, {L_CNT}, v12")
    e("v_mov_b32 v13, 0")
    e("ds_write_b32 v12, v13")
    e(f"s_branch L_m2{UID[0]}")
    lab(f"L_m1{UID[0]}")
    e(f"s_mov_b32 m0, {L_GW}")
    e("s_nop 0")
    e(f"global_load_lds_dwordx4 v{vL16}, {sr(sGW)}")
    lab(f"L_m2{UID[0]}")
    cm("gate: lane -> row 16v + (l>>2), units 4(l&3)+i ; v10 X address, v11 weight address")
    e(f"v_lshrrev_b32 v12, 2, v{vL}")
    e(f"v_and_b32 v13, 3, v{vL}")
    e("v_lshlrev_b32 v13, 2, v13")
    e("v_xor_b32 v10, v13, v12")
    e("v_lshlrev_b32 v10, 4, v10")
    e("v_lshl_add_u32 v10, v12, 8, v10")
    e(f"s_add_u32 s{sT}, s{sXM}, {L_X}")
    e(f"v_add_u32 v10, s{sT}, v10")
    e(f"s_lshr_b32 s{sT}, s{sJQ}, 2")
    e(f"s_lshl_b32 s{sT}, s{sT}, 8")
    e(f"v_lshl_add_u32 v11, v13, 4, s{sT}")
    e("v_mov_b32 v14, 0")
    e("v_mov_b32 v15, 0")
    e(f"v_and_b32 v30, 31, v{vL}")
    e("v_lshlrev_b32 v30, 7, v30")
    e(f"v_add_u32 v30, {WS_KF}, v30")
    add64(sKV, sWS, imm=WS_KV)
    e("s_waitcnt lgkmcnt(0)")
    e(f"s_add_u32 s{sTAG}, s{sTAG}, {hex(TAGC)}")
    UID[0] += 1
UID = [0]
def gate_part(g):
    if opt("nogate", 0): return
    e(f"v_xor_b32 v12, {g*256}, v11")
    e(f"v_add_u32 v12, {L_GW}, v12")
    for i in range(4):
        if i: e(f"v_xor_b32 v13, {i*16}, v10")
        e(f"ds_read_b128 {vr(32+8*i)}, v{13 if i else 10} offset:{g*16384}")
        e(f"ds_read_b128 {vr(36+8*i)}, v12 offset:{i*16}")
    for i in range(4):
        e(f"s_waitcnt lgkmcnt({6-2*i})")
        for j in range(4):
            e(f"v_dot2_f32_bf16 v{14+(j&1)}, v{32+8*i+j}, v{36+8*i+j}, v{14+(j&1)}")
sFAST = sN
def loader(prod):
    nw = 2 if prod else 4
    tg = "p" if prod else "n"
    def issue(s):
        if s % 4 == 0 and s and not prod: x_issue(s // 4)
        base = (s % 4) * 16384
        e(f"s_xor_b32 s{sT}, s{sJQ}, {s}")
        e(f"s_lshl_b32 s{sT2}, s{sT}, 15")
        e(f"s_add_u32 m0, s{sXM}, {base}")
        add64(sWQB, sWQ, off_s=sT2)
        e(f"global_load_lds_dwordx4 v24, {sr(sWQB)}")
        e(f"s_mul_i32 s{sT2}, s{sT}, {32*2752}")
        e(f"s_add_u32 m0, s{sXM}, {base + 3072}")
        add64(sW1B, sW1, off_s=sT2)
        e(f"global_load_lds_dwordx4 v27, {sr(sW1B)}")
        if not prod:
            for j, r in ((1, 25), (2, 26)):
                e(f"s_add_u32 m0, s{sXM}, {base + j*1024}")
                e("s_nop 0")
                e(f"global_load_lds_dwordx4 v{r}, {sr(sW1B)}")
    cnt = [nw + (4 if s % 4 == 0 and not prod else 0) for s in range(16)]
    if prod:
        misc_g()
        e("s_waitcnt vmcnt(4)")
        issue(0); issue(1)
        e("s_waitcnt vmcnt(4)")
        e("s_barrier")
        e("s_barrier")
        issue(2)
    else:
        issue(0); issue(1); issue(2)
        misc_g()
    for s in range(14):
        later = sum(cnt[s+1:min(16, s + 3)]) + (1 if s in (11, 12) or (s < 3 and not prod) else 0)
        e(f"s_waitcnt vmcnt({later})")
        e("s_barrier")
        if s == 0: stamp(1)
        if s == 10: e(f"global_load_dword v31, v30, {sr(sWS)} sc1")
        if s + 3 < 16: issue(s + 3)
        if s in (4, 6, 9): gate_part((4, 6, 9).index(s))
    cm("K/V already published? then start staging it into the ring slots as they free up")
    e(f"v_cmp_ne_u32 vcc, s{sTAG}, v31")
    e(f"s_mov_b32 s{sFAST}, 0")
    e(f"s_cbranch_vccnz L_slow{tg}")
    e(f"s_mov_b32 s{sFAST}, 1")
    dma_lin(sXM, 4)
    gate_part(3)
    e(f"s_waitcnt vmcnt({cnt[15] + 4})")
    e("s_barrier")
    dma_lin(sXM, 4, 16384)
    e("s_waitcnt vmcnt(8)")
    e("s_barrier")
    dma_lin(sXM, 4, 32768)
    e("s_branch L_g4")
    lab(f"L_slow{tg}")
    e(f"global_load_dword v31, v30, {sr(sWS)} sc1")
    gate_part(3)
    e(f"s_waitcnt vmcnt({cnt[15] + 1})")
    e("s_barrier")
    e("s_waitcnt vmcnt(0)")
    e("s_barrier")
    e(f"v_cmp_ne_u32 vcc, s{sTAG}, v31")
    e("s_cbranch_vccnz L_g4")
    e(f"s_mov_b32 s{sFAST}, 1")
    for j in range(3):
        dma_lin(sXM, 4, j*16384)
    e("s_branch L_g4")
loader(False)
if opt("gap", 0): L.append(".p2align 12, 0")
lab("L_gprod")
cm("producer (hg==0): all of X and [wk|wv] first (wave v: k-steps 8v..8v+7); last piece = w1 tile 0")
e(f"v_lshrrev_b32 v28, 2, v{vL}")
e("v_lshlrev_b32 v28, 5, v28")
e("v_and_b32 v19, 16, v18")
e(f"v_add3_u32 v28, v28, v19, s{sXM}")
e("v_mov_b32 v29, 0")
e(f"v_and_b32 v19, 2, v{vL}")
e("v_cmp_ne_u32 vcc, 0, v19")
e(f"v_mov_b32 v32, s{sWK}")
e(f"v_mov_b32 v33, s{sWK+1}")
e(f"v_mov_b32 v34, s{sWV}")
e(f"v_mov_b32 v35, s{sWV+1}")
e("v_cndmask_b32 v32, v32, v34, vcc")
e("v_cndmask_b32 v33, v33, v35, vcc")
e("v_lshl_add_u64 v[32:33], v[28:29], 0, v[32:33]")
e(f"s_lshl_b32 s{sT3}, s{sXM}, 1")
e(f"s_and_b32 s{sC}, s{sQB}, 7")
e(f"s_mov_b32 s{sW1B+1}, 0")
def wkv_dma(i):
    e(f"s_xor_b32 s{sT}, s{sC}, {i}")
    e(f"s_lshl_b32 s{sW1B}, s{sT}, 9")
    e(f"s_lshl_b32 s{sT}, s{sT}, 10")
    e(f"s_add_u32 s{sT}, s{sT}, s{sT3}")
    e(f"s_add_u32 m0, s{sT}, {L_WKV}")
    e(f"v_lshl_add_u64 v[28:29], v[32:33], 0, {sr(sW1B)}")
    e("global_load_lds_dwordx4 v[28:29], off")
wkv_dma(0)
for g in range(1, 4): x_issue(g)
for i in range(1, 8): wkv_dma(i)
e("v_mul_u32_u24 v27, 2752, v16")
e("v_add_u32 v27, v27, v18")
loader(True)

if opt("gap", 0): L.append(".p2align 12, 0")
lab("L_aw")
if DIAG == 4: stamp(9)
e(f"s_mul_i32 s{sHT}, s{sHG}, 6")
e(f"s_add_u32 s{sHT}, s{sHT}, s{sWAVE}")
e(f"s_sub_u32 s{sHT}, s{sHT}, 7")
e(f"s_mov_b32 s{sROLE}, 2")
e(f"s_cmp_lg_u32 s{sHG}, 0")
e("s_cbranch_scc1 L_r1")
e(f"s_mov_b32 s{sHT}, 0")
e(f"s_cmp_lt_u32 s{sWAVE}, 7")
e(f"s_cselect_b32 s{sROLE}, 3, 2")
lab("L_r1")
e(f"s_cmp_lt_u32 s{sWAVE}, 2")
e(f"s_cselect_b32 s{sROLE}, 0, s{sROLE}")
cm("block base: w<2: 256w ; w<6: 1024+256(w-2) ; else 3072+256(w-6) ; rg stride 1024 for 2<=w<6 else 512")
e(f"s_cselect_b32 s{sT}, 0, 512")
e(f"s_cselect_b32 s{sT2}, 512, 1024" if False else f"s_cselect_b32 s{sT2}, 1, 2")
e(f"s_cmp_ge_u32 s{sWAVE}, 6")
e(f"s_cselect_b32 s{sT}, 1536, s{sT}")
e(f"s_cselect_b32 s{sT2}, 1, s{sT2}")
e(f"s_lshl_b32 s{sT2}, s{sT2}, 9")
e(f"s_lshl_b32 s{sT3}, s{sWAVE}, 8")
e(f"s_add_u32 s{sT}, s{sT}, s{sT3}")
e(f"v_bfe_u32 v6, v{vL}, 2, 2")
e(f"v_bfe_u32 v32, v{vL}, 4, 1")
e(f"v_and_b32 v33, 3, v{vL}")
e("v_lshlrev_b32 v6, 6, v6")
e("v_lshl_add_u32 v6, v32, 5, v6")
e("v_lshl_add_u32 v6, v33, 3, v6")
e(f"v_lshrrev_b32 v32, 5, v{vL}")
e("v_lshl_add_u32 v6, v32, 12, v6")
e(f"v_add_u32 v6, s{sT}, v6")
e(f"v_add_u32 v7, s{sT2}, v6")
cm("X fragment addresses v8..v15 for (s&3, ks)")
e(f"v_and_b32 v33, 31, v{vL}")
e(f"v_and_b32 v34, 15, v{vL}")
e("v_xor_b32 v34, v34, v32")
e("v_lshlrev_b32 v34, 4, v34")
e("v_lshl_add_u32 v8, v33, 8, v34")
e(f"s_and_b32 s{sT}, s{sJQ}, 3")
e(f"s_lshl_b32 s{sT}, s{sT}, 6")
e(f"v_xor_b32 v8, s{sT}, v8")
e(f"v_add_u32 v8, {L_X}, v8")
for j in range(1, 8):
    e(f"v_xor_b32 v{8+j}, {j << 5}, v8")
e("s_waitcnt lgkmcnt(0)")
if DIAG == 4: stamp(10)
e(f"s_load_dword s{sTAG}, {sr(sWS)}, {hex(WS_NONCE)}")
e(f"s_lshl3_add_u32 s{sT}, s{sQB}, s{sHG}")
e(f"s_lshl3_add_u32 s{sT}, s{sT}, s{sWAVE}")
e(f"s_lshl_b32 s{sT}, s{sT}, 10")
e(f"s_add_u32 s{sT}, s{sT}, {WS_O}")
add64(sO, sWS, off_s=sT)
e(f"s_mul_i32 s{sT}, s{sQB}, 43")
e(f"s_add_u32 s{sT}, s{sT}, s{sHT}")
e(f"s_lshl_b32 s{sT}, s{sT}, 12")
e(f"s_add_u32 s{sT}, s{sT}, {WS_H}")
add64(sH, sWS, off_s=sT)
ACC = [64, 80]
FB = [16, 40]
def early_setup():
    for i in range(4):
        e(f"v_mov_b32 v{128+i}, -1")
    cm("V lane address: m>=16: 1024 + h*256 + (m-16)*16 ; m in {0,4}: ones slot ; else out of range (reads 0)")
    e(f"v_and_b32 v150, 15, v{vL}")
    e(f"v_lshrrev_b32 v151, 5, v{vL}")
    e("v_lshlrev_b32 v150, 4, v150")
    e("v_lshl_add_u32 v150, v151, 8, v150")
    e(f"v_and_b32 v151, 27, v{vL}")
    e(f"v_cmp_eq_u32 {sr(sT)}, 0, v151")
    e("v_cmp_lt_u32 vcc, 15, v151")
    e("v_mov_b32 v151, 0x40000")
    e("v_mov_b32 v152, 512")
    e(f"v_cndmask_b32 v151, v151, v152, {sr(sT)}")
    e(f"v_cndmask_b32 v148, v151, v150, vcc")
    e(f"v_add_u32 v148, 1024, v148")
    e(f"s_lshl_b32 s{sT}, s{sWAVE}, 10")
    e(f"s_add_u32 s{sT}, s{sT}, {L_Q}")
    e(f"v_add_u32 v149, s{sT}, v{vL16}")
    e(f"s_mov_b32 s{sRETRY}, 0")
    e("v_mov_b32 v153, 0xdddddddd")
    e(f"s_mov_b32 s{sCHK}, 7")
    for r in range(16):
        e(f"v_mov_b32 v{112+r}, 0")
e(f"s_cmp_lg_u32 s{sHG}, 0")
e("s_cbranch_scc1 L_nokv")
e(f"s_lshr_b32 s{sT2}, s{sWAVE}, 1")
e(f"s_and_b32 s{sT3}, s{sWAVE}, 1")
tr_lane(40, 41, 42)
e(f"s_lshr_b32 s{sT}, s{sJQ}, 2")
e(f"s_xor_b32 s{sT}, s{sT}, s{sT2}")
e(f"s_lshl_b32 s{sT}, s{sT}, 13")
e(f"s_add_u32 s{sT}, s{sT}, {L_WKV}")
e(f"v_add_u32 v40, s{sT}, v40")
e(f"s_and_b32 s{sT}, s{sJQ}, 3")
e(f"s_lshl_b32 s{sT}, s{sT}, 6")
e(f"v_xor_b32 v41, s{sT}, v8")
e(f"s_lshl1_add_u32 s{sT}, s{sT2}, s{sT3}")
e(f"s_lshl_b32 s{sT}, s{sT}, 13")
e(f"v_add_u32 v41, s{sT}, v41")
for j in range(1, 8):
    e(f"v_xor_b32 v{41+j}, {j << 5}, v41")
cm("partial slot (rt*3 + idx), idx = kq - (kq>1)")
e(f"s_cmp_gt_u32 s{sT2}, 1")
e(f"s_subb_u32 s{sT}, s{sT2}, 0")
e(f"s_cmp_eq_u32 s{sT2}, 1")
e(f"s_cselect_b32 s{sT}, 0, s{sT}")
e(f"s_mul_i32 s{sC}, s{sT3}, 3")
e(f"s_add_u32 s{sT}, s{sT}, s{sC}")
e(f"s_lshl_b32 s{sT}, s{sT}, 12")
e(f"s_add_u32 s{sT}, s{sT}, {L_KVP}")
e(f"v_add_u32 v50, s{sT}, v{vL16}")
e(f"s_lshl1_add_u32 s{sT}, s{sQB}, s{sT3}")
e(f"s_mul_i32 s{sT}, s{sT}, {TILE}")
add64(sP, sWS, off_s=sT)
e(f"s_lshl_b32 s{sT}, s{sT3}, 10")
e(f"s_add_u32 s{sT}, s{sT}, {L_VT}")
e(f"v_and_b32 v52, 31, v{vL}")
e(f"v_lshrrev_b32 v55, 5, v{vL}")
e("v_lshlrev_b32 v52, 5, v52")
e("v_lshl_add_u32 v52, v55, 3, v52")
e(f"v_add_u32 v52, s{sT}, v52")
e(f"v_bfe_u32 v53, v{vL}, 2, 2")
e(f"v_bfe_u32 v54, v{vL}, 4, 1")
e("v_lshl_add_u32 v53, v54, 3, v53")
e("v_lshl_add_u32 v53, v55, 4, v53")
e("v_lshlrev_b32 v53, 5, v53")
e(f"v_and_b32 v54, 3, v{vL}")
e("v_lshl_add_u32 v53, v54, 3, v53")
e(f"v_add_u32 v53, s{sT}, v53")
e(f"v_lshl_add_u32 v54, v55, 4, v{vL16}")
e(f"v_and_b32 v55, 1, v{vL}")
e("v_mul_u32_u24 v55, 528, v55")
for i in range(4):
    e(f"v_mov_b32 v{56+i}, 0x3f803f80")
e("s_waitcnt lgkmcnt(0)")
e("s_barrier")
stamp(9)
for i in range(8):
    e(f"ds_read_b64_tr_b16 {vr(96+8*(i%5),2)}, v40 offset:{i*1024}")
    e(f"ds_read_b64_tr_b16 {vr(98+8*(i%5),2)}, v40 offset:{i*1024+256}")
    e(f"ds_read_b128 {vr(100+8*(i%5))}, v{41+i}")
    if i >= 3:
        e("s_waitcnt lgkmcnt(9)")
        mfma(64, 96+8*((i-3)%5), 100+8*((i-3)%5), None if i == 3 else 64)
for i in range(5, 8):
    e(f"s_waitcnt lgkmcnt({3*(7-i)})")
    mfma(64, 96+8*(i%5), 100+8*(i%5), 64)
e(f"s_cmp_eq_u32 s{sT2}, 1")
e("s_cbranch_scc1 L_kvf")
e("s_nop 10")
for q in range(4):
    e(f"ds_write_b128 v50, {vr(64+4*q)} offset:{q*1024}")
e("s_waitcnt lgkmcnt(0)")
e("s_barrier")
e("s_branch L_nokv")
lab("L_kvf")
e(f"global_store_dwordx4 v55, v[56:59], {sr(sP)} offset:1536 sc1")
e("s_barrier")
PB = (80, 96, 112)
for c in range(3):
    for q in range(4):
        e(f"ds_read_b128 {vr(PB[c]+4*q)}, v50 offset:{c*4096+q*1024}")
for c in range(3):
    e(f"s_waitcnt lgkmcnt({8-4*c})")
    for r in range(0, 16, 2):
        e(f"v_pk_add_f32 {vr(64+r,2)}, {vr(64+r,2)}, {vr(PB[c]+r,2)}")
for r in range(8, 16, 2):
    e(f"v_cvt_pk_bf16_f32 v{80+r//2}, v{64+r}, v{65+r}")
e("ds_write_b64 v52, v[84:85]")
e("ds_write_b64 v52, v[86:87] offset:16")
e("ds_read_b64_tr_b16 v[88:89], v53")
e("ds_read_b64_tr_b16 v[90:91], v53 offset:128")
for r in range(0, 8, 2):
    e(f"v_cvt_pk_bf16_f32 v{80+r//2}, v{64+r}, v{65+r}")
e(f"global_store_dwordx4 v{vL16}, v[80:83], {sr(sP)} sc1")
e("s_waitcnt lgkmcnt(0)")
e(f"global_store_dwordx4 v54, v[88:91], {sr(sP)} offset:1024 sc1")
stamp(10)
cm("both finishers drain their stores before pipeline barrier 2; wave 2 raises the flag behind it")
e("s_barrier")
early_setup()
e("s_barrier")
e("s_waitcnt vmcnt(0)")
e("s_barrier")
e(f"s_mov_b32 s{sI}, 14")
e(f"s_cmp_lg_u32 s{sT3}, 0")
e("s_cbranch_scc1 L_idle1")
e(f"s_add_u32 s{sT2}, s{sTAG}, {hex(TAGC)}")
e(f"s_lshl_b32 s{sT}, s{sQB}, 7")
e(f"s_add_u32 s{sT}, s{sT}, {WS_KF}")
e(f"v_mov_b32 v20, s{sT}")
e(f"v_mov_b32 v21, s{sT2}")
e("s_mov_b64 exec, 1")
e(f"global_store_dword v20, v21, {sr(sWS)} sc1")
e("s_mov_b64 exec, -1")
stamp(11)
e("s_branch L_idle1")
lab("L_nokv")
early_setup()
for r in range(32):
    e(f"v_mov_b32 v{64+r}, 0")
for r in range(24):
    e(f"v_mov_b32 v{FB[1]+r}, 0")
e(f"s_mov_b32 s{sI}, 4")
e("s_waitcnt lgkmcnt(0)")
e(f"s_cmp_eq_u32 s{sROLE}, 3")
e("s_cbranch_scc1 L_idle")
def p1_mf(st):
    if opt("nomf", 0): return
    for ks in range(2):
        for rt in range(2):
            mfma(ACC[rt], FB[st] + 12*ks, FB[st] + 12*ks + 4 + 4*rt, ACC[rt])
lab("L_p1")
for u in range(4):
    e("s_barrier")
    f = FB[u & 1]
    for ks in range(2 if opt("nomf", 0) < 2 else 0):
        e(f"ds_read_b64_tr_b16 {vr(f+12*ks,2)}, v6 offset:{u*16384+ks*8192}")
        e(f"ds_read_b64_tr_b16 {vr(f+12*ks+2,2)}, v7 offset:{u*16384+ks*8192}")
        for rt in range(2):
            e(f"ds_read_b128 {vr(f+12*ks+4+4*rt)}, v{8+2*u+ks} offset:{rt*8192}")
        e(f"v_add_u32 v{8+2*u+ks}, 0x4000, v{8+2*u+ks}")
    p1_mf((u + 1) & 1)
    e("s_waitcnt lgkmcnt(0)")
e(f"s_sub_u32 s{sI}, s{sI}, 1")
e(f"s_cmp_lg_u32 s{sI}, 0")
e("s_cbranch_scc1 L_p1")
e("s_barrier")
p1_mf(1)
stamp(2)
e(f"s_cmp_eq_u32 s{sROLE}, 0")
e(f"s_mov_b32 s{sC}, {hex(f2u(-LOG2E))}")
e(f"s_cselect_b32 s{sC}, {hex(f2u(0.25*LOG2E))}, s{sC}")
e(f"s_mov_b32 s{sC+1}, s{sC}")
e("s_nop 7")
if opt("sp", 0): e("s_setprio 3")
e("s_cbranch_scc0 L_epiH")
e("s_setprio 3")
for r in range(0, 32, 2):
    e(f"v_pk_mul_f32 {vr(64+r,2)}, {vr(64+r,2)}, {sr(sC)}")
for r in range(0, 32, 2):
    e(f"v_cvt_pk_bf16_f32 v{96+r//2}, v{64+r}, v{65+r}")
e(f"s_lshl_b32 s{sT}, s{sWAVE}, 12")
e(f"s_add_u32 s{sT}, s{sT}, {L_Q}")
e(f"v_add_u32 v32, s{sT}, v{vL16}")
for rt in range(2):
    for i in range(2):
        e(f"ds_write_b128 v32, {vr(96+rt*8+i*4)} offset:{i*2048+rt*1024}")
e("s_waitcnt lgkmcnt(0)")
lds_signal(C_B2, 12, 13)
e("s_branch L_p1done")
lab("L_idle")
e(f"s_mov_b32 s{sI}, 17")
lab("L_idle1")
e("s_barrier")
e(f"s_sub_u32 s{sI}, s{sI}, 1")
e(f"s_cmp_lg_u32 s{sI}, 0")
e("s_cbranch_scc1 L_idle1")
e("s_branch L_p1done")
if opt("gap", 0): L.append(".p2align 12, 0")
lab("L_epiH")
for rt in range(2):
    a = ACC[rt]
    for r in range(0, 16, 2):
        e(f"v_pk_mul_f32 {vr(96+r,2)}, {vr(a+r,2)}, {sr(sC)}")
    for r in range(16):
        e(f"v_exp_f32 v{96+r}, v{96+r}")
    for r in range(0, 16, 2):
        e(f"v_pk_add_f32 {vr(96+r,2)}, {vr(96+r,2)}, 1.0 op_sel_hi:[1,0]")
    for r in range(16):
        e(f"v_rcp_f32 v{96+r}, v{96+r}")
    for r in range(0, 16, 2):
        e(f"v_pk_mul_f32 {vr(96+r,2)}, {vr(96+r,2)}, {vr(a+r,2)}")
    for r in range(0, 16, 2):
        e(f"v_cvt_pk_bf16_f32 v{132+rt*8+r//2}, v{96+r}, v{97+r}")
lab("L_p1done")
Q = 16
KF = [20, 24]
V0 = [28, 32]
V1 = [36, 40]
P = [48, 56]
S = [64, 80]
C = 96
O = 112
vK, vV0, vV = 10, 148, 11
def att_zero(full=True):
    if full:
        for r in range(16):
            e(f"v_mov_b32 v{O+r}, 0")
    for r in range(4):
        e(f"v_mov_b32 v{V1[1]+r}, 0")
    for r in range(8, 16):
        e(f"v_mov_b32 v{S[1]+r}, 0")
att_zero(False)
stamp(3)
lds_spin("b2a", C_B2, 6, 12, 13, slp=1)
stamp(4)
if STAMPS: e("s_memrealtime s[88:89]")
e("s_setprio 3")
e(f"ds_read_b128 {vr(Q)}, v149")
e(f"ds_read_b128 {vr(KF[0])}, v{vL16}")
def att_first_loads():
    e(f"ds_read_b128 {vr(KF[1])}, v{vL16} offset:{TILE}")
    e(f"ds_read_b128 {vr(V0[0])}, v{vV0}")
    e(f"ds_read_b128 {vr(V0[1])}, v{vV0} offset:{TILE}")
    e(f"ds_read_b128 {vr(V1[0])}, v{vV0} offset:528")
att_first_loads()
HST = opt("hst", 0)
e("s_waitcnt lgkmcnt(4)")
mfma(S[0], KF[0], Q, None)
lds_signal(C_QR, 12, 13)
if HST:
    cm("poison this wave's O slot and publish its H tile")
    e(f"global_store_dwordx4 v{vL16}, v[128:131], {sr(sO)} sc1")
    e(f"s_cmp_lg_u32 s{sROLE}, 2")
    e("s_cbranch_scc1 L_noh")
    for rt in range(2):
        for ks in range(2):
            e(f"global_store_dwordx4 v{vL16}, {vr(132+rt*8+ks*4)}, {sr(sH)} offset:{ks*2048+rt*1024} sc1")
    lab("L_noh")
e("s_nop 6")
e(f"v_max3_f32 v12, v{S[0]}, v{S[0]+1}, v{S[0]+2}")
for r in range(3, 15, 2):
    e(f"v_max3_f32 v12, v12, v{S[0]+r}, v{S[0]+r+1}")
e(f"v_max_f32 v12, v12, v{S[0]+15}")
lab("L_att_setC")
e("v_mov_b32 v14, v12")
e(f"v_mov_b32 v{vK}, v{vL16}")
e(f"v_mov_b32 v{vV}, v{vV0}")
e("v_permlane32_swap_b32 v12, v14")
e(f"s_mov_b32 s{sI}, 0")
e("s_nop 0")
e("v_max_f32 v12, v12, v14")
for r in range(16):
    e(f"v_sub_f32 v{C+r}, 0, v12")
e("s_waitcnt lgkmcnt(0)")
e("s_nop 0")
mfma(S[0], KF[0], Q, C)
e(f"ds_read_b128 {vr(KF[0])}, v{vL16} offset:{2*TILE}")
e("s_setprio 2")
e("s_nop 9")
stamp(5)
UN = 8
def ex(x, r): e(f"v_exp_f32 v{S[x]+r}, v{S[x]+r}")
def pv(a, b): e(f"v_smfmac_f32_32x32x32_bf16 {vr(O,16)}, {vr(a)}, {vr(b,8)}, v153")
L.append(".p2align 6")
lab("L_att_loop")
for u in range(UN):
    x = u & 1; y = 1 - x
    if u == 5:
        e(f"s_bitcmp1_b32 s{sCHK}, s{sI}")
        e("s_cbranch_scc1 L_att_chk")
        lab("L_att_chk_ret")
    ex(x, 0); ex(x, 1)
    pv(V1[y], S[y] + 8)
    e(f"ds_read_b128 {vr(V1[y])}, v{vV} offset:{(u+1)*TILE+528}")
    for r in range(2, 7): ex(x, r)
    mfma(S[y], KF[y], Q, C)
    e(f"ds_read_b128 {vr(KF[y])}, v{vK} offset:{(u+3)*TILE}")
    for r in range(7, 12): ex(x, r)
    pv(V0[x], S[x])
    e("s_waitcnt lgkmcnt(2)")
    e(f"ds_read_b128 {vr(V0[x])}, v{vV} offset:{(u+2)*TILE}")
    for r in range(12, 16): ex(x, r)
if DIAG == 2:
    e("s_memtime s[100:101]")
    e("s_waitcnt lgkmcnt(0)")
    e(f"s_mov_b32 m0, s{sI}")
    e("s_nop 0")
    e("v_writelane_b32 v160, s100, m0")
e(f"v_add_u32 v{vK}, {UN*TILE}, v{vK}")
e(f"v_add_u32 v{vV}, {UN*TILE}, v{vV}")
e(f"s_add_u32 s{sI}, s{sI}, 1")
e(f"s_cmp_lt_u32 s{sI}, {64//UN - opt('lastp', 2)}")
e("s_cbranch_scc1 L_att_loop")
e("s_setprio 0")
e(f"s_cmp_lt_u32 s{sI}, {64//UN}")
e("s_cbranch_scc1 L_att_loop")
e("s_setprio 3")
e(f"s_and_b32 s{sT}, s{sWAVE}, 1")
e(f"s_lshl_b32 s{sT}, s{sT}, 7")
pv(V1[1], S[1] + 8)
stamp(6)
e(f"s_add_u32 s{sT}, s{sT}, {L_G}")
e(f"v_and_b32 v12, 31, v{vL}")
e(f"v_lshl_add_u32 v12, v12, 2, s{sT}")
e("ds_read_b32 v14, v12")
e(f"s_mov_b32 s{sT}, {hex(f2u(2.0**86))}")
e("v_mov_b32 v13, 0x207")
e("s_nop 6")
cm("safety check of the stand-in max: l < 2^42 and O finite, else redo with the true row max")
e(f"v_mul_f32 v12, s{sT}, v{O}")
for r in range(8, 16):
    e(f"v_add_f32 v12, v12, abs(v{O+r})")
e("v_cmp_class_f32 vcc, v12, v13")
e(f"v_rcp_f32 v12, v{O}")
e("s_cbranch_vccz L_att_ok")
e(f"s_cmp_eq_u32 s{sRETRY}, 0")
e("s_cbranch_scc1 L_att_truemax")
lab("L_att_ok")
e("s_waitcnt lgkmcnt(0)")
e("v_mul_f32 v12, v12, v14")
for r in range(8, 16):
    e(f"v_mul_f32 v{O+r}, v{O+r}, v12")
for i in range(4):
    e(f"v_cvt_pk_bf16_f32 v{P[0]+i}, v{O+8+2*i}, v{O+9+2*i}")
for i in range(4):
    e(f"v_min_u32 v{P[0]+i}, -2, v{P[0]+i}")
e(f"global_store_dwordx4 v{vL16}, {vr(P[0])}, {sr(sO)} sc1")
lds_signal(C_OD, 12, 13)
stamp(7)
if STAMPS: e("s_memrealtime s[96:97]")
e("s_branch L_fin")
if opt("gap", 0): L.append(".p2align 12, 0")
lab("L_att_chk")
e(f"s_cmp_eq_u32 s{sI}, 1")
e("s_cbranch_scc1 L_att_chk1")
e(f"s_lshl1_add_u32 s{sT2}, s{sI}, {0}")
e(f"s_add_u32 s{sT2}, s{sT2}, {C_KA}")
lds_spin("att_chk2", f"s{sT2}", 4, 12, 13)
def h_stores(skip):
    e(f"global_store_dwordx4 v{vL16}, v[128:131], {sr(sO)} sc1")
    e(f"s_cmp_lg_u32 s{sROLE}, 2")
    e(f"s_cbranch_scc1 {skip}")
    for rt in range(2):
        for ks in range(2):
            e(f"global_store_dwordx4 v{vL16}, {vr(132+rt*8+ks*4)}, {sr(sH)} offset:{ks*2048+rt*1024} sc1")
if not HST:
    e(f"s_cmp_lg_u32 s{sI}, 0")
    e("s_cbranch_scc1 L_att_chk_ret")
    h_stores("L_att_chk_ret")
e("s_branch L_att_chk_ret")
lab("L_att_chk1")
cm("H / poison stores of this wave have drained; the last wave to get here publishes H")
e("s_waitcnt vmcnt(0)")
e(f"v_mov_b32 v12, {C_HD}")
e("v_mov_b32 v13, 1")
e("s_mov_b64 exec, 1")
e("ds_add_rtn_u32 v13, v12, v13")
e(f"s_lshl_b32 s{sT}, s{sQB}, 7")
e(f"s_lshl2_add_u32 s{sT}, s{sHG}, s{sT}")
e(f"s_add_u32 s{sT}, s{sT}, {WS_FL}")
e(f"s_add_u32 s{sT2}, s{sTAG}, {hex(TAGC)}")
e("s_waitcnt lgkmcnt(0)")
e("v_cmp_eq_u32 vcc, 7, v13")
e("s_cbranch_vccz L_att_chk1b")
e(f"v_mov_b32 v12, s{sT}")
e(f"v_mov_b32 v13, s{sT2}")
e(f"global_store_dword v12, v13, {sr(sWS)} sc1")
lab("L_att_chk1b")
e("s_mov_b64 exec, -1")
e("s_setprio 1")
e("s_branch L_att_chk_ret")
lab("L_att_truemax")
e(f"s_mov_b32 s{sRETRY}, 1")
e(f"s_mov_b32 s{sCHK}, 0")
e("v_mov_b32 v12, 0xff800000")
e(f"v_mov_b32 v{vK}, v{vL16}")
e(f"s_mov_b32 s{sI}, 0")
lab("L_att_tm")
e(f"ds_read_b128 {vr(KF[0])}, v{vK}")
e(f"v_add_u32 v{vK}, {TILE}, v{vK}")
e("s_waitcnt lgkmcnt(0)")
mfma(S[0], KF[0], Q, None)
e("s_nop 15")
for r in range(0, 16, 2):
    e(f"v_max3_f32 v12, v12, v{S[0]+r}, v{S[0]+r+1}")
e(f"s_add_u32 s{sI}, s{sI}, 1")
e(f"s_cmp_lt_u32 s{sI}, 64")
e("s_cbranch_scc1 L_att_tm")
e(f"ds_read_b128 {vr(KF[0])}, v{vL16}")
att_first_loads()
att_zero()
e("s_branch L_att_setC")

if opt("gap", 0): L.append(".p2align 12, 0")
lab("L_g4")
e("s_setprio 3")
for perm in ("quad_perm:[1,0,3,2]", "quad_perm:[2,3,0,1]"):
    if perm.endswith("2]"): e("v_add_f32 v14, v14, v15")
    e("s_nop 1")
    e(f"v_add_f32_dpp v14, v14, v14 {perm} row_mask:0xf bank_mask:0xf")
e(f"v_mul_f32 v14, {hex(f2u(-LOG2E))}, v14")
e("v_exp_f32 v14, v14")
e(f"s_lshl_b32 s{sT}, s{sV}, 6")
e(f"s_add_u32 s{sT}, s{sT}, {L_G}")
e("v_add_f32 v14, 1.0, v14")
e("v_rcp_f32 v14, v14")
e(f"v_and_b32 v12, 60, v{vL}")
e(f"v_add_u32 v12, s{sT}, v12")
e("ds_write_b32 v12, v14")
e("s_barrier")
stamp(2)
e(f"s_cmp_lg_u32 s{sFAST}, 0")
e("s_cbranch_scc1 L_kvfast")
tag_poll("kvpoll", 30, 31, sWS, 4)
for j in range(3):
    dma_lin(sXM, 4, j*16384)
lab("L_kvfast")
stamp(3)
cm("K/V: pieces 0..31 gate the start, 32..63 -> C_KA, 64..129 -> C_KB")
dma_lin(sXM, 4, 49152)
e("s_waitcnt vmcnt(8)")
lds_signal(C_B2, 12, 13)
stamp(4)
e(f"s_lshl_b32 s{sT3}, s{sV}, 14")
dma_lin(sT3, 4, 65536)
e("s_waitcnt vmcnt(4)")
lds_signal(C_KA, 12, 13)
dma_lin(sT3, 12, 65536 + 4096)
e(f"s_cmp_lg_u32 s{sV}, 0")
e("s_cbranch_scc1 L_g5")
dma_kv_one(128 * 1024)
dma_kv_one(129 * 1024)
lab("L_g5")
tr_lane(7, 32, 33)
e(f"s_lshl_b32 s{sT}, s{sQB}, 7")
e(f"s_add_u32 s{sT}, s{sT}, {WS_FL}")
add64(sFL, sWS, off_s=sT)
e(f"s_mul_i32 s{sT}, s{sQB}, {43*4096}")
e(f"s_add_u32 s{sT}, s{sT}, {WS_H}")
add64(sH, sWS, off_s=sT)
e(f"s_lshl2_add_u32 s{sT}, s{sQB}, s{sV}")
e(f"s_lshl_b32 s{sT}, s{sT}, 14")
e(f"s_add_u32 s{sT}, s{sT}, {WS_O}")
add64(sO, sWS, off_s=sT)
cm("weight piece lane offsets v8/v9 (8 rows x 128B -> [rg][ct][4 rows][64B]); ring read address v7")
e(f"v_lshrrev_b32 v32, 5, v{vL}")
e(f"v_bfe_u32 v33, v{vL}, 2, 2")
e("v_lshl_add_u32 v32, v32, 2, v33")
e("v_lshlrev_b32 v8, 10, v32")
e(f"v_bfe_u32 v33, v{vL}, 4, 1")
e("v_lshl_add_u32 v8, v33, 6, v8")
e(f"v_and_b32 v33, 3, v{vL}")
e("v_lshl_add_u32 v8, v33, 4, v8")
e("v_add_u32 v9, 0x2000, v8")
e(f"s_mul_i32 s{sRING}, s{sV}, {R2SZ}")
e(f"s_add_u32 s{sRING}, s{sRING}, {L_UP}")
e(f"v_add_u32 v3, s{sRING}, v7")
cm("slot j of the accumulators holds tile j^v: ct ^= v>>1 (v3/v10), rt ^= v&1 (v11/v7)")
e(f"s_lshr_b32 s{sT}, s{sV}, 1")
e(f"s_lshl_b32 s{sT}, s{sT}, 8")
e(f"v_add_u32 v3, s{sT}, v3")
e("v_xor_b32 v10, 0x100, v3")
e(f"s_and_b32 s{sT}, s{sV}, 1")
e(f"s_lshl_b32 s{sT}, s{sT}, 10")
e(f"v_add_u32 v11, s{sT}, v{vL16}")
e("v_xor_b32 v0, 0x400, v11")
e("s_waitcnt vmcnt(0)")
lds_signal(C_KB, 12, 13)
stamp(5)
if opt("w2t", 0):
    cm("pull this workgroup's share of the w2 slice into L2: rows 8*(64v+l) + (qb&7), v<3")
    e(f"s_and_b32 s{sT}, s{sQB}, 7")
    e(f"s_lshl_b32 s{sT2}, s{sV}, 9")
    e(f"s_add_u32 s{sT}, s{sT}, s{sT2}")
    e(f"v_lshl_add_u32 v12, v{vL}, 3, s{sT}")
    e("v_min_u32 v12, 1375, v12")
    e(f"s_lshl_b32 s{sT}, s{sHG}, 7")
    e(f"v_lshl_add_u32 v12, v12, 10, s{sT}")
    e(f"global_load_dword v14, v12, {sr(sW2)}")
lds_spin("qr", C_QR, 8, 12, 13, slp=4)
GA = [100, 116, 132, 148]
def ring_issue(slot, base):
    e(f"s_add_u32 m0, s{sRING}, {slot*2048}")
    e("s_nop 0")
    e(f"global_load_lds_dwordx4 v8, {sr(base)}")
    e(f"s_add_u32 m0, s{sRING}, {slot*2048+1024}")
    e("s_nop 0")
    e(f"global_load_lds_dwordx4 v9, {sr(base)}")
def ring_read(slot, ct, dst):
    e(f"ds_read_b64_tr_b16 {vr(dst,2)}, v{(3, 10)[ct]} offset:{slot*2048}")
    e(f"ds_read_b64_tr_b16 {vr(dst+2,2)}, v{(3, 10)[ct]} offset:{slot*2048+1024}")
WOF = opt("wof", 1)
def wo_block():
    e("s_waitcnt vmcnt(0)")
    e(f"s_lshl_b32 s{sT}, s{sV}, 17")
    e(f"s_lshl_b32 s{sT2}, s{sHG}, 7")
    e(f"s_add_u32 s{sT}, s{sT}, s{sT2}")
    add64(sP, sWO, off_s=sT)
    for ks in range(3):
        ring_issue(ks, sP)
        add64(sP, sP, imm=16384)
    for ks in range(8):
        e(f"s_waitcnt vmcnt({2*min(2, 7-ks)})")
        ring_read(ks % 3, 0, 36 + 8*ks)
        ring_read(ks % 3, 1, 40 + 8*ks)
        if ks + 3 < 8:
            e("s_waitcnt lgkmcnt(0)")
            ring_issue(ks % 3, sP)
            add64(sP, sP, imm=16384)
    e("s_waitcnt lgkmcnt(0)")
if WOF: wo_block()
stamp(6)
e(f"s_cmp_lg_u32 s{sV}, 0")
e("s_cbranch_scc1 L_g6")
e(f"v_mov_b32 v13, s{sTAG}")
e("s_mov_b64 exec, 1")
cm("this workgroup has read the epoch; the last workgroup to get here advances it")
e("v_mov_b32 v12, 0")
e("v_mov_b32 v14, 1")
e(f"global_atomic_add v15, v12, v14, {sr(sDBG)} sc0 sc1")
e("s_waitcnt vmcnt(0)")
e("v_cmp_eq_u32 vcc, 0xff, v15")
e("s_cbranch_vccz L_g6a")
e(f"v_mov_b32 v12, {WS_NONCE}")
e(f"global_store_dword v12, v13, {sr(sWS)} sc1")
lab("L_g6a")
e("s_mov_b64 exec, -1")
lab("L_g6")
e(f"v_and_b32 v12, 7, v{vL}")
e("v_lshlrev_b32 v12, 2, v12")
tag_poll("hpoll", 12, 13, sFL, 8)
stamp(7)
if opt("ht", 0):
    cm("pull this workgroup's share of H into L2: lines 4*(64*i+l) + (hg&3) of this wave's k range")
    e(f"s_mul_i32 s{sT}, s{sV}, {22*2048}")
    e(f"s_and_b32 s{sT2}, s{sHG}, 3")
    e(f"s_lshl_b32 s{sT2}, s{sT2}, 7")
    e(f"s_add_u32 s{sT}, s{sT}, s{sT2}")
    e(f"v_lshl_add_u32 v12, v{vL}, 9, s{sT}")
    e(f"global_load_dword v164, v12, {sr(sH)} sc1")
    e(f"v_min_u32 v14, 23, v{vL}")
    e(f"v_lshl_add_u32 v12, v14, 9, s{sT}")
    e("v_add_u32 v12, 0x8000, v12")
    e(f"v_min_u32 v12, {43*4096-4}, v12")
    e(f"global_load_dword v165, v12, {sr(sH)} sc1")
HB = [12, 20, 28]
GAF = [4, 164]
NA = opt("na", 22); NBB = 43 - NA
e(f"s_mul_i32 s{sT}, s{sV}, {NA}")
e(f"s_cmp_eq_u32 s{sV}, 3")
e(f"s_cselect_b32 s{sT}, {2*NA + NBB}, s{sT}")
e(f"s_cmp_ge_u32 s{sV}, 2")
e(f"s_cselect_b32 s{sI}, {NBB}, {NA}")
e(f"s_sub_u32 s{sN}, s{sI}, 1")
e(f"s_lshl_b32 s{sT2}, s{sT}, 14")
e(f"s_lshl_b32 s{sT3}, s{sHG}, 7")
e(f"s_add_u32 s{sT2}, s{sT2}, s{sT3}")
add64(sP, sW2, off_s=sT2)
e(f"s_lshl_b32 s{sT}, s{sT}, 11")
add64(sP2, sH, off_s=sT)
def g2_h(slot):
    for rt in range(2):
        e(f"global_load_dwordx4 {vr(HB[slot]+4*rt)}, v{(11, 0)[rt]}, {sr(sP2)} sc1")
def g2_adv():
    e(f"s_cmp_lg_u32 s{sN}, 0")
    e(f"s_cselect_b32 s{sT}, 16384, 0")
    e(f"s_cselect_b32 s{sT2}, 2048, 0")
    e(f"s_cselect_b32 s{sT3}, 1, 0")
    e(f"s_sub_u32 s{sN}, s{sN}, s{sT3}")
    add64(sP, sP, off_s=sT)
    add64(sP2, sP2, off_s=sT2)
def g2_step(slot, first):
    def m(ct, rt):
        a = GA[ct*2+rt]
        mfma(a, GAF[ct], HB[slot] + 4*rt, None if first else a)
    e("s_waitcnt vmcnt(8)")
    ring_read(slot, 0, GAF[0])
    e("s_waitcnt lgkmcnt(0)")
    m(0, 0)
    ring_read(slot, 1, GAF[1])
    e("s_waitcnt lgkmcnt(0)")
    m(0, 1)
    e(f"s_add_u32 m0, s{sRING}, {slot*2048}")
    e("s_nop 0")
    e(f"global_load_lds_dwordx4 v8, {sr(sP)}")
    m(1, 0)
    e(f"s_add_u32 m0, s{sRING}, {slot*2048+1024}")
    e("s_nop 0")
    e(f"global_load_lds_dwordx4 v9, {sr(sP)}")
    m(1, 1)
    g2_h(slot)
    g2_adv()
for k in range(3):
    ring_issue(k, sP); g2_h(k); g2_adv()
g2_step(0, True)
e(f"s_sub_u32 s{sI}, s{sI}, 1")
lab("L_g2loop")
for slot in (1, 2, 0):
    g2_step(slot, False)
    e(f"s_sub_u32 s{sI}, s{sI}, 1")
    e(f"s_cmp_eq_u32 s{sI}, 0")
    e("s_cbranch_scc1 L_g2done" if slot != 0 else "s_cbranch_scc0 L_g2loop")
lab("L_g2done")
stampx(8)
if not WOF: wo_block()
e(f"s_and_b32 s{sT}, s{sV}, 1")
e(f"s_lshl_b32 s{sT}, s{sT}, 7")
e(f"s_add_u32 s{sT}, s{sT}, {L_G}")
e(f"v_and_b32 v4, 31, v{vL}")
e(f"v_lshl_add_u32 v4, v4, 2, s{sT}")
e("v_xor_b32 v5, 0x80, v4")
e("ds_read_b32 v6, v4")
e("ds_read_b32 v8, v5")
e("s_waitcnt vmcnt(0) lgkmcnt(0)")
e("v_sub_f32 v6, 1.0, v6")
e("v_sub_f32 v8, 1.0, v8")
e("s_nop 3")
for t in range(4):
    for r in range(0, 16, 2):
        e(f"v_pk_mul_f32 {vr(GA[t]+r,2)}, {vr(GA[t]+r,2)}, {vr(6+2*(t&1),2)} op_sel_hi:[1,0]")
cm("tail: slot j goes to LDS [(j^v)*3 + j-1]*4096 ; v3 = own collection base; v165/v0 = O offsets; v166 = output offset")
e("v_mov_b32 v165, v11")
e(f"s_mul_i32 s{sT3}, s{sV}, 12288")
e(f"v_add_u32 v3, s{sT3}, v{vL16}")
e(f"v_and_b32 v166, 31, v{vL}")
e("v_lshlrev_b32 v166, 10, v166")
e(f"v_lshrrev_b32 v12, 5, v{vL}")
e("v_lshl_add_u32 v166, v12, 4, v166")
e(f"s_and_b32 s{sT}, s{sV}, 1")
e(f"s_lshl1_add_u32 s{sT}, s{sQB}, s{sT}")
e(f"s_lshl_b32 s{sT}, s{sT}, 15")
e(f"s_lshr_b32 s{sT2}, s{sV}, 1")
e(f"s_lshl1_add_u32 s{sT2}, s{sHG}, s{sT2}")
e(f"s_lshl_b32 s{sT2}, s{sT2}, 6")
e(f"s_add_u32 s{sT}, s{sT}, s{sT2}")
add64(sB0, sOUT, off_s=sT)
add64(sP2, sO, imm=8192)
for j in range(1, 4):
    e(f"s_xor_b32 s{sC+j-1 if j < 3 else sN}, s{sV}, {j}")
    e(f"s_mul_i32 s{sC+j-1 if j < 3 else sN}, s{sC+j-1 if j < 3 else sN}, 12288")
OB = 4
for b in range(2):
    if b == 0:
        e(f"s_setprio {opt('b0prio', 0)}")
        lds_spin("od0", C_OD, 4, 164, 167, slp=4)
        stampx(9)
    else:
        e("s_setprio 3")
        lds_spin("od1", C_OD, 8, 164, 167, slp=1)
        stampx(10)
    e(f"s_mov_b32 s{sSPIN}, {SPIN}")
    lab(f"L_opoll{b}")
    for p in range(2):
        for j in range(4):
            e(f"global_load_dwordx4 {vr(OB+16*p+4*j)}, v{(165, 0)[j&1]}, {sr(sO if p == 0 else sP2)} offset:{(j>>1)*2048} sc1")
    e("v_mov_b32 v164, 0")
    for p in range(2):
        e(f"s_waitcnt vmcnt({4-4*p})")
        for r in range(0, 16, 2):
            e(f"v_max3_u32 v164, v164, v{OB+16*p+r}, v{OB+1+16*p+r}")
    e("v_cmp_eq_u32 vcc, -1, v164")
    e(f"s_cbranch_vccz L_ook{b}")
    if b == 0: e("s_sleep 4")
    e(f"s_sub_u32 s{sSPIN}, s{sSPIN}, 1")
    e(f"s_cmp_lg_u32 s{sSPIN}, 0")
    e(f"s_cbranch_scc1 L_opoll{b}")
    lab(f"L_ook{b}")
    if b == 1: stampx(11)
    def chain(j):
        ct, rt = j >> 1, j & 1
        for p in range(2):
            for hh in range(2):
                ks = 4*p + 2*b + hh
                mfma(GA[j], 36 + 8*ks + 4*ct, OB + 16*p + 8*hh + 4*rt, GA[j])
    def wr(j):
        e(f"v_add_u32 v164, s{sC+j-1 if j < 3 else sN}, v{vL16}")
        for qq in range(4):
            e(f"ds_write_b128 v164, {vr(GA[j]+4*qq)} offset:{(j-1)*4096+qq*1024}")
    if b == 0:
        for j in range(4): chain(j)
        add64(sO, sO, imm=4096)
        add64(sP2, sP2, imm=4096)
    else:
        chain(3); chain(2); chain(1)
        e("s_nop 2")
        wr(3)
        chain(0)
        wr(2)
        wr(1)
e("s_waitcnt lgkmcnt(0)")
if opt("bar", 1):
    e("s_barrier")
else:
    lds_signal(C_RED, 4, 5)
    lds_spin("red", C_RED, 4, 4, 5, slp=0)
stampx(12)
for c in range(3):
    for q in range(4):
        e(f"ds_read_b128 {vr(36+16*c+4*q)}, v3 offset:{c*4096+q*1024}")
for c in range(3):
    e(f"s_waitcnt lgkmcnt({8-4*c})")
    for r in range(0, 16, 2):
        e(f"v_pk_add_f32 {vr(GA[0]+r,2)}, {vr(GA[0]+r,2)}, {vr(36+16*c+r,2)}")
for i in range(8):
    e(f"v_cvt_pk_bf16_f32 v{16+i}, v{GA[0]+2*i}, v{GA[0]+1+2*i}")
e("s_nop 1")
for p in range(2):
    e(f"v_permlane32_swap_b32 v{16+4*p}, v{18+4*p}")
    e(f"v_permlane32_swap_b32 v{17+4*p}, v{19+4*p}")
for p in range(2):
    e(f"global_store_dwordx4 v166, {vr(16+4*p)}, {sr(sB0)} offset:{32*p}" + ("", " sc1", " nt")[opt("outf", 0)])
if LITE:
    cm("LITE")
    e("s_waitcnt vmcnt(0)")
    e("s_memrealtime s[72:73]")
    e(f"s_lshl2_add_u32 s{sT}, s2, s{sV}")
    e(f"s_lshl_b32 s{sT}, s{sT}, 3")
    e(f"s_add_u32 s{sT}, s{sT}, {WS_ST}")
    e(f"v_mov_b32 v12, s{sT}")
    e("s_waitcnt lgkmcnt(0)")
    e("v_mov_b32 v14, s70")
    e("v_mov_b32 v15, s72")
    e("s_mov_b64 exec, 1")
    e(f"global_store_dwordx2 v12, v[14:15], {sr(sWS)}")
lab("L_fin")
if opt("dbgt", 0):
    e("s_waitcnt vmcnt(0)")
    e("s_memrealtime s[100:101]")
    e("s_memtime s[98:99]")
    e("s_waitcnt lgkmcnt(0)")
    e("s_mov_b64 exec, 1")
    e("v_mov_b32 v12, 0")
    e("s_not_b32 s3, s70")
    e("v_mov_b32 v13, s3")
    e(f"global_atomic_umax v12, v13, {sr(sDBG)} offset:4 sc1")
    e("v_mov_b32 v14, s100")
    e(f"global_atomic_umax v12, v14, {sr(sDBG)} offset:8 sc1")
    e("v_mov_b32 v15, s70")
    e(f"global_atomic_umax v12, v15, {sr(sDBG)} offset:12 sc1")
    e("s_cmp_lg_u32 s2, 100")
    e("s_cbranch_scc1 L_end")
    e(f"s_cmp_eq_u32 s{sWAVE}, 7")
    e("s_cbranch_scc0 L_dg")
    for k, i in enumerate((9, 1, 2, 4, 7, 13)):
        e(f"s_sub_u32 s3, s{72+2*i}, s72")
        e("v_mov_b32 v13, s3")
        e(f"global_store_dword v12, v13, {sr(sDBG)} offset:{16+4*k}")
    e("s_branch L_end")
    lab("L_dg")
    e(f"s_cmp_eq_u32 s{sWAVE}, 8")
    e("s_cbranch_scc0 L_end")
    for k, i in enumerate((3, 5, 8, 11, 12, 13)):
        e(f"s_sub_u32 s3, s{72+2*i}, s72")
        e("v_mov_b32 v13, s3")
        e(f"global_store_dword v12, v13, {sr(sDBG)} offset:{40+4*k}")
elif STAMPS:
    e("s_waitcnt vmcnt(0)")
    stamp(13)
    e("s_memrealtime s[100:101]")
    e("s_waitcnt lgkmcnt(0)")
    e(f"s_lshl_b32 s{sT}, s2, 4")
    e(f"s_add_u32 s{sT}, s{sT}, s{sWAVE}")
    e(f"s_lshl_b32 s{sT}, s{sT}, 7")
    e(f"s_add_u32 s{sT}, s{sT}, {WS_ST}")
    add64(sP, sWS, off_s=sT)
    if DIAG == 2:
        e(f"v_lshlrev_b32 v12, 2, v{vL}")
        e("s_mov_b64 exec, 0xff")
        e(f"global_store_dword v12, v160, {sr(sP)} offset:64")
    e("v_mov_b32 v12, 0")
    e("s_mov_b64 exec, 1")
    for i in range(16):
        e(f"v_mov_b32 v13, s{70+2*i}")
        e(f"global_store_dword v12, v13, {sr(sP)} offset:{4*i}")
    e("s_waitcnt vmcnt(0)")
lab("L_end")
e("s_endpgm")
lab("L_code_end")

HEAD = open(f"cdna_kernels/{NAME}.s.ref").read().split("; Override launch geometry")[0]
src = HEAD + f"""; @launch grid=(256,1,1) block=(768,1,1) lds={LDS_TOTAL}
.amdgcn_target "amdgcn-amd-amdhsa--gfx950"
.text
.globl {NAME}_kernel
.p2align 8
.type {NAME}_kernel,@function
{NAME}_kernel:
""" + "\n".join(L) + f"""
.section .rodata,"a"
.p2align 6
.amdhsa_kernel {NAME}_kernel
  .amdhsa_next_free_vgpr 168
  .amdhsa_next_free_sgpr 102
  .amdhsa_accum_offset 168
  .amdhsa_group_segment_fixed_size 0
  .amdhsa_kernarg_size 96
  .amdhsa_user_sgpr_count 2
  .amdhsa_user_sgpr_kernarg_segment_ptr 1
  .amdhsa_system_sgpr_workgroup_id_x 1
.end_amdhsa_kernel
"""
open(OUT, "w").write(src)
print("wrote", OUT, len(L), "lines")
```

```python
import sys, struct

NAME = "gated_mix__grouped_kv_mqa__dense_activation_silu__prompt"
STAMPS = "--stamps" in sys.argv
def opt(name, default):
    for a in sys.argv[1:]:
        if a.startswith(f"--{name}="): return int(a.split("=")[1])
    return default
OUT = [a for a in sys.argv[1:] if not a.startswith("--")]
OUT = OUT[0] if OUT else f"cdna_kernels/{NAME}.s"
DIAG = opt("diag", 0)
LITE = opt("lite", 0)

def f2u(x): return struct.unpack("<I", struct.pack("<f", x))[0]
LOG2E = 1.4426950408889634

TILE = 2080
KVBYTES = 64 * TILE
L_X = 66560
L_UP = KVBYTES
L_Q = L_UP
L_KVP = L_UP
L_VT = L_UP + 24576
L_WKV = 32768
R2SZ = 6144
L_G = L_UP + 28672
L_CNT = L_G + 256
L_GW = L_CNT + 256
LDS_TOTAL = L_GW + 1024
C_KA, C_KB, C_KVP, C_GO, C_RED, C_K1, C_HD, C_OD, C_B2, C_QR = [L_CNT + 4*i for i in range(10)]
WS_KV, WS_FL, WS_H, WS_O, WS_ST = 0, 0x30000, 0x40000, 0x600000, 0x900000
WS_KF = WS_FL + 0x1000
WS_NONCE = WS_FL + 0x3000
SPIN = 1 << 16
TAGC = 0x9E3779B1

L = []
def e(s): L.append("    " + s)
def lab(s): L.append(s + ":")
def cm(s): L.append("    ; " + s)
def vr(a, n=4): return f"v[{a}:{a+n-1}]"
def sr(a, n=2): return f"s[{a}:{a+n-1}]"
def stamp(i):
    if STAMPS: e(("s_memrealtime" if opt("rts", 0) else "s_memtime") + f" s[{72+2*i}:{73+2*i}]")

def stampx(i):
    if DIAG != 4: stamp(i)
sX, sWQ, sWK, sWV, sWO, sW1, sW2, sGW, sOUT, sDBG, sWS = 4, 6, 8, 10, 12, 16, 18, 20, 22, 24, 26
sQB, sHG, sWAVE, sV = 28, 29, 30, 31
sJQ, sXM = 32, 33
sB0, sFL, sADV, sROLE, sRING, sN = 34, 36, 38, 39, 40, 41
sHT, sPROD = 42, 43
sKV, sH, sO = 44, 46, 48
sT, sT2, sT3 = 50, 52, 54
sC, sTAG = 56, 58
sSPIN, sI, sCHK, sRETRY = 60, 61, 62, 63
sWB = 14
sP, sP2 = 66, 68
vL, vL16 = 1, 2

def add64(dst, src, off_s=None, imm=None):
    o = f"s{off_s}" if off_s is not None else hex(imm)
    e(f"s_add_u32 s{dst}, s{src}, {o}")
    e(f"s_addc_u32 s{dst+1}, s{src+1}, 0")
def mfma(d, a, b, c):
    cs = "0" if c is None else vr(c, 16)
    e(f"v_mfma_f32_32x32x16_bf16 {vr(d,16)}, {vr(a)}, {vr(b)}, {cs}")
def lds_spin(name, off, want, va, vt, slp=1):
    e(f"v_mov_b32 v{va}, {off}")
    e(f"s_mov_b32 s{sSPIN}, {SPIN*64}")
    lab(f"L_{name}")
    e(f"ds_read_b32 v{vt}, v{va}")
    e("s_waitcnt lgkmcnt(0)")
    e(f"v_readfirstlane_b32 s{sT}, v{vt}")
    e(f"s_sub_u32 s{sSPIN}, s{sSPIN}, 1")
    e(f"s_cmp_eq_u32 s{sSPIN}, 0")
    e(f"s_cbranch_scc1 L_{name}_ok")
    e(f"s_cmp_ge_u32 s{sT}, {want}")
    e(f"s_cbranch_scc1 L_{name}_ok")
    if slp: e(f"s_sleep {slp}")
    e(f"s_branch L_{name}")
    lab(f"L_{name}_ok")
def lds_signal(off, va, vt):
    e(f"v_mov_b32 v{va}, {off}")
    e(f"v_mov_b32 v{vt}, 1")
    e("s_mov_b64 exec, 1")
    e(f"ds_add_u32 v{va}, v{vt}")
    e("s_mov_b64 exec, -1")
def tag_poll(name, va, vt, base, slp):
    e(f"s_mov_b32 s{sSPIN}, {SPIN}")
    lab(f"L_{name}")
    e(f"global_load_dword v{vt}, v{va}, {sr(base)} sc1")
    e("s_waitcnt vmcnt(0)")
    e(f"v_cmp_ne_u32 vcc, s{sTAG}, v{vt}")
    e(f"s_cbranch_vccz L_{name}_ok")
    e(f"s_sleep {slp}")
    e(f"s_sub_u32 s{sSPIN}, s{sSPIN}, 1")
    e(f"s_cmp_lg_u32 s{sSPIN}, 0")
    e(f"s_cbranch_scc1 L_{name}")
    lab(f"L_{name}_ok")
def dma_lin(first_s, n, first_imm=0):
    for j in range(0, n, 4):
        e(f"s_add_u32 s{sT}, s{first_s}, {first_imm + j*1024}")
        e(f"s_mov_b32 m0, s{sT}")
        add64(sP, sKV, off_s=sT)
        for i in range(4):
            e(f"global_load_lds_dwordx4 v{vL16}, {sr(sP)} offset:{i*1024} sc1")
def dma_kv_one(off):
    e(f"s_mov_b32 m0, {off}")
    add64(sP, sKV, imm=off)
    e(f"global_load_lds_dwordx4 v{vL16}, {sr(sP)} sc1")
def tr_lane(dst, t0, t1):
    e(f"v_bfe_u32 v{dst}, v{vL}, 2, 2")
    e(f"v_bfe_u32 v{t0}, v{vL}, 4, 1")
    e(f"v_and_b32 v{t1}, 3, v{vL}")
    e(f"v_lshlrev_b32 v{dst}, 6, v{dst}")
    e(f"v_lshl_add_u32 v{dst}, v{t0}, 5, v{dst}")
    e(f"v_lshl_add_u32 v{dst}, v{t1}, 3, v{dst}")
    e(f"v_lshrrev_b32 v{t0}, 5, v{vL}")
    e(f"v_lshl_add_u32 v{dst}, v{t0}, 9, v{dst}")
e("s_load_dwordx16 s[4:19], s[0:1], 0")
e("s_load_dwordx8 s[20:27], s[0:1], 64")
e("s_cmp_ge_u32 s2, 256")
e("s_cbranch_scc1 L_end")
if STAMPS or LITE: e("s_memrealtime s[70:71]")
stamp(0)
e("v_lshrrev_b32 v5, 6, v0")
e(f"v_and_b32 v{vL}, 63, v0")
e(f"v_readfirstlane_b32 s{sWAVE}, v5")
e(f"v_lshlrev_b32 v{vL16}, 4, v{vL}")
CPF = opt("cpf", 0)
if CPF:
    cm("pull code into L2 at once: wave w < CPF touches 32 lines from 4096*w on")
    e(f"s_cmp_ge_u32 s{sWAVE}, {CPF}")
    e("s_cbranch_scc1 L_nopf")
    e(f"s_getpc_b64 {sr(sT)}")
    e("v_lshlrev_b32 v3, 6, v0")
    e(f"global_load_dword v4, v3, {sr(sT)}")
    lab("L_nopf")
cm("qb = ((wg&7)>>1)*8 + ((wg>>3)&7) ; hg = (wg&1)*4 + (wg>>6) ; producers: wg < 64")
e(f"s_bfe_u32 s{sT}, s2, 0x20001")
e(f"s_bfe_u32 s{sJQ}, s2, 0x30003")
e(f"s_lshl3_add_u32 s{sQB}, s{sT}, s{sJQ}")
e(f"s_and_b32 s{sT}, s2, 1")
e(f"s_lshr_b32 s{sPROD}, s2, 6")
e(f"s_lshl2_add_u32 s{sHG}, s{sT}, s{sPROD}")
cm("stage order s ^ rot, rot = 2*(qb&7) ^ 4*(hg&3)")
e(f"s_lshl_b32 s{sJQ}, s{sJQ}, 1")
e(f"s_lshl_b32 s{sT}, s{sPROD}, 2")
e(f"s_xor_b32 s{sJQ}, s{sJQ}, s{sT}")
e(f"s_and_b32 s{sJQ}, s{sJQ}, {opt('rot', 6)}")
e(f"s_cmp_lt_u32 s{sWAVE}, 8")
e("s_cbranch_scc1 L_aw")

e(f"s_sub_u32 s{sV}, s{sWAVE}, 8")
if opt("gp", 0): e("s_setprio 3")
sWQB, sW1B = 34, 64
cm("X lane offset v20: row 16v + (l>>4) (+4j), 16B unit (l&15) ^ (row&15)")
e(f"v_lshrrev_b32 v16, 4, v{vL}")
e(f"v_and_b32 v17, 15, v{vL}")
e("v_xor_b32 v17, v17, v16")
e("v_lshlrev_b32 v17, 4, v17")
e("v_lshl_add_u32 v20, v16, 10, v17")
for j in range(1, 4):
    e(f"v_xor_b32 v{20+j}, {j*(4096+64)}, v20")
e(f"s_lshl2_add_u32 s{sT2}, s{sQB}, s{sV}")
e(f"s_lshl_b32 s{sT2}, s{sT2}, 14")
e(f"s_lshl_b32 s{sXM}, s{sV}, 12")
cm("row-in-octet v16 = 4*(l>>5) + ((l>>2)&3), v17 = tile bit (l>>4)&1, v18 = (l&3)*16")
e(f"v_lshrrev_b32 v16, 5, v{vL}")
e(f"v_bfe_u32 v19, v{vL}, 2, 2")
e("v_lshl_add_u32 v16, v16, 2, v19")
e(f"s_lshl_b32 s{sT3}, s{sV}, 3")
e(f"v_add_u32 v16, s{sT3}, v16")
e(f"v_bfe_u32 v17, v{vL}, 4, 1")
e(f"v_and_b32 v18, 3, v{vL}")
e("v_lshlrev_b32 v18, 4, v18")
e("v_lshl_add_u32 v24, v17, 6, v18")
e("v_lshl_add_u32 v24, v16, 10, v24")
def x_issue(g):
    e(f"s_xor_b32 s{sT}, s{sJQ}, {4*g}")
    e(f"s_lshr_b32 s{sT}, s{sT}, 2")
    e(f"s_lshl_b32 s{sT}, s{sT}, 8")
    e(f"s_add_u32 m0, s{sXM}, {L_X + g*16384}")
    add64(sP, sP2, off_s=sT)
    for j in range(4):
        if j:
            e(f"s_add_u32 m0, s{sXM}, {L_X + g*16384 + j*1024}")
            e("s_nop 0")
        e(f"global_load_lds_dwordx4 v{20+j}, {sr(sP)}")
e("s_waitcnt lgkmcnt(0)")
stamp(9)
e(f"s_load_dword s{sTAG}, {sr(sWS)}, {hex(WS_NONCE)}")
add64(sP2, sX, off_s=sT2)
x_issue(0)
e(f"s_lshl_b32 s{sT}, s{sHG}, 7")
add64(sWQ, sWQ, off_s=sT)
e(f"s_cmp_eq_u32 s{sHG}, 0")
e("s_cbranch_scc1 L_gprod")
e(f"s_mul_i32 s{sT}, s{sHG}, 384")
e(f"s_sub_u32 s{sT}, s{sT}, 320")
add64(sW1, sW1, off_s=sT)
e(f"v_add_u32 v19, s{sT3}, v19")
e("v_mul_u32_u24 v25, 2752, v19")
e(f"v_lshrrev_b32 v26, 4, v{vL}")
e("v_lshl_add_u32 v25, v26, 6, v25")
e("v_add_u32 v25, v25, v18")
e(f"v_add_u32 v26, {4*2752}, v25")
e("v_mul_u32_u24 v27, 2752, v16")
e("v_lshl_add_u32 v27, v17, 6, v27")
e("v_add3_u32 v27, v27, v18, 64")
e("v_add_u32 v27, 192, v27")
def misc_g():
    cm("gate weights (every wave requests the same 1KB: keeps the counts uniform); zero the LDS counters")
    e(f"s_mov_b32 m0, {L_GW}")
    e(f"v_and_b32 v12, 15, v{vL}")
    e(f"global_load_lds_dwordx4 v{vL16}, {sr(sGW)}")
    e(f"v_lshlrev_b32 v12, 2, v12")
    e(f"v_add_u32 v12, {L_CNT}, v12")
    e("v_mov_b32 v13, 0")
    e("ds_write_b32 v12, v13")
    cm("gate: lane -> row 16v + (l>>2), units 4(l&3)+i ; v10 X address, v11 weight address")
    e(f"v_lshrrev_b32 v12, 2, v{vL}")
    e(f"v_and_b32 v13, 3, v{vL}")
    e("v_lshlrev_b32 v13, 2, v13")
    e("v_xor_b32 v10, v13, v12")
    e("v_lshlrev_b32 v10, 4, v10")
    e("v_lshl_add_u32 v10, v12, 8, v10")
    e(f"s_add_u32 s{sT}, s{sXM}, {L_X}")
    e(f"v_add_u32 v10, s{sT}, v10")
    e(f"s_lshr_b32 s{sT}, s{sJQ}, 2")
    e(f"s_lshl_b32 s{sT}, s{sT}, 8")
    e(f"v_lshl_add_u32 v11, v13, 4, s{sT}")
    e("v_mov_b32 v14, 0")
    e("v_mov_b32 v15, 0")
    e(f"v_and_b32 v30, 31, v{vL}")
    e("v_lshlrev_b32 v30, 7, v30")
    e(f"v_add_u32 v30, {WS_KF}, v30")
    add64(sKV, sWS, imm=WS_KV)
    e("s_waitcnt lgkmcnt(0)")
    e(f"s_add_u32 s{sTAG}, s{sTAG}, {hex(TAGC)}")
    UID[0] += 1
UID = [0]
def gate_part(g):
    if opt("nogate", 0): return
    e(f"v_xor_b32 v12, {g*256}, v11")
    e(f"v_add_u32 v12, {L_GW}, v12")
    for i in range(4):
        if i: e(f"v_xor_b32 v13, {i*16}, v10")
        e(f"ds_read_b128 {vr(32+8*i)}, v{13 if i else 10} offset:{g*16384}")
        e(f"ds_read_b128 {vr(36+8*i)}, v12 offset:{i*16}")
    for i in range(4):
        e(f"s_waitcnt lgkmcnt({6-2*i})")
        for j in range(4):
            e(f"v_dot2_f32_bf16 v{14+(j&1)}, v{32+8*i+j}, v{36+8*i+j}, v{14+(j&1)}")
sFAST = sN
def loader(prod):
    nw = 2 if prod else 4
    tg = "p" if prod else "n"
    def issue(s):
        if s % 4 == 0 and s and not prod: x_issue(s // 4)
        base = (s % 4) * 16384
        e(f"s_xor_b32 s{sT}, s{sJQ}, {s}")
        e(f"s_lshl_b32 s{sT2}, s{sT}, 15")
        e(f"s_add_u32 m0, s{sXM}, {base}")
        add64(sWQB, sWQ, off_s=sT2)
        e(f"global_load_lds_dwordx4 v24, {sr(sWQB)}")
        e(f"s_mul_i32 s{sT2}, s{sT}, {32*2752}")
        e(f"s_add_u32 m0, s{sXM}, {base + 3072}")
        add64(sW1B, sW1, off_s=sT2)
        e(f"global_load_lds_dwordx4 v27, {sr(sW1B)}")
        if not prod:
            for j, r in ((1, 25), (2, 26)):
                e(f"s_add_u32 m0, s{sXM}, {base + j*1024}")
                e("s_nop 0")
                e(f"global_load_lds_dwordx4 v{r}, {sr(sW1B)}")
    cnt = [nw + (4 if s % 4 == 0 and not prod else 0) for s in range(16)]
    if prod:
        misc_g()
        e("s_waitcnt vmcnt(4)")
        issue(0); issue(1)
        e("s_waitcnt vmcnt(4)")
        e("s_barrier")
        e("s_barrier")
        issue(2)
    else:
        issue(0); issue(1); issue(2)
        misc_g()
    for s in range(14):
        later = sum(cnt[s+1:min(16, s + 3)]) + (1 if s in (11, 12) or (s < 3 and not prod) else 0)
        e(f"s_waitcnt vmcnt({later})")
        e("s_barrier")
        if s == 0: stamp(1)
        if s == 10: e(f"global_load_dword v31, v30, {sr(sWS)} sc1")
        if s + 3 < 16: issue(s + 3)
        if s in (4, 6, 9): gate_part((4, 6, 9).index(s))
    cm("K/V already published? then start staging it into the ring slots as they free up")
    e(f"v_cmp_ne_u32 vcc, s{sTAG}, v31")
    e(f"s_mov_b32 s{sFAST}, 0")
    e(f"s_cbranch_vccnz L_slow{tg}")
    e(f"s_mov_b32 s{sFAST}, 1")
    dma_lin(sXM, 4)
    gate_part(3)
    e(f"s_waitcnt vmcnt({cnt[15] + 4})")
    e("s_barrier")
    dma_lin(sXM, 4, 16384)
    e("s_waitcnt vmcnt(8)")
    e("s_barrier")
    dma_lin(sXM, 4, 32768)
    e("s_branch L_g4")
    lab(f"L_slow{tg}")
    e(f"global_load_dword v31, v30, {sr(sWS)} sc1")
    gate_part(3)
    e(f"s_waitcnt vmcnt({cnt[15] + 1})")
    e("s_barrier")
    e("s_waitcnt vmcnt(0)")
    e("s_barrier")
    e(f"v_cmp_ne_u32 vcc, s{sTAG}, v31")
    e("s_cbranch_vccnz L_g4")
    e(f"s_mov_b32 s{sFAST}, 1")
    for j in range(3):
        dma_lin(sXM, 4, j*16384)
    e("s_branch L_g4")
loader(False)
if opt("gap", 0): L.append(".p2align 12, 0")
lab("L_gprod")
cm("producer (hg==0): all of X and [wk|wv] first (wave v: k-steps 8v..8v+7); last piece = w1 tile 0")
e(f"v_lshrrev_b32 v28, 2, v{vL}")
e("v_lshlrev_b32 v28, 5, v28")
e("v_and_b32 v19, 16, v18")
e(f"v_add3_u32 v28, v28, v19, s{sXM}")
e("v_mov_b32 v29, 0")
e(f"v_and_b32 v19, 2, v{vL}")
e("v_cmp_ne_u32 vcc, 0, v19")
e(f"v_mov_b32 v32, s{sWK}")
e(f"v_mov_b32 v33, s{sWK+1}")
e(f"v_mov_b32 v34, s{sWV}")
e(f"v_mov_b32 v35, s{sWV+1}")
e("v_cndmask_b32 v32, v32, v34, vcc")
e("v_cndmask_b32 v33, v33, v35, vcc")
e("v_lshl_add_u64 v[32:33], v[28:29], 0, v[32:33]")
e(f"s_lshl_b32 s{sT3}, s{sXM}, 1")
e(f"s_and_b32 s{sC}, s{sQB}, 7")
e(f"s_mov_b32 s{sW1B+1}, 0")
def wkv_dma(i):
    e(f"s_xor_b32 s{sT}, s{sC}, {i}")
    e(f"s_lshl_b32 s{sW1B}, s{sT}, 9")
    e(f"s_lshl_b32 s{sT}, s{sT}, 10")
    e(f"s_add_u32 s{sT}, s{sT}, s{sT3}")
    e(f"s_add_u32 m0, s{sT}, {L_WKV}")
    e(f"v_lshl_add_u64 v[28:29], v[32:33], 0, {sr(sW1B)}")
    e("global_load_lds_dwordx4 v[28:29], off")
wkv_dma(0)
for g in range(1, 4): x_issue(g)
for i in range(1, 8): wkv_dma(i)
e("v_mul_u32_u24 v27, 2752, v16")
e("v_add_u32 v27, v27, v18")
loader(True)

if opt("gap", 0): L.append(".p2align 12, 0")
lab("L_aw")
if DIAG == 4: stamp(9)
e(f"s_mul_i32 s{sHT}, s{sHG}, 6")
e(f"s_add_u32 s{sHT}, s{sHT}, s{sWAVE}")
e(f"s_sub_u32 s{sHT}, s{sHT}, 7")
e(f"s_mov_b32 s{sROLE}, 2")
e(f"s_cmp_lg_u32 s{sHG}, 0")
e("s_cbranch_scc1 L_r1")
e(f"s_mov_b32 s{sHT}, 0")
e(f"s_cmp_lt_u32 s{sWAVE}, 7")
e(f"s_cselect_b32 s{sROLE}, 3, 2")
lab("L_r1")
e(f"s_cmp_lt_u32 s{sWAVE}, 2")
e(f"s_cselect_b32 s{sROLE}, 0, s{sROLE}")
cm("block base: w<2: 256w ; w<6: 1024+256(w-2) ; else 3072+256(w-6) ; rg stride 1024 for 2<=w<6 else 512")
e(f"s_cselect_b32 s{sT}, 0, 512")
e(f"s_cselect_b32 s{sT2}, 512, 1024" if False else f"s_cselect_b32 s{sT2}, 1, 2")
e(f"s_cmp_ge_u32 s{sWAVE}, 6")
e(f"s_cselect_b32 s{sT}, 1536, s{sT}")
e(f"s_cselect_b32 s{sT2}, 1, s{sT2}")
e(f"s_lshl_b32 s{sT2}, s{sT2}, 9")
e(f"s_lshl_b32 s{sT3}, s{sWAVE}, 8")
e(f"s_add_u32 s{sT}, s{sT}, s{sT3}")
e(f"v_bfe_u32 v6, v{vL}, 2, 2")
e(f"v_bfe_u32 v32, v{vL}, 4, 1")
e(f"v_and_b32 v33, 3, v{vL}")
e("v_lshlrev_b32 v6, 6, v6")
e("v_lshl_add_u32 v6, v32, 5, v6")
e("v_lshl_add_u32 v6, v33, 3, v6")
e(f"v_lshrrev_b32 v32, 5, v{vL}")
e("v_lshl_add_u32 v6, v32, 12, v6")
e(f"v_add_u32 v6, s{sT}, v6")
e(f"v_add_u32 v7, s{sT2}, v6")
cm("X fragment addresses v8..v15 for (s&3, ks)")
e(f"v_and_b32 v33, 31, v{vL}")
e(f"v_and_b32 v34, 15, v{vL}")
e("v_xor_b32 v34, v34, v32")
e("v_lshlrev_b32 v34, 4, v34")
e("v_lshl_add_u32 v8, v33, 8, v34")
e(f"s_and_b32 s{sT}, s{sJQ}, 3")
e(f"s_lshl_b32 s{sT}, s{sT}, 6")
e(f"v_xor_b32 v8, s{sT}, v8")
e(f"v_add_u32 v8, {L_X}, v8")
for j in range(1, 8):
    e(f"v_xor_b32 v{8+j}, {j << 5}, v8")
e("s_waitcnt lgkmcnt(0)")
if DIAG == 4: stamp(10)
e(f"s_load_dword s{sTAG}, {sr(sWS)}, {hex(WS_NONCE)}")
e(f"s_lshl3_add_u32 s{sT}, s{sQB}, s{sHG}")
e(f"s_lshl3_add_u32 s{sT}, s{sT}, s{sWAVE}")
e(f"s_lshl_b32 s{sT}, s{sT}, 10")
e(f"s_add_u32 s{sT}, s{sT}, {WS_O}")
add64(sO, sWS, off_s=sT)
e(f"s_mul_i32 s{sT}, s{sQB}, 43")
e(f"s_add_u32 s{sT}, s{sT}, s{sHT}")
e(f"s_lshl_b32 s{sT}, s{sT}, 12")
e(f"s_add_u32 s{sT}, s{sT}, {WS_H}")
add64(sH, sWS, off_s=sT)
ACC = [64, 80]
FB = [16, 40]
def early_setup():
    for i in range(4):
        e(f"v_mov_b32 v{128+i}, -1")
    cm("V lane address: m>=16: 1024 + h*256 + (m-16)*16 ; m in {0,4}: ones slot ; else out of range (reads 0)")
    e(f"v_and_b32 v150, 15, v{vL}")
    e(f"v_lshrrev_b32 v151, 5, v{vL}")
    e("v_lshlrev_b32 v150, 4, v150")
    e("v_lshl_add_u32 v150, v151, 8, v150")
    e(f"v_and_b32 v151, 27, v{vL}")
    e(f"v_cmp_eq_u32 {sr(sT)}, 0, v151")
    e("v_cmp_lt_u32 vcc, 15, v151")
    e("v_mov_b32 v151, 0x40000")
    e("v_mov_b32 v152, 512")
    e(f"v_cndmask_b32 v151, v151, v152, {sr(sT)}")
    e(f"v_cndmask_b32 v148, v151, v150, vcc")
    e(f"v_add_u32 v148, 1024, v148")
    e(f"s_lshl_b32 s{sT}, s{sWAVE}, 10")
    e(f"s_add_u32 s{sT}, s{sT}, {L_Q}")
    e(f"v_add_u32 v149, s{sT}, v{vL16}")
    e(f"s_mov_b32 s{sRETRY}, 0")
    e("v_mov_b32 v153, 0xdddddddd")
    e(f"s_mov_b32 s{sCHK}, 7")
    for r in range(16):
        e(f"v_mov_b32 v{112+r}, 0")
e(f"s_cmp_lg_u32 s{sHG}, 0")
e("s_cbranch_scc1 L_nokv")
e(f"s_lshr_b32 s{sT2}, s{sWAVE}, 1")
e(f"s_and_b32 s{sT3}, s{sWAVE}, 1")
tr_lane(40, 41, 42)
e(f"s_lshr_b32 s{sT}, s{sJQ}, 2")
e(f"s_xor_b32 s{sT}, s{sT}, s{sT2}")
e(f"s_lshl_b32 s{sT}, s{sT}, 13")
e(f"s_add_u32 s{sT}, s{sT}, {L_WKV}")
e(f"v_add_u32 v40, s{sT}, v40")
e(f"s_and_b32 s{sT}, s{sJQ}, 3")
e(f"s_lshl_b32 s{sT}, s{sT}, 6")
e(f"v_xor_b32 v41, s{sT}, v8")
e(f"s_lshl1_add_u32 s{sT}, s{sT2}, s{sT3}")
e(f"s_lshl_b32 s{sT}, s{sT}, 13")
e(f"v_add_u32 v41, s{sT}, v41")
for j in range(1, 8):
    e(f"v_xor_b32 v{41+j}, {j << 5}, v41")
cm("partial slot (rt*3 + idx), idx = kq - (kq>1)")
e(f"s_cmp_gt_u32 s{sT2}, 1")
e(f"s_subb_u32 s{sT}, s{sT2}, 0")
e(f"s_cmp_eq_u32 s{sT2}, 1")
e(f"s_cselect_b32 s{sT}, 0, s{sT}")
e(f"s_mul_i32 s{sC}, s{sT3}, 3")
e(f"s_add_u32 s{sT}, s{sT}, s{sC}")
e(f"s_lshl_b32 s{sT}, s{sT}, 12")
e(f"s_add_u32 s{sT}, s{sT}, {L_KVP}")
e(f"v_add_u32 v50, s{sT}, v{vL16}")
e(f"s_lshl1_add_u32 s{sT}, s{sQB}, s{sT3}")
e(f"s_mul_i32 s{sT}, s{sT}, {TILE}")
add64(sP, sWS, off_s=sT)
e(f"s_lshl_b32 s{sT}, s{sT3}, 10")
e(f"s_add_u32 s{sT}, s{sT}, {L_VT}")
e(f"v_and_b32 v52, 31, v{vL}")
e(f"v_lshrrev_b32 v55, 5, v{vL}")
e("v_lshlrev_b32 v52, 5, v52")
e("v_lshl_add_u32 v52, v55, 3, v52")
e(f"v_add_u32 v52, s{sT}, v52")
e(f"v_bfe_u32 v53, v{vL}, 2, 2")
e(f"v_bfe_u32 v54, v{vL}, 4, 1")
e("v_lshl_add_u32 v53, v54, 3, v53")
e("v_lshl_add_u32 v53, v55, 4, v53")
e("v_lshlrev_b32 v53, 5, v53")
e(f"v_and_b32 v54, 3, v{vL}")
e("v_lshl_add_u32 v53, v54, 3, v53")
e(f"v_add_u32 v53, s{sT}, v53")
e(f"v_lshl_add_u32 v54, v55, 4, v{vL16}")
e(f"v_and_b32 v55, 1, v{vL}")
e("v_mul_u32_u24 v55, 528, v55")
for i in range(4):
    e(f"v_mov_b32 v{56+i}, 0x3f803f80")
e("s_waitcnt lgkmcnt(0)")
e("s_barrier")
stamp(9)
for i in range(8):
    e(f"ds_read_b64_tr_b16 {vr(96+8*(i%5),2)}, v40 offset:{i*1024}")
    e(f"ds_read_b64_tr_b16 {vr(98+8*(i%5),2)}, v40 offset:{i*1024+256}")
    e(f"ds_read_b128 {vr(100+8*(i%5))}, v{41+i}")
    if i >= 3:
        e("s_waitcnt lgkmcnt(9)")
        mfma(64, 96+8*((i-3)%5), 100+8*((i-3)%5), None if i == 3 else 64)
for i in range(5, 8):
    e(f"s_waitcnt lgkmcnt({3*(7-i)})")
    mfma(64, 96+8*(i%5), 100+8*(i%5), 64)
e(f"s_cmp_eq_u32 s{sT2}, 1")
e("s_cbranch_scc1 L_kvf")
e("s_nop 10")
for q in range(4):
    e(f"ds_write_b128 v50, {vr(64+4*q)} offset:{q*1024}")
e("s_waitcnt lgkmcnt(0)")
e("s_barrier")
e("s_branch L_nokv")
lab("L_kvf")
e(f"global_store_dwordx4 v55, v[56:59], {sr(sP)} offset:1536 sc1")
e("s_barrier")
PB = (80, 96, 112)
for c in range(3):
    for q in range(4):
        e(f"ds_read_b128 {vr(PB[c]+4*q)}, v50 offset:{c*4096+q*1024}")
for c in range(3):
    e(f"s_waitcnt lgkmcnt({8-4*c})")
    for r in range(0, 16, 2):
        e(f"v_pk_add_f32 {vr(64+r,2)}, {vr(64+r,2)}, {vr(PB[c]+r,2)}")
for r in range(8, 16, 2):
    e(f"v_cvt_pk_bf16_f32 v{80+r//2}, v{64+r}, v{65+r}")
e("ds_write_b64 v52, v[84:85]")
e("ds_write_b64 v52, v[86:87] offset:16")
e("ds_read_b64_tr_b16 v[88:89], v53")
e("ds_read_b64_tr_b16 v[90:91], v53 offset:128")
for r in range(0, 8, 2):
    e(f"v_cvt_pk_bf16_f32 v{80+r//2}, v{64+r}, v{65+r}")
e(f"global_store_dwordx4 v{vL16}, v[80:83], {sr(sP)} sc1")
e("s_waitcnt lgkmcnt(0)")
e(f"global_store_dwordx4 v54, v[88:91], {sr(sP)} offset:1024 sc1")
stamp(10)
cm("both finishers drain their stores before pipeline barrier 2; wave 2 raises the flag behind it")
e("s_barrier")
early_setup()
e("s_barrier")
e("s_waitcnt vmcnt(0)")
e("s_barrier")
e(f"s_mov_b32 s{sI}, 14")
e(f"s_cmp_lg_u32 s{sT3}, 0")
e("s_cbranch_scc1 L_idle1")
e(f"s_add_u32 s{sT2}, s{sTAG}, {hex(TAGC)}")
e(f"s_lshl_b32 s{sT}, s{sQB}, 7")
e(f"s_add_u32 s{sT}, s{sT}, {WS_KF}")
e(f"v_mov_b32 v20, s{sT}")
e(f"v_mov_b32 v21, s{sT2}")
e("s_mov_b64 exec, 1")
e(f"global_store_dword v20, v21, {sr(sWS)} sc1")
e("s_mov_b64 exec, -1")
stamp(11)
e("s_branch L_idle1")
lab("L_nokv")
early_setup()
for r in range(32):
    e(f"v_mov_b32 v{64+r}, 0")
for r in range(24):
    e(f"v_mov_b32 v{FB[1]+r}, 0")
e(f"s_mov_b32 s{sI}, 4")
e("s_waitcnt lgkmcnt(0)")
e(f"s_cmp_eq_u32 s{sROLE}, 3")
e("s_cbranch_scc1 L_idle")
def p1_mf(st):
    if opt("nomf", 0): return
    for ks in range(2):
        for rt in range(2):
            mfma(ACC[rt], FB[st] + 12*ks, FB[st] + 12*ks + 4 + 4*rt, ACC[rt])
lab("L_p1")
for u in range(4):
    e("s_barrier")
    f = FB[u & 1]
    for ks in range(2 if opt("nomf", 0) < 2 else 0):
        e(f"ds_read_b64_tr_b16 {vr(f+12*ks,2)}, v6 offset:{u*16384+ks*8192}")
        e(f"ds_read_b64_tr_b16 {vr(f+12*ks+2,2)}, v7 offset:{u*16384+ks*8192}")
        for rt in range(2):
            e(f"ds_read_b128 {vr(f+12*ks+4+4*rt)}, v{8+2*u+ks} offset:{rt*8192}")
        e(f"v_add_u32 v{8+2*u+ks}, 0x4000, v{8+2*u+ks}")
    p1_mf((u + 1) & 1)
    e("s_waitcnt lgkmcnt(0)")
e(f"s_sub_u32 s{sI}, s{sI}, 1")
e(f"s_cmp_lg_u32 s{sI}, 0")
e("s_cbranch_scc1 L_p1")
e("s_barrier")
p1_mf(1)
stamp(2)
e(f"s_cmp_eq_u32 s{sROLE}, 0")
e(f"s_mov_b32 s{sC}, {hex(f2u(-LOG2E))}")
e(f"s_cselect_b32 s{sC}, {hex(f2u(0.25*LOG2E))}, s{sC}")
e(f"s_mov_b32 s{sC+1}, s{sC}")
e("s_nop 7")
if opt("sp", 0): e("s_setprio 3")
e("s_cbranch_scc0 L_epiH")
e("s_setprio 3")
for r in range(0, 32, 2):
    e(f"v_pk_mul_f32 {vr(64+r,2)}, {vr(64+r,2)}, {sr(sC)}")
for r in range(0, 32, 2):
    e(f"v_cvt_pk_bf16_f32 v{96+r//2}, v{64+r}, v{65+r}")
e(f"s_lshl_b32 s{sT}, s{sWAVE}, 12")
e(f"s_add_u32 s{sT}, s{sT}, {L_Q}")
e(f"v_add_u32 v32, s{sT}, v{vL16}")
for rt in range(2):
    for i in range(2):
        e(f"ds_write_b128 v32, {vr(96+rt*8+i*4)} offset:{i*2048+rt*1024}")
e("s_waitcnt lgkmcnt(0)")
lds_signal(C_B2, 12, 13)
e("s_branch L_p1done")
lab("L_idle")
e(f"s_mov_b32 s{sI}, 17")
lab("L_idle1")
e("s_barrier")
e(f"s_sub_u32 s{sI}, s{sI}, 1")
e(f"s_cmp_lg_u32 s{sI}, 0")
e("s_cbranch_scc1 L_idle1")
e("s_branch L_p1done")
if opt("gap", 0): L.append(".p2align 12, 0")
lab("L_epiH")
for rt in range(2):
    a = ACC[rt]
    for r in range(0, 16, 2):
        e(f"v_pk_mul_f32 {vr(96+r,2)}, {vr(a+r,2)}, {sr(sC)}")
    for r in range(16):
        e(f"v_exp_f32 v{96+r}, v{96+r}")
    for r in range(0, 16, 2):
        e(f"v_pk_add_f32 {vr(96+r,2)}, {vr(96+r,2)}, 1.0 op_sel_hi:[1,0]")
    for r in range(16):
        e(f"v_rcp_f32 v{96+r}, v{96+r}")
    for r in range(0, 16, 2):
        e(f"v_pk_mul_f32 {vr(96+r,2)}, {vr(96+r,2)}, {vr(a+r,2)}")
    for r in range(0, 16, 2):
        e(f"v_cvt_pk_bf16_f32 v{132+rt*8+r//2}, v{96+r}, v{97+r}")
lab("L_p1done")
Q = 16
KF = [20, 24]
V0 = [28, 32]
V1 = [36, 40]
P = [48, 56]
S = [64, 80]
C = 96
O = 112
vK, vV0, vV = 10, 148, 11
def att_zero(full=True):
    if full:
        for r in range(16):
            e(f"v_mov_b32 v{O+r}, 0")
    for r in range(4):
        e(f"v_mov_b32 v{V1[1]+r}, 0")
    for r in range(8, 16):
        e(f"v_mov_b32 v{S[1]+r}, 0")
att_zero(False)
stamp(3)
lds_spin("b2a", C_B2, 6, 12, 13, slp=1)
stamp(4)
if STAMPS: e("s_memrealtime s[88:89]")
e("s_setprio 3")
e(f"ds_read_b128 {vr(Q)}, v149")
e(f"ds_read_b128 {vr(KF[0])}, v{vL16}")
def att_first_loads():
    e(f"ds_read_b128 {vr(KF[1])}, v{vL16} offset:{TILE}")
    e(f"ds_read_b128 {vr(V0[0])}, v{vV0}")
    e(f"ds_read_b128 {vr(V0[1])}, v{vV0} offset:{TILE}")
    e(f"ds_read_b128 {vr(V1[0])}, v{vV0} offset:528")
att_first_loads()
HST = opt("hst", 0)
e("s_waitcnt lgkmcnt(4)")
mfma(S[0], KF[0], Q, None)
lds_signal(C_QR, 12, 13)
if HST:
    cm("poison this wave's O slot and publish its H tile")
    e(f"global_store_dwordx4 v{vL16}, v[128:131], {sr(sO)} sc1")
    e(f"s_cmp_lg_u32 s{sROLE}, 2")
    e("s_cbranch_scc1 L_noh")
    for rt in range(2):
        for ks in range(2):
            e(f"global_store_dwordx4 v{vL16}, {vr(132+rt*8+ks*4)}, {sr(sH)} offset:{ks*2048+rt*1024} sc1")
    lab("L_noh")
e("s_nop 6")
e(f"v_max3_f32 v12, v{S[0]}, v{S[0]+1}, v{S[0]+2}")
for r in range(3, 15, 2):
    e(f"v_max3_f32 v12, v12, v{S[0]+r}, v{S[0]+r+1}")
e(f"v_max_f32 v12, v12, v{S[0]+15}")
lab("L_att_setC")
e("v_mov_b32 v14, v12")
e(f"v_mov_b32 v{vK}, v{vL16}")
e(f"v_mov_b32 v{vV}, v{vV0}")
e("v_permlane32_swap_b32 v12, v14")
e(f"s_mov_b32 s{sI}, 0")
e("s_nop 0")
e("v_max_f32 v12, v12, v14")
for r in range(16):
    e(f"v_sub_f32 v{C+r}, 0, v12")
e("s_waitcnt lgkmcnt(0)")
e("s_nop 0")
mfma(S[0], KF[0], Q, C)
e(f"ds_read_b128 {vr(KF[0])}, v{vL16} offset:{2*TILE}")
e("s_setprio 2")
e("s_nop 9")
stamp(5)
UN = 8
def ex(x, r): e(f"v_exp_f32 v{S[x]+r}, v{S[x]+r}")
def pv(a, b): e(f"v_smfmac_f32_32x32x32_bf16 {vr(O,16)}, {vr(a)}, {vr(b,8)}, v153")
L.append(".p2align 6")
lab("L_att_loop")
for u in range(UN):
    x = u & 1; y = 1 - x
    if u == 5:
        e(f"s_bitcmp1_b32 s{sCHK}, s{sI}")
        e("s_cbranch_scc1 L_att_chk")
        lab("L_att_chk_ret")
    ex(x, 0); ex(x, 1)
    pv(V1[y], S[y] + 8)
    e(f"ds_read_b128 {vr(V1[y])}, v{vV} offset:{(u+1)*TILE+528}")
    for r in range(2, 7): ex(x, r)
    mfma(S[y], KF[y], Q, C)
    e(f"ds_read_b128 {vr(KF[y])}, v{vK} offset:{(u+3)*TILE}")
    for r in range(7, 12): ex(x, r)
    pv(V0[x], S[x])
    e("s_waitcnt lgkmcnt(2)")
    e(f"ds_read_b128 {vr(V0[x])}, v{vV} offset:{(u+2)*TILE}")
    for r in range(12, 16): ex(x, r)
if DIAG == 2:
    e("s_memtime s[100:101]")
    e("s_waitcnt lgkmcnt(0)")
    e(f"s_mov_b32 m0, s{sI}")
    e("s_nop 0")
    e("v_writelane_b32 v160, s100, m0")
e(f"v_add_u32 v{vK}, {UN*TILE}, v{vK}")
e(f"v_add_u32 v{vV}, {UN*TILE}, v{vV}")
e(f"s_add_u32 s{sI}, s{sI}, 1")
e(f"s_cmp_lt_u32 s{sI}, {64//UN - opt('lastp', 2)}")
e("s_cbranch_scc1 L_att_loop")
e("s_setprio 0")
e(f"s_cmp_lt_u32 s{sI}, {64//UN}")
e("s_cbranch_scc1 L_att_loop")
e("s_setprio 3")
e(f"s_and_b32 s{sT}, s{sWAVE}, 1")
e(f"s_lshl_b32 s{sT}, s{sT}, 7")
pv(V1[1], S[1] + 8)
stamp(6)
e(f"s_add_u32 s{sT}, s{sT}, {L_G}")
e(f"v_and_b32 v12, 31, v{vL}")
e(f"v_lshl_add_u32 v12, v12, 2, s{sT}")
e("ds_read_b32 v14, v12")
e(f"s_mov_b32 s{sT}, {hex(f2u(2.0**86))}")
e("v_mov_b32 v13, 0x207")
e("s_nop 6")
cm("safety check of the stand-in max: l < 2^42 and O finite, else redo with the true row max")
e(f"v_mul_f32 v12, s{sT}, v{O}")
for r in range(8, 16):
    e(f"v_add_f32 v12, v12, abs(v{O+r})")
e("v_cmp_class_f32 vcc, v12, v13")
e(f"v_rcp_f32 v12, v{O}")
e("s_cbranch_vccz L_att_ok")
e(f"s_cmp_eq_u32 s{sRETRY}, 0")
e("s_cbranch_scc1 L_att_truemax")
lab("L_att_ok")
e("s_waitcnt lgkmcnt(0)")
e("v_mul_f32 v12, v12, v14")
for r in range(8, 16):
    e(f"v_mul_f32 v{O+r}, v{O+r}, v12")
for i in range(4):
    e(f"v_cvt_pk_bf16_f32 v{P[0]+i}, v{O+8+2*i}, v{O+9+2*i}")
for i in range(4):
    e(f"v_min_u32 v{P[0]+i}, -2, v{P[0]+i}")
e(f"global_store_dwordx4 v{vL16}, {vr(P[0])}, {sr(sO)} sc1")
lds_signal(C_OD, 12, 13)
stamp(7)
if STAMPS: e("s_memrealtime s[96:97]")
e("s_branch L_fin")
if opt("gap", 0): L.append(".p2align 12, 0")
lab("L_att_chk")
e(f"s_cmp_eq_u32 s{sI}, 1")
e("s_cbranch_scc1 L_att_chk1")
e(f"s_lshl1_add_u32 s{sT2}, s{sI}, {0}")
e(f"s_add_u32 s{sT2}, s{sT2}, {C_KA}")
lds_spin("att_chk2", f"s{sT2}", 4, 12, 13)
def h_stores(skip):
    e(f"global_store_dwordx4 v{vL16}, v[128:131], {sr(sO)} sc1")
    e(f"s_cmp_lg_u32 s{sROLE}, 2")
    e(f"s_cbranch_scc1 {skip}")
    for rt in range(2):
        for ks in range(2):
            e(f"global_store_dwordx4 v{vL16}, {vr(132+rt*8+ks*4)}, {sr(sH)} offset:{ks*2048+rt*1024} sc1")
if not HST:
    e(f"s_cmp_lg_u32 s{sI}, 0")
    e("s_cbranch_scc1 L_att_chk_ret")
    h_stores("L_att_chk_ret")
e("s_branch L_att_chk_ret")
lab("L_att_chk1")
cm("H / poison stores of this wave have drained; the last wave to get here publishes H")
e("s_waitcnt vmcnt(0)")
e(f"v_mov_b32 v12, {C_HD}")
e("v_mov_b32 v13, 1")
e("s_mov_b64 exec, 1")
e("ds_add_rtn_u32 v13, v12, v13")
e(f"s_lshl_b32 s{sT}, s{sQB}, 7")
e(f"s_lshl2_add_u32 s{sT}, s{sHG}, s{sT}")
e(f"s_add_u32 s{sT}, s{sT}, {WS_FL}")
e(f"s_add_u32 s{sT2}, s{sTAG}, {hex(TAGC)}")
e("s_waitcnt lgkmcnt(0)")
e("v_cmp_eq_u32 vcc, 7, v13")
e("s_cbranch_vccz L_att_chk1b")
e(f"v_mov_b32 v12, s{sT}")
e(f"v_mov_b32 v13, s{sT2}")
e(f"global_store_dword v12, v13, {sr(sWS)} sc1")
lab("L_att_chk1b")
e("s_mov_b64 exec, -1")
e("s_setprio 1")
e("s_branch L_att_chk_ret")
lab("L_att_truemax")
e(f"s_mov_b32 s{sRETRY}, 1")
e(f"s_mov_b32 s{sCHK}, 0")
e("v_mov_b32 v12, 0xff800000")
e(f"v_mov_b32 v{vK}, v{vL16}")
e(f"s_mov_b32 s{sI}, 0")
lab("L_att_tm")
e(f"ds_read_b128 {vr(KF[0])}, v{vK}")
e(f"v_add_u32 v{vK}, {TILE}, v{vK}")
e("s_waitcnt lgkmcnt(0)")
mfma(S[0], KF[0], Q, None)
e("s_nop 15")
for r in range(0, 16, 2):
    e(f"v_max3_f32 v12, v12, v{S[0]+r}, v{S[0]+r+1}")
e(f"s_add_u32 s{sI}, s{sI}, 1")
e(f"s_cmp_lt_u32 s{sI}, 64")
e("s_cbranch_scc1 L_att_tm")
e(f"ds_read_b128 {vr(KF[0])}, v{vL16}")
att_first_loads()
att_zero()
e("s_branch L_att_setC")

if opt("gap", 0): L.append(".p2align 12, 0")
lab("L_g4")
e("s_setprio 3")
for perm in ("quad_perm:[1,0,3,2]", "quad_perm:[2,3,0,1]"):
    if perm.endswith("2]"): e("v_add_f32 v14, v14, v15")
    e("s_nop 1")
    e(f"v_add_f32_dpp v14, v14, v14 {perm} row_mask:0xf bank_mask:0xf")
e(f"v_mul_f32 v14, {hex(f2u(-LOG2E))}, v14")
e("v_exp_f32 v14, v14")
e(f"s_lshl_b32 s{sT}, s{sV}, 6")
e(f"s_add_u32 s{sT}, s{sT}, {L_G}")
e("v_add_f32 v14, 1.0, v14")
e("v_rcp_f32 v14, v14")
e(f"v_and_b32 v12, 60, v{vL}")
e(f"v_add_u32 v12, s{sT}, v12")
e("ds_write_b32 v12, v14")
e("s_barrier")
stamp(2)
e(f"s_cmp_lg_u32 s{sFAST}, 0")
e("s_cbranch_scc1 L_kvfast")
tag_poll("kvpoll", 30, 31, sWS, 4)
for j in range(3):
    dma_lin(sXM, 4, j*16384)
lab("L_kvfast")
stamp(3)
cm("K/V: pieces 0..31 gate the start, 32..63 -> C_KA, 64..129 -> C_KB")
dma_lin(sXM, 4, 49152)
e("s_waitcnt vmcnt(8)")
lds_signal(C_B2, 12, 13)
stamp(4)
e(f"s_lshl_b32 s{sT3}, s{sV}, 14")
dma_lin(sT3, 4, 65536)
e("s_waitcnt vmcnt(4)")
lds_signal(C_KA, 12, 13)
dma_lin(sT3, 12, 65536 + 4096)
e(f"s_cmp_lg_u32 s{sV}, 0")
e("s_cbranch_scc1 L_g5")
dma_kv_one(128 * 1024)
dma_kv_one(129 * 1024)
lab("L_g5")
tr_lane(7, 32, 33)
e(f"s_lshl_b32 s{sT}, s{sQB}, 7")
e(f"s_add_u32 s{sT}, s{sT}, {WS_FL}")
add64(sFL, sWS, off_s=sT)
e(f"s_mul_i32 s{sT}, s{sQB}, {43*4096}")
e(f"s_add_u32 s{sT}, s{sT}, {WS_H}")
add64(sH, sWS, off_s=sT)
e(f"s_lshl2_add_u32 s{sT}, s{sQB}, s{sV}")
e(f"s_lshl_b32 s{sT}, s{sT}, 14")
e(f"s_add_u32 s{sT}, s{sT}, {WS_O}")
add64(sO, sWS, off_s=sT)
cm("weight piece lane offsets v8/v9 (8 rows x 128B -> [rg][ct][4 rows][64B]); ring read address v7")
e(f"v_lshrrev_b32 v32, 5, v{vL}")
e(f"v_bfe_u32 v33, v{vL}, 2, 2")
e("v_lshl_add_u32 v32, v32, 2, v33")
e("v_lshlrev_b32 v8, 10, v32")
e(f"v_bfe_u32 v33, v{vL}, 4, 1")
e("v_lshl_add_u32 v8, v33, 6, v8")
e(f"v_and_b32 v33, 3, v{vL}")
e("v_lshl_add_u32 v8, v33, 4, v8")
e("v_add_u32 v9, 0x2000, v8")
e(f"s_mul_i32 s{sRING}, s{sV}, {R2SZ}")
e(f"s_add_u32 s{sRING}, s{sRING}, {L_UP}")
e(f"v_add_u32 v3, s{sRING}, v7")
cm("slot j of the accumulators holds tile j^v: ct ^= v>>1 (v3/v10), rt ^= v&1 (v11/v7)")
e(f"s_lshr_b32 s{sT}, s{sV}, 1")
e(f"s_lshl_b32 s{sT}, s{sT}, 8")
e(f"v_add_u32 v3, s{sT}, v3")
e("v_xor_b32 v10, 0x100, v3")
e(f"s_and_b32 s{sT}, s{sV}, 1")
e(f"s_lshl_b32 s{sT}, s{sT}, 10")
e(f"v_add_u32 v11, s{sT}, v{vL16}")
e("v_xor_b32 v0, 0x400, v11")
e("s_waitcnt vmcnt(0)")
lds_signal(C_KB, 12, 13)
stamp(5)
if opt("w2t", 0):
    cm("pull this workgroup's share of the w2 slice into L2: rows 8*(64v+l) + (qb&7), v<3")
    e(f"s_and_b32 s{sT}, s{sQB}, 7")
    e(f"s_lshl_b32 s{sT2}, s{sV}, 9")
    e(f"s_add_u32 s{sT}, s{sT}, s{sT2}")
    e(f"v_lshl_add_u32 v12, v{vL}, 3, s{sT}")
    e("v_min_u32 v12, 1375, v12")
    e(f"s_lshl_b32 s{sT}, s{sHG}, 7")
    e(f"v_lshl_add_u32 v12, v12, 10, s{sT}")
    e(f"global_load_dword v14, v12, {sr(sW2)}")
lds_spin("qr", C_QR, 8, 12, 13, slp=4)
GA = [100, 116, 132, 148]
def ring_issue(slot, base):
    e(f"s_add_u32 m0, s{sRING}, {slot*2048}")
    e("s_nop 0")
    e(f"global_load_lds_dwordx4 v8, {sr(base)}")
    e(f"s_add_u32 m0, s{sRING}, {slot*2048+1024}")
    e("s_nop 0")
    e(f"global_load_lds_dwordx4 v9, {sr(base)}")
def ring_read(slot, ct, dst):
    e(f"ds_read_b64_tr_b16 {vr(dst,2)}, v{(3, 10)[ct]} offset:{slot*2048}")
    e(f"ds_read_b64_tr_b16 {vr(dst+2,2)}, v{(3, 10)[ct]} offset:{slot*2048+1024}")
WOF = opt("wof", 1)
def wo_block():
    e("s_waitcnt vmcnt(0)")
    e(f"s_lshl_b32 s{sT}, s{sV}, 17")
    e(f"s_lshl_b32 s{sT2}, s{sHG}, 7")
    e(f"s_add_u32 s{sT}, s{sT}, s{sT2}")
    add64(sP, sWO, off_s=sT)
    for ks in range(3):
        ring_issue(ks, sP)
        add64(sP, sP, imm=16384)
    for ks in range(8):
        e(f"s_waitcnt vmcnt({2*min(2, 7-ks)})")
        ring_read(ks % 3, 0, 36 + 8*ks)
        ring_read(ks % 3, 1, 40 + 8*ks)
        if ks + 3 < 8:
            e("s_waitcnt lgkmcnt(0)")
            ring_issue(ks % 3, sP)
            add64(sP, sP, imm=16384)
    e("s_waitcnt lgkmcnt(0)")
if WOF: wo_block()
stamp(6)
e(f"s_cmp_lg_u32 s{sV}, 0")
e("s_cbranch_scc1 L_g6")
e(f"v_mov_b32 v13, s{sTAG}")
e("s_mov_b64 exec, 1")
cm("this workgroup has read the epoch; the last workgroup to get here advances it")
e("v_mov_b32 v12, 0")
e("v_mov_b32 v14, 1")
e(f"global_atomic_add v15, v12, v14, {sr(sDBG)} sc0 sc1")
e("s_waitcnt vmcnt(0)")
e("v_cmp_eq_u32 vcc, 0xff, v15")
e("s_cbranch_vccz L_g6a")
e(f"v_mov_b32 v12, {WS_NONCE}")
e(f"global_store_dword v12, v13, {sr(sWS)} sc1")
lab("L_g6a")
e("s_mov_b64 exec, -1")
lab("L_g6")
e(f"v_and_b32 v12, 7, v{vL}")
e("v_lshlrev_b32 v12, 2, v12")
tag_poll("hpoll", 12, 13, sFL, 8)
stamp(7)
if opt("ht", 0):
    cm("pull this workgroup's share of H into L2: lines 4*(64*i+l) + (hg&3) of this wave's k range")
    e(f"s_mul_i32 s{sT}, s{sV}, {22*2048}")
    e(f"s_and_b32 s{sT2}, s{sHG}, 3")
    e(f"s_lshl_b32 s{sT2}, s{sT2}, 7")
    e(f"s_add_u32 s{sT}, s{sT}, s{sT2}")
    e(f"v_lshl_add_u32 v12, v{vL}, 9, s{sT}")
    e(f"global_load_dword v164, v12, {sr(sH)} sc1")
    e(f"v_min_u32 v14, 23, v{vL}")
    e(f"v_lshl_add_u32 v12, v14, 9, s{sT}")
    e("v_add_u32 v12, 0x8000, v12")
    e(f"v_min_u32 v12, {43*4096-4}, v12")
    e(f"global_load_dword v165, v12, {sr(sH)} sc1")
HB = [12, 20, 28]
GAF = [4, 164]
NA = opt("na", 22); NBB = 43 - NA
e(f"s_mul_i32 s{sT}, s{sV}, {NA}")
e(f"s_cmp_eq_u32 s{sV}, 3")
e(f"s_cselect_b32 s{sT}, {2*NA + NBB}, s{sT}")
e(f"s_cmp_ge_u32 s{sV}, 2")
e(f"s_cselect_b32 s{sI}, {NBB}, {NA}")
e(f"s_sub_u32 s{sN}, s{sI}, 1")
e(f"s_lshl_b32 s{sT2}, s{sT}, 14")
e(f"s_lshl_b32 s{sT3}, s{sHG}, 7")
e(f"s_add_u32 s{sT2}, s{sT2}, s{sT3}")
add64(sP, sW2, off_s=sT2)
e(f"s_lshl_b32 s{sT}, s{sT}, 11")
add64(sP2, sH, off_s=sT)
def g2_h(slot):
    for rt in range(2):
        e(f"global_load_dwordx4 {vr(HB[slot]+4*rt)}, v{(11, 0)[rt]}, {sr(sP2)} sc1")
def g2_adv():
    e(f"s_cmp_lg_u32 s{sN}, 0")
    e(f"s_cselect_b32 s{sT}, 16384, 0")
    e(f"s_cselect_b32 s{sT2}, 2048, 0")
    e(f"s_cselect_b32 s{sT3}, 1, 0")
    e(f"s_sub_u32 s{sN}, s{sN}, s{sT3}")
    add64(sP, sP, off_s=sT)
    add64(sP2, sP2, off_s=sT2)
def g2_step(slot, first):
    def m(ct, rt):
        a = GA[ct*2+rt]
        mfma(a, GAF[ct], HB[slot] + 4*rt, None if first else a)
    e("s_waitcnt vmcnt(8)")
    ring_read(slot, 0, GAF[0])
    e("s_waitcnt lgkmcnt(0)")
    m(0, 0)
    ring_read(slot, 1, GAF[1])
    e("s_waitcnt lgkmcnt(0)")
    m(0, 1)
    e(f"s_add_u32 m0, s{sRING}, {slot*2048}")
    e("s_nop 0")
    e(f"global_load_lds_dwordx4 v8, {sr(sP)}")
    m(1, 0)
    e(f"s_add_u32 m0, s{sRING}, {slot*2048+1024}")
    e("s_nop 0")
    e(f"global_load_lds_dwordx4 v9, {sr(sP)}")
    m(1, 1)
    g2_h(slot)
    g2_adv()
for k in range(3):
    ring_issue(k, sP); g2_h(k); g2_adv()
g2_step(0, True)
e(f"s_sub_u32 s{sI}, s{sI}, 1")
lab("L_g2loop")
for slot in (1, 2, 0):
    g2_step(slot, False)
    e(f"s_sub_u32 s{sI}, s{sI}, 1")
    e(f"s_cmp_eq_u32 s{sI}, 0")
    e("s_cbranch_scc1 L_g2done" if slot != 0 else "s_cbranch_scc0 L_g2loop")
lab("L_g2done")
stampx(8)
if not WOF: wo_block()
e(f"s_and_b32 s{sT}, s{sV}, 1")
e(f"s_lshl_b32 s{sT}, s{sT}, 7")
e(f"s_add_u32 s{sT}, s{sT}, {L_G}")
e(f"v_and_b32 v4, 31, v{vL}")
e(f"v_lshl_add_u32 v4, v4, 2, s{sT}")
e("v_xor_b32 v5, 0x80, v4")
e("ds_read_b32 v6, v4")
e("ds_read_b32 v8, v5")
e("s_waitcnt vmcnt(0) lgkmcnt(0)")
e("v_sub_f32 v6, 1.0, v6")
e("v_sub_f32 v8, 1.0, v8")
e("s_nop 3")
for t in range(4):
    for r in range(0, 16, 2):
        e(f"v_pk_mul_f32 {vr(GA[t]+r,2)}, {vr(GA[t]+r,2)}, {vr(6+2*(t&1),2)} op_sel_hi:[1,0]")
cm("tail: slot j (tile j^v) goes to LDS v*17408 + tile*4352 + q*1088; wave v then owns rows 16v..16v+15 (full 128B lines)")
e("v_mov_b32 v165, v11")
e(f"v_bfe_u32 v3, v{vL}, 2, 1")
e(f"v_mul_u32_u24 v3, {2*4352}, v3")
e(f"v_and_b32 v12, 3, v{vL}")
e("v_mul_u32_u24 v12, 1088, v12")
e(f"v_lshrrev_b32 v13, 3, v{vL}")
e("v_lshl_add_u32 v12, v13, 4, v12")
e(f"s_lshr_b32 s{sT}, s{sV}, 1")
e(f"s_mul_i32 s{sT}, s{sT}, 4352")
e(f"s_and_b32 s{sT2}, s{sV}, 1")
e(f"s_lshl_b32 s{sT2}, s{sT2}, 8")
e(f"s_add_u32 s{sT}, s{sT}, s{sT2}")
e(f"v_add3_u32 v3, v3, v12, s{sT}")
e(f"v_and_b32 v12, 7, v{vL}")
e("v_lshlrev_b32 v166, 10, v13")
e("v_lshl_add_u32 v166, v12, 4, v166")
e(f"s_lshl2_add_u32 s{sT}, s{sQB}, s{sV}")
e(f"s_lshl_b32 s{sT}, s{sT}, 14")
e(f"s_lshl_b32 s{sT2}, s{sHG}, 7")
e(f"s_add_u32 s{sT}, s{sT}, s{sT2}")
add64(sB0, sOUT, off_s=sT)
add64(sFL, sB0, imm=8192)
if opt("otouch", 0):
    e(f"global_load_dword v13, v166, {sr(sB0)}")
add64(sP2, sO, imm=8192)
WB = [sI, sC, sC + 1, sN]
e(f"s_mul_i32 s{sT}, s{sV}, 17408")
for j in range(4):
    e(f"s_xor_b32 s{WB[j]}, s{sV}, {j}")
    e(f"s_mul_i32 s{WB[j]}, s{WB[j]}, 4352")
    e(f"s_add_u32 s{WB[j]}, s{WB[j]}, s{sT}")
SETS = [[4, 20], [36, 68]]
def o_issue(st):
    for p in range(2):
        for j in range(4):
            e(f"global_load_dwordx4 {vr(SETS[st][p]+4*j)}, v{(165, 0)[j&1]}, {sr(sO if p == 0 else sP2)} offset:{(j>>1)*2048} sc1")
def o_check(st, younger):
    for p in range(2):
        e(f"s_waitcnt vmcnt({younger + 4-4*p})")
        for r in range(0, 16, 2):
            if p == 0 and r == 0: e(f"v_max_u32 v164, v{SETS[st][0]}, v{SETS[st][0]+1}")
            else: e(f"v_max3_u32 v164, v164, v{SETS[st][p]+r}, v{SETS[st][p]+r+1}")
    e("v_cmp_eq_u32 vcc, -1, v164")
def chain(j, b, st):
    ct, rt = j >> 1, j & 1
    for p in range(2):
        for hh in range(2):
            mfma(GA[j], 36 + 8*(4*p + 2*b + hh) + 4*ct, SETS[st][p] + 8*hh + 4*rt, GA[j])
def wr(j):
    e(f"v_add_u32 v164, s{WB[j]}, v{vL16}")
    for qq in range(4):
        e(f"ds_write_b128 v164, {vr(GA[j]+4*qq)} offset:{qq*1088}")
e(f"s_setprio {opt('b0prio', 0)}")
lds_spin("od0", C_OD, 4, 164, 167, slp=4)
stampx(9)
e(f"s_mov_b32 s{sSPIN}, {SPIN}")
lab("L_opoll0")
o_issue(0)
o_check(0, 0)
e("s_cbranch_vccz L_ook0")
e("s_sleep 4")
e(f"s_sub_u32 s{sSPIN}, s{sSPIN}, 1")
e(f"s_cmp_lg_u32 s{sSPIN}, 0")
e("s_cbranch_scc1 L_opoll0")
lab("L_ook0")
if opt("b0sp", 0):
    e("s_setprio 3")
    e(f"v_mov_b32 v164, {C_OD}")
    n = 0
    for j in range(4):
        ct, rt = j >> 1, j & 1
        for p in range(2):
            for hh in range(2):
                mfma(GA[j], 36 + 8*(4*p + hh) + 4*ct, SETS[0][p] + 8*hh + 4*rt, GA[j])
                n += 1
                if n % opt("b0sp", 1) == 0 and n < 16:
                    e("ds_read_b32 v167, v164")
                    e("s_waitcnt lgkmcnt(0)")
else:
    for j in range(4): chain(j, 0, 0)
add64(sO, sO, imm=4096)
add64(sP2, sP2, imm=4096)
e("s_setprio 3")
lds_spin("od1", C_OD, 8, 164, 167, slp=1)
stampx(10)
e(f"s_mov_b32 s{sSPIN}, {SPIN}")
def finish(st):
    chain(3, 1, st); chain(2, 1, st); chain(1, 1, st)
    e("s_nop 2")
    wr(3)
    chain(0, 1, st)
if opt("stag", 0):
    cm("two request sets in flight, half a round trip apart")
    o_issue(0)
    e(f"s_sleep {opt('stagsl', 4)}")
    o_issue(1)
    lab("L_opoll1")
    o_check(0, 8)
    e("s_cbranch_vccz L_ook1")
    o_issue(0)
    o_check(1, 8)
    e("s_cbranch_vccz L_ook1b")
    o_issue(1)
    e(f"s_sub_u32 s{sSPIN}, s{sSPIN}, 1")
    e(f"s_cmp_lg_u32 s{sSPIN}, 0")
    e("s_cbranch_scc1 L_opoll1")
    e("s_waitcnt vmcnt(0)")
    lab("L_ook1b")
    stampx(11)
    finish(1)
    e("s_branch L_ojoin")
else:
    lab("L_opoll1")
    o_issue(0)
    o_check(0, 0)
    e("s_cbranch_vccz L_ook1")
    if opt("psl", 0): e(f"s_sleep {opt('psl', 0)}")
    e(f"s_sub_u32 s{sSPIN}, s{sSPIN}, 1")
    e(f"s_cmp_lg_u32 s{sSPIN}, 0")
    e("s_cbranch_scc1 L_opoll1")
lab("L_ook1")
stampx(11)
finish(0)
lab("L_ojoin")
wr(2)
wr(1)
e("s_waitcnt lgkmcnt(8)")
wr(0)
e("s_waitcnt vmcnt(0)")
e("s_waitcnt lgkmcnt(0)")
if opt("bar", 1):
    e("s_barrier")
else:
    lds_signal(C_RED, 4, 5)
    lds_spin("red", C_RED, 4, 4, 5, slp=0)
stampx(12)
def rd(i):
    for c in range(4):
        for h in range(2):
            e(f"ds_read_b128 {vr(36+32*i+8*c+4*h)}, v3 offset:{c*17408+h*512+i*128}")
def fin(i):
    b0 = 36 + 32*i
    for r in range(0, 8, 2):
        e(f"v_pk_add_f32 {vr(b0+r,2)}, {vr(b0+r,2)}, {vr(b0+8+r,2)}")
        e(f"v_pk_add_f32 {vr(b0+16+r,2)}, {vr(b0+16+r,2)}, {vr(b0+24+r,2)}")
    for r in range(0, 8, 2):
        e(f"v_pk_add_f32 {vr(b0+r,2)}, {vr(b0+r,2)}, {vr(b0+16+r,2)}")
    for k in range(4):
        e(f"v_cvt_pk_bf16_f32 v{16+4*i+k}, v{b0+2*k}, v{b0+1+2*k}")
    e(f"global_store_dwordx4 v166, {vr(16+4*i)}, {sr((sB0, sFL)[i])}" + ("", " sc1", " nt", " sc0 sc1")[opt("outf", 1)])
rd(0)
e("s_waitcnt lgkmcnt(4)")
rd(1)
e("s_waitcnt lgkmcnt(8)")
fin(0)
e("s_waitcnt lgkmcnt(0)")
fin(1)
if LITE:
    cm("LITE")
    e("s_waitcnt vmcnt(0)")
    e("s_memrealtime s[72:73]")
    e(f"s_lshl2_add_u32 s{sT}, s2, s{sV}")
    e(f"s_lshl_b32 s{sT}, s{sT}, 3")
    e(f"s_add_u32 s{sT}, s{sT}, {WS_ST}")
    e(f"v_mov_b32 v12, s{sT}")
    e("s_waitcnt lgkmcnt(0)")
    e("v_mov_b32 v14, s70")
    e("v_mov_b32 v15, s72")
    e("s_mov_b64 exec, 1")
    e(f"global_store_dwordx2 v12, v[14:15], {sr(sWS)}")
lab("L_fin")
if opt("dbgt", 0):
    e("s_waitcnt vmcnt(0)")
    e("s_memrealtime s[100:101]")
    e("s_memtime s[98:99]")
    e("s_waitcnt lgkmcnt(0)")
    e("s_mov_b64 exec, 1")
    e("v_mov_b32 v12, 0")
    e("s_not_b32 s3, s70")
    e("v_mov_b32 v13, s3")
    e(f"global_atomic_umax v12, v13, {sr(sDBG)} offset:4 sc1")
    e("v_mov_b32 v14, s100")
    e(f"global_atomic_umax v12, v14, {sr(sDBG)} offset:8 sc1")
    e("v_mov_b32 v15, s70")
    e(f"global_atomic_umax v12, v15, {sr(sDBG)} offset:12 sc1")
    e("s_cmp_lg_u32 s2, 100")
    e("s_cbranch_scc1 L_end")
    e(f"s_cmp_eq_u32 s{sWAVE}, 7")
    e("s_cbranch_scc0 L_dg")
    for k, i in enumerate((9, 1, 2, 4, 7, 13)):
        e(f"s_sub_u32 s3, s{72+2*i}, s72")
        e("v_mov_b32 v13, s3")
        e(f"global_store_dword v12, v13, {sr(sDBG)} offset:{16+4*k}")
    e("s_branch L_end")
    lab("L_dg")
    e(f"s_cmp_eq_u32 s{sWAVE}, 8")
    e("s_cbranch_scc0 L_end")
    for k, i in enumerate((3, 5, 8, 11, 12, 13)):
        e(f"s_sub_u32 s3, s{72+2*i}, s72")
        e("v_mov_b32 v13, s3")
        e(f"global_store_dword v12, v13, {sr(sDBG)} offset:{40+4*k}")
elif STAMPS:
    e("s_waitcnt vmcnt(0)")
    stamp(13)
    e("s_memrealtime s[100:101]")
    e("s_waitcnt lgkmcnt(0)")
    e(f"s_lshl_b32 s{sT}, s2, 4")
    e(f"s_add_u32 s{sT}, s{sT}, s{sWAVE}")
    e(f"s_lshl_b32 s{sT}, s{sT}, 7")
    e(f"s_add_u32 s{sT}, s{sT}, {WS_ST}")
    add64(sP, sWS, off_s=sT)
    if DIAG == 2:
        e(f"v_lshlrev_b32 v12, 2, v{vL}")
        e("s_mov_b64 exec, 0xff")
        e(f"global_store_dword v12, v160, {sr(sP)} offset:64")
    e("v_mov_b32 v12, 0")
    e("s_mov_b64 exec, 1")
    for i in range(16):
        e(f"v_mov_b32 v13, s{70+2*i}")
        e(f"global_store_dword v12, v13, {sr(sP)} offset:{4*i}")
    e("s_waitcnt vmcnt(0)")
lab("L_end")
e("s_endpgm")
lab("L_code_end")

HEAD = open(f"cdna_kernels/{NAME}.s.ref").read().split("; Override launch geometry")[0]
src = HEAD + f"""; @launch grid=(256,1,1) block=(768,1,1) lds={LDS_TOTAL}
.amdgcn_target "amdgcn-amd-amdhsa--gfx950"
.text
.globl {NAME}_kernel
.p2align 8
.type {NAME}_kernel,@function
{NAME}_kernel:
""" + "\n".join(L) + f"""
.section .rodata,"a"
.p2align 6
.amdhsa_kernel {NAME}_kernel
  .amdhsa_next_free_vgpr 168
  .amdhsa_next_free_sgpr 102
  .amdhsa_accum_offset 168
  .amdhsa_group_segment_fixed_size 0
  .amdhsa_kernarg_size 96
  .amdhsa_user_sgpr_count 2
  .amdhsa_user_sgpr_kernarg_segment_ptr 1
  .amdhsa_system_sgpr_workgroup_id_x 1
.end_amdhsa_kernel
"""
open(OUT, "w").write(src)
print("wrote", OUT, len(L), "lines")
```

```python
import sys, struct

NAME = "gated_mix__grouped_kv_mqa__dense_activation_silu__prompt"
STAMPS = "--stamps" in sys.argv
def opt(name, default):
    for a in sys.argv[1:]:
        if a.startswith(f"--{name}="): return int(a.split("=")[1])
    return default
OUT = [a for a in sys.argv[1:] if not a.startswith("--")]
OUT = OUT[0] if OUT else f"cdna_kernels/{NAME}.s"
DIAG = opt("diag", 0)
LITE = opt("lite", 0)

def f2u(x): return struct.unpack("<I", struct.pack("<f", x))[0]
LOG2E = 1.4426950408889634

TILE = 2080
KVBYTES = 64 * TILE
L_X = 66560
L_UP = KVBYTES
L_Q = L_UP
L_KVP = L_UP
L_VT = L_UP + 24576
L_WKV = 32768
R2SZ = 6144
L_G = L_UP + 28672
L_CNT = L_G + 256
L_GW = L_CNT + 256
LDS_TOTAL = L_GW + 1024
C_KA, C_KB, C_KVP, C_GO, C_RED, C_K1, C_HD, C_OD, C_B2, C_QR = [L_CNT + 4*i for i in range(10)]
WS_KV, WS_FL, WS_H, WS_O, WS_ST = 0, 0x30000, 0x40000, 0x600000, 0x900000
WS_KF = WS_FL + 0x1000
WS_NONCE = WS_FL + 0x3000
SPIN = 1 << 16
TAGC = 0x9E3779B1

L = []
def e(s): L.append("    " + s)
def lab(s): L.append(s + ":")
def cm(s): L.append("    ; " + s)
def vr(a, n=4): return f"v[{a}:{a+n-1}]"
def sr(a, n=2): return f"s[{a}:{a+n-1}]"
def stamp(i):
    if STAMPS: e(("s_memrealtime" if opt("rts", 0) else "s_memtime") + f" s[{72+2*i}:{73+2*i}]")

def stampx(i):
    if DIAG != 4: stamp(i)
sX, sWQ, sWK, sWV, sWO, sW1, sW2, sGW, sOUT, sDBG, sWS = 4, 6, 8, 10, 12, 16, 18, 20, 22, 24, 26
sQB, sHG, sWAVE, sV = 28, 29, 30, 31
sJQ, sXM = 32, 33
sB0, sFL, sADV, sROLE, sRING, sN = 34, 36, 38, 39, 40, 41
sHT, sPROD = 42, 43
sKV, sH, sO = 44, 46, 48
sT, sT2, sT3 = 50, 52, 54
sC, sTAG = 56, 58
sSPIN, sI, sCHK, sRETRY = 60, 61, 62, 63
sWB = 14
sP, sP2 = 66, 68
vL, vL16 = 1, 2

def add64(dst, src, off_s=None, imm=None):
    o = f"s{off_s}" if off_s is not None else hex(imm)
    e(f"s_add_u32 s{dst}, s{src}, {o}")
    e(f"s_addc_u32 s{dst+1}, s{src+1}, 0")
def mfma(d, a, b, c):
    cs = "0" if c is None else vr(c, 16)
    e(f"v_mfma_f32_32x32x16_bf16 {vr(d,16)}, {vr(a)}, {vr(b)}, {cs}")
def lds_spin(name, off, want, va, vt, slp=1):
    e(f"v_mov_b32 v{va}, {off}")
    e(f"s_mov_b32 s{sSPIN}, {SPIN*64}")
    lab(f"L_{name}")
    e(f"ds_read_b32 v{vt}, v{va}")
    e("s_waitcnt lgkmcnt(0)")
    e(f"v_readfirstlane_b32 s{sT}, v{vt}")
    e(f"s_sub_u32 s{sSPIN}, s{sSPIN}, 1")
    e(f"s_cmp_eq_u32 s{sSPIN}, 0")
    e(f"s_cbranch_scc1 L_{name}_ok")
    e(f"s_cmp_ge_u32 s{sT}, {want}")
    e(f"s_cbranch_scc1 L_{name}_ok")
    if slp: e(f"s_sleep {slp}")
    e(f"s_branch L_{name}")
    lab(f"L_{name}_ok")
def lds_signal(off, va, vt):
    e(f"v_mov_b32 v{va}, {off}")
    e(f"v_mov_b32 v{vt}, 1")
    e("s_mov_b64 exec, 1")
    e(f"ds_add_u32 v{va}, v{vt}")
    e("s_mov_b64 exec, -1")
def tag_poll(name, va, vt, base, slp):
    e(f"s_mov_b32 s{sSPIN}, {SPIN}")
    lab(f"L_{name}")
    e(f"global_load_dword v{vt}, v{va}, {sr(base)} sc1")
    e("s_waitcnt vmcnt(0)")
    e(f"v_cmp_ne_u32 vcc, s{sTAG}, v{vt}")
    e(f"s_cbranch_vccz L_{name}_ok")
    e(f"s_sleep {slp}")
    e(f"s_sub_u32 s{sSPIN}, s{sSPIN}, 1")
    e(f"s_cmp_lg_u32 s{sSPIN}, 0")
    e(f"s_cbranch_scc1 L_{name}")
    lab(f"L_{name}_ok")
def dma_lin(first_s, n, first_imm=0):
    for j in range(0, n, 4):
        e(f"s_add_u32 s{sT}, s{first_s}, {first_imm + j*1024}")
        e(f"s_mov_b32 m0, s{sT}")
        add64(sP, sKV, off_s=sT)
        for i in range(4):
            e(f"global_load_lds_dwordx4 v{vL16}, {sr(sP)} offset:{i*1024} sc1")
def dma_kv_one(off):
    e(f"s_mov_b32 m0, {off}")
    add64(sP, sKV, imm=off)
    e(f"global_load_lds_dwordx4 v{vL16}, {sr(sP)} sc1")
def tr_lane(dst, t0, t1):
    e(f"v_bfe_u32 v{dst}, v{vL}, 2, 2")
    e(f"v_bfe_u32 v{t0}, v{vL}, 4, 1")
    e(f"v_and_b32 v{t1}, 3, v{vL}")
    e(f"v_lshlrev_b32 v{dst}, 6, v{dst}")
    e(f"v_lshl_add_u32 v{dst}, v{t0}, 5, v{dst}")
    e(f"v_lshl_add_u32 v{dst}, v{t1}, 3, v{dst}")
    e(f"v_lshrrev_b32 v{t0}, 5, v{vL}")
    e(f"v_lshl_add_u32 v{dst}, v{t0}, 9, v{dst}")
e("s_load_dwordx16 s[4:19], s[0:1], 0")
e("s_load_dwordx8 s[20:27], s[0:1], 64")
e("s_cmp_ge_u32 s2, 256")
e("s_cbranch_scc1 L_end")
if STAMPS or LITE: e("s_memrealtime s[70:71]")
stamp(0)
e("v_lshrrev_b32 v5, 6, v0")
e(f"v_and_b32 v{vL}, 63, v0")
e(f"v_readfirstlane_b32 s{sWAVE}, v5")
e(f"v_lshlrev_b32 v{vL16}, 4, v{vL}")
CPF = opt("cpf", 0)
if CPF:
    cm("pull code into L2 at once: wave w < CPF touches 32 lines from 4096*w on")
    e(f"s_cmp_ge_u32 s{sWAVE}, {CPF}")
    e("s_cbranch_scc1 L_nopf")
    e(f"s_getpc_b64 {sr(sT)}")
    e("v_lshlrev_b32 v3, 6, v0")
    e(f"global_load_dword v4, v3, {sr(sT)}")
    lab("L_nopf")
cm("qb = ((wg&7)>>1)*8 + ((wg>>3)&7) ; hg = (wg&1)*4 + (wg>>6) ; producers: wg < 64")
e(f"s_bfe_u32 s{sT}, s2, 0x20001")
e(f"s_bfe_u32 s{sJQ}, s2, 0x30003")
e(f"s_lshl3_add_u32 s{sQB}, s{sT}, s{sJQ}")
e(f"s_and_b32 s{sT}, s2, 1")
e(f"s_lshr_b32 s{sPROD}, s2, 6")
e(f"s_lshl2_add_u32 s{sHG}, s{sT}, s{sPROD}")
cm("stage order s ^ rot, rot = 2*(qb&7) ^ 4*(hg&3)")
e(f"s_lshl_b32 s{sJQ}, s{sJQ}, 1")
e(f"s_lshl_b32 s{sT}, s{sPROD}, 2")
e(f"s_xor_b32 s{sJQ}, s{sJQ}, s{sT}")
e(f"s_and_b32 s{sJQ}, s{sJQ}, {opt('rot', 6)}")
e(f"s_cmp_lt_u32 s{sWAVE}, 8")
e("s_cbranch_scc1 L_aw")

e(f"s_sub_u32 s{sV}, s{sWAVE}, 8")
if opt("gp", 0): e("s_setprio 3")
sWQB, sW1B = 34, 64
cm("X lane offset v20: row 16v + (l>>4) (+4j), 16B unit (l&15) ^ (row&15)")
e(f"v_lshrrev_b32 v16, 4, v{vL}")
e(f"v_and_b32 v17, 15, v{vL}")
e("v_xor_b32 v17, v17, v16")
e("v_lshlrev_b32 v17, 4, v17")
e("v_lshl_add_u32 v20, v16, 10, v17")
for j in range(1, 4):
    e(f"v_xor_b32 v{20+j}, {j*(4096+64)}, v20")
e(f"s_lshl2_add_u32 s{sT2}, s{sQB}, s{sV}")
e(f"s_lshl_b32 s{sT2}, s{sT2}, 14")
e(f"s_lshl_b32 s{sXM}, s{sV}, 12")
cm("row-in-octet v16 = 4*(l>>5) + ((l>>2)&3), v17 = tile bit (l>>4)&1, v18 = (l&3)*16")
e(f"v_lshrrev_b32 v16, 5, v{vL}")
e(f"v_bfe_u32 v19, v{vL}, 2, 2")
e("v_lshl_add_u32 v16, v16, 2, v19")
e(f"s_lshl_b32 s{sT3}, s{sV}, 3")
e(f"v_add_u32 v16, s{sT3}, v16")
e(f"v_bfe_u32 v17, v{vL}, 4, 1")
e(f"v_and_b32 v18, 3, v{vL}")
e("v_lshlrev_b32 v18, 4, v18")
e("v_lshl_add_u32 v24, v17, 6, v18")
e("v_lshl_add_u32 v24, v16, 10, v24")
def x_issue(g):
    e(f"s_xor_b32 s{sT}, s{sJQ}, {4*g}")
    e(f"s_lshr_b32 s{sT}, s{sT}, 2")
    e(f"s_lshl_b32 s{sT}, s{sT}, 8")
    e(f"s_add_u32 m0, s{sXM}, {L_X + g*16384}")
    add64(sP, sP2, off_s=sT)
    for j in range(4):
        if j:
            e(f"s_add_u32 m0, s{sXM}, {L_X + g*16384 + j*1024}")
            e("s_nop 0")
        e(f"global_load_lds_dwordx4 v{20+j}, {sr(sP)}")
e("s_waitcnt lgkmcnt(0)")
stamp(9)
e(f"s_load_dword s{sTAG}, {sr(sWS)}, {hex(WS_NONCE)}")
add64(sP2, sX, off_s=sT2)
x_issue(0)
e(f"s_lshl_b32 s{sT}, s{sHG}, 7")
add64(sWQ, sWQ, off_s=sT)
e(f"s_cmp_eq_u32 s{sHG}, 0")
e("s_cbranch_scc1 L_gprod")
e(f"s_mul_i32 s{sT}, s{sHG}, 384")
e(f"s_sub_u32 s{sT}, s{sT}, 320")
add64(sW1, sW1, off_s=sT)
e(f"v_add_u32 v19, s{sT3}, v19")
e("v_mul_u32_u24 v25, 2752, v19")
e(f"v_lshrrev_b32 v26, 4, v{vL}")
e("v_lshl_add_u32 v25, v26, 6, v25")
e("v_add_u32 v25, v25, v18")
e(f"v_add_u32 v26, {4*2752}, v25")
e("v_mul_u32_u24 v27, 2752, v16")
e("v_lshl_add_u32 v27, v17, 6, v27")
e("v_add3_u32 v27, v27, v18, 64")
e("v_add_u32 v27, 192, v27")
def misc_g():
    cm("gate weights (every wave requests the same 1KB: keeps the counts uniform); zero the LDS counters")
    e(f"s_mov_b32 m0, {L_GW}")
    e(f"v_and_b32 v12, 15, v{vL}")
    e(f"global_load_lds_dwordx4 v{vL16}, {sr(sGW)}")
    e(f"v_lshlrev_b32 v12, 2, v12")
    e(f"v_add_u32 v12, {L_CNT}, v12")
    e("v_mov_b32 v13, 0")
    e("ds_write_b32 v12, v13")
    cm("gate: lane -> row 16v + (l>>2), units 4(l&3)+i ; v10 X address, v11 weight address")
    e(f"v_lshrrev_b32 v12, 2, v{vL}")
    e(f"v_and_b32 v13, 3, v{vL}")
    e("v_lshlrev_b32 v13, 2, v13")
    e("v_xor_b32 v10, v13, v12")
    e("v_lshlrev_b32 v10, 4, v10")
    e("v_lshl_add_u32 v10, v12, 8, v10")
    e(f"s_add_u32 s{sT}, s{sXM}, {L_X}")
    e(f"v_add_u32 v10, s{sT}, v10")
    e(f"s_lshr_b32 s{sT}, s{sJQ}, 2")
    e(f"s_lshl_b32 s{sT}, s{sT}, 8")
    e(f"v_lshl_add_u32 v11, v13, 4, s{sT}")
    e("v_mov_b32 v14, 0")
    e("v_mov_b32 v15, 0")
    e(f"v_and_b32 v30, 31, v{vL}")
    e(f"v_lshlrev_b32 v30, {opt('fsh', 7)}, v30")
    e(f"v_add_u32 v30, {WS_KF}, v30")
    add64(sKV, sWS, imm=WS_KV)
    e("s_waitcnt lgkmcnt(0)")
    e(f"s_add_u32 s{sTAG}, s{sTAG}, {hex(TAGC)}")
    UID[0] += 1
UID = [0]
def gate_part(g):
    if opt("nogate", 0): return
    e(f"v_xor_b32 v12, {g*256}, v11")
    e(f"v_add_u32 v12, {L_GW}, v12")
    for i in range(4):
        if i: e(f"v_xor_b32 v13, {i*16}, v10")
        e(f"ds_read_b128 {vr(32+8*i)}, v{13 if i else 10} offset:{g*16384}")
        e(f"ds_read_b128 {vr(36+8*i)}, v12 offset:{i*16}")
    for i in range(4):
        e(f"s_waitcnt lgkmcnt({6-2*i})")
        for j in range(4):
            e(f"v_dot2_f32_bf16 v{14+(j&1)}, v{32+8*i+j}, v{36+8*i+j}, v{14+(j&1)}")
sFAST = sN
PS = opt("ps", 10)
def loader(prod):
    nw = 2 if prod else 4
    tg = "p" if prod else "n"
    def issue(s):
        if s % 4 == 0 and s and not prod: x_issue(s // 4)
        base = (s % 4) * 16384
        e(f"s_xor_b32 s{sT}, s{sJQ}, {s}")
        e(f"s_lshl_b32 s{sT2}, s{sT}, 15")
        e(f"s_add_u32 m0, s{sXM}, {base}")
        add64(sWQB, sWQ, off_s=sT2)
        e(f"global_load_lds_dwordx4 v24, {sr(sWQB)}")
        e(f"s_mul_i32 s{sT2}, s{sT}, {32*2752}")
        e(f"s_add_u32 m0, s{sXM}, {base + 3072}")
        add64(sW1B, sW1, off_s=sT2)
        e(f"global_load_lds_dwordx4 v27, {sr(sW1B)}")
        if not prod:
            for j, r in ((1, 25), (2, 26)):
                e(f"s_add_u32 m0, s{sXM}, {base + j*1024}")
                e("s_nop 0")
                e(f"global_load_lds_dwordx4 v{r}, {sr(sW1B)}")
    cnt = [nw + (4 if s % 4 == 0 and not prod else 0) for s in range(16)]
    if prod:
        misc_g()
        e("s_waitcnt vmcnt(4)")
        issue(0); issue(1)
        e("s_waitcnt vmcnt(4)")
        e("s_barrier")
        e("s_barrier")
        issue(2)
    else:
        issue(0); issue(1); issue(2)
        misc_g()
    for s in range(14):
        later = sum(cnt[s+1:min(16, s + 3)]) + (1 if s in (PS+1, PS+2) or (s < 3 and not prod) else 0)
        e(f"s_waitcnt vmcnt({later})")
        e("s_barrier")
        if s == 0: stamp(1)
        if s == PS: e(f"global_load_dword v31, v30, {sr(sWS)} sc1")
        if s + 3 < 16: issue(s + 3)
        if s in (4, 6, 9): gate_part((4, 6, 9).index(s))
    cm("K/V already published? then start staging it into the ring slots as they free up")
    e(f"v_cmp_ne_u32 vcc, s{sTAG}, v31")
    e(f"s_mov_b32 s{sFAST}, 0")
    e(f"s_cbranch_vccnz L_slow{tg}")
    e(f"s_mov_b32 s{sFAST}, 1")
    dma_lin(sXM, 4)
    gate_part(3)
    e(f"s_waitcnt vmcnt({cnt[15] + 4})")
    e("s_barrier")
    dma_lin(sXM, 4, 16384)
    e("s_waitcnt vmcnt(8)")
    e("s_barrier")
    dma_lin(sXM, 4, 32768)
    e("s_branch L_g4")
    lab(f"L_slow{tg}")
    e(f"global_load_dword v31, v30, {sr(sWS)} sc1")
    gate_part(3)
    e(f"s_waitcnt vmcnt({cnt[15] + 1})")
    e("s_barrier")
    e("s_waitcnt vmcnt(0)")
    e("s_barrier")
    e(f"v_cmp_ne_u32 vcc, s{sTAG}, v31")
    e("s_cbranch_vccnz L_g4")
    e(f"s_mov_b32 s{sFAST}, 1")
    for j in range(3):
        dma_lin(sXM, 4, j*16384)
    e("s_branch L_g4")
loader(False)
if opt("gap", 0): L.append(".p2align 12, 0")
lab("L_gprod")
cm("producer (hg==0): all of X and [wk|wv] first (wave v: k-steps 8v..8v+7); last piece = w1 tile 0")
e(f"v_lshrrev_b32 v28, 2, v{vL}")
e("v_lshlrev_b32 v28, 5, v28")
e("v_and_b32 v19, 16, v18")
e(f"v_add3_u32 v28, v28, v19, s{sXM}")
e("v_mov_b32 v29, 0")
e(f"v_and_b32 v19, 2, v{vL}")
e("v_cmp_ne_u32 vcc, 0, v19")
e(f"v_mov_b32 v32, s{sWK}")
e(f"v_mov_b32 v33, s{sWK+1}")
e(f"v_mov_b32 v34, s{sWV}")
e(f"v_mov_b32 v35, s{sWV+1}")
e("v_cndmask_b32 v32, v32, v34, vcc")
e("v_cndmask_b32 v33, v33, v35, vcc")
e("v_lshl_add_u64 v[32:33], v[28:29], 0, v[32:33]")
e(f"s_lshl_b32 s{sT3}, s{sXM}, 1")
e(f"s_and_b32 s{sC}, s{sQB}, 7")
e(f"s_mov_b32 s{sW1B+1}, 0")
def wkv_dma(i):
    e(f"s_xor_b32 s{sT}, s{sC}, {i}")
    e(f"s_lshl_b32 s{sW1B}, s{sT}, 9")
    e(f"s_lshl_b32 s{sT}, s{sT}, 10")
    e(f"s_add_u32 s{sT}, s{sT}, s{sT3}")
    e(f"s_add_u32 m0, s{sT}, {L_WKV}")
    e(f"v_lshl_add_u64 v[28:29], v[32:33], 0, {sr(sW1B)}")
    e("global_load_lds_dwordx4 v[28:29], off")
wkv_dma(0)
for g in range(1, 4): x_issue(g)
for i in range(1, 8): wkv_dma(i)
e("v_mul_u32_u24 v27, 2752, v16")
e("v_add_u32 v27, v27, v18")
loader(True)

if opt("gap", 0): L.append(".p2align 12, 0")
lab("L_aw")
if DIAG == 4: stamp(9)
e(f"s_mul_i32 s{sHT}, s{sHG}, 6")
e(f"s_add_u32 s{sHT}, s{sHT}, s{sWAVE}")
e(f"s_sub_u32 s{sHT}, s{sHT}, 7")
e(f"s_mov_b32 s{sROLE}, 2")
e(f"s_cmp_lg_u32 s{sHG}, 0")
e("s_cbranch_scc1 L_r1")
e(f"s_mov_b32 s{sHT}, 0")
e(f"s_cmp_lt_u32 s{sWAVE}, 7")
e(f"s_cselect_b32 s{sROLE}, 3, 2")
lab("L_r1")
e(f"s_cmp_lt_u32 s{sWAVE}, 2")
e(f"s_cselect_b32 s{sROLE}, 0, s{sROLE}")
cm("block base: w<2: 256w ; w<6: 1024+256(w-2) ; else 3072+256(w-6) ; rg stride 1024 for 2<=w<6 else 512")
e(f"s_cselect_b32 s{sT}, 0, 512")
e(f"s_cselect_b32 s{sT2}, 512, 1024" if False else f"s_cselect_b32 s{sT2}, 1, 2")
e(f"s_cmp_ge_u32 s{sWAVE}, 6")
e(f"s_cselect_b32 s{sT}, 1536, s{sT}")
e(f"s_cselect_b32 s{sT2}, 1, s{sT2}")
e(f"s_lshl_b32 s{sT2}, s{sT2}, 9")
e(f"s_lshl_b32 s{sT3}, s{sWAVE}, 8")
e(f"s_add_u32 s{sT}, s{sT}, s{sT3}")
e(f"v_bfe_u32 v6, v{vL}, 2, 2")
e(f"v_bfe_u32 v32, v{vL}, 4, 1")
e(f"v_and_b32 v33, 3, v{vL}")
e("v_lshlrev_b32 v6, 6, v6")
e("v_lshl_add_u32 v6, v32, 5, v6")
e("v_lshl_add_u32 v6, v33, 3, v6")
e(f"v_lshrrev_b32 v32, 5, v{vL}")
e("v_lshl_add_u32 v6, v32, 12, v6")
e(f"v_add_u32 v6, s{sT}, v6")
e(f"v_add_u32 v7, s{sT2}, v6")
cm("X fragment addresses v8..v15 for (s&3, ks)")
e(f"v_and_b32 v33, 31, v{vL}")
e(f"v_and_b32 v34, 15, v{vL}")
e("v_xor_b32 v34, v34, v32")
e("v_lshlrev_b32 v34, 4, v34")
e("v_lshl_add_u32 v8, v33, 8, v34")
e(f"s_and_b32 s{sT}, s{sJQ}, 3")
e(f"s_lshl_b32 s{sT}, s{sT}, 6")
e(f"v_xor_b32 v8, s{sT}, v8")
e(f"v_add_u32 v8, {L_X}, v8")
for j in range(1, 8):
    e(f"v_xor_b32 v{8+j}, {j << 5}, v8")
e("s_waitcnt lgkmcnt(0)")
if DIAG == 4: stamp(10)
e(f"s_load_dword s{sTAG}, {sr(sWS)}, {hex(WS_NONCE)}")
e(f"s_lshl3_add_u32 s{sT}, s{sQB}, s{sHG}")
e(f"s_lshl3_add_u32 s{sT}, s{sT}, s{sWAVE}")
e(f"s_lshl_b32 s{sT}, s{sT}, 10")
e(f"s_add_u32 s{sT}, s{sT}, {WS_O}")
add64(sO, sWS, off_s=sT)
e(f"s_mul_i32 s{sT}, s{sQB}, 43")
e(f"s_add_u32 s{sT}, s{sT}, s{sHT}")
e(f"s_lshl_b32 s{sT}, s{sT}, 12")
e(f"s_add_u32 s{sT}, s{sT}, {WS_H}")
add64(sH, sWS, off_s=sT)
ACC = [64, 80]
FB = [16, 40]
def early_setup():
    for i in range(4):
        e(f"v_mov_b32 v{128+i}, -1")
    cm("V lane address: m>=16: 1024 + h*256 + (m-16)*16 ; m in {0,4}: ones slot ; else out of range (reads 0)")
    e(f"v_and_b32 v150, 15, v{vL}")
    e(f"v_lshrrev_b32 v151, 5, v{vL}")
    e("v_lshlrev_b32 v150, 4, v150")
    e("v_lshl_add_u32 v150, v151, 8, v150")
    e(f"v_and_b32 v151, 27, v{vL}")
    e(f"v_cmp_eq_u32 {sr(sT)}, 0, v151")
    e("v_cmp_lt_u32 vcc, 15, v151")
    e("v_mov_b32 v151, 0x40000")
    e("v_mov_b32 v152, 512")
    e(f"v_cndmask_b32 v151, v151, v152, {sr(sT)}")
    e(f"v_cndmask_b32 v148, v151, v150, vcc")
    e(f"v_add_u32 v148, 1024, v148")
    e(f"s_lshl_b32 s{sT}, s{sWAVE}, 10")
    e(f"s_add_u32 s{sT}, s{sT}, {L_Q}")
    e(f"v_add_u32 v149, s{sT}, v{vL16}")
    e(f"s_mov_b32 s{sRETRY}, 0")
    e("v_mov_b32 v153, 0xdddddddd")
    e(f"s_mov_b32 s{sCHK}, 7")
    for r in range(16):
        e(f"v_mov_b32 v{112+r}, 0")
e(f"s_cmp_lg_u32 s{sHG}, 0")
e("s_cbranch_scc1 L_nokv")
e(f"s_lshr_b32 s{sT2}, s{sWAVE}, 1")
e(f"s_and_b32 s{sT3}, s{sWAVE}, 1")
tr_lane(40, 41, 42)
e(f"s_lshr_b32 s{sT}, s{sJQ}, 2")
e(f"s_xor_b32 s{sT}, s{sT}, s{sT2}")
e(f"s_lshl_b32 s{sT}, s{sT}, 13")
e(f"s_add_u32 s{sT}, s{sT}, {L_WKV}")
e(f"v_add_u32 v40, s{sT}, v40")
e(f"s_and_b32 s{sT}, s{sJQ}, 3")
e(f"s_lshl_b32 s{sT}, s{sT}, 6")
e(f"v_xor_b32 v41, s{sT}, v8")
e(f"s_lshl1_add_u32 s{sT}, s{sT2}, s{sT3}")
e(f"s_lshl_b32 s{sT}, s{sT}, 13")
e(f"v_add_u32 v41, s{sT}, v41")
for j in range(1, 8):
    e(f"v_xor_b32 v{41+j}, {j << 5}, v41")
cm("partial slot (rt*3 + idx), idx = kq - (kq>1)")
e(f"s_cmp_gt_u32 s{sT2}, 1")
e(f"s_subb_u32 s{sT}, s{sT2}, 0")
e(f"s_cmp_eq_u32 s{sT2}, 1")
e(f"s_cselect_b32 s{sT}, 0, s{sT}")
e(f"s_mul_i32 s{sC}, s{sT3}, 3")
e(f"s_add_u32 s{sT}, s{sT}, s{sC}")
e(f"s_lshl_b32 s{sT}, s{sT}, 12")
e(f"s_add_u32 s{sT}, s{sT}, {L_KVP}")
e(f"v_add_u32 v50, s{sT}, v{vL16}")
e(f"s_lshl1_add_u32 s{sT}, s{sQB}, s{sT3}")
e(f"s_mul_i32 s{sT}, s{sT}, {TILE}")
add64(sP, sWS, off_s=sT)
e(f"s_lshl_b32 s{sT}, s{sT3}, 10")
e(f"s_add_u32 s{sT}, s{sT}, {L_VT}")
e(f"v_and_b32 v52, 31, v{vL}")
e(f"v_lshrrev_b32 v55, 5, v{vL}")
e("v_lshlrev_b32 v52, 5, v52")
e("v_lshl_add_u32 v52, v55, 3, v52")
e(f"v_add_u32 v52, s{sT}, v52")
e(f"v_bfe_u32 v53, v{vL}, 2, 2")
e(f"v_bfe_u32 v54, v{vL}, 4, 1")
e("v_lshl_add_u32 v53, v54, 3, v53")
e("v_lshl_add_u32 v53, v55, 4, v53")
e("v_lshlrev_b32 v53, 5, v53")
e(f"v_and_b32 v54, 3, v{vL}")
e("v_lshl_add_u32 v53, v54, 3, v53")
e(f"v_add_u32 v53, s{sT}, v53")
e(f"v_lshl_add_u32 v54, v55, 4, v{vL16}")
e(f"v_and_b32 v55, 1, v{vL}")
e("v_mul_u32_u24 v55, 528, v55")
for i in range(4):
    e(f"v_mov_b32 v{56+i}, 0x3f803f80")
e("s_waitcnt lgkmcnt(0)")
e("s_barrier")
stamp(9)
for i in range(8):
    e(f"ds_read_b64_tr_b16 {vr(96+8*(i%5),2)}, v40 offset:{i*1024}")
    e(f"ds_read_b64_tr_b16 {vr(98+8*(i%5),2)}, v40 offset:{i*1024+256}")
    e(f"ds_read_b128 {vr(100+8*(i%5))}, v{41+i}")
    if i >= 3:
        e("s_waitcnt lgkmcnt(9)")
        mfma(64, 96+8*((i-3)%5), 100+8*((i-3)%5), None if i == 3 else 64)
for i in range(5, 8):
    e(f"s_waitcnt lgkmcnt({3*(7-i)})")
    mfma(64, 96+8*(i%5), 100+8*(i%5), 64)
e(f"s_cmp_eq_u32 s{sT2}, 1")
e("s_cbranch_scc1 L_kvf")
e("s_nop 10")
for q in range(4):
    e(f"ds_write_b128 v50, {vr(64+4*q)} offset:{q*1024}")
e("s_waitcnt lgkmcnt(0)")
e("s_barrier")
e("s_branch L_nokv")
lab("L_kvf")
e(f"global_store_dwordx4 v55, v[56:59], {sr(sP)} offset:1536 sc1")
e("s_barrier")
PB = (80, 96, 112)
for c in range(3):
    for q in range(4):
        e(f"ds_read_b128 {vr(PB[c]+4*q)}, v50 offset:{c*4096+q*1024}")
for c in range(3):
    e(f"s_waitcnt lgkmcnt({8-4*c})")
    for r in range(0, 16, 2):
        e(f"v_pk_add_f32 {vr(64+r,2)}, {vr(64+r,2)}, {vr(PB[c]+r,2)}")
for r in range(8, 16, 2):
    e(f"v_cvt_pk_bf16_f32 v{80+r//2}, v{64+r}, v{65+r}")
e("ds_write_b64 v52, v[84:85]")
e("ds_write_b64 v52, v[86:87] offset:16")
e("ds_read_b64_tr_b16 v[88:89], v53")
e("ds_read_b64_tr_b16 v[90:91], v53 offset:128")
for r in range(0, 8, 2):
    e(f"v_cvt_pk_bf16_f32 v{80+r//2}, v{64+r}, v{65+r}")
e(f"global_store_dwordx4 v{vL16}, v[80:83], {sr(sP)} sc1")
e("s_waitcnt lgkmcnt(0)")
e(f"global_store_dwordx4 v54, v[88:91], {sr(sP)} offset:1024 sc1")
stamp(10)
cm("both finishers drain their stores before pipeline barrier 2; wave 2 raises the flag behind it")
e("s_barrier")
early_setup()
e("s_barrier")
e("s_waitcnt vmcnt(0)")
e("s_barrier")
e(f"s_mov_b32 s{sI}, 14")
e(f"s_cmp_lg_u32 s{sT3}, 0")
e("s_cbranch_scc1 L_idle1")
e(f"s_add_u32 s{sT2}, s{sTAG}, {hex(TAGC)}")
e(f"s_lshl_b32 s{sT}, s{sQB}, {opt('fsh', 7)}")
e(f"s_add_u32 s{sT}, s{sT}, {WS_KF}")
e(f"v_mov_b32 v20, s{sT}")
e(f"v_mov_b32 v21, s{sT2}")
e("s_mov_b64 exec, 1")
e(f"global_store_dword v20, v21, {sr(sWS)} sc1")
e("s_mov_b64 exec, -1")
stamp(11)
e("s_branch L_idle1")
lab("L_nokv")
early_setup()
for r in range(32):
    e(f"v_mov_b32 v{64+r}, 0")
for r in range(24):
    e(f"v_mov_b32 v{FB[1]+r}, 0")
e(f"s_mov_b32 s{sI}, 4")
e("s_waitcnt lgkmcnt(0)")
e(f"s_cmp_eq_u32 s{sROLE}, 3")
e("s_cbranch_scc1 L_idle")
def p1_mf(st):
    if opt("nomf", 0): return
    for ks in range(2):
        for rt in range(2):
            mfma(ACC[rt], FB[st] + 12*ks, FB[st] + 12*ks + 4 + 4*rt, ACC[rt])
lab("L_p1")
for u in range(4):
    e("s_barrier")
    f = FB[u & 1]
    for ks in range(2 if opt("nomf", 0) < 2 else 0):
        e(f"ds_read_b64_tr_b16 {vr(f+12*ks,2)}, v6 offset:{u*16384+ks*8192}")
        e(f"ds_read_b64_tr_b16 {vr(f+12*ks+2,2)}, v7 offset:{u*16384+ks*8192}")
        for rt in range(2):
            e(f"ds_read_b128 {vr(f+12*ks+4+4*rt)}, v{8+2*u+ks} offset:{rt*8192}")
        e(f"v_add_u32 v{8+2*u+ks}, 0x4000, v{8+2*u+ks}")
    p1_mf((u + 1) & 1)
    e("s_waitcnt lgkmcnt(0)")
e(f"s_sub_u32 s{sI}, s{sI}, 1")
e(f"s_cmp_lg_u32 s{sI}, 0")
e("s_cbranch_scc1 L_p1")
e("s_barrier")
p1_mf(1)
stamp(2)
e(f"s_cmp_eq_u32 s{sROLE}, 0")
e(f"s_mov_b32 s{sC}, {hex(f2u(-LOG2E))}")
e(f"s_cselect_b32 s{sC}, {hex(f2u(0.25*LOG2E))}, s{sC}")
e(f"s_mov_b32 s{sC+1}, s{sC}")
e("s_nop 7")
if opt("sp", 0): e("s_setprio 3")
e("s_cbranch_scc0 L_epiH")
e("s_setprio 3")
for r in range(0, 32, 2):
    e(f"v_pk_mul_f32 {vr(64+r,2)}, {vr(64+r,2)}, {sr(sC)}")
for r in range(0, 32, 2):
    e(f"v_cvt_pk_bf16_f32 v{96+r//2}, v{64+r}, v{65+r}")
e(f"s_lshl_b32 s{sT}, s{sWAVE}, 12")
e(f"s_add_u32 s{sT}, s{sT}, {L_Q}")
e(f"v_add_u32 v32, s{sT}, v{vL16}")
for rt in range(2):
    for i in range(2):
        e(f"ds_write_b128 v32, {vr(96+rt*8+i*4)} offset:{i*2048+rt*1024}")
e("s_waitcnt lgkmcnt(0)")
lds_signal(C_B2, 12, 13)
e("s_branch L_p1done")
lab("L_idle")
e(f"s_mov_b32 s{sI}, 17")
lab("L_idle1")
e("s_barrier")
e(f"s_sub_u32 s{sI}, s{sI}, 1")
e(f"s_cmp_lg_u32 s{sI}, 0")
e("s_cbranch_scc1 L_idle1")
e("s_branch L_p1done")
if opt("gap", 0): L.append(".p2align 12, 0")
lab("L_epiH")
for rt in range(2):
    a = ACC[rt]
    for r in range(0, 16, 2):
        e(f"v_pk_mul_f32 {vr(96+r,2)}, {vr(a+r,2)}, {sr(sC)}")
    for r in range(16):
        e(f"v_exp_f32 v{96+r}, v{96+r}")
    for r in range(0, 16, 2):
        e(f"v_pk_add_f32 {vr(96+r,2)}, {vr(96+r,2)}, 1.0 op_sel_hi:[1,0]")
    for r in range(16):
        e(f"v_rcp_f32 v{96+r}, v{96+r}")
    for r in range(0, 16, 2):
        e(f"v_pk_mul_f32 {vr(96+r,2)}, {vr(96+r,2)}, {vr(a+r,2)}")
    for r in range(0, 16, 2):
        e(f"v_cvt_pk_bf16_f32 v{132+rt*8+r//2}, v{96+r}, v{97+r}")
lab("L_p1done")
Q = 16
KF = [20, 24]
V0 = [28, 32]
V1 = [36, 40]
P = [48, 56]
S = [64, 80]
C = 96
O = 112
vK, vV0, vV = 10, 148, 11
def att_zero(full=True):
    if full:
        for r in range(16):
            e(f"v_mov_b32 v{O+r}, 0")
    for r in range(4):
        e(f"v_mov_b32 v{V1[1]+r}, 0")
    for r in range(8, 16):
        e(f"v_mov_b32 v{S[1]+r}, 0")
att_zero(False)
stamp(3)
lds_spin("b2a", C_B2, 6, 12, 13, slp=1)
stamp(4)
if STAMPS: e("s_memrealtime s[88:89]")
e("s_setprio 3")
e(f"ds_read_b128 {vr(Q)}, v149")
e(f"ds_read_b128 {vr(KF[0])}, v{vL16}")
def att_first_loads():
    e(f"ds_read_b128 {vr(KF[1])}, v{vL16} offset:{TILE}")
    e(f"ds_read_b128 {vr(V0[0])}, v{vV0}")
    e(f"ds_read_b128 {vr(V0[1])}, v{vV0} offset:{TILE}")
    e(f"ds_read_b128 {vr(V1[0])}, v{vV0} offset:528")
att_first_loads()
HST = opt("hst", 0)
e("s_waitcnt lgkmcnt(4)")
mfma(S[0], KF[0], Q, None)
lds_signal(C_QR, 12, 13)
if HST:
    cm("poison this wave's O slot and publish its H tile")
    e(f"global_store_dwordx4 v{vL16}, v[128:131], {sr(sO)} sc1")
    e(f"s_cmp_lg_u32 s{sROLE}, 2")
    e("s_cbranch_scc1 L_noh")
    for rt in range(2):
        for ks in range(2):
            e(f"global_store_dwordx4 v{vL16}, {vr(132+rt*8+ks*4)}, {sr(sH)} offset:{ks*2048+rt*1024} sc1")
    lab("L_noh")
e("s_nop 6")
e(f"v_max3_f32 v12, v{S[0]}, v{S[0]+1}, v{S[0]+2}")
for r in range(3, 15, 2):
    e(f"v_max3_f32 v12, v12, v{S[0]+r}, v{S[0]+r+1}")
e(f"v_max_f32 v12, v12, v{S[0]+15}")
lab("L_att_setC")
e("v_mov_b32 v14, v12")
e(f"v_mov_b32 v{vK}, v{vL16}")
e(f"v_mov_b32 v{vV}, v{vV0}")
e("v_permlane32_swap_b32 v12, v14")
e(f"s_mov_b32 s{sI}, 0")
e("s_nop 0")
e("v_max_f32 v12, v12, v14")
for r in range(16):
    e(f"v_sub_f32 v{C+r}, 0, v12")
e("s_waitcnt lgkmcnt(0)")
e("s_nop 0")
mfma(S[0], KF[0], Q, C)
e(f"ds_read_b128 {vr(KF[0])}, v{vL16} offset:{2*TILE}")
e("s_setprio 2")
e("s_nop 9")
stamp(5)
UN = 8
EXO = opt("exo", 0)
def ex(x, r): e(f"v_exp_f32 v{S[x]+r}, v{S[x]+r}")
def pv(a, b): e(f"v_smfmac_f32_32x32x32_bf16 {vr(O,16)}, {vr(a)}, {vr(b,8)}, v153")
L.append(".p2align 6")
lab("L_att_loop")
for u in range(UN):
    x = u & 1; y = 1 - x
    if u == 5:
        e(f"s_bitcmp1_b32 s{sCHK}, s{sI}")
        e("s_cbranch_scc1 L_att_chk")
        lab("L_att_chk_ret")
    n1, n2, n3 = ((2, 7, 12), (3, 8, 13), (2, 6, 11), (4, 8, 12))[EXO]
    for r in range(n1): ex(x, r)
    pv(V1[y], S[y] + 8)
    e(f"ds_read_b128 {vr(V1[y])}, v{vV} offset:{(u+1)*TILE+528}")
    for r in range(n1, n2): ex(x, r)
    mfma(S[y], KF[y], Q, C)
    e(f"ds_read_b128 {vr(KF[y])}, v{vK} offset:{(u+3)*TILE}")
    for r in range(n2, n3): ex(x, r)
    pv(V0[x], S[x])
    e("s_waitcnt lgkmcnt(2)")
    e(f"ds_read_b128 {vr(V0[x])}, v{vV} offset:{(u+2)*TILE}")
    for r in range(n3, 16): ex(x, r)
if DIAG == 2:
    e("s_memtime s[100:101]")
    e("s_waitcnt lgkmcnt(0)")
    e(f"s_mov_b32 m0, s{sI}")
    e("s_nop 0")
    e("v_writelane_b32 v160, s100, m0")
e(f"v_add_u32 v{vK}, {UN*TILE}, v{vK}")
e(f"v_add_u32 v{vV}, {UN*TILE}, v{vV}")
e(f"s_add_u32 s{sI}, s{sI}, 1")
e(f"s_cmp_lt_u32 s{sI}, {64//UN - opt('lastp', 2)}")
e("s_cbranch_scc1 L_att_loop")
e("s_setprio 0")
e(f"s_cmp_lt_u32 s{sI}, {64//UN}")
e("s_cbranch_scc1 L_att_loop")
e("s_setprio 3")
e(f"s_and_b32 s{sT}, s{sWAVE}, 1")
e(f"s_lshl_b32 s{sT}, s{sT}, 7")
pv(V1[1], S[1] + 8)
stamp(6)
e(f"s_add_u32 s{sT}, s{sT}, {L_G}")
e(f"v_and_b32 v12, 31, v{vL}")
e(f"v_lshl_add_u32 v12, v12, 2, s{sT}")
e("ds_read_b32 v14, v12")
e(f"s_mov_b32 s{sT}, {hex(f2u(2.0**86))}")
e("v_mov_b32 v13, 0x207")
e("s_nop 6")
cm("safety check of the stand-in max: l < 2^42 and O finite, else redo with the true row max")
e(f"v_mul_f32 v12, s{sT}, v{O}")
for r in range(8, 16):
    e(f"v_add_f32 v12, v12, abs(v{O+r})")
e("v_cmp_class_f32 vcc, v12, v13")
e(f"v_rcp_f32 v12, v{O}")
e("s_cbranch_vccz L_att_ok")
e(f"s_cmp_eq_u32 s{sRETRY}, 0")
e("s_cbranch_scc1 L_att_truemax")
lab("L_att_ok")
e("s_waitcnt lgkmcnt(0)")
e("v_mul_f32 v12, v12, v14")
for r in range(8, 16):
    e(f"v_mul_f32 v{O+r}, v{O+r}, v12")
for i in range(4):
    e(f"v_cvt_pk_bf16_f32 v{P[0]+i}, v{O+8+2*i}, v{O+9+2*i}")
for i in range(4):
    e(f"v_min_u32 v{P[0]+i}, -2, v{P[0]+i}")
e(f"global_store_dwordx4 v{vL16}, {vr(P[0])}, {sr(sO)} sc1")
lds_signal(C_OD, 12, 13)
stamp(7)
if STAMPS: e("s_memrealtime s[96:97]")
e("s_branch L_fin")
if opt("gap", 0): L.append(".p2align 12, 0")
lab("L_att_chk")
e(f"s_cmp_eq_u32 s{sI}, 1")
e("s_cbranch_scc1 L_att_chk1")
e(f"s_lshl1_add_u32 s{sT2}, s{sI}, {0}")
e(f"s_add_u32 s{sT2}, s{sT2}, {C_KA}")
lds_spin("att_chk2", f"s{sT2}", 4, 12, 13)
def h_stores(skip):
    e(f"global_store_dwordx4 v{vL16}, v[128:131], {sr(sO)} sc1")
    e(f"s_cmp_lg_u32 s{sROLE}, 2")
    e(f"s_cbranch_scc1 {skip}")
    for rt in range(2):
        for ks in range(2):
            e(f"global_store_dwordx4 v{vL16}, {vr(132+rt*8+ks*4)}, {sr(sH)} offset:{ks*2048+rt*1024} sc1")
if not HST:
    e(f"s_cmp_lg_u32 s{sI}, 0")
    e("s_cbranch_scc1 L_att_chk_ret")
    h_stores("L_att_chk_ret")
e("s_branch L_att_chk_ret")
lab("L_att_chk1")
cm("H / poison stores of this wave have drained; the last wave to get here publishes H")
e("s_waitcnt vmcnt(0)")
e(f"v_mov_b32 v12, {C_HD}")
e("v_mov_b32 v13, 1")
e("s_mov_b64 exec, 1")
e("ds_add_rtn_u32 v13, v12, v13")
e(f"s_lshl_b32 s{sT}, s{sQB}, 7")
e(f"s_lshl2_add_u32 s{sT}, s{sHG}, s{sT}")
e(f"s_add_u32 s{sT}, s{sT}, {WS_FL}")
e(f"s_add_u32 s{sT2}, s{sTAG}, {hex(TAGC)}")
e("s_waitcnt lgkmcnt(0)")
e("v_cmp_eq_u32 vcc, 7, v13")
e("s_cbranch_vccz L_att_chk1b")
e(f"v_mov_b32 v12, s{sT}")
e(f"v_mov_b32 v13, s{sT2}")
e(f"global_store_dword v12, v13, {sr(sWS)} sc1")
lab("L_att_chk1b")
e("s_mov_b64 exec, -1")
e("s_setprio 1")
e("s_branch L_att_chk_ret")
lab("L_att_truemax")
e(f"s_mov_b32 s{sRETRY}, 1")
e(f"s_mov_b32 s{sCHK}, 0")
e("v_mov_b32 v12, 0xff800000")
e(f"v_mov_b32 v{vK}, v{vL16}")
e(f"s_mov_b32 s{sI}, 0")
lab("L_att_tm")
e(f"ds_read_b128 {vr(KF[0])}, v{vK}")
e(f"v_add_u32 v{vK}, {TILE}, v{vK}")
e("s_waitcnt lgkmcnt(0)")
mfma(S[0], KF[0], Q, None)
e("s_nop 15")
for r in range(0, 16, 2):
    e(f"v_max3_f32 v12, v12, v{S[0]+r}, v{S[0]+r+1}")
e(f"s_add_u32 s{sI}, s{sI}, 1")
e(f"s_cmp_lt_u32 s{sI}, 64")
e("s_cbranch_scc1 L_att_tm")
e(f"ds_read_b128 {vr(KF[0])}, v{vL16}")
att_first_loads()
att_zero()
e("s_branch L_att_setC")

if opt("gap", 0): L.append(".p2align 12, 0")
lab("L_g4")
e("s_setprio 3")
for perm in ("quad_perm:[1,0,3,2]", "quad_perm:[2,3,0,1]"):
    if perm.endswith("2]"): e("v_add_f32 v14, v14, v15")
    e("s_nop 1")
    e(f"v_add_f32_dpp v14, v14, v14 {perm} row_mask:0xf bank_mask:0xf")
e(f"v_mul_f32 v14, {hex(f2u(-LOG2E))}, v14")
e("v_exp_f32 v14, v14")
e(f"s_lshl_b32 s{sT}, s{sV}, 6")
e(f"s_add_u32 s{sT}, s{sT}, {L_G}")
e("v_add_f32 v14, 1.0, v14")
e("v_rcp_f32 v14, v14")
e(f"v_and_b32 v12, 60, v{vL}")
e(f"v_add_u32 v12, s{sT}, v12")
e("ds_write_b32 v12, v14")
e("s_barrier")
stamp(2)
e(f"s_cmp_lg_u32 s{sFAST}, 0")
e("s_cbranch_scc1 L_kvfast")
tag_poll("kvpoll", 30, 31, sWS, 4)
for j in range(3):
    dma_lin(sXM, 4, j*16384)
lab("L_kvfast")
stamp(3)
cm("K/V: pieces 0..31 gate the start, 32..63 -> C_KA, 64..129 -> C_KB")
dma_lin(sXM, 4, 49152)
e("s_waitcnt vmcnt(8)")
lds_signal(C_B2, 12, 13)
stamp(4)
e(f"s_lshl_b32 s{sT3}, s{sV}, 14")
dma_lin(sT3, 4, 65536)
e("s_waitcnt vmcnt(4)")
lds_signal(C_KA, 12, 13)
dma_lin(sT3, 12, 65536 + 4096)
e(f"s_cmp_lg_u32 s{sV}, 0")
e("s_cbranch_scc1 L_g5")
dma_kv_one(128 * 1024)
dma_kv_one(129 * 1024)
lab("L_g5")
tr_lane(7, 32, 33)
e(f"s_lshl_b32 s{sT}, s{sQB}, 7")
e(f"s_add_u32 s{sT}, s{sT}, {WS_FL}")
add64(sFL, sWS, off_s=sT)
e(f"s_mul_i32 s{sT}, s{sQB}, {43*4096}")
e(f"s_add_u32 s{sT}, s{sT}, {WS_H}")
add64(sH, sWS, off_s=sT)
e(f"s_lshl2_add_u32 s{sT}, s{sQB}, s{sV}")
e(f"s_lshl_b32 s{sT}, s{sT}, 14")
e(f"s_add_u32 s{sT}, s{sT}, {WS_O}")
add64(sO, sWS, off_s=sT)
cm("weight piece lane offsets v8/v9 (8 rows x 128B -> [rg][ct][4 rows][64B]); ring read address v7")
e(f"v_lshrrev_b32 v32, 5, v{vL}")
e(f"v_bfe_u32 v33, v{vL}, 2, 2")
e("v_lshl_add_u32 v32, v32, 2, v33")
e("v_lshlrev_b32 v8, 10, v32")
e(f"v_bfe_u32 v33, v{vL}, 4, 1")
e("v_lshl_add_u32 v8, v33, 6, v8")
e(f"v_and_b32 v33, 3, v{vL}")
e("v_lshl_add_u32 v8, v33, 4, v8")
e("v_add_u32 v9, 0x2000, v8")
e(f"s_mul_i32 s{sRING}, s{sV}, {R2SZ}")
e(f"s_add_u32 s{sRING}, s{sRING}, {L_UP}")
e(f"v_add_u32 v3, s{sRING}, v7")
cm("slot j of the accumulators holds tile j^v: ct ^= v>>1 (v3/v10), rt ^= v&1 (v11/v7)")
e(f"s_lshr_b32 s{sT}, s{sV}, 1")
e(f"s_lshl_b32 s{sT}, s{sT}, 8")
e(f"v_add_u32 v3, s{sT}, v3")
e("v_xor_b32 v10, 0x100, v3")
e(f"s_and_b32 s{sT}, s{sV}, 1")
e(f"s_lshl_b32 s{sT}, s{sT}, 10")
e(f"v_add_u32 v11, s{sT}, v{vL16}")
e("v_xor_b32 v0, 0x400, v11")
e("s_waitcnt vmcnt(0)")
lds_signal(C_KB, 12, 13)
stamp(5)
if opt("w2t", 1):
    cm("pull this workgroup's share of the w2 slice into L2: rows 8*(64v+l) + (qb&7), v<3")
    e(f"s_and_b32 s{sT}, s{sQB}, 7")
    e(f"s_lshl_b32 s{sT2}, s{sV}, 9")
    e(f"s_add_u32 s{sT}, s{sT}, s{sT2}")
    e(f"v_lshl_add_u32 v12, v{vL}, 3, s{sT}")
    e("v_min_u32 v12, 1375, v12")
    e(f"s_lshl_b32 s{sT}, s{sHG}, 7")
    e(f"v_lshl_add_u32 v12, v12, 10, s{sT}")
    e(f"global_load_dword v14, v12, {sr(sW2)}")
lds_spin("qr", C_QR, 8, 12, 13, slp=4)
GA = [100, 116, 132, 148]
def ring_issue(slot, base):
    e(f"s_add_u32 m0, s{sRING}, {slot*2048}")
    e("s_nop 0")
    e(f"global_load_lds_dwordx4 v8, {sr(base)}")
    e(f"s_add_u32 m0, s{sRING}, {slot*2048+1024}")
    e("s_nop 0")
    e(f"global_load_lds_dwordx4 v9, {sr(base)}")
def ring_read(slot, ct, dst):
    e(f"ds_read_b64_tr_b16 {vr(dst,2)}, v{(3, 10)[ct]} offset:{slot*2048}")
    e(f"ds_read_b64_tr_b16 {vr(dst+2,2)}, v{(3, 10)[ct]} offset:{slot*2048+1024}")
WOF = opt("wof", 1)
def wo_block():
    e("s_waitcnt vmcnt(0)")
    e(f"s_lshl_b32 s{sT}, s{sV}, 17")
    e(f"s_lshl_b32 s{sT2}, s{sHG}, 7")
    e(f"s_add_u32 s{sT}, s{sT}, s{sT2}")
    add64(sP, sWO, off_s=sT)
    for ks in range(3):
        ring_issue(ks, sP)
        add64(sP, sP, imm=16384)
    for ks in range(8):
        e(f"s_waitcnt vmcnt({2*min(2, 7-ks)})")
        ring_read(ks % 3, 0, 36 + 8*ks)
        ring_read(ks % 3, 1, 40 + 8*ks)
        if ks + 3 < 8:
            e("s_waitcnt lgkmcnt(0)")
            ring_issue(ks % 3, sP)
            add64(sP, sP, imm=16384)
    e("s_waitcnt lgkmcnt(0)")
if WOF: wo_block()
stamp(6)
e(f"s_cmp_lg_u32 s{sV}, 0")
e("s_cbranch_scc1 L_g6")
e(f"v_mov_b32 v13, s{sTAG}")
e("s_mov_b64 exec, 1")
cm("this workgroup has read the epoch; the last workgroup to get here advances it")
e("v_mov_b32 v12, 0")
e("v_mov_b32 v14, 1")
e(f"global_atomic_add v15, v12, v14, {sr(sDBG)} sc0 sc1")
e("s_waitcnt vmcnt(0)")
e("v_cmp_eq_u32 vcc, 0xff, v15")
e("s_cbranch_vccz L_g6a")
e(f"v_mov_b32 v12, {WS_NONCE}")
e(f"global_store_dword v12, v13, {sr(sWS)} sc1")
lab("L_g6a")
e("s_mov_b64 exec, -1")
lab("L_g6")
e(f"v_and_b32 v12, 7, v{vL}")
e("v_lshlrev_b32 v12, 2, v12")
tag_poll("hpoll", 12, 13, sFL, opt("hsl", 8))
stamp(7)
if opt("ht", 0):
    cm("pull this workgroup's share of H into L2: lines 4*(64*i+l) + (hg&3) of this wave's k range")
    e(f"s_mul_i32 s{sT}, s{sV}, {22*2048}")
    e(f"s_and_b32 s{sT2}, s{sHG}, 3")
    e(f"s_lshl_b32 s{sT2}, s{sT2}, 7")
    e(f"s_add_u32 s{sT}, s{sT}, s{sT2}")
    e(f"v_lshl_add_u32 v12, v{vL}, 9, s{sT}")
    e(f"global_load_dword v164, v12, {sr(sH)} sc1")
    e(f"v_min_u32 v14, 23, v{vL}")
    e(f"v_lshl_add_u32 v12, v14, 9, s{sT}")
    e("v_add_u32 v12, 0x8000, v12")
    e(f"v_min_u32 v12, {43*4096-4}, v12")
    e(f"global_load_dword v165, v12, {sr(sH)} sc1")
HB = [12, 20, 28]
GAF = [4, 164]
NA = opt("na", 22); NBB = 43 - NA
if opt("nog2", 0) == 2: NA = NBB = 2
e(f"s_mul_i32 s{sT}, s{sV}, {NA}")
e(f"s_cmp_eq_u32 s{sV}, 3")
e(f"s_cselect_b32 s{sT}, {2*NA + NBB}, s{sT}")
e(f"s_cmp_ge_u32 s{sV}, 2")
e(f"s_cselect_b32 s{sI}, {NBB}, {NA}")
e(f"s_sub_u32 s{sN}, s{sI}, 1")
e(f"s_lshl_b32 s{sT2}, s{sT}, 14")
e(f"s_lshl_b32 s{sT3}, s{sHG}, 7")
e(f"s_add_u32 s{sT2}, s{sT2}, s{sT3}")
add64(sP, sW2, off_s=sT2)
e(f"s_lshl_b32 s{sT}, s{sT}, 11")
add64(sP2, sH, off_s=sT)
def g2_h(slot):
    for rt in range(2):
        e(f"global_load_dwordx4 {vr(HB[slot]+4*rt)}, v{(11, 0)[rt]}, {sr(sP2)} sc1")
def g2_adv():
    e(f"s_cmp_lg_u32 s{sN}, 0")
    e(f"s_cselect_b32 s{sT}, 16384, 0")
    e(f"s_cselect_b32 s{sT2}, 2048, 0")
    e(f"s_cselect_b32 s{sT3}, 1, 0")
    e(f"s_sub_u32 s{sN}, s{sN}, s{sT3}")
    add64(sP, sP, off_s=sT)
    add64(sP2, sP2, off_s=sT2)
def g2_step(slot, first):
    def m(ct, rt):
        a = GA[ct*2+rt]
        if first or not opt("nog2", 0): mfma(a, GAF[ct], HB[slot] + 4*rt, None if first else a)
    e("s_waitcnt vmcnt(8)")
    ring_read(slot, 0, GAF[0])
    e("s_waitcnt lgkmcnt(0)")
    m(0, 0)
    ring_read(slot, 1, GAF[1])
    e("s_waitcnt lgkmcnt(0)")
    m(0, 1)
    e(f"s_add_u32 m0, s{sRING}, {slot*2048}")
    e("s_nop 0")
    e(f"global_load_lds_dwordx4 v8, {sr(sP)}")
    m(1, 0)
    e(f"s_add_u32 m0, s{sRING}, {slot*2048+1024}")
    e("s_nop 0")
    e(f"global_load_lds_dwordx4 v9, {sr(sP)}")
    m(1, 1)
    g2_h(slot)
    g2_adv()
for k in range(3):
    ring_issue(k, sP); g2_h(k); g2_adv()
g2_step(0, True)
e(f"s_sub_u32 s{sI}, s{sI}, 1")
lab("L_g2loop")
for slot in (1, 2, 0):
    g2_step(slot, False)
    e(f"s_sub_u32 s{sI}, s{sI}, 1")
    e(f"s_cmp_eq_u32 s{sI}, 0")
    e("s_cbranch_scc1 L_g2done" if slot != 0 else "s_cbranch_scc0 L_g2loop")
lab("L_g2done")
stampx(8)
if not WOF: wo_block()
e(f"s_and_b32 s{sT}, s{sV}, 1")
e(f"s_lshl_b32 s{sT}, s{sT}, 7")
e(f"s_add_u32 s{sT}, s{sT}, {L_G}")
e(f"v_and_b32 v4, 31, v{vL}")
e(f"v_lshl_add_u32 v4, v4, 2, s{sT}")
e("v_xor_b32 v5, 0x80, v4")
e("ds_read_b32 v6, v4")
e("ds_read_b32 v8, v5")
e("s_waitcnt vmcnt(0) lgkmcnt(0)")
e("v_sub_f32 v6, 1.0, v6")
e("v_sub_f32 v8, 1.0, v8")
e("s_nop 3")
for t in range(4):
    for r in range(0, 16, 2):
        e(f"v_pk_mul_f32 {vr(GA[t]+r,2)}, {vr(GA[t]+r,2)}, {vr(6+2*(t&1),2)} op_sel_hi:[1,0]")
cm("tail: slot j (tile j^v) goes to LDS v*17408 + tile*4352 + q*1088; wave v then owns rows 16v..16v+15 (full 128B lines)")
e("v_mov_b32 v165, v11")
e(f"v_bfe_u32 v3, v{vL}, 2, 1")
e(f"v_mul_u32_u24 v3, {2*4352}, v3")
e(f"v_and_b32 v12, 3, v{vL}")
e("v_mul_u32_u24 v12, 1088, v12")
e(f"v_lshrrev_b32 v13, 3, v{vL}")
e("v_lshl_add_u32 v12, v13, 4, v12")
e(f"s_lshr_b32 s{sT}, s{sV}, 1")
e(f"s_mul_i32 s{sT}, s{sT}, 4352")
e(f"s_and_b32 s{sT2}, s{sV}, 1")
e(f"s_lshl_b32 s{sT2}, s{sT2}, 8")
e(f"s_add_u32 s{sT}, s{sT}, s{sT2}")
e(f"v_add3_u32 v3, v3, v12, s{sT}")
e(f"v_and_b32 v12, 7, v{vL}")
e("v_lshlrev_b32 v166, 10, v13")
e("v_lshl_add_u32 v166, v12, 4, v166")
e(f"s_lshl2_add_u32 s{sT}, s{sQB}, s{sV}")
e(f"s_lshl_b32 s{sT}, s{sT}, 14")
e(f"s_lshl_b32 s{sT2}, s{sHG}, 7")
e(f"s_add_u32 s{sT}, s{sT}, s{sT2}")
add64(sB0, sOUT, off_s=sT)
add64(sFL, sB0, imm=8192)
if opt("otouch", 0):
    e(f"global_load_dword v13, v166, {sr(sB0)}")
add64(sP2, sO, imm=8192)
WB = [sI, sC, sC + 1, sN]
e(f"s_mul_i32 s{sT}, s{sV}, 17408")
for j in range(4):
    e(f"s_xor_b32 s{WB[j]}, s{sV}, {j}")
    e(f"s_mul_i32 s{WB[j]}, s{WB[j]}, 4352")
    e(f"s_add_u32 s{WB[j]}, s{WB[j]}, s{sT}")
SETS = [[4, 20], [36, 68]]
def o_issue(st):
    for p in range(2):
        for j in range(4):
            e(f"global_load_dwordx4 {vr(SETS[st][p]+4*j)}, v{(165, 0)[j&1]}, {sr(sO if p == 0 else sP2)} offset:{(j>>1)*2048} sc1")
def o_check(st, younger):
    for p in range(2):
        e(f"s_waitcnt vmcnt({younger + 4-4*p})")
        for r in range(0, 16, 2):
            if p == 0 and r == 0: e(f"v_max_u32 v164, v{SETS[st][0]}, v{SETS[st][0]+1}")
            else: e(f"v_max3_u32 v164, v164, v{SETS[st][p]+r}, v{SETS[st][p]+r+1}")
    e("v_cmp_eq_u32 vcc, -1, v164")
def chain(j, b, st):
    ct, rt = j >> 1, j & 1
    for p in range(2):
        for hh in range(2):
            mfma(GA[j], 36 + 8*(4*p + 2*b + hh) + 4*ct, SETS[st][p] + 8*hh + 4*rt, GA[j])
def wr(j):
    e(f"v_add_u32 v164, s{WB[j]}, v{vL16}")
    for qq in range(4):
        e(f"ds_write_b128 v164, {vr(GA[j]+4*qq)} offset:{qq*1088}")
e(f"s_setprio {opt('b0prio', 0)}")
lds_spin("od0", C_OD, 4, 164, 167, slp=opt("osl", 4))
stampx(9)
e(f"s_mov_b32 s{sSPIN}, {SPIN}")
lab("L_opoll0")
o_issue(0)
o_check(0, 0)
e("s_cbranch_vccz L_ook0")
e("s_sleep 4")
e(f"s_sub_u32 s{sSPIN}, s{sSPIN}, 1")
e(f"s_cmp_lg_u32 s{sSPIN}, 0")
e("s_cbranch_scc1 L_opoll0")
lab("L_ook0")
if opt("b0sp", 0):
    e("s_setprio 3")
    e(f"v_mov_b32 v164, {C_OD}")
    n = 0
    for j in range(4):
        ct, rt = j >> 1, j & 1
        for p in range(2):
            for hh in range(2):
                mfma(GA[j], 36 + 8*(4*p + hh) + 4*ct, SETS[0][p] + 8*hh + 4*rt, GA[j])
                n += 1
                if n % opt("b0sp", 1) == 0 and n < 16:
                    e("ds_read_b32 v167, v164")
                    e("s_waitcnt lgkmcnt(0)")
else:
    for j in range(4): chain(j, 0, 0)
add64(sO, sO, imm=4096)
add64(sP2, sP2, imm=4096)
e("s_setprio 3")
lds_spin("od1", C_OD, 8, 164, 167, slp=1)
stampx(10)
e(f"s_mov_b32 s{sSPIN}, {SPIN}")
def finish(st):
    chain(3, 1, st); chain(2, 1, st); chain(1, 1, st)
    e("s_nop 2")
    wr(3)
    chain(0, 1, st)
if opt("stag", 0):
    cm("two request sets in flight, half a round trip apart")
    o_issue(0)
    e(f"s_sleep {opt('stagsl', 4)}")
    o_issue(1)
    lab("L_opoll1")
    o_check(0, 8)
    e("s_cbranch_vccz L_ook1")
    o_issue(0)
    o_check(1, 8)
    e("s_cbranch_vccz L_ook1b")
    o_issue(1)
    e(f"s_sub_u32 s{sSPIN}, s{sSPIN}, 1")
    e(f"s_cmp_lg_u32 s{sSPIN}, 0")
    e("s_cbranch_scc1 L_opoll1")
    e("s_waitcnt vmcnt(0)")
    lab("L_ook1b")
    stampx(11)
    finish(1)
    e("s_branch L_ojoin")
else:
    lab("L_opoll1")
    o_issue(0)
    o_check(0, 0)
    e("s_cbranch_vccz L_ook1")
    if opt("psl", 0): e(f"s_sleep {opt('psl', 0)}")
    e(f"s_sub_u32 s{sSPIN}, s{sSPIN}, 1")
    e(f"s_cmp_lg_u32 s{sSPIN}, 0")
    e("s_cbranch_scc1 L_opoll1")
lab("L_ook1")
stampx(11)
finish(0)
lab("L_ojoin")
wr(2)
wr(1)
e("s_waitcnt lgkmcnt(8)")
wr(0)
e("s_waitcnt vmcnt(0)")
e("s_waitcnt lgkmcnt(0)")
if opt("bar", 1):
    e("s_barrier")
else:
    lds_signal(C_RED, 4, 5)
    lds_spin("red", C_RED, 4, 4, 5, slp=0)
stampx(12)
def rd(i):
    for c in range(4):
        for h in range(2):
            e(f"ds_read_b128 {vr(36+32*i+8*c+4*h)}, v3 offset:{c*17408+h*512+i*128}")
def fin(i):
    b0 = 36 + 32*i
    for r in range(0, 8, 2):
        e(f"v_pk_add_f32 {vr(b0+r,2)}, {vr(b0+r,2)}, {vr(b0+8+r,2)}")
        e(f"v_pk_add_f32 {vr(b0+16+r,2)}, {vr(b0+16+r,2)}, {vr(b0+24+r,2)}")
    for r in range(0, 8, 2):
        e(f"v_pk_add_f32 {vr(b0+r,2)}, {vr(b0+r,2)}, {vr(b0+16+r,2)}")
    for k in range(4):
        e(f"v_cvt_pk_bf16_f32 v{16+4*i+k}, v{b0+2*k}, v{b0+1+2*k}")
    e(f"global_store_dwordx4 v166, {vr(16+4*i)}, {sr((sB0, sFL)[i])}" + ("", " sc1", " nt", " sc0 sc1")[opt("outf", 1)])
rd(0)
e("s_waitcnt lgkmcnt(4)")
rd(1)
e("s_waitcnt lgkmcnt(8)")
fin(0)
e("s_waitcnt lgkmcnt(0)")
fin(1)
if LITE:
    cm("LITE")
    e("s_waitcnt vmcnt(0)")
    e("s_memrealtime s[72:73]")
    e(f"s_lshl2_add_u32 s{sT}, s2, s{sV}")
    e(f"s_lshl_b32 s{sT}, s{sT}, 3")
    e(f"s_add_u32 s{sT}, s{sT}, {WS_ST}")
    e(f"v_mov_b32 v12, s{sT}")
    e("s_waitcnt lgkmcnt(0)")
    e("v_mov_b32 v14, s70")
    e("v_mov_b32 v15, s72")
    e("s_mov_b64 exec, 1")
    e(f"global_store_dwordx2 v12, v[14:15], {sr(sWS)}")
lab("L_fin")
if opt("dbgt", 0):
    e("s_waitcnt vmcnt(0)")
    e("s_memrealtime s[100:101]")
    e("s_memtime s[98:99]")
    e("s_waitcnt lgkmcnt(0)")
    e("s_mov_b64 exec, 1")
    e("v_mov_b32 v12, 0")
    e("s_not_b32 s3, s70")
    e("v_mov_b32 v13, s3")
    e(f"global_atomic_umax v12, v13, {sr(sDBG)} offset:4 sc1")
    e("v_mov_b32 v14, s100")
    e(f"global_atomic_umax v12, v14, {sr(sDBG)} offset:8 sc1")
    e("v_mov_b32 v15, s70")
    e(f"global_atomic_umax v12, v15, {sr(sDBG)} offset:12 sc1")
    e("s_cmp_lg_u32 s2, 100")
    e("s_cbranch_scc1 L_end")
    e(f"s_cmp_eq_u32 s{sWAVE}, 7")
    e("s_cbranch_scc0 L_dg")
    for k, i in enumerate((9, 1, 2, 4, 7, 13)):
        e(f"s_sub_u32 s3, s{72+2*i}, s72")
        e("v_mov_b32 v13, s3")
        e(f"global_store_dword v12, v13, {sr(sDBG)} offset:{16+4*k}")
    e("s_branch L_end")
    lab("L_dg")
    e(f"s_cmp_eq_u32 s{sWAVE}, 8")
    e("s_cbranch_scc0 L_end")
    for k, i in enumerate((3, 5, 8, 11, 12, 13)):
        e(f"s_sub_u32 s3, s{72+2*i}, s72")
        e("v_mov_b32 v13, s3")
        e(f"global_store_dword v12, v13, {sr(sDBG)} offset:{40+4*k}")
elif STAMPS:
    e("s_waitcnt vmcnt(0)")
    stamp(13)
    e("s_memrealtime s[100:101]")
    e("s_waitcnt lgkmcnt(0)")
    e(f"s_lshl_b32 s{sT}, s2, 4")
    e(f"s_add_u32 s{sT}, s{sT}, s{sWAVE}")
    e(f"s_lshl_b32 s{sT}, s{sT}, 7")
    e(f"s_add_u32 s{sT}, s{sT}, {WS_ST}")
    add64(sP, sWS, off_s=sT)
    if DIAG == 2:
        e(f"v_lshlrev_b32 v12, 2, v{vL}")
        e("s_mov_b64 exec, 0xff")
        e(f"global_store_dword v12, v160, {sr(sP)} offset:64")
    e("v_mov_b32 v12, 0")
    e("s_mov_b64 exec, 1")
    for i in range(16):
        e(f"v_mov_b32 v13, s{70+2*i}")
        e(f"global_store_dword v12, v13, {sr(sP)} offset:{4*i}")
    e("s_waitcnt vmcnt(0)")
lab("L_end")
e("s_endpgm")
lab("L_code_end")

HEAD = open(f"cdna_kernels/{NAME}.s.ref").read().split("; Override launch geometry")[0]
src = HEAD + f"""; @launch grid=(256,1,1) block=(768,1,1) lds={LDS_TOTAL}
.amdgcn_target "amdgcn-amd-amdhsa--gfx950"
.text
.globl {NAME}_kernel
.p2align 8
.type {NAME}_kernel,@function
{NAME}_kernel:
""" + "\n".join(L) + f"""
.section .rodata,"a"
.p2align 6
.amdhsa_kernel {NAME}_kernel
  .amdhsa_next_free_vgpr 168
  .amdhsa_next_free_sgpr 102
  .amdhsa_accum_offset 168
  .amdhsa_group_segment_fixed_size 0
  .amdhsa_kernarg_size 96
  .amdhsa_user_sgpr_count 2
  .amdhsa_user_sgpr_kernarg_segment_ptr 1
  .amdhsa_system_sgpr_workgroup_id_x 1
.end_amdhsa_kernel
"""
open(OUT, "w").write(src)
print("wrote", OUT, len(L), "lines")
```

```python
import sys, struct

NAME = "gated_mix__grouped_kv_mqa__dense_activation_silu__prompt"
STAMPS = "--stamps" in sys.argv
def opt(name, default):
    for a in sys.argv[1:]:
        if a.startswith(f"--{name}="): return int(a.split("=")[1])
    return default
OUT = [a for a in sys.argv[1:] if not a.startswith("--")]
OUT = OUT[0] if OUT else f"cdna_kernels/{NAME}.s"
DIAG = opt("diag", 0)
LITE = opt("lite", 0)

def f2u(x): return struct.unpack("<I", struct.pack("<f", x))[0]
LOG2E = 1.4426950408889634

TILE = 2080
KVBYTES = 64 * TILE
L_X = 66560
L_UP = KVBYTES
L_Q = L_UP
L_KVP = L_UP
L_VT = L_UP + 24576
L_WKV = 32768
R2SZ = 6144
L_G = L_UP + 28672
L_CNT = L_G + 256
L_GW = L_CNT + 256
LDS_TOTAL = L_GW + 1024
C_KA, C_KB, C_KVP, C_GO, C_RED, C_K1, C_HD, C_OD, C_B2, C_QR = [L_CNT + 4*i for i in range(10)]
WS_KV, WS_FL, WS_H, WS_O, WS_ST = 0, 0x30000, 0x40000, 0x600000, 0x900000
WS_KF = WS_FL + 0x1000
WS_NONCE = WS_FL + 0x3000
SPIN = 1 << 16
TAGC = 0x9E3779B1

L = []
def e(s): L.append("    " + s)
def lab(s): L.append(s + ":")
def cm(s): L.append("    ; " + s)
def vr(a, n=4): return f"v[{a}:{a+n-1}]"
def sr(a, n=2): return f"s[{a}:{a+n-1}]"
def stamp(i):
    if STAMPS: e(("s_memrealtime" if opt("rts", 0) else "s_memtime") + f" s[{72+2*i}:{73+2*i}]")

def stampx(i):
    if DIAG != 4: stamp(i)
sX, sWQ, sWK, sWV, sWO, sW1, sW2, sGW, sOUT, sDBG, sWS = 4, 6, 8, 10, 12, 16, 18, 20, 22, 24, 26
sQB, sHG, sWAVE, sV = 28, 29, 30, 31
sJQ, sXM = 32, 33
sB0, sFL, sADV, sROLE, sRING, sN = 34, 36, 38, 39, 40, 41
sHT, sPROD = 42, 43
sKV, sH, sO = 44, 46, 48
sT, sT2, sT3 = 50, 52, 54
sC, sTAG = 56, 58
sSPIN, sI, sCHK, sRETRY = 60, 61, 62, 63
sWB = 14
sP, sP2 = 66, 68
vL, vL16 = 1, 2

def add64(dst, src, off_s=None, imm=None):
    o = f"s{off_s}" if off_s is not None else hex(imm)
    e(f"s_add_u32 s{dst}, s{src}, {o}")
    e(f"s_addc_u32 s{dst+1}, s{src+1}, 0")
def mfma(d, a, b, c):
    cs = "0" if c is None else vr(c, 16)
    e(f"v_mfma_f32_32x32x16_bf16 {vr(d,16)}, {vr(a)}, {vr(b)}, {cs}")
def lds_spin(name, off, want, va, vt, slp=1):
    e(f"v_mov_b32 v{va}, {off}")
    e(f"s_mov_b32 s{sSPIN}, {SPIN*64}")
    lab(f"L_{name}")
    e(f"ds_read_b32 v{vt}, v{va}")
    e("s_waitcnt lgkmcnt(0)")
    e(f"v_readfirstlane_b32 s{sT}, v{vt}")
    e(f"s_sub_u32 s{sSPIN}, s{sSPIN}, 1")
    e(f"s_cmp_eq_u32 s{sSPIN}, 0")
    e(f"s_cbranch_scc1 L_{name}_ok")
    e(f"s_cmp_ge_u32 s{sT}, {want}")
    e(f"s_cbranch_scc1 L_{name}_ok")
    if slp: e(f"s_sleep {slp}")
    e(f"s_branch L_{name}")
    lab(f"L_{name}_ok")
def lds_signal(off, va, vt):
    e(f"v_mov_b32 v{va}, {off}")
    e(f"v_mov_b32 v{vt}, 1")
    e("s_mov_b64 exec, 1")
    e(f"ds_add_u32 v{va}, v{vt}")
    e("s_mov_b64 exec, -1")
def tag_poll(name, va, vt, base, slp):
    e(f"s_mov_b32 s{sSPIN}, {SPIN}")
    lab(f"L_{name}")
    e(f"global_load_dword v{vt}, v{va}, {sr(base)} sc1")
    e("s_waitcnt vmcnt(0)")
    e(f"v_cmp_ne_u32 vcc, s{sTAG}, v{vt}")
    e(f"s_cbranch_vccz L_{name}_ok")
    e(f"s_sleep {slp}")
    e(f"s_sub_u32 s{sSPIN}, s{sSPIN}, 1")
    e(f"s_cmp_lg_u32 s{sSPIN}, 0")
    e(f"s_cbranch_scc1 L_{name}")
    lab(f"L_{name}_ok")
def dma_lin(first_s, n, first_imm=0):
    for j in range(0, n, 4):
        e(f"s_add_u32 s{sT}, s{first_s}, {first_imm + j*1024}")
        e(f"s_mov_b32 m0, s{sT}")
        add64(sP, sKV, off_s=sT)
        for i in range(4):
            e(f"global_load_lds_dwordx4 v{vL16}, {sr(sP)} offset:{i*1024} sc1")
def dma_kv_one(off):
    e(f"s_mov_b32 m0, {off}")
    add64(sP, sKV, imm=off)
    e(f"global_load_lds_dwordx4 v{vL16}, {sr(sP)} sc1")
def tr_lane(dst, t0, t1):
    e(f"v_bfe_u32 v{dst}, v{vL}, 2, 2")
    e(f"v_bfe_u32 v{t0}, v{vL}, 4, 1")
    e(f"v_and_b32 v{t1}, 3, v{vL}")
    e(f"v_lshlrev_b32 v{dst}, 6, v{dst}")
    e(f"v_lshl_add_u32 v{dst}, v{t0}, 5, v{dst}")
    e(f"v_lshl_add_u32 v{dst}, v{t1}, 3, v{dst}")
    e(f"v_lshrrev_b32 v{t0}, 5, v{vL}")
    e(f"v_lshl_add_u32 v{dst}, v{t0}, 9, v{dst}")
e("s_load_dwordx16 s[4:19], s[0:1], 0")
e("s_load_dwordx8 s[20:27], s[0:1], 64")
e("s_cmp_ge_u32 s2, 256")
e("s_cbranch_scc1 L_end")
if STAMPS or LITE or opt("hold", 0): e("s_memrealtime s[70:71]")
stamp(0)
e("v_lshrrev_b32 v5, 6, v0")
e(f"v_and_b32 v{vL}, 63, v0")
e(f"v_readfirstlane_b32 s{sWAVE}, v5")
e(f"v_lshlrev_b32 v{vL16}, 4, v{vL}")
CPF = opt("cpf", 0)
if CPF:
    cm("pull code into L2 at once: wave w < CPF touches 32 lines from 4096*w on")
    e(f"s_cmp_ge_u32 s{sWAVE}, {CPF}")
    e("s_cbranch_scc1 L_nopf")
    e(f"s_getpc_b64 {sr(sT)}")
    e("v_lshlrev_b32 v3, 6, v0")
    e(f"global_load_dword v4, v3, {sr(sT)}")
    lab("L_nopf")
cm("qb = ((wg&7)>>1)*8 + ((wg>>3)&7) ; hg = (wg&1)*4 + (wg>>6) ; producers: wg < 64")
e(f"s_bfe_u32 s{sT}, s2, 0x20001")
e(f"s_bfe_u32 s{sJQ}, s2, 0x30003")
e(f"s_lshl3_add_u32 s{sQB}, s{sT}, s{sJQ}")
e(f"s_and_b32 s{sT}, s2, 1")
e(f"s_lshr_b32 s{sPROD}, s2, 6")
e(f"s_lshl2_add_u32 s{sHG}, s{sT}, s{sPROD}")
cm("stage order s ^ rot, rot = 2*(qb&7) ^ 4*(hg&3)")
e(f"s_lshl_b32 s{sJQ}, s{sJQ}, 1")
e(f"s_lshl_b32 s{sT}, s{sPROD}, 2")
e(f"s_xor_b32 s{sJQ}, s{sJQ}, s{sT}")
e(f"s_and_b32 s{sJQ}, s{sJQ}, {opt('rot', 6)}")
e(f"s_cmp_lt_u32 s{sWAVE}, 8")
e("s_cbranch_scc1 L_aw")

e(f"s_sub_u32 s{sV}, s{sWAVE}, 8")
if opt("gp", 0): e("s_setprio 3")
sWQB, sW1B = 34, 64
cm("X lane offset v20: row 16v + (l>>4) (+4j), 16B unit (l&15) ^ (row&15)")
e(f"v_lshrrev_b32 v16, 4, v{vL}")
e(f"v_and_b32 v17, 15, v{vL}")
e("v_xor_b32 v17, v17, v16")
e("v_lshlrev_b32 v17, 4, v17")
e("v_lshl_add_u32 v20, v16, 10, v17")
for j in range(1, 4):
    e(f"v_xor_b32 v{20+j}, {j*(4096+64)}, v20")
e(f"s_lshl2_add_u32 s{sT2}, s{sQB}, s{sV}")
e(f"s_lshl_b32 s{sT2}, s{sT2}, 14")
e(f"s_lshl_b32 s{sXM}, s{sV}, 12")
cm("row-in-octet v16 = 4*(l>>5) + ((l>>2)&3), v17 = tile bit (l>>4)&1, v18 = (l&3)*16")
e(f"v_lshrrev_b32 v16, 5, v{vL}")
e(f"v_bfe_u32 v19, v{vL}, 2, 2")
e("v_lshl_add_u32 v16, v16, 2, v19")
e(f"s_lshl_b32 s{sT3}, s{sV}, 3")
e(f"v_add_u32 v16, s{sT3}, v16")
e(f"v_bfe_u32 v17, v{vL}, 4, 1")
e(f"v_and_b32 v18, 3, v{vL}")
e("v_lshlrev_b32 v18, 4, v18")
e("v_lshl_add_u32 v24, v17, 6, v18")
e("v_lshl_add_u32 v24, v16, 10, v24")
def x_issue(g):
    e(f"s_xor_b32 s{sT}, s{sJQ}, {4*g}")
    e(f"s_lshr_b32 s{sT}, s{sT}, 2")
    e(f"s_lshl_b32 s{sT}, s{sT}, 8")
    e(f"s_add_u32 m0, s{sXM}, {L_X + g*16384}")
    add64(sP, sP2, off_s=sT)
    for j in range(4):
        if j:
            e(f"s_add_u32 m0, s{sXM}, {L_X + g*16384 + j*1024}")
            e("s_nop 0")
        e(f"global_load_lds_dwordx4 v{20+j}, {sr(sP)}")
e("s_waitcnt lgkmcnt(0)")
stamp(9)
e(f"s_load_dword s{sTAG}, {sr(sWS)}, {hex(WS_NONCE)}")
add64(sP2, sX, off_s=sT2)
x_issue(0)
e(f"s_lshl_b32 s{sT}, s{sHG}, 7")
add64(sWQ, sWQ, off_s=sT)
e(f"s_cmp_eq_u32 s{sHG}, 0")
e("s_cbranch_scc1 L_gprod")
e(f"s_mul_i32 s{sT}, s{sHG}, 384")
e(f"s_sub_u32 s{sT}, s{sT}, 320")
add64(sW1, sW1, off_s=sT)
e(f"v_add_u32 v19, s{sT3}, v19")
e("v_mul_u32_u24 v25, 2752, v19")
e(f"v_lshrrev_b32 v26, 4, v{vL}")
e("v_lshl_add_u32 v25, v26, 6, v25")
e("v_add_u32 v25, v25, v18")
e(f"v_add_u32 v26, {4*2752}, v25")
e("v_mul_u32_u24 v27, 2752, v16")
e("v_lshl_add_u32 v27, v17, 6, v27")
e("v_add3_u32 v27, v27, v18, 64")
e("v_add_u32 v27, 192, v27")
def misc_g():
    cm("gate weights (every wave requests the same 1KB: keeps the counts uniform); zero the LDS counters")
    e(f"s_mov_b32 m0, {L_GW}")
    e(f"v_and_b32 v12, 15, v{vL}")
    e(f"global_load_lds_dwordx4 v{vL16}, {sr(sGW)}")
    e(f"v_lshlrev_b32 v12, 2, v12")
    e(f"v_add_u32 v12, {L_CNT}, v12")
    e("v_mov_b32 v13, 0")
    e("ds_write_b32 v12, v13")
    cm("gate: lane -> row 16v + (l>>2), units 4(l&3)+i ; v10 X address, v11 weight address")
    e(f"v_lshrrev_b32 v12, 2, v{vL}")
    e(f"v_and_b32 v13, 3, v{vL}")
    e("v_lshlrev_b32 v13, 2, v13")
    e("v_xor_b32 v10, v13, v12")
    e("v_lshlrev_b32 v10, 4, v10")
    e("v_lshl_add_u32 v10, v12, 8, v10")
    e(f"s_add_u32 s{sT}, s{sXM}, {L_X}")
    e(f"v_add_u32 v10, s{sT}, v10")
    e(f"s_lshr_b32 s{sT}, s{sJQ}, 2")
    e(f"s_lshl_b32 s{sT}, s{sT}, 8")
    e(f"v_lshl_add_u32 v11, v13, 4, s{sT}")
    e("v_mov_b32 v14, 0")
    e("v_mov_b32 v15, 0")
    e(f"v_and_b32 v30, 31, v{vL}")
    e(f"v_lshlrev_b32 v30, {opt('fsh', 7)}, v30")
    e(f"v_add_u32 v30, {WS_KF}, v30")
    add64(sKV, sWS, imm=WS_KV)
    e("s_waitcnt lgkmcnt(0)")
    e(f"s_add_u32 s{sTAG}, s{sTAG}, {hex(TAGC)}")
    UID[0] += 1
UID = [0]
def gate_part(g):
    if opt("nogate", 0): return
    e(f"v_xor_b32 v12, {g*256}, v11")
    e(f"v_add_u32 v12, {L_GW}, v12")
    for i in range(4):
        if i: e(f"v_xor_b32 v13, {i*16}, v10")
        e(f"ds_read_b128 {vr(32+8*i)}, v{13 if i else 10} offset:{g*16384}")
        e(f"ds_read_b128 {vr(36+8*i)}, v12 offset:{i*16}")
    for i in range(4):
        e(f"s_waitcnt lgkmcnt({6-2*i})")
        for j in range(4):
            e(f"v_dot2_f32_bf16 v{14+(j&1)}, v{32+8*i+j}, v{36+8*i+j}, v{14+(j&1)}")
sFAST = sN
PS = opt("ps", 10)
def loader(prod):
    nw = 2 if prod else 4
    tg = "p" if prod else "n"
    def issue(s):
        if s % 4 == 0 and s and not prod: x_issue(s // 4)
        base = (s % 4) * 16384
        e(f"s_xor_b32 s{sT}, s{sJQ}, {s}")
        e(f"s_lshl_b32 s{sT2}, s{sT}, 15")
        e(f"s_add_u32 m0, s{sXM}, {base}")
        add64(sWQB, sWQ, off_s=sT2)
        e(f"global_load_lds_dwordx4 v24, {sr(sWQB)}")
        e(f"s_mul_i32 s{sT2}, s{sT}, {32*2752}")
        e(f"s_add_u32 m0, s{sXM}, {base + 3072}")
        add64(sW1B, sW1, off_s=sT2)
        e(f"global_load_lds_dwordx4 v27, {sr(sW1B)}")
        if not prod:
            for j, r in ((1, 25), (2, 26)):
                e(f"s_add_u32 m0, s{sXM}, {base + j*1024}")
                e("s_nop 0")
                e(f"global_load_lds_dwordx4 v{r}, {sr(sW1B)}")
    cnt = [nw + (4 if s % 4 == 0 and not prod else 0) for s in range(16)]
    if prod:
        misc_g()
        e("s_waitcnt vmcnt(4)")
        issue(0); issue(1)
        e("s_waitcnt vmcnt(4)")
        e("s_barrier")
        e("s_barrier")
        issue(2)
    else:
        issue(0); issue(1); issue(2)
        misc_g()
    for s in range(14):
        later = sum(cnt[s+1:min(16, s + 3)]) + (1 if s in (PS+1, PS+2) or (s < 3 and not prod) else 0)
        e(f"s_waitcnt vmcnt({later})")
        e("s_barrier")
        if s == 0: stamp(1)
        if s == PS: e(f"global_load_dword v31, v30, {sr(sWS)} sc1")
        if s + 3 < 16: issue(s + 3)
        if s in (4, 6, 9): gate_part((4, 6, 9).index(s))
    cm("K/V already published? then start staging it into the ring slots as they free up")
    e(f"v_cmp_ne_u32 vcc, s{sTAG}, v31")
    e(f"s_mov_b32 s{sFAST}, 0")
    e(f"s_cbranch_vccnz L_slow{tg}")
    e(f"s_mov_b32 s{sFAST}, 1")
    dma_lin(sXM, 4)
    gate_part(3)
    e(f"s_waitcnt vmcnt({cnt[15] + 4})")
    e("s_barrier")
    dma_lin(sXM, 4, 16384)
    e("s_waitcnt vmcnt(8)")
    e("s_barrier")
    dma_lin(sXM, 4, 32768)
    e("s_branch L_g4")
    lab(f"L_slow{tg}")
    e(f"global_load_dword v31, v30, {sr(sWS)} sc1")
    gate_part(3)
    e(f"s_waitcnt vmcnt({cnt[15] + 1})")
    e("s_barrier")
    e("s_waitcnt vmcnt(0)")
    e("s_barrier")
    e(f"v_cmp_ne_u32 vcc, s{sTAG}, v31")
    e("s_cbranch_vccnz L_g4")
    e(f"s_mov_b32 s{sFAST}, 1")
    for j in range(3):
        dma_lin(sXM, 4, j*16384)
    e("s_branch L_g4")
loader(False)
if opt("gap", 0): L.append(".p2align 12, 0")
lab("L_gprod")
cm("producer (hg==0): all of X and [wk|wv] first (wave v: k-steps 8v..8v+7); last piece = w1 tile 0")
e(f"v_lshrrev_b32 v28, 2, v{vL}")
e("v_lshlrev_b32 v28, 5, v28")
e("v_and_b32 v19, 16, v18")
e(f"v_add3_u32 v28, v28, v19, s{sXM}")
e("v_mov_b32 v29, 0")
e(f"v_and_b32 v19, 2, v{vL}")
e("v_cmp_ne_u32 vcc, 0, v19")
e(f"v_mov_b32 v32, s{sWK}")
e(f"v_mov_b32 v33, s{sWK+1}")
e(f"v_mov_b32 v34, s{sWV}")
e(f"v_mov_b32 v35, s{sWV+1}")
e("v_cndmask_b32 v32, v32, v34, vcc")
e("v_cndmask_b32 v33, v33, v35, vcc")
e("v_lshl_add_u64 v[32:33], v[28:29], 0, v[32:33]")
e(f"s_lshl_b32 s{sT3}, s{sXM}, 1")
e(f"s_and_b32 s{sC}, s{sQB}, 7")
e(f"s_mov_b32 s{sW1B+1}, 0")
def wkv_dma(i):
    e(f"s_xor_b32 s{sT}, s{sC}, {i}")
    e(f"s_lshl_b32 s{sW1B}, s{sT}, 9")
    e(f"s_lshl_b32 s{sT}, s{sT}, 10")
    e(f"s_add_u32 s{sT}, s{sT}, s{sT3}")
    e(f"s_add_u32 m0, s{sT}, {L_WKV}")
    e(f"v_lshl_add_u64 v[28:29], v[32:33], 0, {sr(sW1B)}")
    e("global_load_lds_dwordx4 v[28:29], off")
wkv_dma(0)
for g in range(1, 4): x_issue(g)
for i in range(1, 8): wkv_dma(i)
e("v_mul_u32_u24 v27, 2752, v16")
e("v_add_u32 v27, v27, v18")
loader(True)

if opt("gap", 0): L.append(".p2align 12, 0")
lab("L_aw")
if DIAG == 4: stamp(9)
e(f"s_mul_i32 s{sHT}, s{sHG}, 6")
e(f"s_add_u32 s{sHT}, s{sHT}, s{sWAVE}")
e(f"s_sub_u32 s{sHT}, s{sHT}, 7")
e(f"s_mov_b32 s{sROLE}, 2")
e(f"s_cmp_lg_u32 s{sHG}, 0")
e("s_cbranch_scc1 L_r1")
e(f"s_mov_b32 s{sHT}, 0")
e(f"s_cmp_lt_u32 s{sWAVE}, 7")
e(f"s_cselect_b32 s{sROLE}, 3, 2")
lab("L_r1")
e(f"s_cmp_lt_u32 s{sWAVE}, 2")
e(f"s_cselect_b32 s{sROLE}, 0, s{sROLE}")
cm("block base: w<2: 256w ; w<6: 1024+256(w-2) ; else 3072+256(w-6) ; rg stride 1024 for 2<=w<6 else 512")
e(f"s_cselect_b32 s{sT}, 0, 512")
e(f"s_cselect_b32 s{sT2}, 512, 1024" if False else f"s_cselect_b32 s{sT2}, 1, 2")
e(f"s_cmp_ge_u32 s{sWAVE}, 6")
e(f"s_cselect_b32 s{sT}, 1536, s{sT}")
e(f"s_cselect_b32 s{sT2}, 1, s{sT2}")
e(f"s_lshl_b32 s{sT2}, s{sT2}, 9")
e(f"s_lshl_b32 s{sT3}, s{sWAVE}, 8")
e(f"s_add_u32 s{sT}, s{sT}, s{sT3}")
e(f"v_bfe_u32 v6, v{vL}, 2, 2")
e(f"v_bfe_u32 v32, v{vL}, 4, 1")
e(f"v_and_b32 v33, 3, v{vL}")
e("v_lshlrev_b32 v6, 6, v6")
e("v_lshl_add_u32 v6, v32, 5, v6")
e("v_lshl_add_u32 v6, v33, 3, v6")
e(f"v_lshrrev_b32 v32, 5, v{vL}")
e("v_lshl_add_u32 v6, v32, 12, v6")
e(f"v_add_u32 v6, s{sT}, v6")
e(f"v_add_u32 v7, s{sT2}, v6")
cm("X fragment addresses v8..v15 for (s&3, ks)")
e(f"v_and_b32 v33, 31, v{vL}")
e(f"v_and_b32 v34, 15, v{vL}")
e("v_xor_b32 v34, v34, v32")
e("v_lshlrev_b32 v34, 4, v34")
e("v_lshl_add_u32 v8, v33, 8, v34")
e(f"s_and_b32 s{sT}, s{sJQ}, 3")
e(f"s_lshl_b32 s{sT}, s{sT}, 6")
e(f"v_xor_b32 v8, s{sT}, v8")
e(f"v_add_u32 v8, {L_X}, v8")
for j in range(1, 8):
    e(f"v_xor_b32 v{8+j}, {j << 5}, v8")
e("s_waitcnt lgkmcnt(0)")
if DIAG == 4: stamp(10)
e(f"s_load_dword s{sTAG}, {sr(sWS)}, {hex(WS_NONCE)}")
e(f"s_lshl3_add_u32 s{sT}, s{sQB}, s{sHG}")
e(f"s_lshl3_add_u32 s{sT}, s{sT}, s{sWAVE}")
e(f"s_lshl_b32 s{sT}, s{sT}, 10")
e(f"s_add_u32 s{sT}, s{sT}, {WS_O}")
add64(sO, sWS, off_s=sT)
e(f"s_mul_i32 s{sT}, s{sQB}, 43")
e(f"s_add_u32 s{sT}, s{sT}, s{sHT}")
e(f"s_lshl_b32 s{sT}, s{sT}, 12")
e(f"s_add_u32 s{sT}, s{sT}, {WS_H}")
add64(sH, sWS, off_s=sT)
ACC = [64, 80]
FB = [16, 40]
def early_setup():
    for i in range(4):
        e(f"v_mov_b32 v{128+i}, -1")
    cm("V lane address: m>=16: 1024 + h*256 + (m-16)*16 ; m in {0,4}: ones slot ; else out of range (reads 0)")
    e(f"v_and_b32 v150, 15, v{vL}")
    e(f"v_lshrrev_b32 v151, 5, v{vL}")
    e("v_lshlrev_b32 v150, 4, v150")
    e("v_lshl_add_u32 v150, v151, 8, v150")
    e(f"v_and_b32 v151, 27, v{vL}")
    e(f"v_cmp_eq_u32 {sr(sT)}, 0, v151")
    e("v_cmp_lt_u32 vcc, 15, v151")
    e("v_mov_b32 v151, 0x40000")
    e("v_mov_b32 v152, 512")
    e(f"v_cndmask_b32 v151, v151, v152, {sr(sT)}")
    e(f"v_cndmask_b32 v148, v151, v150, vcc")
    e(f"v_add_u32 v148, 1024, v148")
    e(f"s_lshl_b32 s{sT}, s{sWAVE}, 10")
    e(f"s_add_u32 s{sT}, s{sT}, {L_Q}")
    e(f"v_add_u32 v149, s{sT}, v{vL16}")
    e(f"s_mov_b32 s{sRETRY}, 0")
    e("v_mov_b32 v153, 0xdddddddd")
    e(f"s_mov_b32 s{sCHK}, 7")
    for r in range(16):
        e(f"v_mov_b32 v{112+r}, 0")
e(f"s_cmp_lg_u32 s{sHG}, 0")
e("s_cbranch_scc1 L_nokv")
e(f"s_lshr_b32 s{sT2}, s{sWAVE}, 1")
e(f"s_and_b32 s{sT3}, s{sWAVE}, 1")
tr_lane(40, 41, 42)
e(f"s_lshr_b32 s{sT}, s{sJQ}, 2")
e(f"s_xor_b32 s{sT}, s{sT}, s{sT2}")
e(f"s_lshl_b32 s{sT}, s{sT}, 13")
e(f"s_add_u32 s{sT}, s{sT}, {L_WKV}")
e(f"v_add_u32 v40, s{sT}, v40")
e(f"s_and_b32 s{sT}, s{sJQ}, 3")
e(f"s_lshl_b32 s{sT}, s{sT}, 6")
e(f"v_xor_b32 v41, s{sT}, v8")
e(f"s_lshl1_add_u32 s{sT}, s{sT2}, s{sT3}")
e(f"s_lshl_b32 s{sT}, s{sT}, 13")
e(f"v_add_u32 v41, s{sT}, v41")
for j in range(1, 8):
    e(f"v_xor_b32 v{41+j}, {j << 5}, v41")
cm("partial slot (rt*3 + idx), idx = kq - (kq>1)")
e(f"s_cmp_gt_u32 s{sT2}, 1")
e(f"s_subb_u32 s{sT}, s{sT2}, 0")
e(f"s_cmp_eq_u32 s{sT2}, 1")
e(f"s_cselect_b32 s{sT}, 0, s{sT}")
e(f"s_mul_i32 s{sC}, s{sT3}, 3")
e(f"s_add_u32 s{sT}, s{sT}, s{sC}")
e(f"s_lshl_b32 s{sT}, s{sT}, 12")
e(f"s_add_u32 s{sT}, s{sT}, {L_KVP}")
e(f"v_add_u32 v50, s{sT}, v{vL16}")
e(f"s_lshl1_add_u32 s{sT}, s{sQB}, s{sT3}")
e(f"s_mul_i32 s{sT}, s{sT}, {TILE}")
add64(sP, sWS, off_s=sT)
e(f"s_lshl_b32 s{sT}, s{sT3}, 10")
e(f"s_add_u32 s{sT}, s{sT}, {L_VT}")
e(f"v_and_b32 v52, 31, v{vL}")
e(f"v_lshrrev_b32 v55, 5, v{vL}")
e("v_lshlrev_b32 v52, 5, v52")
e("v_lshl_add_u32 v52, v55, 3, v52")
e(f"v_add_u32 v52, s{sT}, v52")
e(f"v_bfe_u32 v53, v{vL}, 2, 2")
e(f"v_bfe_u32 v54, v{vL}, 4, 1")
e("v_lshl_add_u32 v53, v54, 3, v53")
e("v_lshl_add_u32 v53, v55, 4, v53")
e("v_lshlrev_b32 v53, 5, v53")
e(f"v_and_b32 v54, 3, v{vL}")
e("v_lshl_add_u32 v53, v54, 3, v53")
e(f"v_add_u32 v53, s{sT}, v53")
e(f"v_lshl_add_u32 v54, v55, 4, v{vL16}")
e(f"v_and_b32 v55, 1, v{vL}")
e("v_mul_u32_u24 v55, 528, v55")
for i in range(4):
    e(f"v_mov_b32 v{56+i}, 0x3f803f80")
e("s_waitcnt lgkmcnt(0)")
e("s_barrier")
stamp(9)
for i in range(8):
    e(f"ds_read_b64_tr_b16 {vr(96+8*(i%5),2)}, v40 offset:{i*1024}")
    e(f"ds_read_b64_tr_b16 {vr(98+8*(i%5),2)}, v40 offset:{i*1024+256}")
    e(f"ds_read_b128 {vr(100+8*(i%5))}, v{41+i}")
    if i >= 3:
        e("s_waitcnt lgkmcnt(9)")
        mfma(64, 96+8*((i-3)%5), 100+8*((i-3)%5), None if i == 3 else 64)
for i in range(5, 8):
    e(f"s_waitcnt lgkmcnt({3*(7-i)})")
    mfma(64, 96+8*(i%5), 100+8*(i%5), 64)
e(f"s_cmp_eq_u32 s{sT2}, 1")
e("s_cbranch_scc1 L_kvf")
e("s_nop 10")
for q in range(4):
    e(f"ds_write_b128 v50, {vr(64+4*q)} offset:{q*1024}")
e("s_waitcnt lgkmcnt(0)")
e("s_barrier")
e("s_branch L_nokv")
lab("L_kvf")
e(f"global_store_dwordx4 v55, v[56:59], {sr(sP)} offset:1536 sc1")
e("s_barrier")
PB = (80, 96, 112)
for c in range(3):
    for q in range(4):
        e(f"ds_read_b128 {vr(PB[c]+4*q)}, v50 offset:{c*4096+q*1024}")
for c in range(3):
    e(f"s_waitcnt lgkmcnt({8-4*c})")
    for r in range(0, 16, 2):
        e(f"v_pk_add_f32 {vr(64+r,2)}, {vr(64+r,2)}, {vr(PB[c]+r,2)}")
for r in range(8, 16, 2):
    e(f"v_cvt_pk_bf16_f32 v{80+r//2}, v{64+r}, v{65+r}")
e("ds_write_b64 v52, v[84:85]")
e("ds_write_b64 v52, v[86:87] offset:16")
e("ds_read_b64_tr_b16 v[88:89], v53")
e("ds_read_b64_tr_b16 v[90:91], v53 offset:128")
for r in range(0, 8, 2):
    e(f"v_cvt_pk_bf16_f32 v{80+r//2}, v{64+r}, v{65+r}")
e(f"global_store_dwordx4 v{vL16}, v[80:83], {sr(sP)} sc1")
e("s_waitcnt lgkmcnt(0)")
e(f"global_store_dwordx4 v54, v[88:91], {sr(sP)} offset:1024 sc1")
stamp(10)
cm("both finishers drain their stores before pipeline barrier 2; wave 2 raises the flag behind it")
e("s_barrier")
early_setup()
e("s_barrier")
e("s_waitcnt vmcnt(0)")
e("s_barrier")
e(f"s_mov_b32 s{sI}, 14")
e(f"s_cmp_lg_u32 s{sT3}, 0")
e("s_cbranch_scc1 L_idle1")
e(f"s_add_u32 s{sT2}, s{sTAG}, {hex(TAGC)}")
e(f"s_lshl_b32 s{sT}, s{sQB}, {opt('fsh', 7)}")
e(f"s_add_u32 s{sT}, s{sT}, {WS_KF}")
e(f"v_mov_b32 v20, s{sT}")
e(f"v_mov_b32 v21, s{sT2}")
e("s_mov_b64 exec, 1")
e(f"global_store_dword v20, v21, {sr(sWS)} sc1")
e("s_mov_b64 exec, -1")
stamp(11)
e("s_branch L_idle1")
lab("L_nokv")
early_setup()
for r in range(32):
    e(f"v_mov_b32 v{64+r}, 0")
for r in range(24):
    e(f"v_mov_b32 v{FB[1]+r}, 0")
e(f"s_mov_b32 s{sI}, 4")
e("s_waitcnt lgkmcnt(0)")
e(f"s_cmp_eq_u32 s{sROLE}, 3")
e("s_cbranch_scc1 L_idle")
def p1_mf(st):
    if opt("nomf", 0): return
    for ks in range(2):
        for rt in range(2):
            mfma(ACC[rt], FB[st] + 12*ks, FB[st] + 12*ks + 4 + 4*rt, ACC[rt])
lab("L_p1")
for u in range(4):
    e("s_barrier")
    f = FB[u & 1]
    for ks in range(2 if opt("nomf", 0) < 2 else 0):
        e(f"ds_read_b64_tr_b16 {vr(f+12*ks,2)}, v6 offset:{u*16384+ks*8192}")
        e(f"ds_read_b64_tr_b16 {vr(f+12*ks+2,2)}, v7 offset:{u*16384+ks*8192}")
        for rt in range(2):
            e(f"ds_read_b128 {vr(f+12*ks+4+4*rt)}, v{8+2*u+ks} offset:{rt*8192}")
        e(f"v_add_u32 v{8+2*u+ks}, 0x4000, v{8+2*u+ks}")
    p1_mf((u + 1) & 1)
    e("s_waitcnt lgkmcnt(0)")
e(f"s_sub_u32 s{sI}, s{sI}, 1")
e(f"s_cmp_lg_u32 s{sI}, 0")
e("s_cbranch_scc1 L_p1")
e("s_barrier")
p1_mf(1)
stamp(2)
e(f"s_cmp_eq_u32 s{sROLE}, 0")
e(f"s_mov_b32 s{sC}, {hex(f2u(-LOG2E))}")
e(f"s_cselect_b32 s{sC}, {hex(f2u(0.25*LOG2E))}, s{sC}")
e(f"s_mov_b32 s{sC+1}, s{sC}")
e("s_nop 7")
if opt("sp", 0): e("s_setprio 3")
e("s_cbranch_scc0 L_epiH")
e("s_setprio 3")
for r in range(0, 32, 2):
    e(f"v_pk_mul_f32 {vr(64+r,2)}, {vr(64+r,2)}, {sr(sC)}")
for r in range(0, 32, 2):
    e(f"v_cvt_pk_bf16_f32 v{96+r//2}, v{64+r}, v{65+r}")
e(f"s_lshl_b32 s{sT}, s{sWAVE}, 12")
e(f"s_add_u32 s{sT}, s{sT}, {L_Q}")
e(f"v_add_u32 v32, s{sT}, v{vL16}")
for rt in range(2):
    for i in range(2):
        e(f"ds_write_b128 v32, {vr(96+rt*8+i*4)} offset:{i*2048+rt*1024}")
e("s_waitcnt lgkmcnt(0)")
lds_signal(C_B2, 12, 13)
e("s_branch L_p1done")
lab("L_idle")
e(f"s_mov_b32 s{sI}, 17")
lab("L_idle1")
e("s_barrier")
e(f"s_sub_u32 s{sI}, s{sI}, 1")
e(f"s_cmp_lg_u32 s{sI}, 0")
e("s_cbranch_scc1 L_idle1")
e("s_branch L_p1done")
if opt("gap", 0): L.append(".p2align 12, 0")
lab("L_epiH")
for rt in range(2):
    a = ACC[rt]
    for r in range(0, 16, 2):
        e(f"v_pk_mul_f32 {vr(96+r,2)}, {vr(a+r,2)}, {sr(sC)}")
    for r in range(16):
        e(f"v_exp_f32 v{96+r}, v{96+r}")
    for r in range(0, 16, 2):
        e(f"v_pk_add_f32 {vr(96+r,2)}, {vr(96+r,2)}, 1.0 op_sel_hi:[1,0]")
    for r in range(16):
        e(f"v_rcp_f32 v{96+r}, v{96+r}")
    for r in range(0, 16, 2):
        e(f"v_pk_mul_f32 {vr(96+r,2)}, {vr(96+r,2)}, {vr(a+r,2)}")
    for r in range(0, 16, 2):
        e(f"v_cvt_pk_bf16_f32 v{132+rt*8+r//2}, v{96+r}, v{97+r}")
lab("L_p1done")
Q = 16
KF = [20, 24]
V0 = [28, 32]
V1 = [36, 40]
P = [48, 56]
S = [64, 80]
C = 96
O = 112
vK, vV0, vV = 10, 148, 11
def att_zero(full=True):
    if full:
        for r in range(16):
            e(f"v_mov_b32 v{O+r}, 0")
    for r in range(4):
        e(f"v_mov_b32 v{V1[1]+r}, 0")
    for r in range(8, 16):
        e(f"v_mov_b32 v{S[1]+r}, 0")
att_zero(False)
stamp(3)
lds_spin("b2a", C_B2, 6, 12, 13, slp=1)
stamp(4)
if STAMPS: e("s_memrealtime s[88:89]")
e("s_setprio 3")
e(f"ds_read_b128 {vr(Q)}, v149")
e(f"ds_read_b128 {vr(KF[0])}, v{vL16}")
def att_first_loads():
    e(f"ds_read_b128 {vr(KF[1])}, v{vL16} offset:{TILE}")
    e(f"ds_read_b128 {vr(V0[0])}, v{vV0}")
    e(f"ds_read_b128 {vr(V0[1])}, v{vV0} offset:{TILE}")
    e(f"ds_read_b128 {vr(V1[0])}, v{vV0} offset:528")
att_first_loads()
HST = opt("hst", 0)
e("s_waitcnt lgkmcnt(4)")
mfma(S[0], KF[0], Q, None)
lds_signal(C_QR, 12, 13)
if HST:
    cm("poison this wave's O slot and publish its H tile")
    e(f"global_store_dwordx4 v{vL16}, v[128:131], {sr(sO)} sc1")
    e(f"s_cmp_lg_u32 s{sROLE}, 2")
    e("s_cbranch_scc1 L_noh")
    for rt in range(2):
        for ks in range(2):
            e(f"global_store_dwordx4 v{vL16}, {vr(132+rt*8+ks*4)}, {sr(sH)} offset:{ks*2048+rt*1024} sc1")
    lab("L_noh")
e("s_nop 6")
e(f"v_max3_f32 v12, v{S[0]}, v{S[0]+1}, v{S[0]+2}")
for r in range(3, 15, 2):
    e(f"v_max3_f32 v12, v12, v{S[0]+r}, v{S[0]+r+1}")
e(f"v_max_f32 v12, v12, v{S[0]+15}")
lab("L_att_setC")
e("v_mov_b32 v14, v12")
e(f"v_mov_b32 v{vK}, v{vL16}")
e(f"v_mov_b32 v{vV}, v{vV0}")
e("v_permlane32_swap_b32 v12, v14")
e(f"s_mov_b32 s{sI}, 0")
e("s_nop 0")
e("v_max_f32 v12, v12, v14")
for r in range(16):
    e(f"v_sub_f32 v{C+r}, 0, v12")
e("s_waitcnt lgkmcnt(0)")
e("s_nop 0")
mfma(S[0], KF[0], Q, C)
e(f"ds_read_b128 {vr(KF[0])}, v{vL16} offset:{2*TILE}")
e("s_setprio 2")
e("s_nop 9")
stamp(5)
UN = 8
EXO = opt("exo", 0)
def ex(x, r): e(f"v_exp_f32 v{S[x]+r}, v{S[x]+r}")
def pv(a, b): e(f"v_smfmac_f32_32x32x32_bf16 {vr(O,16)}, {vr(a)}, {vr(b,8)}, v153")
L.append(".p2align 6")
lab("L_att_loop")
for u in range(UN):
    x = u & 1; y = 1 - x
    if u == 5:
        e(f"s_bitcmp1_b32 s{sCHK}, s{sI}")
        e("s_cbranch_scc1 L_att_chk")
        lab("L_att_chk_ret")
    n1, n2, n3 = ((2, 7, 12), (3, 8, 13), (2, 6, 11), (4, 8, 12))[EXO]
    for r in range(n1): ex(x, r)
    pv(V1[y], S[y] + 8)
    e(f"ds_read_b128 {vr(V1[y])}, v{vV} offset:{(u+1)*TILE+528}")
    for r in range(n1, n2): ex(x, r)
    mfma(S[y], KF[y], Q, C)
    e(f"ds_read_b128 {vr(KF[y])}, v{vK} offset:{(u+3)*TILE}")
    for r in range(n2, n3): ex(x, r)
    pv(V0[x], S[x])
    e("s_waitcnt lgkmcnt(2)")
    e(f"ds_read_b128 {vr(V0[x])}, v{vV} offset:{(u+2)*TILE}")
    for r in range(n3, 16): ex(x, r)
if DIAG == 2:
    e("s_memtime s[100:101]")
    e("s_waitcnt lgkmcnt(0)")
    e(f"s_mov_b32 m0, s{sI}")
    e("s_nop 0")
    e("v_writelane_b32 v160, s100, m0")
e(f"v_add_u32 v{vK}, {UN*TILE}, v{vK}")
e(f"v_add_u32 v{vV}, {UN*TILE}, v{vV}")
e(f"s_add_u32 s{sI}, s{sI}, 1")
e(f"s_cmp_lt_u32 s{sI}, {64//UN - opt('lastp', 2)}")
e("s_cbranch_scc1 L_att_loop")
e("s_setprio 0")
e(f"s_cmp_lt_u32 s{sI}, {64//UN}")
e("s_cbranch_scc1 L_att_loop")
e("s_setprio 3")
e(f"s_and_b32 s{sT}, s{sWAVE}, 1")
e(f"s_lshl_b32 s{sT}, s{sT}, 7")
pv(V1[1], S[1] + 8)
stamp(6)
e(f"s_add_u32 s{sT}, s{sT}, {L_G}")
e(f"v_and_b32 v12, 31, v{vL}")
e(f"v_lshl_add_u32 v12, v12, 2, s{sT}")
e("ds_read_b32 v14, v12")
e(f"s_mov_b32 s{sT}, {hex(f2u(2.0**86))}")
e("v_mov_b32 v13, 0x207")
e("s_nop 6")
cm("safety check of the stand-in max: l < 2^42 and O finite, else redo with the true row max")
e(f"v_mul_f32 v12, s{sT}, v{O}")
for r in range(8, 16):
    e(f"v_add_f32 v12, v12, abs(v{O+r})")
e("v_cmp_class_f32 vcc, v12, v13")
e(f"v_rcp_f32 v12, v{O}")
e("s_cbranch_vccz L_att_ok")
e(f"s_cmp_eq_u32 s{sRETRY}, 0")
e("s_cbranch_scc1 L_att_truemax")
lab("L_att_ok")
e("s_waitcnt lgkmcnt(0)")
e("v_mul_f32 v12, v12, v14")
for r in range(8, 16):
    e(f"v_mul_f32 v{O+r}, v{O+r}, v12")
for i in range(4):
    e(f"v_cvt_pk_bf16_f32 v{P[0]+i}, v{O+8+2*i}, v{O+9+2*i}")
for i in range(4):
    e(f"v_min_u32 v{P[0]+i}, -2, v{P[0]+i}")
e(f"global_store_dwordx4 v{vL16}, {vr(P[0])}, {sr(sO)} sc1")
lds_signal(C_OD, 12, 13)
stamp(7)
if STAMPS: e("s_memrealtime s[96:97]")
e("s_branch L_fin")
if opt("gap", 0): L.append(".p2align 12, 0")
lab("L_att_chk")
e(f"s_cmp_eq_u32 s{sI}, 1")
e("s_cbranch_scc1 L_att_chk1")
e(f"s_lshl1_add_u32 s{sT2}, s{sI}, {0}")
e(f"s_add_u32 s{sT2}, s{sT2}, {C_KA}")
lds_spin("att_chk2", f"s{sT2}", 4, 12, 13)
def h_stores(skip):
    e(f"global_store_dwordx4 v{vL16}, v[128:131], {sr(sO)} sc1")
    e(f"s_cmp_lg_u32 s{sROLE}, 2")
    e(f"s_cbranch_scc1 {skip}")
    for rt in range(2):
        for ks in range(2):
            e(f"global_store_dwordx4 v{vL16}, {vr(132+rt*8+ks*4)}, {sr(sH)} offset:{ks*2048+rt*1024} sc1")
if not HST:
    e(f"s_cmp_lg_u32 s{sI}, 0")
    e("s_cbranch_scc1 L_att_chk_ret")
    h_stores("L_att_chk_ret")
e("s_branch L_att_chk_ret")
lab("L_att_chk1")
cm("H / poison stores of this wave have drained; the last wave to get here publishes H")
e("s_waitcnt vmcnt(0)")
e(f"v_mov_b32 v12, {C_HD}")
e("v_mov_b32 v13, 1")
e("s_mov_b64 exec, 1")
e("ds_add_rtn_u32 v13, v12, v13")
e(f"s_lshl_b32 s{sT}, s{sQB}, 7")
e(f"s_lshl2_add_u32 s{sT}, s{sHG}, s{sT}")
e(f"s_add_u32 s{sT}, s{sT}, {WS_FL}")
e(f"s_add_u32 s{sT2}, s{sTAG}, {hex(TAGC)}")
e("s_waitcnt lgkmcnt(0)")
e("v_cmp_eq_u32 vcc, 7, v13")
e("s_cbranch_vccz L_att_chk1b")
e(f"v_mov_b32 v12, s{sT}")
e(f"v_mov_b32 v13, s{sT2}")
e(f"global_store_dword v12, v13, {sr(sWS)} sc1")
lab("L_att_chk1b")
e("s_mov_b64 exec, -1")
e("s_setprio 1")
e("s_branch L_att_chk_ret")
lab("L_att_truemax")
e(f"s_mov_b32 s{sRETRY}, 1")
e(f"s_mov_b32 s{sCHK}, 0")
e("v_mov_b32 v12, 0xff800000")
e(f"v_mov_b32 v{vK}, v{vL16}")
e(f"s_mov_b32 s{sI}, 0")
lab("L_att_tm")
e(f"ds_read_b128 {vr(KF[0])}, v{vK}")
e(f"v_add_u32 v{vK}, {TILE}, v{vK}")
e("s_waitcnt lgkmcnt(0)")
mfma(S[0], KF[0], Q, None)
e("s_nop 15")
for r in range(0, 16, 2):
    e(f"v_max3_f32 v12, v12, v{S[0]+r}, v{S[0]+r+1}")
e(f"s_add_u32 s{sI}, s{sI}, 1")
e(f"s_cmp_lt_u32 s{sI}, 64")
e("s_cbranch_scc1 L_att_tm")
e(f"ds_read_b128 {vr(KF[0])}, v{vL16}")
att_first_loads()
att_zero()
e("s_branch L_att_setC")

if opt("gap", 0): L.append(".p2align 12, 0")
lab("L_g4")
e("s_setprio 3")
for perm in ("quad_perm:[1,0,3,2]", "quad_perm:[2,3,0,1]"):
    if perm.endswith("2]"): e("v_add_f32 v14, v14, v15")
    e("s_nop 1")
    e(f"v_add_f32_dpp v14, v14, v14 {perm} row_mask:0xf bank_mask:0xf")
e(f"v_mul_f32 v14, {hex(f2u(-LOG2E))}, v14")
e("v_exp_f32 v14, v14")
e(f"s_lshl_b32 s{sT}, s{sV}, 6")
e(f"s_add_u32 s{sT}, s{sT}, {L_G}")
e("v_add_f32 v14, 1.0, v14")
e("v_rcp_f32 v14, v14")
e(f"v_and_b32 v12, 60, v{vL}")
e(f"v_add_u32 v12, s{sT}, v12")
e("ds_write_b32 v12, v14")
e("s_barrier")
stamp(2)
e(f"s_cmp_lg_u32 s{sFAST}, 0")
e("s_cbranch_scc1 L_kvfast")
tag_poll("kvpoll", 30, 31, sWS, 4)
for j in range(3):
    dma_lin(sXM, 4, j*16384)
lab("L_kvfast")
stamp(3)
cm("K/V: pieces 0..31 gate the start, 32..63 -> C_KA, 64..129 -> C_KB")
dma_lin(sXM, 4, 49152)
e("s_waitcnt vmcnt(8)")
lds_signal(C_B2, 12, 13)
stamp(4)
e(f"s_lshl_b32 s{sT3}, s{sV}, 14")
dma_lin(sT3, 4, 65536)
e("s_waitcnt vmcnt(4)")
lds_signal(C_KA, 12, 13)
dma_lin(sT3, 12, 65536 + 4096)
e(f"s_cmp_lg_u32 s{sV}, 0")
e("s_cbranch_scc1 L_g5")
dma_kv_one(128 * 1024)
dma_kv_one(129 * 1024)
lab("L_g5")
tr_lane(7, 32, 33)
e(f"s_lshl_b32 s{sT}, s{sQB}, 7")
e(f"s_add_u32 s{sT}, s{sT}, {WS_FL}")
add64(sFL, sWS, off_s=sT)
e(f"s_mul_i32 s{sT}, s{sQB}, {43*4096}")
e(f"s_add_u32 s{sT}, s{sT}, {WS_H}")
add64(sH, sWS, off_s=sT)
e(f"s_lshl2_add_u32 s{sT}, s{sQB}, s{sV}")
e(f"s_lshl_b32 s{sT}, s{sT}, 14")
e(f"s_add_u32 s{sT}, s{sT}, {WS_O}")
add64(sO, sWS, off_s=sT)
cm("weight piece lane offsets v8/v9 (8 rows x 128B -> [rg][ct][4 rows][64B]); ring read address v7")
e(f"v_lshrrev_b32 v32, 5, v{vL}")
e(f"v_bfe_u32 v33, v{vL}, 2, 2")
e("v_lshl_add_u32 v32, v32, 2, v33")
e("v_lshlrev_b32 v8, 10, v32")
e(f"v_bfe_u32 v33, v{vL}, 4, 1")
e("v_lshl_add_u32 v8, v33, 6, v8")
e(f"v_and_b32 v33, 3, v{vL}")
e("v_lshl_add_u32 v8, v33, 4, v8")
e("v_add_u32 v9, 0x2000, v8")
e(f"s_mul_i32 s{sRING}, s{sV}, {R2SZ}")
e(f"s_add_u32 s{sRING}, s{sRING}, {L_UP}")
e(f"v_add_u32 v3, s{sRING}, v7")
cm("slot j of the accumulators holds tile j^v: ct ^= v>>1 (v3/v10), rt ^= v&1 (v11/v7)")
e(f"s_lshr_b32 s{sT}, s{sV}, 1")
e(f"s_lshl_b32 s{sT}, s{sT}, 8")
e(f"v_add_u32 v3, s{sT}, v3")
e("v_xor_b32 v10, 0x100, v3")
e(f"s_and_b32 s{sT}, s{sV}, 1")
e(f"s_lshl_b32 s{sT}, s{sT}, 10")
e(f"v_add_u32 v11, s{sT}, v{vL16}")
e("v_xor_b32 v0, 0x400, v11")
e("s_waitcnt vmcnt(0)")
lds_signal(C_KB, 12, 13)
stamp(5)
if opt("w2t", 1):
    cm("pull this workgroup's share of the w2 slice into L2: rows 8*(64v+l) + (qb&7), v<3")
    e(f"s_and_b32 s{sT}, s{sQB}, 7")
    e(f"s_lshl_b32 s{sT2}, s{sV}, 9")
    e(f"s_add_u32 s{sT}, s{sT}, s{sT2}")
    e(f"v_lshl_add_u32 v12, v{vL}, 3, s{sT}")
    e("v_min_u32 v12, 1375, v12")
    e(f"s_lshl_b32 s{sT}, s{sHG}, 7")
    e(f"v_lshl_add_u32 v12, v12, 10, s{sT}")
    e(f"global_load_dword v14, v12, {sr(sW2)}")
lds_spin("qr", C_QR, 8, 12, 13, slp=4)
GA = [100, 116, 132, 148]
def ring_issue(slot, base):
    e(f"s_add_u32 m0, s{sRING}, {slot*2048}")
    e("s_nop 0")
    e(f"global_load_lds_dwordx4 v8, {sr(base)}")
    e(f"s_add_u32 m0, s{sRING}, {slot*2048+1024}")
    e("s_nop 0")
    e(f"global_load_lds_dwordx4 v9, {sr(base)}")
def ring_read(slot, ct, dst):
    e(f"ds_read_b64_tr_b16 {vr(dst,2)}, v{(3, 10)[ct]} offset:{slot*2048}")
    e(f"ds_read_b64_tr_b16 {vr(dst+2,2)}, v{(3, 10)[ct]} offset:{slot*2048+1024}")
WOF = opt("wof", 1)
def wo_block():
    e("s_waitcnt vmcnt(0)")
    e(f"s_lshl_b32 s{sT}, s{sV}, 17")
    e(f"s_lshl_b32 s{sT2}, s{sHG}, 7")
    e(f"s_add_u32 s{sT}, s{sT}, s{sT2}")
    add64(sP, sWO, off_s=sT)
    for ks in range(3):
        ring_issue(ks, sP)
        add64(sP, sP, imm=16384)
    for ks in range(8):
        e(f"s_waitcnt vmcnt({2*min(2, 7-ks)})")
        ring_read(ks % 3, 0, 36 + 8*ks)
        ring_read(ks % 3, 1, 40 + 8*ks)
        if ks + 3 < 8:
            e("s_waitcnt lgkmcnt(0)")
            ring_issue(ks % 3, sP)
            add64(sP, sP, imm=16384)
    e("s_waitcnt lgkmcnt(0)")
if WOF: wo_block()
stamp(6)
e(f"s_cmp_lg_u32 s{sV}, 0")
e("s_cbranch_scc1 L_g6")
e(f"v_mov_b32 v13, s{sTAG}")
e("s_mov_b64 exec, 1")
cm("this workgroup has read the epoch; the last workgroup to get here advances it")
e("v_mov_b32 v12, 0")
e("v_mov_b32 v14, 1")
e(f"global_atomic_add v15, v12, v14, {sr(sDBG)} sc0 sc1")
e("s_waitcnt vmcnt(0)")
e("v_cmp_eq_u32 vcc, 0xff, v15")
e("s_cbranch_vccz L_g6a")
e(f"v_mov_b32 v12, {WS_NONCE}")
e(f"global_store_dword v12, v13, {sr(sWS)} sc1")
lab("L_g6a")
e("s_mov_b64 exec, -1")
lab("L_g6")
e(f"v_and_b32 v12, 7, v{vL}")
e("v_lshlrev_b32 v12, 2, v12")
tag_poll("hpoll", 12, 13, sFL, opt("hsl", 8))
stamp(7)
if opt("ht", 0):
    cm("pull this workgroup's share of H into L2: lines 4*(64*i+l) + (hg&3) of this wave's k range")
    e(f"s_mul_i32 s{sT}, s{sV}, {22*2048}")
    e(f"s_and_b32 s{sT2}, s{sHG}, 3")
    e(f"s_lshl_b32 s{sT2}, s{sT2}, 7")
    e(f"s_add_u32 s{sT}, s{sT}, s{sT2}")
    e(f"v_lshl_add_u32 v12, v{vL}, 9, s{sT}")
    e(f"global_load_dword v164, v12, {sr(sH)} sc1")
    e(f"v_min_u32 v14, 23, v{vL}")
    e(f"v_lshl_add_u32 v12, v14, 9, s{sT}")
    e("v_add_u32 v12, 0x8000, v12")
    e(f"v_min_u32 v12, {43*4096-4}, v12")
    e(f"global_load_dword v165, v12, {sr(sH)} sc1")
HB = [12, 20, 28]
GAF = [4, 164]
NA = opt("na", 22); NBB = 43 - NA
if opt("nog2", 0) == 2: NA = NBB = 2
e(f"s_mul_i32 s{sT}, s{sV}, {NA}")
e(f"s_cmp_eq_u32 s{sV}, 3")
e(f"s_cselect_b32 s{sT}, {2*NA + NBB}, s{sT}")
e(f"s_cmp_ge_u32 s{sV}, 2")
e(f"s_cselect_b32 s{sI}, {NBB}, {NA}")
e(f"s_sub_u32 s{sN}, s{sI}, 1")
e(f"s_lshl_b32 s{sT2}, s{sT}, 14")
e(f"s_lshl_b32 s{sT3}, s{sHG}, 7")
e(f"s_add_u32 s{sT2}, s{sT2}, s{sT3}")
add64(sP, sW2, off_s=sT2)
e(f"s_lshl_b32 s{sT}, s{sT}, 11")
add64(sP2, sH, off_s=sT)
def g2_h(slot):
    for rt in range(2):
        e(f"global_load_dwordx4 {vr(HB[slot]+4*rt)}, v{(11, 0)[rt]}, {sr(sP2)} sc1")
def g2_adv():
    e(f"s_cmp_lg_u32 s{sN}, 0")
    e(f"s_cselect_b32 s{sT}, 16384, 0")
    e(f"s_cselect_b32 s{sT2}, 2048, 0")
    e(f"s_cselect_b32 s{sT3}, 1, 0")
    e(f"s_sub_u32 s{sN}, s{sN}, s{sT3}")
    add64(sP, sP, off_s=sT)
    add64(sP2, sP2, off_s=sT2)
def g2_step(slot, first):
    def m(ct, rt):
        a = GA[ct*2+rt]
        if first or not opt("nog2", 0): mfma(a, GAF[ct], HB[slot] + 4*rt, None if first else a)
    e("s_waitcnt vmcnt(8)")
    ring_read(slot, 0, GAF[0])
    e("s_waitcnt lgkmcnt(0)")
    m(0, 0)
    ring_read(slot, 1, GAF[1])
    e("s_waitcnt lgkmcnt(0)")
    m(0, 1)
    e(f"s_add_u32 m0, s{sRING}, {slot*2048}")
    e("s_nop 0")
    e(f"global_load_lds_dwordx4 v8, {sr(sP)}")
    m(1, 0)
    e(f"s_add_u32 m0, s{sRING}, {slot*2048+1024}")
    e("s_nop 0")
    e(f"global_load_lds_dwordx4 v9, {sr(sP)}")
    m(1, 1)
    g2_h(slot)
    g2_adv()
for k in range(3):
    ring_issue(k, sP); g2_h(k); g2_adv()
g2_step(0, True)
e(f"s_sub_u32 s{sI}, s{sI}, 1")
lab("L_g2loop")
for slot in (1, 2, 0):
    g2_step(slot, False)
    e(f"s_sub_u32 s{sI}, s{sI}, 1")
    e(f"s_cmp_eq_u32 s{sI}, 0")
    e("s_cbranch_scc1 L_g2done" if slot != 0 else "s_cbranch_scc0 L_g2loop")
lab("L_g2done")
stampx(8)
if not WOF: wo_block()
e(f"s_and_b32 s{sT}, s{sV}, 1")
e(f"s_lshl_b32 s{sT}, s{sT}, 7")
e(f"s_add_u32 s{sT}, s{sT}, {L_G}")
e(f"v_and_b32 v4, 31, v{vL}")
e(f"v_lshl_add_u32 v4, v4, 2, s{sT}")
e("v_xor_b32 v5, 0x80, v4")
e("ds_read_b32 v6, v4")
e("ds_read_b32 v8, v5")
e("s_waitcnt vmcnt(0) lgkmcnt(0)")
e("v_sub_f32 v6, 1.0, v6")
e("v_sub_f32 v8, 1.0, v8")
e("s_nop 3")
for t in range(4):
    for r in range(0, 16, 2):
        e(f"v_pk_mul_f32 {vr(GA[t]+r,2)}, {vr(GA[t]+r,2)}, {vr(6+2*(t&1),2)} op_sel_hi:[1,0]")
cm("tail: slot j (tile j^v) goes to LDS v*17408 + tile*4352 + q*1088; wave v then owns rows 16v..16v+15 (full 128B lines)")
e("v_mov_b32 v165, v11")
e(f"v_bfe_u32 v3, v{vL}, 2, 1")
e(f"v_mul_u32_u24 v3, {2*4352}, v3")
e(f"v_and_b32 v12, 3, v{vL}")
e("v_mul_u32_u24 v12, 1088, v12")
e(f"v_lshrrev_b32 v13, 3, v{vL}")
e("v_lshl_add_u32 v12, v13, 4, v12")
e(f"s_lshr_b32 s{sT}, s{sV}, 1")
e(f"s_mul_i32 s{sT}, s{sT}, 4352")
e(f"s_and_b32 s{sT2}, s{sV}, 1")
e(f"s_lshl_b32 s{sT2}, s{sT2}, 8")
e(f"s_add_u32 s{sT}, s{sT}, s{sT2}")
e(f"v_add3_u32 v3, v3, v12, s{sT}")
e(f"v_and_b32 v12, 7, v{vL}")
e("v_lshlrev_b32 v166, 10, v13")
e("v_lshl_add_u32 v166, v12, 4, v166")
e(f"s_lshl2_add_u32 s{sT}, s{sQB}, s{sV}")
e(f"s_lshl_b32 s{sT}, s{sT}, 14")
e(f"s_lshl_b32 s{sT2}, s{sHG}, 7")
e(f"s_add_u32 s{sT}, s{sT}, s{sT2}")
add64(sB0, sOUT, off_s=sT)
add64(sFL, sB0, imm=8192)
if opt("otouch", 0):
    e(f"global_load_dword v13, v166, {sr(sB0)}")
add64(sP2, sO, imm=8192)
WB = [sI, sC, sC + 1, sN]
e(f"s_mul_i32 s{sT}, s{sV}, 17408")
for j in range(4):
    e(f"s_xor_b32 s{WB[j]}, s{sV}, {j}")
    e(f"s_mul_i32 s{WB[j]}, s{WB[j]}, 4352")
    e(f"s_add_u32 s{WB[j]}, s{WB[j]}, s{sT}")
SETS = [[4, 20], [36, 68]]
def o_issue(st):
    for p in range(2):
        for j in range(4):
            e(f"global_load_dwordx4 {vr(SETS[st][p]+4*j)}, v{(165, 0)[j&1]}, {sr(sO if p == 0 else sP2)} offset:{(j>>1)*2048} sc1")
def o_check(st, younger):
    for p in range(2):
        e(f"s_waitcnt vmcnt({younger + 4-4*p})")
        for r in range(0, 16, 2):
            if p == 0 and r == 0: e(f"v_max_u32 v164, v{SETS[st][0]}, v{SETS[st][0]+1}")
            else: e(f"v_max3_u32 v164, v164, v{SETS[st][p]+r}, v{SETS[st][p]+r+1}")
    e("v_cmp_eq_u32 vcc, -1, v164")
def chain(j, b, st):
    ct, rt = j >> 1, j & 1
    for p in range(2):
        for hh in range(2):
            mfma(GA[j], 36 + 8*(4*p + 2*b + hh) + 4*ct, SETS[st][p] + 8*hh + 4*rt, GA[j])
def wr(j):
    e(f"v_add_u32 v164, s{WB[j]}, v{vL16}")
    for qq in range(4):
        e(f"ds_write_b128 v164, {vr(GA[j]+4*qq)} offset:{qq*1088}")
e(f"s_setprio {opt('b0prio', 0)}")
lds_spin("od0", C_OD, 4, 164, 167, slp=opt("osl", 4))
stampx(9)
e(f"s_mov_b32 s{sSPIN}, {SPIN}")
lab("L_opoll0")
o_issue(0)
o_check(0, 0)
e("s_cbranch_vccz L_ook0")
e("s_sleep 4")
e(f"s_sub_u32 s{sSPIN}, s{sSPIN}, 1")
e(f"s_cmp_lg_u32 s{sSPIN}, 0")
e("s_cbranch_scc1 L_opoll0")
lab("L_ook0")
if opt("b0sp", 0):
    e("s_setprio 3")
    e(f"v_mov_b32 v164, {C_OD}")
    n = 0
    for j in range(4):
        ct, rt = j >> 1, j & 1
        for p in range(2):
            for hh in range(2):
                mfma(GA[j], 36 + 8*(4*p + hh) + 4*ct, SETS[0][p] + 8*hh + 4*rt, GA[j])
                n += 1
                if n % opt("b0sp", 1) == 0 and n < 16:
                    e("ds_read_b32 v167, v164")
                    e("s_waitcnt lgkmcnt(0)")
else:
    for j in range(4): chain(j, 0, 0)
add64(sO, sO, imm=4096)
add64(sP2, sP2, imm=4096)
e("s_setprio 3")
lds_spin("od1", C_OD, 8, 164, 167, slp=1)
stampx(10)
e(f"s_mov_b32 s{sSPIN}, {SPIN}")
def finish(st):
    chain(3, 1, st); chain(2, 1, st); chain(1, 1, st)
    e("s_nop 2")
    wr(3)
    chain(0, 1, st)
if opt("stag", 0):
    cm("two request sets in flight, half a round trip apart")
    o_issue(0)
    e(f"s_sleep {opt('stagsl', 4)}")
    o_issue(1)
    lab("L_opoll1")
    o_check(0, 8)
    e("s_cbranch_vccz L_ook1")
    o_issue(0)
    o_check(1, 8)
    e("s_cbranch_vccz L_ook1b")
    o_issue(1)
    e(f"s_sub_u32 s{sSPIN}, s{sSPIN}, 1")
    e(f"s_cmp_lg_u32 s{sSPIN}, 0")
    e("s_cbranch_scc1 L_opoll1")
    e("s_waitcnt vmcnt(0)")
    lab("L_ook1b")
    stampx(11)
    finish(1)
    e("s_branch L_ojoin")
else:
    lab("L_opoll1")
    o_issue(0)
    o_check(0, 0)
    e("s_cbranch_vccz L_ook1")
    if opt("psl", 0): e(f"s_sleep {opt('psl', 0)}")
    e(f"s_sub_u32 s{sSPIN}, s{sSPIN}, 1")
    e(f"s_cmp_lg_u32 s{sSPIN}, 0")
    e("s_cbranch_scc1 L_opoll1")
lab("L_ook1")
stampx(11)
finish(0)
lab("L_ojoin")
wr(2)
wr(1)
e("s_waitcnt lgkmcnt(8)")
wr(0)
e("s_waitcnt vmcnt(0)")
e("s_waitcnt lgkmcnt(0)")
if opt("bar", 1):
    e("s_barrier")
else:
    lds_signal(C_RED, 4, 5)
    lds_spin("red", C_RED, 4, 4, 5, slp=0)
stampx(12)
def rd(i):
    for c in range(4):
        for h in range(2):
            e(f"ds_read_b128 {vr(36+32*i+8*c+4*h)}, v3 offset:{c*17408+h*512+i*128}")
def fin(i):
    b0 = 36 + 32*i
    for r in range(0, 8, 2):
        e(f"v_pk_add_f32 {vr(b0+r,2)}, {vr(b0+r,2)}, {vr(b0+8+r,2)}")
        e(f"v_pk_add_f32 {vr(b0+16+r,2)}, {vr(b0+16+r,2)}, {vr(b0+24+r,2)}")
    for r in range(0, 8, 2):
        e(f"v_pk_add_f32 {vr(b0+r,2)}, {vr(b0+r,2)}, {vr(b0+16+r,2)}")
    for k in range(4):
        e(f"v_cvt_pk_bf16_f32 v{16+4*i+k}, v{b0+2*k}, v{b0+1+2*k}")
    e(f"global_store_dwordx4 v166, {vr(16+4*i)}, {sr((sB0, sFL)[i])}" + ("", " sc1", " nt", " sc0 sc1")[opt("outf", 1)])
rd(0)
e("s_waitcnt lgkmcnt(4)")
rd(1)
e("s_waitcnt lgkmcnt(8)")
fin(0)
e("s_waitcnt lgkmcnt(0)")
fin(1)
if opt("hold", 0):
    lab("L_hold")
    e("s_memrealtime s[72:73]")
    e("s_waitcnt lgkmcnt(0)")
    e("s_sub_u32 s72, s72, s70")
    e(f"s_cmp_lt_u32 s72, {opt('hold', 0)}")
    e("s_cbranch_scc1 L_hold")
if LITE:
    cm("LITE")
    e("s_waitcnt vmcnt(0)")
    e("s_memrealtime s[72:73]")
    e(f"s_lshl2_add_u32 s{sT}, s2, s{sV}")
    e(f"s_lshl_b32 s{sT}, s{sT}, 3")
    e(f"s_add_u32 s{sT}, s{sT}, {WS_ST}")
    e(f"v_mov_b32 v12, s{sT}")
    e("s_waitcnt lgkmcnt(0)")
    e("v_mov_b32 v14, s70")
    e("v_mov_b32 v15, s72")
    e("s_mov_b64 exec, 1")
    e(f"global_store_dwordx2 v12, v[14:15], {sr(sWS)}")
lab("L_fin")
if opt("dbgt", 0):
    e("s_waitcnt vmcnt(0)")
    e("s_memrealtime s[100:101]")
    e("s_memtime s[98:99]")
    e("s_waitcnt lgkmcnt(0)")
    e("s_mov_b64 exec, 1")
    e("v_mov_b32 v12, 0")
    e("s_not_b32 s3, s70")
    e("v_mov_b32 v13, s3")
    e(f"global_atomic_umax v12, v13, {sr(sDBG)} offset:4 sc1")
    e("v_mov_b32 v14, s100")
    e(f"global_atomic_umax v12, v14, {sr(sDBG)} offset:8 sc1")
    e("v_mov_b32 v15, s70")
    e(f"global_atomic_umax v12, v15, {sr(sDBG)} offset:12 sc1")
    e("s_cmp_lg_u32 s2, 100")
    e("s_cbranch_scc1 L_end")
    e(f"s_cmp_eq_u32 s{sWAVE}, 7")
    e("s_cbranch_scc0 L_dg")
    for k, i in enumerate((9, 1, 2, 4, 7, 13)):
        e(f"s_sub_u32 s3, s{72+2*i}, s72")
        e("v_mov_b32 v13, s3")
        e(f"global_store_dword v12, v13, {sr(sDBG)} offset:{16+4*k}")
    e("s_branch L_end")
    lab("L_dg")
    e(f"s_cmp_eq_u32 s{sWAVE}, 8")
    e("s_cbranch_scc0 L_end")
    for k, i in enumerate((3, 5, 8, 11, 12, 13)):
        e(f"s_sub_u32 s3, s{72+2*i}, s72")
        e("v_mov_b32 v13, s3")
        e(f"global_store_dword v12, v13, {sr(sDBG)} offset:{40+4*k}")
elif STAMPS:
    e("s_waitcnt vmcnt(0)")
    stamp(13)
    e("s_memrealtime s[100:101]")
    e("s_waitcnt lgkmcnt(0)")
    e(f"s_lshl_b32 s{sT}, s2, 4")
    e(f"s_add_u32 s{sT}, s{sT}, s{sWAVE}")
    e(f"s_lshl_b32 s{sT}, s{sT}, 7")
    e(f"s_add_u32 s{sT}, s{sT}, {WS_ST}")
    add64(sP, sWS, off_s=sT)
    if DIAG == 2:
        e(f"v_lshlrev_b32 v12, 2, v{vL}")
        e("s_mov_b64 exec, 0xff")
        e(f"global_store_dword v12, v160, {sr(sP)} offset:64")
    e("v_mov_b32 v12, 0")
    e("s_mov_b64 exec, 1")
    for i in range(16):
        e(f"v_mov_b32 v13, s{70+2*i}")
        e(f"global_store_dword v12, v13, {sr(sP)} offset:{4*i}")
    e("s_waitcnt vmcnt(0)")
lab("L_end")
e("s_endpgm")
lab("L_code_end")

HEAD = open(f"cdna_kernels/{NAME}.s.ref").read().split("; Override launch geometry")[0]
src = HEAD + f"""; @launch grid=(256,1,1) block=(768,1,1) lds={LDS_TOTAL}
.amdgcn_target "amdgcn-amd-amdhsa--gfx950"
.text
.globl {NAME}_kernel
.p2align 8
.type {NAME}_kernel,@function
{NAME}_kernel:
""" + "\n".join(L) + f"""
.section .rodata,"a"
.p2align 6
.amdhsa_kernel {NAME}_kernel
  .amdhsa_next_free_vgpr 168
  .amdhsa_next_free_sgpr 102
  .amdhsa_accum_offset 168
  .amdhsa_group_segment_fixed_size 0
  .amdhsa_kernarg_size 96
  .amdhsa_user_sgpr_count 2
  .amdhsa_user_sgpr_kernarg_segment_ptr 1
  .amdhsa_system_sgpr_workgroup_id_x 1
.end_amdhsa_kernel
"""
open(OUT, "w").write(src)
print("wrote", OUT, len(L), "lines")
```

```python
import sys, struct

NAME = "gated_mix__grouped_kv_mqa__dense_activation_silu__prompt"
STAMPS = "--stamps" in sys.argv
def opt(name, default):
    for a in sys.argv[1:]:
        if a.startswith(f"--{name}="): return int(a.split("=")[1])
    return default
OUT = [a for a in sys.argv[1:] if not a.startswith("--")]
OUT = OUT[0] if OUT else f"cdna_kernels/{NAME}.s"
DIAG = opt("diag", 0)
LITE = opt("lite", 0)

def f2u(x): return struct.unpack("<I", struct.pack("<f", x))[0]
LOG2E = 1.4426950408889634

TILE = 2080
KVBYTES = 64 * TILE
L_X = 66560
L_UP = KVBYTES
L_Q = L_UP
L_KVP = L_UP
L_VT = L_UP + 24576
L_WKV = 32768
R2SZ = 6144
L_G = L_UP + 28672
L_CNT = L_G + 256
L_GW = L_CNT + 256
LDS_TOTAL = L_GW + 1024
C_KA, C_KB, C_KVP, C_GO, C_RED, C_K1, C_HD, C_OD, C_B2, C_QR = [L_CNT + 4*i for i in range(10)]
WS_KV, WS_FL, WS_H, WS_O, WS_ST = 0, 0x30000, 0x40000, 0x600000, 0x900000
WS_KF = WS_FL + 0x1000
WS_NONCE = WS_FL + 0x3000
SPIN = 1 << 16
TAGC = 0x9E3779B1

L = []
def e(s): L.append("    " + s)
def lab(s): L.append(s + ":")
def cm(s): L.append("    ; " + s)
def vr(a, n=4): return f"v[{a}:{a+n-1}]"
def sr(a, n=2): return f"s[{a}:{a+n-1}]"
def stamp(i):
    if STAMPS: e(("s_memrealtime" if opt("rts", 0) else "s_memtime") + f" s[{72+2*i}:{73+2*i}]")

def stampx(i):
    if DIAG != 4: stamp(i)
sX, sWQ, sWK, sWV, sWO, sW1, sW2, sGW, sOUT, sDBG, sWS = 4, 6, 8, 10, 12, 16, 18, 20, 22, 24, 26
sQB, sHG, sWAVE, sV = 28, 29, 30, 31
sJQ, sXM = 32, 33
sB0, sFL, sADV, sROLE, sRING, sN = 34, 36, 38, 39, 40, 41
sHT, sPROD = 42, 43
sKV, sH, sO = 44, 46, 48
sT, sT2, sT3 = 50, 52, 54
sC, sTAG = 56, 58
sSPIN, sI, sCHK, sRETRY = 60, 61, 62, 63
sWB = 14
sP, sP2 = 66, 68
vL, vL16 = 1, 2

def add64(dst, src, off_s=None, imm=None):
    o = f"s{off_s}" if off_s is not None else hex(imm)
    e(f"s_add_u32 s{dst}, s{src}, {o}")
    e(f"s_addc_u32 s{dst+1}, s{src+1}, 0")
def mfma(d, a, b, c):
    cs = "0" if c is None else vr(c, 16)
    e(f"v_mfma_f32_32x32x16_bf16 {vr(d,16)}, {vr(a)}, {vr(b)}, {cs}")
def lds_spin(name, off, want, va, vt, slp=1):
    e(f"v_mov_b32 v{va}, {off}")
    e(f"s_mov_b32 s{sSPIN}, {SPIN*64}")
    lab(f"L_{name}")
    e(f"ds_read_b32 v{vt}, v{va}")
    e("s_waitcnt lgkmcnt(0)")
    e(f"v_readfirstlane_b32 s{sT}, v{vt}")
    e(f"s_sub_u32 s{sSPIN}, s{sSPIN}, 1")
    e(f"s_cmp_eq_u32 s{sSPIN}, 0")
    e(f"s_cbranch_scc1 L_{name}_ok")
    e(f"s_cmp_ge_u32 s{sT}, {want}")
    e(f"s_cbranch_scc1 L_{name}_ok")
    if slp: e(f"s_sleep {slp}")
    e(f"s_branch L_{name}")
    lab(f"L_{name}_ok")
def lds_signal(off, va, vt):
    e(f"v_mov_b32 v{va}, {off}")
    e(f"v_mov_b32 v{vt}, 1")
    e("s_mov_b64 exec, 1")
    e(f"ds_add_u32 v{va}, v{vt}")
    e("s_mov_b64 exec, -1")
def tag_poll(name, va, vt, base, slp):
    e(f"s_mov_b32 s{sSPIN}, {SPIN}")
    lab(f"L_{name}")
    e(f"global_load_dword v{vt}, v{va}, {sr(base)} sc1")
    e("s_waitcnt vmcnt(0)")
    e(f"v_cmp_ne_u32 vcc, s{sTAG}, v{vt}")
    e(f"s_cbranch_vccz L_{name}_ok")
    e(f"s_sleep {slp}")
    e(f"s_sub_u32 s{sSPIN}, s{sSPIN}, 1")
    e(f"s_cmp_lg_u32 s{sSPIN}, 0")
    e(f"s_cbranch_scc1 L_{name}")
    lab(f"L_{name}_ok")
def dma_lin(first_s, n, first_imm=0):
    for j in range(0, n, 4):
        e(f"s_add_u32 s{sT}, s{first_s}, {first_imm + j*1024}")
        e(f"s_mov_b32 m0, s{sT}")
        add64(sP, sKV, off_s=sT)
        for i in range(4):
            e(f"global_load_lds_dwordx4 v{vL16}, {sr(sP)} offset:{i*1024} sc1")
def dma_kv_one(off):
    e(f"s_mov_b32 m0, {off}")
    add64(sP, sKV, imm=off)
    e(f"global_load_lds_dwordx4 v{vL16}, {sr(sP)} sc1")
def tr_lane(dst, t0, t1):
    e(f"v_bfe_u32 v{dst}, v{vL}, 2, 2")
    e(f"v_bfe_u32 v{t0}, v{vL}, 4, 1")
    e(f"v_and_b32 v{t1}, 3, v{vL}")
    e(f"v_lshlrev_b32 v{dst}, 6, v{dst}")
    e(f"v_lshl_add_u32 v{dst}, v{t0}, 5, v{dst}")
    e(f"v_lshl_add_u32 v{dst}, v{t1}, 3, v{dst}")
    e(f"v_lshrrev_b32 v{t0}, 5, v{vL}")
    e(f"v_lshl_add_u32 v{dst}, v{t0}, 9, v{dst}")
for t in """One launch, 256 workgroups (one per CU) x 12 waves. Workgroup (qb, hg): 64 query rows, 4 heads, output tile 64x64.
 waves 8..11 (G): stream X / wq / w1 into LDS (LDS-DMA ring, 16 barrier stages), gate, K/V staging, H@w2, O@wo, output
 waves 0..7  (A): one 32-column tile of X@[wq|w1] each (hg==0 also X@[wk|wv]), SiLU, then attention (32 queries x 1 head)
Attention works on S^T = K Q^T - m (m enters as the MFMA C operand), P = exp2(S^T), O^T/l = [V^T; ones] P through the
 sparse MFMA, whose index picks the upper (bf16) halves of the f32 P registers.
Softmax guard: m is the row max over the first key tile (so l >= 1); after the loop l and O are checked for overflow
 and the wave redoes its rows with the true row max over all keys when the check fails (L_att_truemax).
Hand-offs between workgroups (K/V, H, O) go through d_ws with write-through stores; flags carry a per-launch tag derived
 from an epoch word in d_ws, O is polled against a poison pattern written earlier in the same launch. Every wait is bounded.""".split("\n"):
    cm(t)
e("s_load_dwordx16 s[4:19], s[0:1], 0")
e("s_load_dwordx8 s[20:27], s[0:1], 64")
e("s_cmp_ge_u32 s2, 256")
e("s_cbranch_scc1 L_end")
if STAMPS or LITE: e("s_memrealtime s[70:71]")
stamp(0)
e("v_lshrrev_b32 v5, 6, v0")
e(f"v_and_b32 v{vL}, 63, v0")
e(f"v_readfirstlane_b32 s{sWAVE}, v5")
e(f"v_lshlrev_b32 v{vL16}, 4, v{vL}")
CPF = opt("cpf", 0)
if CPF:
    cm("pull code into L2 at once: wave w < CPF touches 32 lines from 4096*w on")
    e(f"s_cmp_ge_u32 s{sWAVE}, {CPF}")
    e("s_cbranch_scc1 L_nopf")
    e(f"s_getpc_b64 {sr(sT)}")
    e("v_lshlrev_b32 v3, 6, v0")
    e(f"global_load_dword v4, v3, {sr(sT)}")
    lab("L_nopf")
cm("qb = ((wg&7)>>1)*8 + ((wg>>3)&7) ; hg = (wg&1)*4 + (wg>>6) ; K/V producers: hg == 0")
e(f"s_bfe_u32 s{sT}, s2, 0x20001")
e(f"s_bfe_u32 s{sJQ}, s2, 0x30003")
e(f"s_lshl3_add_u32 s{sQB}, s{sT}, s{sJQ}")
e(f"s_and_b32 s{sT}, s2, 1")
e(f"s_lshr_b32 s{sPROD}, s2, 6")
e(f"s_lshl2_add_u32 s{sHG}, s{sT}, s{sPROD}")
cm("stage order s ^ rot, rot = 2*(qb&7) ^ 4*(hg&3)")
e(f"s_lshl_b32 s{sJQ}, s{sJQ}, 1")
e(f"s_lshl_b32 s{sT}, s{sPROD}, 2")
e(f"s_xor_b32 s{sJQ}, s{sJQ}, s{sT}")
e(f"s_and_b32 s{sJQ}, s{sJQ}, {opt('rot', 6)}")
e(f"s_cmp_lt_u32 s{sWAVE}, 8")
e("s_cbranch_scc1 L_aw")

e(f"s_sub_u32 s{sV}, s{sWAVE}, 8")
if opt("gp", 0): e("s_setprio 3")
sWQB, sW1B = 34, 64
cm("X lane offset v20: row 16v + (l>>4) (+4j), 16B unit (l&15) ^ (row&15)")
e(f"v_lshrrev_b32 v16, 4, v{vL}")
e(f"v_and_b32 v17, 15, v{vL}")
e("v_xor_b32 v17, v17, v16")
e("v_lshlrev_b32 v17, 4, v17")
e("v_lshl_add_u32 v20, v16, 10, v17")
for j in range(1, 4):
    e(f"v_xor_b32 v{20+j}, {j*(4096+64)}, v20")
e(f"s_lshl2_add_u32 s{sT2}, s{sQB}, s{sV}")
e(f"s_lshl_b32 s{sT2}, s{sT2}, 14")
e(f"s_lshl_b32 s{sXM}, s{sV}, 12")
cm("row-in-octet v16 = 4*(l>>5) + ((l>>2)&3), v17 = tile bit (l>>4)&1, v18 = (l&3)*16")
e(f"v_lshrrev_b32 v16, 5, v{vL}")
e(f"v_bfe_u32 v19, v{vL}, 2, 2")
e("v_lshl_add_u32 v16, v16, 2, v19")
e(f"s_lshl_b32 s{sT3}, s{sV}, 3")
e(f"v_add_u32 v16, s{sT3}, v16")
e(f"v_bfe_u32 v17, v{vL}, 4, 1")
e(f"v_and_b32 v18, 3, v{vL}")
e("v_lshlrev_b32 v18, 4, v18")
e("v_lshl_add_u32 v24, v17, 6, v18")
e("v_lshl_add_u32 v24, v16, 10, v24")
def x_issue(g):
    e(f"s_xor_b32 s{sT}, s{sJQ}, {4*g}")
    e(f"s_lshr_b32 s{sT}, s{sT}, 2")
    e(f"s_lshl_b32 s{sT}, s{sT}, 8")
    e(f"s_add_u32 m0, s{sXM}, {L_X + g*16384}")
    add64(sP, sP2, off_s=sT)
    for j in range(4):
        if j:
            e(f"s_add_u32 m0, s{sXM}, {L_X + g*16384 + j*1024}")
            e("s_nop 0")
        e(f"global_load_lds_dwordx4 v{20+j}, {sr(sP)}")
e("s_waitcnt lgkmcnt(0)")
stamp(9)
e(f"s_load_dword s{sTAG}, {sr(sWS)}, {hex(WS_NONCE)}")
add64(sP2, sX, off_s=sT2)
x_issue(0)
e(f"s_lshl_b32 s{sT}, s{sHG}, 7")
add64(sWQ, sWQ, off_s=sT)
e(f"s_cmp_eq_u32 s{sHG}, 0")
e("s_cbranch_scc1 L_gprod")
e(f"s_mul_i32 s{sT}, s{sHG}, 384")
e(f"s_sub_u32 s{sT}, s{sT}, 320")
add64(sW1, sW1, off_s=sT)
e(f"v_add_u32 v19, s{sT3}, v19")
e("v_mul_u32_u24 v25, 2752, v19")
e(f"v_lshrrev_b32 v26, 4, v{vL}")
e("v_lshl_add_u32 v25, v26, 6, v25")
e("v_add_u32 v25, v25, v18")
e(f"v_add_u32 v26, {4*2752}, v25")
e("v_mul_u32_u24 v27, 2752, v16")
e("v_lshl_add_u32 v27, v17, 6, v27")
e("v_add3_u32 v27, v27, v18, 64")
e("v_add_u32 v27, 192, v27")
def misc_g():
    cm("gate weights (every wave requests the same 1KB: keeps the counts uniform); zero the LDS counters")
    e(f"s_mov_b32 m0, {L_GW}")
    e(f"v_and_b32 v12, 15, v{vL}")
    e(f"global_load_lds_dwordx4 v{vL16}, {sr(sGW)}")
    e(f"v_lshlrev_b32 v12, 2, v12")
    e(f"v_add_u32 v12, {L_CNT}, v12")
    e("v_mov_b32 v13, 0")
    e("ds_write_b32 v12, v13")
    cm("gate: lane -> row 16v + (l>>2), units 4(l&3)+i ; v10 X address, v11 weight address")
    e(f"v_lshrrev_b32 v12, 2, v{vL}")
    e(f"v_and_b32 v13, 3, v{vL}")
    e("v_lshlrev_b32 v13, 2, v13")
    e("v_xor_b32 v10, v13, v12")
    e("v_lshlrev_b32 v10, 4, v10")
    e("v_lshl_add_u32 v10, v12, 8, v10")
    e(f"s_add_u32 s{sT}, s{sXM}, {L_X}")
    e(f"v_add_u32 v10, s{sT}, v10")
    e(f"s_lshr_b32 s{sT}, s{sJQ}, 2")
    e(f"s_lshl_b32 s{sT}, s{sT}, 8")
    e(f"v_lshl_add_u32 v11, v13, 4, s{sT}")
    e("v_mov_b32 v14, 0")
    e("v_mov_b32 v15, 0")
    e(f"v_and_b32 v30, 31, v{vL}")
    e(f"v_lshlrev_b32 v30, {opt('fsh', 7)}, v30")
    e(f"v_add_u32 v30, {WS_KF}, v30")
    add64(sKV, sWS, imm=WS_KV)
    e("s_waitcnt lgkmcnt(0)")
    e(f"s_add_u32 s{sTAG}, s{sTAG}, {hex(TAGC)}")
    UID[0] += 1
UID = [0]
def gate_part(g):
    if opt("nogate", 0): return
    e(f"v_xor_b32 v12, {g*256}, v11")
    e(f"v_add_u32 v12, {L_GW}, v12")
    for i in range(4):
        if i: e(f"v_xor_b32 v13, {i*16}, v10")
        e(f"ds_read_b128 {vr(32+8*i)}, v{13 if i else 10} offset:{g*16384}")
        e(f"ds_read_b128 {vr(36+8*i)}, v12 offset:{i*16}")
    for i in range(4):
        e(f"s_waitcnt lgkmcnt({6-2*i})")
        for j in range(4):
            e(f"v_dot2_f32_bf16 v{14+(j&1)}, v{32+8*i+j}, v{36+8*i+j}, v{14+(j&1)}")
sFAST = sN
PS = opt("ps", 10)
def loader(prod):
    nw = 2 if prod else 4
    tg = "p" if prod else "n"
    def issue(s):
        if s % 4 == 0 and s and not prod: x_issue(s // 4)
        base = (s % 4) * 16384
        e(f"s_xor_b32 s{sT}, s{sJQ}, {s}")
        e(f"s_lshl_b32 s{sT2}, s{sT}, 15")
        e(f"s_add_u32 m0, s{sXM}, {base}")
        add64(sWQB, sWQ, off_s=sT2)
        e(f"global_load_lds_dwordx4 v24, {sr(sWQB)}")
        e(f"s_mul_i32 s{sT2}, s{sT}, {32*2752}")
        e(f"s_add_u32 m0, s{sXM}, {base + 3072}")
        add64(sW1B, sW1, off_s=sT2)
        e(f"global_load_lds_dwordx4 v27, {sr(sW1B)}")
        if not prod:
            for j, r in ((1, 25), (2, 26)):
                e(f"s_add_u32 m0, s{sXM}, {base + j*1024}")
                e("s_nop 0")
                e(f"global_load_lds_dwordx4 v{r}, {sr(sW1B)}")
    cnt = [nw + (4 if s % 4 == 0 and not prod else 0) for s in range(16)]
    if prod:
        misc_g()
        e("s_waitcnt vmcnt(4)")
        issue(0); issue(1)
        e("s_waitcnt vmcnt(4)")
        e("s_barrier")
        e("s_barrier")
        issue(2)
    else:
        issue(0); issue(1); issue(2)
        misc_g()
    for s in range(14):
        later = sum(cnt[s+1:min(16, s + 3)]) + (1 if s in (PS+1, PS+2) or (s < 3 and not prod) else 0)
        e(f"s_waitcnt vmcnt({later})")
        e("s_barrier")
        if s == 0: stamp(1)
        if s == PS: e(f"global_load_dword v31, v30, {sr(sWS)} sc1")
        if s + 3 < 16: issue(s + 3)
        if s in (4, 6, 9): gate_part((4, 6, 9).index(s))
    cm("K/V already published? then start staging it into the ring slots as they free up")
    e(f"v_cmp_ne_u32 vcc, s{sTAG}, v31")
    e(f"s_mov_b32 s{sFAST}, 0")
    e(f"s_cbranch_vccnz L_slow{tg}")
    e(f"s_mov_b32 s{sFAST}, 1")
    dma_lin(sXM, 4)
    gate_part(3)
    e(f"s_waitcnt vmcnt({cnt[15] + 4})")
    e("s_barrier")
    dma_lin(sXM, 4, 16384)
    e("s_waitcnt vmcnt(8)")
    e("s_barrier")
    dma_lin(sXM, 4, 32768)
    e("s_branch L_g4")
    lab(f"L_slow{tg}")
    e(f"global_load_dword v31, v30, {sr(sWS)} sc1")
    gate_part(3)
    e(f"s_waitcnt vmcnt({cnt[15] + 1})")
    e("s_barrier")
    e("s_waitcnt vmcnt(0)")
    e("s_barrier")
    e(f"v_cmp_ne_u32 vcc, s{sTAG}, v31")
    e("s_cbranch_vccnz L_g4")
    e(f"s_mov_b32 s{sFAST}, 1")
    for j in range(3):
        dma_lin(sXM, 4, j*16384)
    e("s_branch L_g4")
loader(False)
if opt("gap", 0): L.append(".p2align 12, 0")
lab("L_gprod")
cm("producer (hg==0): all of X and [wk|wv] first (wave v: k-steps 8v..8v+7); last piece = w1 tile 0")
e(f"v_lshrrev_b32 v28, 2, v{vL}")
e("v_lshlrev_b32 v28, 5, v28")
e("v_and_b32 v19, 16, v18")
e(f"v_add3_u32 v28, v28, v19, s{sXM}")
e("v_mov_b32 v29, 0")
e(f"v_and_b32 v19, 2, v{vL}")
e("v_cmp_ne_u32 vcc, 0, v19")
e(f"v_mov_b32 v32, s{sWK}")
e(f"v_mov_b32 v33, s{sWK+1}")
e(f"v_mov_b32 v34, s{sWV}")
e(f"v_mov_b32 v35, s{sWV+1}")
e("v_cndmask_b32 v32, v32, v34, vcc")
e("v_cndmask_b32 v33, v33, v35, vcc")
e("v_lshl_add_u64 v[32:33], v[28:29], 0, v[32:33]")
e(f"s_lshl_b32 s{sT3}, s{sXM}, 1")
e(f"s_and_b32 s{sC}, s{sQB}, 7")
e(f"s_mov_b32 s{sW1B+1}, 0")
def wkv_dma(i):
    e(f"s_xor_b32 s{sT}, s{sC}, {i}")
    e(f"s_lshl_b32 s{sW1B}, s{sT}, 9")
    e(f"s_lshl_b32 s{sT}, s{sT}, 10")
    e(f"s_add_u32 s{sT}, s{sT}, s{sT3}")
    e(f"s_add_u32 m0, s{sT}, {L_WKV}")
    e(f"v_lshl_add_u64 v[28:29], v[32:33], 0, {sr(sW1B)}")
    e("global_load_lds_dwordx4 v[28:29], off")
wkv_dma(0)
for g in range(1, 4): x_issue(g)
for i in range(1, 8): wkv_dma(i)
e("v_mul_u32_u24 v27, 2752, v16")
e("v_add_u32 v27, v27, v18")
loader(True)

if opt("gap", 0): L.append(".p2align 12, 0")
lab("L_aw")
if DIAG == 4: stamp(9)
e(f"s_mul_i32 s{sHT}, s{sHG}, 6")
e(f"s_add_u32 s{sHT}, s{sHT}, s{sWAVE}")
e(f"s_sub_u32 s{sHT}, s{sHT}, 7")
e(f"s_mov_b32 s{sROLE}, 2")
e(f"s_cmp_lg_u32 s{sHG}, 0")
e("s_cbranch_scc1 L_r1")
e(f"s_mov_b32 s{sHT}, 0")
e(f"s_cmp_lt_u32 s{sWAVE}, 7")
e(f"s_cselect_b32 s{sROLE}, 3, 2")
lab("L_r1")
e(f"s_cmp_lt_u32 s{sWAVE}, 2")
e(f"s_cselect_b32 s{sROLE}, 0, s{sROLE}")
cm("block base: w<2: 256w ; w<6: 1024+256(w-2) ; else 3072+256(w-6) ; rg stride 1024 for 2<=w<6 else 512")
e(f"s_cselect_b32 s{sT}, 0, 512")
e(f"s_cselect_b32 s{sT2}, 512, 1024" if False else f"s_cselect_b32 s{sT2}, 1, 2")
e(f"s_cmp_ge_u32 s{sWAVE}, 6")
e(f"s_cselect_b32 s{sT}, 1536, s{sT}")
e(f"s_cselect_b32 s{sT2}, 1, s{sT2}")
e(f"s_lshl_b32 s{sT2}, s{sT2}, 9")
e(f"s_lshl_b32 s{sT3}, s{sWAVE}, 8")
e(f"s_add_u32 s{sT}, s{sT}, s{sT3}")
e(f"v_bfe_u32 v6, v{vL}, 2, 2")
e(f"v_bfe_u32 v32, v{vL}, 4, 1")
e(f"v_and_b32 v33, 3, v{vL}")
e("v_lshlrev_b32 v6, 6, v6")
e("v_lshl_add_u32 v6, v32, 5, v6")
e("v_lshl_add_u32 v6, v33, 3, v6")
e(f"v_lshrrev_b32 v32, 5, v{vL}")
e("v_lshl_add_u32 v6, v32, 12, v6")
e(f"v_add_u32 v6, s{sT}, v6")
e(f"v_add_u32 v7, s{sT2}, v6")
cm("X fragment addresses v8..v15 for (s&3, ks)")
e(f"v_and_b32 v33, 31, v{vL}")
e(f"v_and_b32 v34, 15, v{vL}")
e("v_xor_b32 v34, v34, v32")
e("v_lshlrev_b32 v34, 4, v34")
e("v_lshl_add_u32 v8, v33, 8, v34")
e(f"s_and_b32 s{sT}, s{sJQ}, 3")
e(f"s_lshl_b32 s{sT}, s{sT}, 6")
e(f"v_xor_b32 v8, s{sT}, v8")
e(f"v_add_u32 v8, {L_X}, v8")
for j in range(1, 8):
    e(f"v_xor_b32 v{8+j}, {j << 5}, v8")
e("s_waitcnt lgkmcnt(0)")
if DIAG == 4: stamp(10)
e(f"s_load_dword s{sTAG}, {sr(sWS)}, {hex(WS_NONCE)}")
e(f"s_lshl3_add_u32 s{sT}, s{sQB}, s{sHG}")
e(f"s_lshl3_add_u32 s{sT}, s{sT}, s{sWAVE}")
e(f"s_lshl_b32 s{sT}, s{sT}, 10")
e(f"s_add_u32 s{sT}, s{sT}, {WS_O}")
add64(sO, sWS, off_s=sT)
e(f"s_mul_i32 s{sT}, s{sQB}, 43")
e(f"s_add_u32 s{sT}, s{sT}, s{sHT}")
e(f"s_lshl_b32 s{sT}, s{sT}, 12")
e(f"s_add_u32 s{sT}, s{sT}, {WS_H}")
add64(sH, sWS, off_s=sT)
ACC = [64, 80]
FB = [16, 40]
def early_setup():
    for i in range(4):
        e(f"v_mov_b32 v{128+i}, -1")
    cm("V lane address: m>=16: 1024 + h*256 + (m-16)*16 ; m in {0,4}: ones slot ; else out of range (reads 0)")
    e(f"v_and_b32 v150, 15, v{vL}")
    e(f"v_lshrrev_b32 v151, 5, v{vL}")
    e("v_lshlrev_b32 v150, 4, v150")
    e("v_lshl_add_u32 v150, v151, 8, v150")
    e(f"v_and_b32 v151, 27, v{vL}")
    e(f"v_cmp_eq_u32 {sr(sT)}, 0, v151")
    e("v_cmp_lt_u32 vcc, 15, v151")
    e("v_mov_b32 v151, 0x40000")
    e("v_mov_b32 v152, 512")
    e(f"v_cndmask_b32 v151, v151, v152, {sr(sT)}")
    e(f"v_cndmask_b32 v148, v151, v150, vcc")
    e(f"v_add_u32 v148, 1024, v148")
    e(f"s_lshl_b32 s{sT}, s{sWAVE}, 10")
    e(f"s_add_u32 s{sT}, s{sT}, {L_Q}")
    e(f"v_add_u32 v149, s{sT}, v{vL16}")
    e(f"s_mov_b32 s{sRETRY}, 0")
    e("v_mov_b32 v153, 0xdddddddd")
    e(f"s_mov_b32 s{sCHK}, 7")
    for r in range(16):
        e(f"v_mov_b32 v{112+r}, 0")
e(f"s_cmp_lg_u32 s{sHG}, 0")
e("s_cbranch_scc1 L_nokv")
e(f"s_lshr_b32 s{sT2}, s{sWAVE}, 1")
e(f"s_and_b32 s{sT3}, s{sWAVE}, 1")
tr_lane(40, 41, 42)
e(f"s_lshr_b32 s{sT}, s{sJQ}, 2")
e(f"s_xor_b32 s{sT}, s{sT}, s{sT2}")
e(f"s_lshl_b32 s{sT}, s{sT}, 13")
e(f"s_add_u32 s{sT}, s{sT}, {L_WKV}")
e(f"v_add_u32 v40, s{sT}, v40")
e(f"s_and_b32 s{sT}, s{sJQ}, 3")
e(f"s_lshl_b32 s{sT}, s{sT}, 6")
e(f"v_xor_b32 v41, s{sT}, v8")
e(f"s_lshl1_add_u32 s{sT}, s{sT2}, s{sT3}")
e(f"s_lshl_b32 s{sT}, s{sT}, 13")
e(f"v_add_u32 v41, s{sT}, v41")
for j in range(1, 8):
    e(f"v_xor_b32 v{41+j}, {j << 5}, v41")
cm("partial slot (rt*3 + idx), idx = kq - (kq>1)")
e(f"s_cmp_gt_u32 s{sT2}, 1")
e(f"s_subb_u32 s{sT}, s{sT2}, 0")
e(f"s_cmp_eq_u32 s{sT2}, 1")
e(f"s_cselect_b32 s{sT}, 0, s{sT}")
e(f"s_mul_i32 s{sC}, s{sT3}, 3")
e(f"s_add_u32 s{sT}, s{sT}, s{sC}")
e(f"s_lshl_b32 s{sT}, s{sT}, 12")
e(f"s_add_u32 s{sT}, s{sT}, {L_KVP}")
e(f"v_add_u32 v50, s{sT}, v{vL16}")
e(f"s_lshl1_add_u32 s{sT}, s{sQB}, s{sT3}")
e(f"s_mul_i32 s{sT}, s{sT}, {TILE}")
add64(sP, sWS, off_s=sT)
e(f"s_lshl_b32 s{sT}, s{sT3}, 10")
e(f"s_add_u32 s{sT}, s{sT}, {L_VT}")
e(f"v_and_b32 v52, 31, v{vL}")
e(f"v_lshrrev_b32 v55, 5, v{vL}")
e("v_lshlrev_b32 v52, 5, v52")
e("v_lshl_add_u32 v52, v55, 3, v52")
e(f"v_add_u32 v52, s{sT}, v52")
e(f"v_bfe_u32 v53, v{vL}, 2, 2")
e(f"v_bfe_u32 v54, v{vL}, 4, 1")
e("v_lshl_add_u32 v53, v54, 3, v53")
e("v_lshl_add_u32 v53, v55, 4, v53")
e("v_lshlrev_b32 v53, 5, v53")
e(f"v_and_b32 v54, 3, v{vL}")
e("v_lshl_add_u32 v53, v54, 3, v53")
e(f"v_add_u32 v53, s{sT}, v53")
e(f"v_lshl_add_u32 v54, v55, 4, v{vL16}")
e(f"v_and_b32 v55, 1, v{vL}")
e("v_mul_u32_u24 v55, 528, v55")
for i in range(4):
    e(f"v_mov_b32 v{56+i}, 0x3f803f80")
e("s_waitcnt lgkmcnt(0)")
e("s_barrier")
stamp(9)
for i in range(8):
    e(f"ds_read_b64_tr_b16 {vr(96+8*(i%5),2)}, v40 offset:{i*1024}")
    e(f"ds_read_b64_tr_b16 {vr(98+8*(i%5),2)}, v40 offset:{i*1024+256}")
    e(f"ds_read_b128 {vr(100+8*(i%5))}, v{41+i}")
    if i >= 3:
        e("s_waitcnt lgkmcnt(9)")
        mfma(64, 96+8*((i-3)%5), 100+8*((i-3)%5), None if i == 3 else 64)
for i in range(5, 8):
    e(f"s_waitcnt lgkmcnt({3*(7-i)})")
    mfma(64, 96+8*(i%5), 100+8*(i%5), 64)
e(f"s_cmp_eq_u32 s{sT2}, 1")
e("s_cbranch_scc1 L_kvf")
e("s_nop 10")
for q in range(4):
    e(f"ds_write_b128 v50, {vr(64+4*q)} offset:{q*1024}")
e("s_waitcnt lgkmcnt(0)")
e("s_barrier")
e("s_branch L_nokv")
lab("L_kvf")
e(f"global_store_dwordx4 v55, v[56:59], {sr(sP)} offset:1536 sc1")
e("s_barrier")
PB = (80, 96, 112)
for c in range(3):
    for q in range(4):
        e(f"ds_read_b128 {vr(PB[c]+4*q)}, v50 offset:{c*4096+q*1024}")
for c in range(3):
    e(f"s_waitcnt lgkmcnt({8-4*c})")
    for r in range(0, 16, 2):
        e(f"v_pk_add_f32 {vr(64+r,2)}, {vr(64+r,2)}, {vr(PB[c]+r,2)}")
for r in range(8, 16, 2):
    e(f"v_cvt_pk_bf16_f32 v{80+r//2}, v{64+r}, v{65+r}")
e("ds_write_b64 v52, v[84:85]")
e("ds_write_b64 v52, v[86:87] offset:16")
e("ds_read_b64_tr_b16 v[88:89], v53")
e("ds_read_b64_tr_b16 v[90:91], v53 offset:128")
for r in range(0, 8, 2):
    e(f"v_cvt_pk_bf16_f32 v{80+r//2}, v{64+r}, v{65+r}")
e(f"global_store_dwordx4 v{vL16}, v[80:83], {sr(sP)} sc1")
e("s_waitcnt lgkmcnt(0)")
e(f"global_store_dwordx4 v54, v[88:91], {sr(sP)} offset:1024 sc1")
stamp(10)
cm("both finishers drain their stores before pipeline barrier 2; wave 2 raises the flag behind it")
e("s_barrier")
early_setup()
e("s_barrier")
e("s_waitcnt vmcnt(0)")
e("s_barrier")
e(f"s_mov_b32 s{sI}, 14")
e(f"s_cmp_lg_u32 s{sT3}, 0")
e("s_cbranch_scc1 L_idle1")
e(f"s_add_u32 s{sT2}, s{sTAG}, {hex(TAGC)}")
e(f"s_lshl_b32 s{sT}, s{sQB}, {opt('fsh', 7)}")
e(f"s_add_u32 s{sT}, s{sT}, {WS_KF}")
e(f"v_mov_b32 v20, s{sT}")
e(f"v_mov_b32 v21, s{sT2}")
e("s_mov_b64 exec, 1")
e(f"global_store_dword v20, v21, {sr(sWS)} sc1")
e("s_mov_b64 exec, -1")
stamp(11)
e("s_branch L_idle1")
lab("L_nokv")
early_setup()
for r in range(32):
    e(f"v_mov_b32 v{64+r}, 0")
for r in range(24):
    e(f"v_mov_b32 v{FB[1]+r}, 0")
e(f"s_mov_b32 s{sI}, 4")
e("s_waitcnt lgkmcnt(0)")
e(f"s_cmp_eq_u32 s{sROLE}, 3")
e("s_cbranch_scc1 L_idle")
def p1_mf(st):
    if opt("nomf", 0): return
    for ks in range(2):
        for rt in range(2):
            mfma(ACC[rt], FB[st] + 12*ks, FB[st] + 12*ks + 4 + 4*rt, ACC[rt])
lab("L_p1")
for u in range(4):
    e("s_barrier")
    f = FB[u & 1]
    for ks in range(2 if opt("nomf", 0) < 2 else 0):
        e(f"ds_read_b64_tr_b16 {vr(f+12*ks,2)}, v6 offset:{u*16384+ks*8192}")
        e(f"ds_read_b64_tr_b16 {vr(f+12*ks+2,2)}, v7 offset:{u*16384+ks*8192}")
        for rt in range(2):
            e(f"ds_read_b128 {vr(f+12*ks+4+4*rt)}, v{8+2*u+ks} offset:{rt*8192}")
        e(f"v_add_u32 v{8+2*u+ks}, 0x4000, v{8+2*u+ks}")
    p1_mf((u + 1) & 1)
    e("s_waitcnt lgkmcnt(0)")
e(f"s_sub_u32 s{sI}, s{sI}, 1")
e(f"s_cmp_lg_u32 s{sI}, 0")
e("s_cbranch_scc1 L_p1")
e("s_barrier")
p1_mf(1)
stamp(2)
e(f"s_cmp_eq_u32 s{sROLE}, 0")
e(f"s_mov_b32 s{sC}, {hex(f2u(-LOG2E))}")
e(f"s_cselect_b32 s{sC}, {hex(f2u(0.25*LOG2E))}, s{sC}")
e(f"s_mov_b32 s{sC+1}, s{sC}")
e("s_nop 7")
if opt("sp", 0): e("s_setprio 3")
e("s_cbranch_scc0 L_epiH")
e("s_setprio 3")
for r in range(0, 32, 2):
    e(f"v_pk_mul_f32 {vr(64+r,2)}, {vr(64+r,2)}, {sr(sC)}")
for r in range(0, 32, 2):
    e(f"v_cvt_pk_bf16_f32 v{96+r//2}, v{64+r}, v{65+r}")
e(f"s_lshl_b32 s{sT}, s{sWAVE}, 12")
e(f"s_add_u32 s{sT}, s{sT}, {L_Q}")
e(f"v_add_u32 v32, s{sT}, v{vL16}")
for rt in range(2):
    for i in range(2):
        e(f"ds_write_b128 v32, {vr(96+rt*8+i*4)} offset:{i*2048+rt*1024}")
e("s_waitcnt lgkmcnt(0)")
lds_signal(C_B2, 12, 13)
e("s_branch L_p1done")
lab("L_idle")
e(f"s_mov_b32 s{sI}, 17")
lab("L_idle1")
e("s_barrier")
e(f"s_sub_u32 s{sI}, s{sI}, 1")
e(f"s_cmp_lg_u32 s{sI}, 0")
e("s_cbranch_scc1 L_idle1")
e("s_branch L_p1done")
if opt("gap", 0): L.append(".p2align 12, 0")
lab("L_epiH")
for rt in range(2):
    a = ACC[rt]
    for r in range(0, 16, 2):
        e(f"v_pk_mul_f32 {vr(96+r,2)}, {vr(a+r,2)}, {sr(sC)}")
    for r in range(16):
        e(f"v_exp_f32 v{96+r}, v{96+r}")
    for r in range(0, 16, 2):
        e(f"v_pk_add_f32 {vr(96+r,2)}, {vr(96+r,2)}, 1.0 op_sel_hi:[1,0]")
    for r in range(16):
        e(f"v_rcp_f32 v{96+r}, v{96+r}")
    for r in range(0, 16, 2):
        e(f"v_pk_mul_f32 {vr(96+r,2)}, {vr(96+r,2)}, {vr(a+r,2)}")
    for r in range(0, 16, 2):
        e(f"v_cvt_pk_bf16_f32 v{132+rt*8+r//2}, v{96+r}, v{97+r}")
lab("L_p1done")
Q = 16
KF = [20, 24]
V0 = [28, 32]
V1 = [36, 40]
P = [48, 56]
S = [64, 80]
C = 96
O = 112
vK, vV0, vV = 10, 148, 11
def att_zero(full=True):
    if full:
        for r in range(16):
            e(f"v_mov_b32 v{O+r}, 0")
    for r in range(4):
        e(f"v_mov_b32 v{V1[1]+r}, 0")
    for r in range(8, 16):
        e(f"v_mov_b32 v{S[1]+r}, 0")
att_zero(False)
stamp(3)
lds_spin("b2a", C_B2, 6, 12, 13, slp=1)
stamp(4)
if STAMPS: e("s_memrealtime s[88:89]")
e("s_setprio 3")
e(f"ds_read_b128 {vr(Q)}, v149")
e(f"ds_read_b128 {vr(KF[0])}, v{vL16}")
def att_first_loads():
    e(f"ds_read_b128 {vr(KF[1])}, v{vL16} offset:{TILE}")
    e(f"ds_read_b128 {vr(V0[0])}, v{vV0}")
    e(f"ds_read_b128 {vr(V0[1])}, v{vV0} offset:{TILE}")
    e(f"ds_read_b128 {vr(V1[0])}, v{vV0} offset:528")
att_first_loads()
HST = opt("hst", 0)
e("s_waitcnt lgkmcnt(4)")
mfma(S[0], KF[0], Q, None)
lds_signal(C_QR, 12, 13)
if HST:
    cm("poison this wave's O slot and publish its H tile")
    e(f"global_store_dwordx4 v{vL16}, v[128:131], {sr(sO)} sc1")
    e(f"s_cmp_lg_u32 s{sROLE}, 2")
    e("s_cbranch_scc1 L_noh")
    for rt in range(2):
        for ks in range(2):
            e(f"global_store_dwordx4 v{vL16}, {vr(132+rt*8+ks*4)}, {sr(sH)} offset:{ks*2048+rt*1024} sc1")
    lab("L_noh")
e("s_nop 6")
e(f"v_max3_f32 v12, v{S[0]}, v{S[0]+1}, v{S[0]+2}")
for r in range(3, 15, 2):
    e(f"v_max3_f32 v12, v12, v{S[0]+r}, v{S[0]+r+1}")
e(f"v_max_f32 v12, v12, v{S[0]+15}")
lab("L_att_setC")
e("v_mov_b32 v14, v12")
e(f"v_mov_b32 v{vK}, v{vL16}")
e(f"v_mov_b32 v{vV}, v{vV0}")
e("v_permlane32_swap_b32 v12, v14")
e(f"s_mov_b32 s{sI}, 0")
e("s_nop 0")
e("v_max_f32 v12, v12, v14")
for r in range(16):
    e(f"v_sub_f32 v{C+r}, 0, v12")
e("s_waitcnt lgkmcnt(0)")
e("s_nop 0")
mfma(S[0], KF[0], Q, C)
e(f"ds_read_b128 {vr(KF[0])}, v{vL16} offset:{2*TILE}")
e("s_setprio 2")
e("s_nop 9")
stamp(5)
UN = 8
EXO = opt("exo", 0)
def ex(x, r): e(f"v_exp_f32 v{S[x]+r}, v{S[x]+r}")
def pv(a, b): e(f"v_smfmac_f32_32x32x32_bf16 {vr(O,16)}, {vr(a)}, {vr(b,8)}, v153")
L.append(".p2align 6")
lab("L_att_loop")
for u in range(UN):
    x = u & 1; y = 1 - x
    if u == 5:
        e(f"s_bitcmp1_b32 s{sCHK}, s{sI}")
        e("s_cbranch_scc1 L_att_chk")
        lab("L_att_chk_ret")
    n1, n2, n3 = ((2, 7, 12), (3, 8, 13), (2, 6, 11), (4, 8, 12))[EXO]
    for r in range(n1): ex(x, r)
    pv(V1[y], S[y] + 8)
    e(f"ds_read_b128 {vr(V1[y])}, v{vV} offset:{(u+1)*TILE+528}")
    for r in range(n1, n2): ex(x, r)
    mfma(S[y], KF[y], Q, C)
    e(f"ds_read_b128 {vr(KF[y])}, v{vK} offset:{(u+3)*TILE}")
    for r in range(n2, n3): ex(x, r)
    pv(V0[x], S[x])
    e("s_waitcnt lgkmcnt(2)")
    e(f"ds_read_b128 {vr(V0[x])}, v{vV} offset:{(u+2)*TILE}")
    for r in range(n3, 16): ex(x, r)
if DIAG == 2:
    e("s_memtime s[100:101]")
    e("s_waitcnt lgkmcnt(0)")
    e(f"s_mov_b32 m0, s{sI}")
    e("s_nop 0")
    e("v_writelane_b32 v160, s100, m0")
e(f"v_add_u32 v{vK}, {UN*TILE}, v{vK}")
e(f"v_add_u32 v{vV}, {UN*TILE}, v{vV}")
e(f"s_add_u32 s{sI}, s{sI}, 1")
e(f"s_cmp_lt_u32 s{sI}, {64//UN - opt('lastp', 2)}")
e("s_cbranch_scc1 L_att_loop")
e("s_setprio 0")
e(f"s_cmp_lt_u32 s{sI}, {64//UN}")
e("s_cbranch_scc1 L_att_loop")
e("s_setprio 3")
e(f"s_and_b32 s{sT}, s{sWAVE}, 1")
e(f"s_lshl_b32 s{sT}, s{sT}, 7")
pv(V1[1], S[1] + 8)
stamp(6)
e(f"s_add_u32 s{sT}, s{sT}, {L_G}")
e(f"v_and_b32 v12, 31, v{vL}")
e(f"v_lshl_add_u32 v12, v12, 2, s{sT}")
e("ds_read_b32 v14, v12")
e(f"s_mov_b32 s{sT}, {hex(f2u(2.0**86))}")
e("v_mov_b32 v13, 0x207")
e("s_nop 6")
cm("safety check of the stand-in max: l < 2^42 and O finite, else redo with the true row max")
e(f"v_mul_f32 v12, s{sT}, v{O}")
for r in range(8, 16):
    e(f"v_add_f32 v12, v12, abs(v{O+r})")
e("v_cmp_class_f32 vcc, v12, v13")
e(f"v_rcp_f32 v12, v{O}")
e("s_cbranch_vccz L_att_ok")
e(f"s_cmp_eq_u32 s{sRETRY}, 0")
e("s_cbranch_scc1 L_att_truemax")
lab("L_att_ok")
e("s_waitcnt lgkmcnt(0)")
e("v_mul_f32 v12, v12, v14")
for r in range(8, 16):
    e(f"v_mul_f32 v{O+r}, v{O+r}, v12")
for i in range(4):
    e(f"v_cvt_pk_bf16_f32 v{P[0]+i}, v{O+8+2*i}, v{O+9+2*i}")
for i in range(4):
    e(f"v_min_u32 v{P[0]+i}, -2, v{P[0]+i}")
e(f"global_store_dwordx4 v{vL16}, {vr(P[0])}, {sr(sO)} sc1")
lds_signal(C_OD, 12, 13)
stamp(7)
if STAMPS: e("s_memrealtime s[96:97]")
e("s_branch L_fin")
if opt("gap", 0): L.append(".p2align 12, 0")
lab("L_att_chk")
e(f"s_cmp_eq_u32 s{sI}, 1")
e("s_cbranch_scc1 L_att_chk1")
e(f"s_lshl1_add_u32 s{sT2}, s{sI}, {0}")
e(f"s_add_u32 s{sT2}, s{sT2}, {C_KA}")
lds_spin("att_chk2", f"s{sT2}", 4, 12, 13)
def h_stores(skip):
    e(f"global_store_dwordx4 v{vL16}, v[128:131], {sr(sO)} sc1")
    e(f"s_cmp_lg_u32 s{sROLE}, 2")
    e(f"s_cbranch_scc1 {skip}")
    for rt in range(2):
        for ks in range(2):
            e(f"global_store_dwordx4 v{vL16}, {vr(132+rt*8+ks*4)}, {sr(sH)} offset:{ks*2048+rt*1024} sc1")
if not HST:
    e(f"s_cmp_lg_u32 s{sI}, 0")
    e("s_cbranch_scc1 L_att_chk_ret")
    h_stores("L_att_chk_ret")
e("s_branch L_att_chk_ret")
lab("L_att_chk1")
cm("H / poison stores of this wave have drained; the last wave to get here publishes H")
e("s_waitcnt vmcnt(0)")
e(f"v_mov_b32 v12, {C_HD}")
e("v_mov_b32 v13, 1")
e("s_mov_b64 exec, 1")
e("ds_add_rtn_u32 v13, v12, v13")
e(f"s_lshl_b32 s{sT}, s{sQB}, 7")
e(f"s_lshl2_add_u32 s{sT}, s{sHG}, s{sT}")
e(f"s_add_u32 s{sT}, s{sT}, {WS_FL}")
e(f"s_add_u32 s{sT2}, s{sTAG}, {hex(TAGC)}")
e("s_waitcnt lgkmcnt(0)")
e("v_cmp_eq_u32 vcc, 7, v13")
e("s_cbranch_vccz L_att_chk1b")
e(f"v_mov_b32 v12, s{sT}")
e(f"v_mov_b32 v13, s{sT2}")
e(f"global_store_dword v12, v13, {sr(sWS)} sc1")
lab("L_att_chk1b")
e("s_mov_b64 exec, -1")
e("s_setprio 1")
e("s_branch L_att_chk_ret")
lab("L_att_truemax")
e(f"s_mov_b32 s{sRETRY}, 1")
e(f"s_mov_b32 s{sCHK}, 0")
e("v_mov_b32 v12, 0xff800000")
e(f"v_mov_b32 v{vK}, v{vL16}")
e(f"s_mov_b32 s{sI}, 0")
lab("L_att_tm")
e(f"ds_read_b128 {vr(KF[0])}, v{vK}")
e(f"v_add_u32 v{vK}, {TILE}, v{vK}")
e("s_waitcnt lgkmcnt(0)")
mfma(S[0], KF[0], Q, None)
e("s_nop 15")
for r in range(0, 16, 2):
    e(f"v_max3_f32 v12, v12, v{S[0]+r}, v{S[0]+r+1}")
e(f"s_add_u32 s{sI}, s{sI}, 1")
e(f"s_cmp_lt_u32 s{sI}, 64")
e("s_cbranch_scc1 L_att_tm")
e(f"ds_read_b128 {vr(KF[0])}, v{vL16}")
att_first_loads()
att_zero()
e("s_branch L_att_setC")

if opt("gap", 0): L.append(".p2align 12, 0")
lab("L_g4")
e("s_setprio 3")
for perm in ("quad_perm:[1,0,3,2]", "quad_perm:[2,3,0,1]"):
    if perm.endswith("2]"): e("v_add_f32 v14, v14, v15")
    e("s_nop 1")
    e(f"v_add_f32_dpp v14, v14, v14 {perm} row_mask:0xf bank_mask:0xf")
e(f"v_mul_f32 v14, {hex(f2u(-LOG2E))}, v14")
e("v_exp_f32 v14, v14")
e(f"s_lshl_b32 s{sT}, s{sV}, 6")
e(f"s_add_u32 s{sT}, s{sT}, {L_G}")
e("v_add_f32 v14, 1.0, v14")
e("v_rcp_f32 v14, v14")
e(f"v_and_b32 v12, 60, v{vL}")
e(f"v_add_u32 v12, s{sT}, v12")
e("ds_write_b32 v12, v14")
e("s_barrier")
stamp(2)
e(f"s_cmp_lg_u32 s{sFAST}, 0")
e("s_cbranch_scc1 L_kvfast")
tag_poll("kvpoll", 30, 31, sWS, 4)
for j in range(3):
    dma_lin(sXM, 4, j*16384)
lab("L_kvfast")
stamp(3)
cm("K/V: pieces 0..31 gate the start, 32..63 -> C_KA, 64..129 -> C_KB")
dma_lin(sXM, 4, 49152)
e("s_waitcnt vmcnt(8)")
lds_signal(C_B2, 12, 13)
stamp(4)
e(f"s_lshl_b32 s{sT3}, s{sV}, 14")
dma_lin(sT3, 4, 65536)
e("s_waitcnt vmcnt(4)")
lds_signal(C_KA, 12, 13)
dma_lin(sT3, 12, 65536 + 4096)
e(f"s_cmp_lg_u32 s{sV}, 0")
e("s_cbranch_scc1 L_g5")
dma_kv_one(128 * 1024)
dma_kv_one(129 * 1024)
lab("L_g5")
tr_lane(7, 32, 33)
e(f"s_lshl_b32 s{sT}, s{sQB}, 7")
e(f"s_add_u32 s{sT}, s{sT}, {WS_FL}")
add64(sFL, sWS, off_s=sT)
e(f"s_mul_i32 s{sT}, s{sQB}, {43*4096}")
e(f"s_add_u32 s{sT}, s{sT}, {WS_H}")
add64(sH, sWS, off_s=sT)
e(f"s_lshl2_add_u32 s{sT}, s{sQB}, s{sV}")
e(f"s_lshl_b32 s{sT}, s{sT}, 14")
e(f"s_add_u32 s{sT}, s{sT}, {WS_O}")
add64(sO, sWS, off_s=sT)
cm("weight piece lane offsets v8/v9 (8 rows x 128B -> [rg][ct][4 rows][64B]); ring read address v7")
e(f"v_lshrrev_b32 v32, 5, v{vL}")
e(f"v_bfe_u32 v33, v{vL}, 2, 2")
e("v_lshl_add_u32 v32, v32, 2, v33")
e("v_lshlrev_b32 v8, 10, v32")
e(f"v_bfe_u32 v33, v{vL}, 4, 1")
e("v_lshl_add_u32 v8, v33, 6, v8")
e(f"v_and_b32 v33, 3, v{vL}")
e("v_lshl_add_u32 v8, v33, 4, v8")
e("v_add_u32 v9, 0x2000, v8")
e(f"s_mul_i32 s{sRING}, s{sV}, {R2SZ}")
e(f"s_add_u32 s{sRING}, s{sRING}, {L_UP}")
e(f"v_add_u32 v3, s{sRING}, v7")
cm("slot j of the accumulators holds tile j^v: ct ^= v>>1 (v3/v10), rt ^= v&1 (v11/v7)")
e(f"s_lshr_b32 s{sT}, s{sV}, 1")
e(f"s_lshl_b32 s{sT}, s{sT}, 8")
e(f"v_add_u32 v3, s{sT}, v3")
e("v_xor_b32 v10, 0x100, v3")
e(f"s_and_b32 s{sT}, s{sV}, 1")
e(f"s_lshl_b32 s{sT}, s{sT}, 10")
e(f"v_add_u32 v11, s{sT}, v{vL16}")
e("v_xor_b32 v0, 0x400, v11")
e("s_waitcnt vmcnt(0)")
lds_signal(C_KB, 12, 13)
stamp(5)
if opt("w2t", 1):
    cm("pull this workgroup's share of the w2 slice into L2: rows 8*(64v+l) + (qb&7), v<3")
    e(f"s_and_b32 s{sT}, s{sQB}, 7")
    e(f"s_lshl_b32 s{sT2}, s{sV}, 9")
    e(f"s_add_u32 s{sT}, s{sT}, s{sT2}")
    e(f"v_lshl_add_u32 v12, v{vL}, 3, s{sT}")
    e("v_min_u32 v12, 1375, v12")
    e(f"s_lshl_b32 s{sT}, s{sHG}, 7")
    e(f"v_lshl_add_u32 v12, v12, 10, s{sT}")
    e(f"global_load_dword v14, v12, {sr(sW2)}")
lds_spin("qr", C_QR, 8, 12, 13, slp=4)
GA = [100, 116, 132, 148]
def ring_issue(slot, base):
    e(f"s_add_u32 m0, s{sRING}, {slot*2048}")
    e("s_nop 0")
    e(f"global_load_lds_dwordx4 v8, {sr(base)}")
    e(f"s_add_u32 m0, s{sRING}, {slot*2048+1024}")
    e("s_nop 0")
    e(f"global_load_lds_dwordx4 v9, {sr(base)}")
def ring_read(slot, ct, dst):
    e(f"ds_read_b64_tr_b16 {vr(dst,2)}, v{(3, 10)[ct]} offset:{slot*2048}")
    e(f"ds_read_b64_tr_b16 {vr(dst+2,2)}, v{(3, 10)[ct]} offset:{slot*2048+1024}")
WOF = opt("wof", 1)
def wo_block():
    e("s_waitcnt vmcnt(0)")
    e(f"s_lshl_b32 s{sT}, s{sV}, 17")
    e(f"s_lshl_b32 s{sT2}, s{sHG}, 7")
    e(f"s_add_u32 s{sT}, s{sT}, s{sT2}")
    add64(sP, sWO, off_s=sT)
    for ks in range(3):
        ring_issue(ks, sP)
        add64(sP, sP, imm=16384)
    for ks in range(8):
        e(f"s_waitcnt vmcnt({2*min(2, 7-ks)})")
        ring_read(ks % 3, 0, 36 + 8*ks)
        ring_read(ks % 3, 1, 40 + 8*ks)
        if ks + 3 < 8:
            e("s_waitcnt lgkmcnt(0)")
            ring_issue(ks % 3, sP)
            add64(sP, sP, imm=16384)
    e("s_waitcnt lgkmcnt(0)")
if WOF: wo_block()
stamp(6)
e(f"s_cmp_lg_u32 s{sV}, 0")
e("s_cbranch_scc1 L_g6")
e(f"v_mov_b32 v13, s{sTAG}")
e("s_mov_b64 exec, 1")
cm("this workgroup has read the epoch; the last workgroup to get here advances it")
e("v_mov_b32 v12, 0")
e("v_mov_b32 v14, 1")
e(f"global_atomic_add v15, v12, v14, {sr(sDBG)} sc0 sc1")
e("s_waitcnt vmcnt(0)")
e("v_cmp_eq_u32 vcc, 0xff, v15")
e("s_cbranch_vccz L_g6a")
e(f"v_mov_b32 v12, {WS_NONCE}")
e(f"global_store_dword v12, v13, {sr(sWS)} sc1")
lab("L_g6a")
e("s_mov_b64 exec, -1")
lab("L_g6")
e(f"v_and_b32 v12, 7, v{vL}")
e("v_lshlrev_b32 v12, 2, v12")
tag_poll("hpoll", 12, 13, sFL, opt("hsl", 8))
stamp(7)
if opt("ht", 0):
    cm("pull this workgroup's share of H into L2: lines 4*(64*i+l) + (hg&3) of this wave's k range")
    e(f"s_mul_i32 s{sT}, s{sV}, {22*2048}")
    e(f"s_and_b32 s{sT2}, s{sHG}, 3")
    e(f"s_lshl_b32 s{sT2}, s{sT2}, 7")
    e(f"s_add_u32 s{sT}, s{sT}, s{sT2}")
    e(f"v_lshl_add_u32 v12, v{vL}, 9, s{sT}")
    e(f"global_load_dword v164, v12, {sr(sH)} sc1")
    e(f"v_min_u32 v14, 23, v{vL}")
    e(f"v_lshl_add_u32 v12, v14, 9, s{sT}")
    e("v_add_u32 v12, 0x8000, v12")
    e(f"v_min_u32 v12, {43*4096-4}, v12")
    e(f"global_load_dword v165, v12, {sr(sH)} sc1")
HB = [12, 20, 28]
GAF = [4, 164]
NA = opt("na", 22); NBB = 43 - NA
if opt("nog2", 0) == 2: NA = NBB = 2
e(f"s_mul_i32 s{sT}, s{sV}, {NA}")
e(f"s_cmp_eq_u32 s{sV}, 3")
e(f"s_cselect_b32 s{sT}, {2*NA + NBB}, s{sT}")
e(f"s_cmp_ge_u32 s{sV}, 2")
e(f"s_cselect_b32 s{sI}, {NBB}, {NA}")
e(f"s_sub_u32 s{sN}, s{sI}, 1")
e(f"s_lshl_b32 s{sT2}, s{sT}, 14")
e(f"s_lshl_b32 s{sT3}, s{sHG}, 7")
e(f"s_add_u32 s{sT2}, s{sT2}, s{sT3}")
add64(sP, sW2, off_s=sT2)
e(f"s_lshl_b32 s{sT}, s{sT}, 11")
add64(sP2, sH, off_s=sT)
def g2_h(slot):
    for rt in range(2):
        e(f"global_load_dwordx4 {vr(HB[slot]+4*rt)}, v{(11, 0)[rt]}, {sr(sP2)} sc1")
def g2_adv():
    e(f"s_cmp_lg_u32 s{sN}, 0")
    e(f"s_cselect_b32 s{sT}, 16384, 0")
    e(f"s_cselect_b32 s{sT2}, 2048, 0")
    e(f"s_cselect_b32 s{sT3}, 1, 0")
    e(f"s_sub_u32 s{sN}, s{sN}, s{sT3}")
    add64(sP, sP, off_s=sT)
    add64(sP2, sP2, off_s=sT2)
def g2_step(slot, first):
    def m(ct, rt):
        a = GA[ct*2+rt]
        if first or not opt("nog2", 0): mfma(a, GAF[ct], HB[slot] + 4*rt, None if first else a)
    e("s_waitcnt vmcnt(8)")
    ring_read(slot, 0, GAF[0])
    e("s_waitcnt lgkmcnt(0)")
    m(0, 0)
    ring_read(slot, 1, GAF[1])
    e("s_waitcnt lgkmcnt(0)")
    m(0, 1)
    e(f"s_add_u32 m0, s{sRING}, {slot*2048}")
    e("s_nop 0")
    e(f"global_load_lds_dwordx4 v8, {sr(sP)}")
    m(1, 0)
    e(f"s_add_u32 m0, s{sRING}, {slot*2048+1024}")
    e("s_nop 0")
    e(f"global_load_lds_dwordx4 v9, {sr(sP)}")
    m(1, 1)
    g2_h(slot)
    g2_adv()
for k in range(3):
    ring_issue(k, sP); g2_h(k); g2_adv()
g2_step(0, True)
e(f"s_sub_u32 s{sI}, s{sI}, 1")
lab("L_g2loop")
for slot in (1, 2, 0):
    g2_step(slot, False)
    e(f"s_sub_u32 s{sI}, s{sI}, 1")
    e(f"s_cmp_eq_u32 s{sI}, 0")
    e("s_cbranch_scc1 L_g2done" if slot != 0 else "s_cbranch_scc0 L_g2loop")
lab("L_g2done")
stampx(8)
if not WOF: wo_block()
e(f"s_and_b32 s{sT}, s{sV}, 1")
e(f"s_lshl_b32 s{sT}, s{sT}, 7")
e(f"s_add_u32 s{sT}, s{sT}, {L_G}")
e(f"v_and_b32 v4, 31, v{vL}")
e(f"v_lshl_add_u32 v4, v4, 2, s{sT}")
e("v_xor_b32 v5, 0x80, v4")
e("ds_read_b32 v6, v4")
e("ds_read_b32 v8, v5")
e("s_waitcnt vmcnt(0) lgkmcnt(0)")
e("v_sub_f32 v6, 1.0, v6")
e("v_sub_f32 v8, 1.0, v8")
e("s_nop 3")
for t in range(4):
    for r in range(0, 16, 2):
        e(f"v_pk_mul_f32 {vr(GA[t]+r,2)}, {vr(GA[t]+r,2)}, {vr(6+2*(t&1),2)} op_sel_hi:[1,0]")
cm("tail: slot j (tile j^v) goes to LDS v*17408 + tile*4352 + q*1088; wave v then owns rows 16v..16v+15 (full 128B lines)")
e("v_mov_b32 v165, v11")
e(f"v_bfe_u32 v3, v{vL}, 2, 1")
e(f"v_mul_u32_u24 v3, {2*4352}, v3")
e(f"v_and_b32 v12, 3, v{vL}")
e("v_mul_u32_u24 v12, 1088, v12")
e(f"v_lshrrev_b32 v13, 3, v{vL}")
e("v_lshl_add_u32 v12, v13, 4, v12")
e(f"s_lshr_b32 s{sT}, s{sV}, 1")
e(f"s_mul_i32 s{sT}, s{sT}, 4352")
e(f"s_and_b32 s{sT2}, s{sV}, 1")
e(f"s_lshl_b32 s{sT2}, s{sT2}, 8")
e(f"s_add_u32 s{sT}, s{sT}, s{sT2}")
e(f"v_add3_u32 v3, v3, v12, s{sT}")
e(f"v_and_b32 v12, 7, v{vL}")
e("v_lshlrev_b32 v166, 10, v13")
e("v_lshl_add_u32 v166, v12, 4, v166")
e(f"s_lshl2_add_u32 s{sT}, s{sQB}, s{sV}")
e(f"s_lshl_b32 s{sT}, s{sT}, 14")
e(f"s_lshl_b32 s{sT2}, s{sHG}, 7")
e(f"s_add_u32 s{sT}, s{sT}, s{sT2}")
add64(sB0, sOUT, off_s=sT)
add64(sFL, sB0, imm=8192)
if opt("otouch", 0):
    e(f"global_load_dword v13, v166, {sr(sB0)}")
add64(sP2, sO, imm=8192)
WB = [sI, sC, sC + 1, sN]
e(f"s_mul_i32 s{sT}, s{sV}, 17408")
for j in range(4):
    e(f"s_xor_b32 s{WB[j]}, s{sV}, {j}")
    e(f"s_mul_i32 s{WB[j]}, s{WB[j]}, 4352")
    e(f"s_add_u32 s{WB[j]}, s{WB[j]}, s{sT}")
SETS = [[4, 20], [36, 68]]
def o_issue(st):
    for p in range(2):
        for j in range(4):
            e(f"global_load_dwordx4 {vr(SETS[st][p]+4*j)}, v{(165, 0)[j&1]}, {sr(sO if p == 0 else sP2)} offset:{(j>>1)*2048} sc1")
def o_check(st, younger):
    for p in range(2):
        e(f"s_waitcnt vmcnt({younger + 4-4*p})")
        for r in range(0, 16, 2):
            if p == 0 and r == 0: e(f"v_max_u32 v164, v{SETS[st][0]}, v{SETS[st][0]+1}")
            else: e(f"v_max3_u32 v164, v164, v{SETS[st][p]+r}, v{SETS[st][p]+r+1}")
    e("v_cmp_eq_u32 vcc, -1, v164")
def chain(j, b, st):
    ct, rt = j >> 1, j & 1
    for p in range(2):
        for hh in range(2):
            mfma(GA[j], 36 + 8*(4*p + 2*b + hh) + 4*ct, SETS[st][p] + 8*hh + 4*rt, GA[j])
def wr(j):
    e(f"v_add_u32 v164, s{WB[j]}, v{vL16}")
    for qq in range(4):
        e(f"ds_write_b128 v164, {vr(GA[j]+4*qq)} offset:{qq*1088}")
e(f"s_setprio {opt('b0prio', 0)}")
lds_spin("od0", C_OD, 4, 164, 167, slp=opt("osl", 4))
stampx(9)
e(f"s_mov_b32 s{sSPIN}, {SPIN}")
lab("L_opoll0")
o_issue(0)
o_check(0, 0)
e("s_cbranch_vccz L_ook0")
e("s_sleep 4")
e(f"s_sub_u32 s{sSPIN}, s{sSPIN}, 1")
e(f"s_cmp_lg_u32 s{sSPIN}, 0")
e("s_cbranch_scc1 L_opoll0")
lab("L_ook0")
if opt("b0sp", 0):
    e("s_setprio 3")
    e(f"v_mov_b32 v164, {C_OD}")
    n = 0
    for j in range(4):
        ct, rt = j >> 1, j & 1
        for p in range(2):
            for hh in range(2):
                mfma(GA[j], 36 + 8*(4*p + hh) + 4*ct, SETS[0][p] + 8*hh + 4*rt, GA[j])
                n += 1
                if n % opt("b0sp", 1) == 0 and n < 16:
                    e("ds_read_b32 v167, v164")
                    e("s_waitcnt lgkmcnt(0)")
else:
    for j in range(4): chain(j, 0, 0)
add64(sO, sO, imm=4096)
add64(sP2, sP2, imm=4096)
e("s_setprio 3")
lds_spin("od1", C_OD, 8, 164, 167, slp=1)
stampx(10)
e(f"s_mov_b32 s{sSPIN}, {SPIN}")
def finish(st):
    chain(3, 1, st); chain(2, 1, st); chain(1, 1, st)
    e("s_nop 2")
    wr(3)
    chain(0, 1, st)
if opt("stag", 0):
    cm("two request sets in flight, half a round trip apart")
    o_issue(0)
    e(f"s_sleep {opt('stagsl', 4)}")
    o_issue(1)
    lab("L_opoll1")
    o_check(0, 8)
    e("s_cbranch_vccz L_ook1")
    o_issue(0)
    o_check(1, 8)
    e("s_cbranch_vccz L_ook1b")
    o_issue(1)
    e(f"s_sub_u32 s{sSPIN}, s{sSPIN}, 1")
    e(f"s_cmp_lg_u32 s{sSPIN}, 0")
    e("s_cbranch_scc1 L_opoll1")
    e("s_waitcnt vmcnt(0)")
    lab("L_ook1b")
    stampx(11)
    finish(1)
    e("s_branch L_ojoin")
else:
    lab("L_opoll1")
    o_issue(0)
    o_check(0, 0)
    e("s_cbranch_vccz L_ook1")
    if opt("psl", 0): e(f"s_sleep {opt('psl', 0)}")
    e(f"s_sub_u32 s{sSPIN}, s{sSPIN}, 1")
    e(f"s_cmp_lg_u32 s{sSPIN}, 0")
    e("s_cbranch_scc1 L_opoll1")
lab("L_ook1")
stampx(11)
finish(0)
lab("L_ojoin")
wr(2)
wr(1)
e("s_waitcnt lgkmcnt(8)")
wr(0)
e("s_waitcnt vmcnt(0)")
e("s_waitcnt lgkmcnt(0)")
if opt("bar", 1):
    e("s_barrier")
else:
    lds_signal(C_RED, 4, 5)
    lds_spin("red", C_RED, 4, 4, 5, slp=0)
stampx(12)
def rd(i):
    for c in range(4):
        for h in range(2):
            e(f"ds_read_b128 {vr(36+32*i+8*c+4*h)}, v3 offset:{c*17408+h*512+i*128}")
def fin(i):
    b0 = 36 + 32*i
    for r in range(0, 8, 2):
        e(f"v_pk_add_f32 {vr(b0+r,2)}, {vr(b0+r,2)}, {vr(b0+8+r,2)}")
        e(f"v_pk_add_f32 {vr(b0+16+r,2)}, {vr(b0+16+r,2)}, {vr(b0+24+r,2)}")
    for r in range(0, 8, 2):
        e(f"v_pk_add_f32 {vr(b0+r,2)}, {vr(b0+r,2)}, {vr(b0+16+r,2)}")
    for k in range(4):
        e(f"v_cvt_pk_bf16_f32 v{16+4*i+k}, v{b0+2*k}, v{b0+1+2*k}")
    e(f"global_store_dwordx4 v166, {vr(16+4*i)}, {sr((sB0, sFL)[i])}" + ("", " sc1", " nt", " sc0 sc1")[opt("outf", 1)])
rd(0)
e("s_waitcnt lgkmcnt(4)")
rd(1)
e("s_waitcnt lgkmcnt(8)")
fin(0)
e("s_waitcnt lgkmcnt(0)")
fin(1)
if LITE:
    cm("LITE")
    e("s_waitcnt vmcnt(0)")
    e("s_memrealtime s[72:73]")
    e(f"s_lshl2_add_u32 s{sT}, s2, s{sV}")
    e(f"s_lshl_b32 s{sT}, s{sT}, 3")
    e(f"s_add_u32 s{sT}, s{sT}, {WS_ST}")
    e(f"v_mov_b32 v12, s{sT}")
    e("s_waitcnt lgkmcnt(0)")
    e("v_mov_b32 v14, s70")
    e("v_mov_b32 v15, s72")
    e("s_mov_b64 exec, 1")
    e(f"global_store_dwordx2 v12, v[14:15], {sr(sWS)}")
lab("L_fin")
if opt("dbgt", 0):
    e("s_waitcnt vmcnt(0)")
    e("s_memrealtime s[100:101]")
    e("s_memtime s[98:99]")
    e("s_waitcnt lgkmcnt(0)")
    e("s_mov_b64 exec, 1")
    e("v_mov_b32 v12, 0")
    e("s_not_b32 s3, s70")
    e("v_mov_b32 v13, s3")
    e(f"global_atomic_umax v12, v13, {sr(sDBG)} offset:4 sc1")
    e("v_mov_b32 v14, s100")
    e(f"global_atomic_umax v12, v14, {sr(sDBG)} offset:8 sc1")
    e("v_mov_b32 v15, s70")
    e(f"global_atomic_umax v12, v15, {sr(sDBG)} offset:12 sc1")
    e("s_cmp_lg_u32 s2, 100")
    e("s_cbranch_scc1 L_end")
    e(f"s_cmp_eq_u32 s{sWAVE}, 7")
    e("s_cbranch_scc0 L_dg")
    for k, i in enumerate((9, 1, 2, 4, 7, 13)):
        e(f"s_sub_u32 s3, s{72+2*i}, s72")
        e("v_mov_b32 v13, s3")
        e(f"global_store_dword v12, v13, {sr(sDBG)} offset:{16+4*k}")
    e("s_branch L_end")
    lab("L_dg")
    e(f"s_cmp_eq_u32 s{sWAVE}, 8")
    e("s_cbranch_scc0 L_end")
    for k, i in enumerate((3, 5, 8, 11, 12, 13)):
        e(f"s_sub_u32 s3, s{72+2*i}, s72")
        e("v_mov_b32 v13, s3")
        e(f"global_store_dword v12, v13, {sr(sDBG)} offset:{40+4*k}")
elif STAMPS:
    e("s_waitcnt vmcnt(0)")
    stamp(13)
    e("s_memrealtime s[100:101]")
    e("s_waitcnt lgkmcnt(0)")
    e(f"s_lshl_b32 s{sT}, s2, 4")
    e(f"s_add_u32 s{sT}, s{sT}, s{sWAVE}")
    e(f"s_lshl_b32 s{sT}, s{sT}, 7")
    e(f"s_add_u32 s{sT}, s{sT}, {WS_ST}")
    add64(sP, sWS, off_s=sT)
    if DIAG == 2:
        e(f"v_lshlrev_b32 v12, 2, v{vL}")
        e("s_mov_b64 exec, 0xff")
        e(f"global_store_dword v12, v160, {sr(sP)} offset:64")
    e("v_mov_b32 v12, 0")
    e("s_mov_b64 exec, 1")
    for i in range(16):
        e(f"v_mov_b32 v13, s{70+2*i}")
        e(f"global_store_dword v12, v13, {sr(sP)} offset:{4*i}")
    e("s_waitcnt vmcnt(0)")
lab("L_end")
e("s_endpgm")
lab("L_code_end")

HEAD = open(f"cdna_kernels/{NAME}.s.ref").read().split("; Override launch geometry")[0]
src = HEAD + f"""; @launch grid=(256,1,1) block=(768,1,1) lds={LDS_TOTAL}
.amdgcn_target "amdgcn-amd-amdhsa--gfx950"
.text
.globl {NAME}_kernel
.p2align 8
.type {NAME}_kernel,@function
{NAME}_kernel:
""" + "\n".join(L) + f"""
.section .rodata,"a"
.p2align 6
.amdhsa_kernel {NAME}_kernel
  .amdhsa_next_free_vgpr 168
  .amdhsa_next_free_sgpr 102
  .amdhsa_accum_offset 168
  .amdhsa_group_segment_fixed_size 0
  .amdhsa_kernarg_size 96
  .amdhsa_user_sgpr_count 2
  .amdhsa_user_sgpr_kernarg_segment_ptr 1
  .amdhsa_system_sgpr_workgroup_id_x 1
.end_amdhsa_kernel
"""
open(OUT, "w").write(src)
print("wrote", OUT, len(L), "lines")
```
